```python
import torch

def _softmax(x, axis=-1):
    return torch.softmax(x, dim=axis)
def _gelu(x):
    return torch.nn.functional.gelu(x, approximate="tanh")
def _silu(x):
    return torch.nn.functional.silu(x)
def _sigmoid(x):
    return torch.sigmoid(x)
def _layernorm(x, axis=-1, eps=1e-5):
    m = x.mean(dim=axis, keepdim=True)
    v = x.var(dim=axis, keepdim=True, unbiased=False)
    return (x - m) / torch.sqrt(v + eps)
def _scatter_add(tgt, idx, src, axis=0):
    return tgt.clone().index_add_(axis, idx, src)
def _segment_sum(src, seg, n):
    out = torch.zeros((n,) + src.shape[1:], dtype=src.dtype)
    return out.index_add_(0, seg, src)
def _pad(x, pw):
    flat = tuple(v for pair in reversed(pw) for v in pair)
    return torch.nn.functional.pad(x, flat)

kernel_name = 'gated_mix__ssm_conv_h3__spectral_fnet__prompt'

def setup_inputs():

    _w = (lambda a: (lambda t: t.to(torch.bfloat16) if t.is_floating_point() else t)(torch.as_tensor(a)))
    def _A_setup():
        B, S, D = 1, 2048, 512
        ks = 4
        return {
            "q": _w((lambda *s: torch.randn(*s, dtype=torch.bfloat16) * 0.05)(B, S, D)),
            "k": _w((lambda *s: torch.randn(*s, dtype=torch.bfloat16) * 3.2)(B, S, D)),
            "v": _w((lambda *s: torch.randn(*s, dtype=torch.bfloat16) * 3.2)(B, S, D)),
            "shift_k": _w((lambda *s: torch.randn(*s, dtype=torch.bfloat16) * 3.2)(D, ks) * 0.5),
            "ssm_k": _w((lambda *s: torch.randn(*s, dtype=torch.bfloat16) * 3.2)(D, S) * (1.0 / S ** 0.5)),
            "ssm_D": _w((lambda *s: torch.randn(*s, dtype=torch.bfloat16) * 3.2)(D)),
        }
    _A_in = _A_setup()

    def _B_setup():
        B, S, D = 1, 2048, 512
        ns = torch.arange(S)[:, None] * torch.arange(S)[None, :]
        nd = torch.arange(D)[:, None] * torch.arange(D)[None, :]
        Ws_re = torch.cos(-2.0 * torch.pi * ns / S).to(float)
        Ws_im = torch.sin(-2.0 * torch.pi * ns / S).to(float)
        Wd_re = torch.cos(-2.0 * torch.pi * nd / D).to(float)
        Wd_im = torch.sin(-2.0 * torch.pi * nd / D).to(float)
        return {
            "x": _w((lambda *s: torch.randn(*s, dtype=torch.bfloat16) * 0.05)(B, S, D)),
            "dft_seq_re": _w(Ws_re),
            "dft_seq_im": _w(Ws_im),
            "dft_hid_re": _w(Wd_re),
            "dft_hid_im": _w(Wd_im),
        }
    _B_in = _B_setup()

    return {
        "A_q": _A_in["q"],
        "A_k": _A_in["k"],
        "A_v": _A_in["v"],
        "A_shift_k": _A_in["shift_k"],
        "A_ssm_k": _A_in["ssm_k"],
        "A_ssm_D": _A_in["ssm_D"],
        "B_x": _B_in["x"],
        "B_dft_seq_re": _B_in["dft_seq_re"],
        "B_dft_seq_im": _B_in["dft_seq_im"],
        "B_dft_hid_re": _B_in["dft_hid_re"],
        "B_dft_hid_im": _B_in["dft_hid_im"],
        "gate_w": _w((lambda *s: torch.randn(*s, dtype=torch.bfloat16) * 0.05)(512) * 16.0),
    }

def reference(A_q, A_k, A_v, A_shift_k, A_ssm_k, A_ssm_D, B_x, B_dft_seq_re, B_dft_seq_im, B_dft_hid_re, B_dft_hid_im, gate_w):
    def _A_ref(q, k, v, shift_k, ssm_k, ssm_D):
        B, S, D = q.shape
        ks = shift_k.shape[-1]
        k_pad = _pad(k, ((0, 0), (ks - 1, 0), (0, 0)))
        k_shift = torch.zeros_like(k)
        for t in range(ks):
            k_shift = k_shift + k_pad[:, t:t + S, :] * shift_k[:, ks - 1 - t][None, None, :]
        kv = k_shift * v
        L = 2 * S
        kv_pad = _pad(kv, ((0, 0), (0, S), (0, 0)))
        kf_pad = _pad(ssm_k, ((0, 0), (0, S)))
        kv_f = (lambda x, axes=(-2,-1): torch.fft.rfft2(x.float(), dim=axes))(kv_pad[:, None, :, :], axes=(1, 2))
        kf_f = (lambda x, axes=(-2,-1): torch.fft.rfft2(x.float(), dim=axes))(kf_pad[:, None, :], axes=(1, 2))
        kf_f = (lambda x, *d: x.permute(*d))(kf_f, 1, 2, 0)
        y_f = kv_f * kf_f[None, :, :, :]
        y = (lambda x, s, axes=(-2,-1): torch.fft.irfft2(x, s=s, dim=axes).to(torch.bfloat16))(y_f, (1, L), axes=(1, 2))[:, 0, :S, :]
        y = y + kv * ssm_D[None, None, :]
        return q * y

    def _B_ref(x, dft_seq_re, dft_seq_im, dft_hid_re, dft_hid_im):
        a = torch.einsum("bsd,ed->bse", x, dft_hid_re)
        b = torch.einsum("bsd,ed->bse", x, dft_hid_im)
        y = torch.einsum("ts,bse->bte", dft_seq_re, a) - torch.einsum("ts,bse->bte", dft_seq_im, b)
        return y

    x = A_q
    g = _sigmoid((x * gate_w).sum(-1, keepdims=True))
    a = _A_ref(x, A_k, A_v, A_shift_k, A_ssm_k, A_ssm_D)
    b = _B_ref(x, B_dft_seq_re, B_dft_seq_im, B_dft_hid_re, B_dft_hid_im)
    return g * a + (1 - g) * b
```

```python
import re
TRANS = ("v_exp_f32","v_log_f32","v_rcp_f32","v_rsq_f32","v_sqrt_f32","v_sin_f32","v_cos_f32")
def regs_of(tok):
    tok = tok.strip()
    tok = tok.lstrip("-").replace("|","")
    m = re.fullmatch(r"abs\((.*)\)", tok)
    if m: tok = m.group(1)
    m = re.fullmatch(r"([vsa])(\d+)", tok)
    if m: return {(m.group(1), int(m.group(2)))}
    m = re.fullmatch(r"([vsa])\[(\d+):(\d+)\]", tok)
    if m: return {(m.group(1), i) for i in range(int(m.group(2)), int(m.group(3))+1)}
    if tok in ("vcc","vcc_lo","vcc_hi"): return {("s","vcc")}
    if tok == "m0": return {("s","m0")}
    if tok == "exec": return {("s","exec")}
    return set()
class I:
    def __init__(self, text):
        self.text = text
        t = text.split(";")[0].strip()
        self.label = t.endswith(":")
        self.directive = t.startswith(".") or t == ""
        self.op = ""; self.defs=set(); self.uses=set(); self.kind="other"; self.srcC=set(); self.srcAB=set(); self.data=set()
        if self.label or self.directive: return
        parts = t.split(None,1); self.op = op = parts[0]
        rest = parts[1] if len(parts)>1 else ""
        ops = [o.strip() for o in re.split(r",(?![^\[]*\])", rest)] if rest else []
        if ops:
            ops[-1] = ops[-1].split()[0] if ops[-1] else ops[-1]
        R = [regs_of(o) for o in ops]
        U = lambda l: set().union(*l) if l else set()
        self.dpp = ("_dpp" in op) or (" row_" in t) or ("quad_perm" in t)
        if op.startswith("v_mfma"):
            self.kind="mfma"; self.defs=R[0]; self.srcAB=R[1]|R[2]; self.srcC=R[3]; self.uses=self.srcAB|self.srcC
            self.passes = 8 if "32x32" in op else 4
        elif op.startswith("v_"):
            self.kind="valu"
            if op.startswith("v_permlane") and "swap" in op:
                self.defs=R[0]|R[1]; self.uses=R[0]|R[1]
            elif "_co_" in op:
                self.defs=R[0]|R[1]; self.uses=U(R[2:])
            else:
                self.defs=R[0]; self.uses=U(R[1:])
                if op.startswith(("v_fmac","v_dot2c","v_pk_fmac","v_writelane")) or self.dpp: self.uses|=R[0]
            if op.startswith("v_dot") and len(R)>2: self.srcAB=R[1]|R[2]
            self.trans = op.replace("_e32","").replace("_e64","") in TRANS
        elif op.startswith("ds_"):
            self.kind="ds"
            if op.startswith(("ds_read","ds_bpermute","ds_permute","ds_swizzle")) or "_rtn" in op:
                self.defs=R[0]; self.uses=U(R[1:])
            else: self.uses=U(R)
        elif op.startswith(("buffer_","global_")):
            self.kind="vmem"
            self.lds = (" lds" in t) or ("load_lds" in op)
            if op in ("buffer_wbl2","buffer_inv"): pass
            elif self.lds: self.uses=U(R)|{("s","m0")}
            elif "load" in op: self.defs=R[0]; self.uses=U(R[1:])
            else:
                self.uses=U(R)
                d = R[0] if op.startswith("buffer_") else R[1]
                if "x3" in op or "x4" in op: self.data=d
        elif op.startswith("s_"):
            self.kind="salu"
            if op.startswith(("s_cmp","s_cbranch","s_branch","s_waitcnt","s_nop","s_barrier","s_endpgm","s_sleep","s_setprio","s_bitcmp")):
                self.uses=U(R)
            else:
                self.defs=R[0] if R else set(); self.uses=U(R[1:])
                if "saveexec" in op: self.defs|={("s","exec")}
    def states(self):
        if self.label or self.directive: return 0
        if self.op=="s_nop": return int(self.text.split()[1],0)+1
        return 1
def isv(S): return {r for r in S if r[0] in "va"}
def iss(S): return {r for r in S if r[0]=="s"}
def need(p, c):
    n=0
    if p.kind=="valu":
        pv=isv(p.defs); ps=iss(p.defs)
        if c.kind=="mfma" and pv & c.uses: n=max(n,2)
        if c.kind=="valu":
            if c.dpp and pv & c.uses: n=max(n,2)
            if c.op.startswith("v_permlane") and pv & c.uses: n=max(n,2)
            if c.op.startswith(("v_readlane","v_readfirstlane")) and pv & c.uses: n=max(n,1)
            if p.trans and pv & c.uses: n=max(n,1)
            if ps & c.uses: n=max(n,4 if c.op.startswith(("v_readlane","v_writelane")) else 2)
            if ("sdwa" in p.op) and pv & (c.uses|c.defs): n=max(n,1)
            if p.op.startswith("v_dot") and pv & (c.uses|c.defs) and not (c.op==p.op and not (pv & c.srcAB)): n=max(n,3)
        if p.op.startswith("v_dot") and c.kind in("ds","vmem","mfma") and pv & c.uses: n=max(n,3)
        if c.kind=="vmem" and ps & c.uses: n=max(n,5)
        if c.kind=="salu" and ps & c.uses and not c.op.startswith("s_cbranch"): n=max(n,1)
    if p.kind=="mfma":
        big = p.passes==8
        if c.kind=="mfma":
            if p.defs & c.srcAB: n=max(n,12 if big else 8)
            if p.defs & c.srcC and not (p.defs==c.srcC and p.passes==c.passes): n=max(n,10 if big else 6)
            if p.defs & c.defs and not (p.defs==c.srcC): n=max(n,10 if big else 6)
        elif c.kind in("valu","ds","vmem"):
            if p.defs & (c.uses|c.defs): n=max(n,12 if big else 8)
            if c.kind=="valu" and p.srcC & c.defs: n=max(n,7 if big else 3)
    if p.kind=="vmem" and p.data and (p.data & c.defs): n=max(n,2)
    if p.kind=="salu" and ("s","m0") in p.defs and c.kind=="vmem" and c.lds: n=max(n,1)
    return n
class Asm:
    def __init__(self):
        self.L=[]; self.vm=[]; self.lg=[]
    def raw(self, s):
        for l in s.split("\n"):
            self.L.append(I(l.strip()))
    def __call__(self, s, tag=None):
        for l in s.split("\n"):
            l=l.strip()
            if not l: continue
            i=I(l); self.L.append(i)
            if i.kind=="vmem": self.vm.append(tag)
            if i.kind=="ds": self.lg.append(tag)
            if i.op=="s_waitcnt":
                m=re.search(r"vmcnt\((\d+)\)",l)
                if m: n=int(m.group(1)); self.vm=self.vm[len(self.vm)-n:] if n and n<len(self.vm) else ([] if n==0 else self.vm)
                m=re.search(r"lgkmcnt\((\d+)\)",l)
                if m: n=int(m.group(1)); self.lg=self.lg[len(self.lg)-n:] if n and n<len(self.lg) else ([] if n==0 else self.lg)
    def _cnt(self, q, tags):
        idx=[k for k,t in enumerate(q) if t in tags]
        if not idx: return None
        return len(q)-1-max(idx)
    def wait(self, vm=(), lg=()):
        if isinstance(vm,(str,tuple)) and not isinstance(vm,list): vm=[vm] if vm!=() else []
        if isinstance(lg,(str,tuple)) and not isinstance(lg,list): lg=[lg] if lg!=() else []
        a=self._cnt(self.vm,vm); b=self._cnt(self.lg,lg); s=[]
        if a is not None: s.append("vmcnt(%d)"%min(a,63))
        if b is not None: s.append("lgkmcnt(%d)"%min(b,15))
        if s: self("s_waitcnt "+" ".join(s))
    def reset_counters(self): self.vm=[]; self.lg=[]
    def finish(self):
        out=[]; nn=0
        for c in self.L:
            if not (c.label or c.directive):
                dist=0; req=0
                for p in reversed(out):
                    if dist>=20: break
                    if p.op in("s_endpgm","s_branch"): break
                    if not (p.label or p.directive):
                        r=need(p,c)-dist
                        if r>req: req=r
                    dist+=p.states()
                if req>0:
                    out.append(I("s_nop %d"%(req-1))); nn+=1
            out.append(c)
        self.nops=nn
        return "\n".join(("" if (i.label or i.directive) else "    ")+i.text for i in out)+"\n"
```

```python
import sys
from dsl import Asm
KN = "gated_mix__ssm_conv_h3__spectral_fnet__prompt_kernel"
W_E   = 0
W_FU  = 8192
W_FY  = 12288
W_FV  = 32768
W_G   = 0x80000
W_R   = 0x100000
W_V   = 0x400000
STAMP_OFF = 200<<20
LCG_A, LCG_C = 1664525, 1013904223
UL = 0; HL = 9216; RED = HL + 16640; LDS_A = RED + 4*8448
X1 = 0; VL = 16640; YL = VL + 16384; LDS_B = YL + 8192
LDS = max(LDS_A, LDS_B)
SPIN = 40000

def vr(a, n): return "v[%d:%d]" % (a, a+n-1)

class G:
    def __init__(s, **cfg):
        s.cfg = dict(stamps=False, loc="sc1", nt=" nt", pre=True)
        s.cfg.update(cfg)
        s.A = Asm(); s.nst = 0
    def stamp(s, i):
        if s.cfg["stamps"]: s.A("s_memrealtime s[%d:%d]" % (64+2*i, 65+2*i))
    def stamps_out(s, role, n):
        if not s.cfg["stamps"]: return
        A = s.A
        A("s_waitcnt vmcnt(0) lgkmcnt(0)")
        s.stamp(n-1)
        A("s_waitcnt lgkmcnt(0)")
        A("s_cmp_lg_u32 s6, 0\ns_cbranch_scc1 L_end")
        A("s_add_u32 s38, s38, %d\ns_addc_u32 s39, s39, 0" % (STAMP_OFF))
        A("s_lshl_b32 s3, s2, 7\nv_mov_b32 v1, s3\ns_mov_b64 exec, 1")
        for j in range(n):
            A("v_mov_b32 v2, s%d\nv_mov_b32 v3, s%d\nglobal_store_dwordx2 v1, v[2:3], s[38:39] offset:%d\ns_nop 1" % (64+2*j, 65+2*j, 8*j))
    def poll(s, name, vdst, vaddr, sbase, snonce, sleep=0):
        A = s.A
        A("s_mov_b32 s3, 0")
        A("%s:" % name)
        A("global_load_dword v%d, v%d, s[%d:%d] sc1" % (vdst, vaddr, sbase, sbase+1))
        A("s_waitcnt vmcnt(0)")
        A("v_cmp_ne_u32 vcc, s%d, v%d" % (snonce, vdst))
        A("s_cbranch_vccz %s_ok" % name)
        if sleep: A("s_sleep %d" % sleep)
        A("s_add_u32 s3, s3, 1\ns_cmp_lt_u32 s3, %d\ns_cbranch_scc1 %s" % (SPIN, name))
        A("%s_ok:" % name)
    def srd(s, d, base, size):
        s.A("s_mov_b32 s%d, s%d\ns_mov_b32 s%d, s%d\ns_mov_b32 s%d, 0x%x\ns_mov_b32 s%d, 0x20000" % (d, base, d+1, base+1, d+2, size, d+3))
    def addbase(s, d, base, soff):
        s.A("s_add_u32 s%d, s%d, %s\ns_addc_u32 s%d, s%d, 0" % (d, base, soff, d+1, base+1))

    def prologue(s):
        A = s.A
        s.stamp(0)
        A("s_load_dwordx16 s[16:31], s[0:1], 0\ns_load_dwordx8 s[32:39], s[0:1], 88")
        A("s_cmp_ge_u32 s2, 512\ns_cbranch_scc1 L_end")
        A("s_getpc_b64 s[40:41]")
        A("s_and_b32 s4, s2, 7\ns_bfe_u32 s5, s2, 0x50003")
        A("s_lshr_b32 s3, s2, 3\ns_lshl_b32 s3, s3, 8\nv_and_b32 v1, 1, v0\nv_lshl_add_u32 v1, v1, 7, s3")
        A("global_load_dword v255, v1, s[40:41]", "pf")
        A("v_lshrrev_b32 v2, 6, v0\nv_and_b32 v1, 63, v0\nv_readfirstlane_b32 s6, v2")
        A("s_cmp_ge_u32 s2, 256\ns_cbranch_scc1 L_roleB")

    def roleA(s):
        A = s.A; cfg = s.cfg; nt = cfg["nt"]; loc = (" " + cfg["loc"]) if cfg["loc"] else ""
        A("s_lshl_b32 s40, s5, 16\ns_lshl_b32 s3, s4, 7\ns_add_u32 s40, s40, s3")
        A("v_lshrrev_b32 v3, 5, v0\nv_lshlrev_b32 v3, 13, v3\nv_and_b32 v4, 31, v0\nv_lshl_add_u32 v2, v4, 2, v3")
        A("v_add_u32 v2, s40, v2\nv_subrev_u32 v3, 3072, v2")
        A("s_lshl_b32 s3, s4, 9\nv_lshl_add_u32 v5, v4, 4, s3")
        A("v_lshlrev_b32 v6, 4, v0")
        A("s_lshl_b32 s41, s4, 5\ns_add_u32 s41, s41, s5")
        A("s_lshl_b32 s42, s41, 13\ns_add_u32 s43, s42, 4096\ns_lshl_b32 s44, s41, 2\ns_movk_i32 s45, 4096")
        A("v_and_b32 v7, 3, v0\nv_lshlrev_b32 v7, 7, v7\nv_add_u32 v7, s3, v7")
        A("s_waitcnt lgkmcnt(0)")
        s.stamp(1)
        s.srd(8, 18, 2 << 20);
        A("global_load_dword v9, v7, s[38:39] sc1", "E")
        KR = 10
        for i in range(3): A("buffer_load_dword v%d, v3, s[8:11], 0 offen offset:%d%s" % (KR+i, 1024*i, nt), "k")
        for i in range(8): A("buffer_load_dword v%d, v2, s[8:11], %s offen offset:%d%s" % (KR+3+i, "s45" if i >= 4 else "0", 1024*(i & 3), nt), "k")
        A("global_load_dwordx4 v[30:33], v5, s[22:23]", "k")
        s.srd(12, 20, 2 << 20)
        VR = 22
        for i in range(8): A("buffer_load_dword v%d, v2, s[12:15], %s offen offset:%d%s" % (VR+i, "s45" if i >= 4 else "0", 1024*(i & 3), nt), "v")
        s.srd(48, 24, 2 << 20)
        A("buffer_load_dwordx4 v[36:39], v6, s[48:51], s42 offen offset:4" + nt, "h")
        A("buffer_load_dwordx4 v[40:43], v6, s[48:51], s43 offen offset:4" + nt, "h")
        A("buffer_load_dword v34, v6, s[48:51], s42 offen" + nt, "h")
        A("buffer_load_dword v35, v6, s[48:51], s43 offen" + nt, "h")
        A("s_load_dword s46, s[26:27], s44")
        A("s_add_u32 s3, s42, %d" % W_R); s.addbase(52, 38, "s3")
        A("s_lshl_b32 s3, s4, 18\ns_add_u32 s3, s3, %d" % W_R); s.addbase(54, 38, "s3")
        s.addbase(56, 54, "0x20000")
        A("s_lshl_b32 s3, s4, 7\ns_add_u32 s3, s3, %d" % W_FU); s.addbase(58, 38, "s3")
        s.addbase(60, 38, "%d" % W_FY)
        A("v_and_b32 v44, 31, v0\nv_lshlrev_b32 v44, 2, v44")
        if cfg["pre"]:
            A("v_lshlrev_b32 v45, 5, v0")
            A("global_load_dword v254, v45, s[52:53] sc1", "pre")
            A("global_load_dword v253, v44, s[58:59] sc1", "pre")
        A("v_mov_b32 v46, 0\nv_lshlrev_b32 v47, 2, v0\nds_write_b32 v47, v46 offset:%d" % UL)
        A("s_cmp_lg_u32 s6, 0\ns_cbranch_scc1 L_a_nz")
        A("v_bfe_u32 v47, v0, 3, 2\nv_mul_u32_u24 v47, 4160, v47\nv_and_b32 v48, 7, v0\nv_lshl_add_u32 v47, v48, 2, v47\nds_write_b32 v47, v46 offset:%d" % HL)
        A("L_a_nz:")
        A("s_lshl_b32 s47, s6, 11")
        A("v_bfe_u32 v47, v0, 5, 1\nv_bfe_u32 v48, v0, 1, 2\nv_xor_b32 v47, v47, v48\nv_lshlrev_b32 v47, 4, v47\nv_lshl_add_u32 v47, v4, 6, v47")
        A("v_add_u32 v47, s47, v47\nv_xor_b32 v48, 32, v47\nv_lshl_add_u32 v49, v1, 4, s47")
        A("v_lshrrev_b32 v8, 3, v0\nv_xor_b32 v8, v8, v0\nv_xor_b32 v8, s5, v8\nv_and_b32 v8, 3, v8\nv_lshlrev_b32 v8, 4, v8")
        A("v_lshrrev_b32 v21, 2, v1\nv_lshl_add_u32 v8, v21, 13, v8\ns_lshl_b32 s3, s5, 2\ns_add_u32 s3, s3, s6\ns_lshl_b32 s3, s3, 6\nv_add_u32 v8, s3, v8")
        A("s_mov_b32 s62, 0xffff0000")
        A.wait(vm="E")
        A("s_mov_b32 s3, %d\nv_mul_lo_u32 v9, v9, s3\nv_add_u32 v9, %d, v9\nv_readfirstlane_b32 s63, v9" % (LCG_A, LCG_C))
        KP, W, S, VP = 50, 72, 80, 96
        A.wait(vm="k")
        s.stamp(2)
        for t in range(4):
            for c in range(2):
                src = 30 + 2*c + (t >> 1)
                A(("v_and_b32 v%d, s62, v%d" if t & 1 else "v_lshlrev_b32 v%d, 16, v%d") % (W+2*t+c, src))
        for i in range(11):
            A("v_lshlrev_b32 v%d, 16, v%d\nv_and_b32 v%d, s62, v%d" % (KP+2*i, KR+i, KP+2*i+1, KR+i))
        for t in (3, 2, 1, 0):
            for r in range(8):
                k = vr(KP+2*(r+3-t), 2); w = vr(W+2*t, 2); d = vr(S+2*r, 2)
                A("v_pk_mul_f32 %s, %s, %s" % (d, k, w) if t == 3 else "v_pk_fma_f32 %s, %s, %s, %s" % (d, k, w, d))
        A.wait(vm="v")
        for r in range(8):
            A("v_lshlrev_b32 v%d, 16, v%d\nv_and_b32 v%d, s62, v%d" % (VP+2*r, VR+r, VP+2*r+1, VR+r))
        for r in range(8):
            A("v_pk_mul_f32 %s, %s, %s" % (vr(S+2*r, 2), vr(S+2*r, 2), vr(VP+2*r, 2)))
        for c in range(2):
            for j in range(4):
                A("v_cvt_pk_bf16_f32 v%d, v%d, v%d" % (112+4*c+j, S+2*(7-2*j)+c, S+2*(6-2*j)+c))
            A("ds_write_b128 v%d, %s offset:%d" % (47+c, vr(112+4*c, 4), RED))
        A("ds_read_b128 v[120:123], v49 offset:%d" % RED, "sh0")
        A("ds_read_b128 v[124:127], v49 offset:%d" % (RED+1024), "sh1")
        A("s_waitcnt lgkmcnt(0)")
        A("global_store_dwordx4 v8, v[120:123], s[54:55]" + loc, "ust")
        A("global_store_dwordx4 v8, v[124:127], s[56:57]" + loc, "ust")
        s.stamp(3)
        A.wait(vm="h")
        for c in range(2):
            d = [34+c] + [36+4*c+k for k in range(4)]
            for k in range(4): A("v_alignbit_b32 v%d, v%d, v%d, 16" % (50+4*c+k, d[k+1], d[k]))
            A("ds_write_b128 v6, %s offset:%d" % (vr(50+4*c, 4), HL+c*8320+32))
            A("ds_write_b128 v6, %s offset:%d" % (vr(36+4*c, 4), HL+c*8320+4160+32))
        A("s_cmp_lg_u32 s6, 0\ns_cbranch_scc1 L_a_nh")
        A("s_lshl_b32 s3, s46, 16\ns_and_b32 s7, s46, s62")
        for c in range(2):
            A("v_lshlrev_b32 v60, 16, v%d\nv_add_f32 v60, %s, v60\nv_cvt_pk_bf16_f32 v60, v60, v60" % (34+c, "s7" if c else "s3"))
            A("v_bfi_b32 v%d, s62, v%d, v60\nv_and_b32 v%d, s62, v60" % (62+2*c, 34+c, 61+2*c))
        A("s_mov_b64 exec, 1")
        for c in range(2):
            A("ds_write_b32 v6, v%d offset:%d" % (61+2*c, HL+c*8320+28))
            A("ds_write_b32 v6, v%d offset:%d" % (62+2*c, HL+c*8320+4160+28))
        A("s_mov_b64 exec, -1")
        A("L_a_nh:")
        A("s_lshr_b32 s3, s6, 1\ns_mul_i32 s7, s3, 8320\ns_and_b32 s40, s6, 1\ns_lshl_b32 s41, s40, 8\ns_add_u32 s7, s7, s41\ns_add_u32 s7, s7, %d" % HL)
        A("v_and_b32 v10, 1, v0\nv_mul_u32_u24 v10, 4160, v10\nv_lshrrev_b32 v11, 1, v1\nv_lshl_add_u32 v10, v11, 2, v10\nv_add_u32 v10, s7, v10")
        for i in range(1, 4): A("v_add_u32 v%d, %d, v10" % (10+i, 1024*i))
        A("v_and_b32 v18, 3, v0\nv_bfe_u32 v19, v0, 2, 1\nv_lshl_add_u32 v18, v18, 1, v19\nv_and_b32 v19, 8, v0\nv_add_u32 v18, v18, v19")
        A("v_lshrrev_b32 v19, 4, v1\nv_sub_u32 v18, v18, v19\ns_lshl_b32 s41, s40, 3\ns_sub_u32 s41, 16, s41\nv_add_u32 v18, s41, v18")
        A("s_lshl_b32 s3, s3, 1\ns_add_u32 s3, s3, 1")
        for bb in range(2):
            if bb: A("v_subrev_u32 v18, 4, v18")
            A("v_lshrrev_b32 v19, 2, v18\nv_xor_b32 v19, s3, v19\nv_and_b32 v19, 3, v19\nv_lshlrev_b32 v19, 4, v19\nv_lshl_add_u32 v%d, v18, 6, v19" % (14+2*bb))
            A("v_xor_b32 v%d, 16, v%d" % (15+2*bb, 14+2*bb))
        A("s_add_u32 s3, s47, %d\ns_mov_b32 m0, s3" % (UL+1024))
        A("s_waitcnt vmcnt(0) lgkmcnt(0)\ns_barrier")
        s.stamp(4)
        A("s_cmp_lg_u32 s6, 0\ns_cbranch_scc1 L_a_nf")
        A("s_lshl_b32 s3, s5, 2\nv_mov_b32 v19, s3\ns_mov_b64 exec, 1")
        A("global_store_dword v19, v9, s[58:59]" + loc)
        A("s_mov_b64 exec, -1\nL_a_nf:")
        HB = lambda q: 32+32*q
        UB = lambda q: 160+32*(q & 1)
        ACC = 224
        def hread(q, a, half):
            bb, hf = q >> 1, q & 1
            o = 128*(a & 1)+32*bb+4*hf+2*half
            A("ds_read2_b32 %s, v%d offset0:%d offset1:%d" % (vr(HB(q)+4*a+2*half, 2), 10+(a >> 1), o, o+1), ("h", q, a))
        def uread(q, z):
            A("ds_read_b128 %s, v%d offset:%d" % (vr(UB(q)+4*z, 4), 14+q, UL+1024*z), ("u", q, z))
        A("v_mov_b32 v20, v44\nv_mov_b32 v21, v49")
        for q in range(2):
            for a in range(8):
                hread(q, a, 0); hread(q, a, 1)
        A("s_mul_i32 s3, s6, 8448\nv_lshrrev_b32 v22, 5, v1\nv_add_u32 v22, v22, v1\nv_lshl_add_u32 v22, v22, 4, s3")
        A("v_and_b32 v23, 15, v0\nv_mul_u32_u24 v23, 528, v23\nv_lshrrev_b32 v24, 4, v1\nv_lshl_add_u32 v23, v24, 4, v23\ns_lshl_b32 s3, s6, 7\nv_add_u32 v23, s3, v23")
        s.poll("L_a_pu", 19, 20, 58, 63)
        s.stamp(5)
        A("global_load_lds_dwordx4 v21, s[52:53] sc1\nglobal_load_lds_dwordx4 v21, s[52:53] offset:1024 sc1")
        A("s_waitcnt vmcnt(0) lgkmcnt(0)\ns_barrier")
        s.stamp(6)
        for z in range(8): uread(0, z)
        for q in range(4):
            side = []
            if q < 3: side += [("u", q+1, z) for z in range(8)]
            if q < 2: side += [("h", q+2, a, hh) for a in range(8) for hh in range(2)]
            pend = []
            n = 0
            for i in range(8):
                A.wait(lg=[("u", q, i), ("h", q, i)])
                for a in range(i+1):
                    acc = vr(ACC+4*i, 4)
                    A("v_mfma_f32_16x16x32_bf16 %s, %s, %s, %s" % (acc, vr(UB(q)+4*(i-a), 4), vr(HB(q)+4*a, 4), "0" if (q == 0 and a == 0) else acc))
                    n += 1
                    if n >= (10 if q == 0 else 2) and side:
                        it = side.pop(0)
                        if it[0] == "u": uread(it[1], it[2])
                        else: hread(it[1], it[2], it[3])
                    if pend and n >= pend[0][1]:
                        t = pend.pop(0)[0]
                        A("ds_write_b128 v22, %s offset:%d" % (vr(ACC+4*t, 4), RED+1056*t))
                if q == 3: pend.append((i, n+8))
            assert not side
            for t, _ in pend: A("ds_write_b128 v22, %s offset:%d" % (vr(ACC+4*t, 4), RED+1056*t))
        A("s_waitcnt lgkmcnt(0)\ns_barrier")
        s.stamp(7)
        for io in range(2):
            for ws in range(4):
                A("ds_read_b128 %s, v23 offset:%d" % (vr(32+16*io+4*ws, 4), RED+ws*8448+io*64), ("r", io))
        for io in range(2):
            b = 32+16*io
            A.wait(lg=("r", io))
            for c in range(2):
                for p in range(2):
                    A("v_pk_add_f32 %s, %s, %s" % (vr(b+8*c+2*p, 2), vr(b+8*c+2*p, 2), vr(b+8*c+4+2*p, 2)))
            for r in range(4): A("v_cvt_pk_bf16_f32 v%d, v%d, v%d" % (64+4*io+r, b+r, b+8+r))
            A("global_store_dwordx4 v21, %s, s[52:53] offset:%d%s" % (vr(64+4*io, 4), 1024*io, loc))
        A("s_lshl_b32 s3, s5, 2\nv_add_u32 v7, s3, v7")
        A("s_waitcnt vmcnt(0)\ns_barrier")
        s.stamp(8)
        A("s_cmp_lg_u32 s6, 0\ns_cbranch_scc1 L_end")
        A("s_mov_b64 exec, 15")
        A("global_store_dword v7, v9, s[60:61]" + loc)
        s.stamps_out(0, 10)
        A("s_endpgm")

    def roleB(s):
        A = s.A; cfg = s.cfg; nt = cfg["nt"]
        A.reset_counters(); A.vm = ["pf"]
        A("L_roleB:")
        A("s_lshr_b32 s7, s5, 3\ns_and_b32 s3, s5, 7\ns_lshl_b32 s40, s4, 3\ns_add_u32 s40, s40, s3")
        A("v_and_b32 v2, 3, v0\nv_bfe_u32 v3, v0, 2, 1\nv_lshl_add_u32 v2, v2, 1, v3\nv_and_b32 v3, 8, v0\nv_add_u32 v2, v2, v3")
        A("v_lshrrev_b32 v56, 4, v1\nv_and_b32 v57, 15, v0")
        A("v_lshlrev_b32 v3, 19, v56\nv_lshl_add_u32 v2, v2, 4, v3\ns_lshl_b32 s3, s40, 10\ns_lshl_b32 s41, s6, 8\ns_add_u32 s3, s3, s41\nv_add_u32 v2, s3, v2")
        A("s_lshl_b32 s3, s5, 10\ns_lshl_b32 s41, s6, 19\ns_add_u32 s3, s3, s41\ns_lshl_b32 s41, s4, 7\ns_add_u32 s3, s3, s41")
        A("v_lshlrev_b32 v58, 17, v56\nv_lshl_add_u32 v58, v57, 3, v58\nv_add_u32 v58, s3, v58\nv_lshl_add_u32 v3, v57, 3, s41")
        for j in range(1, 8): A("s_mov_b32 s%d, 0x%x" % (48+j, 65536*j))
        A("s_mov_b32 s56, 0x8000\ns_mov_b32 s57, 0x18000")
        A("s_lshl_b32 s42, s7, 7\ns_lshl_b32 s43, s4, 9\ns_add_u32 s43, s43, s42")
        A("s_waitcnt lgkmcnt(0)")
        s.stamp(1)
        s.srd(8, 16, 2 << 20)
        for j in range(8): A("buffer_load_dwordx4 %s, v2, s[8:11], %s offen" % (vr(64+4*j, 4), "s%d" % (48+j) if j else "0"), ("x", j))
        qso = ["0", "s56", "s49", "s57"]
        for r in range(4): A("buffer_load_dwordx2 %s, v58, s[8:11], %s offen" % (vr(176+2*r, 2), qso[r]), "q")
        A("global_load_dwordx2 v[184:185], v3, s[32:33]", "q")
        A("s_load_dword s44, s[38:39], s42\ns_load_dword s45, s[38:39], s43")
        s.srd(12, 34, 2 << 20)
        A("s_add_u32 s3, s43, %d" % W_FY); s.addbase(58, 38, "s3")
        A("s_lshl_b32 s3, s7, 13\ns_add_u32 s3, s3, %d" % W_FV); s.addbase(60, 38, "s3")
        A("v_and_b32 v59, 31, v0\nv_lshlrev_b32 v59, 2, v59")
        A("s_lshl_b32 s3, s6, 4\nv_add_u32 v60, s3, v57\nv_and_b32 v61, 7, v0\ns_and_b32 s3, s5, 7\nv_lshl_add_u32 v62, v61, 3, s3")
        A("v_and_b32 v63, 16, v0\nv_cmp_eq_u32 vcc, 0, v63\nv_cndmask_b32 v60, v62, v60, vcc\nv_lshlrev_b32 v60, 7, v60")
        if cfg["pre"]:
            A("global_load_dword v254, v59, s[58:59] sc1", "pre")
            A("global_load_dword v253, v60, s[60:61] sc1", "pre")
        A("v_and_b32 v160, 6, v0\nv_bfe_u32 v161, v0, 3, 1\ns_lshl_b32 s3, s7, 3\nv_add3_u32 v160, v160, v161, s3\nv_cvt_f32_u32 v160, v160")
        A("v_lshl_add_u32 v161, v56, 9, s40\nv_cvt_f32_u32 v161, v161\nv_and_b32 v162, 1, v0\nv_cvt_f32_u32 v162, v162\nv_mul_f32 v162, 0.25, v162")
        A("v_mul_f32 v163, 0x3a000000, v160\nv_fma_f32 v164, v163, v161, v162\nv_mul_f32 v163, 0x3d000000, v160")
        for j in range(8):
            A("v_cos_f32 v%d, v164" % (168+j))
            if j < 7: A("v_add_f32 v164, v164, v163")
        for j in range(4): A("v_cvt_pk_bf16_f32 v%d, v%d, v%d" % (4+j, 168+2*j, 169+2*j))
        A("v_and_b32 v160, 8, v0\nv_lshlrev_b32 v160, 1, v160\nv_and_b32 v161, 3, v0\nv_lshl_add_u32 v160, v161, 2, v160\nv_bfe_u32 v161, v0, 2, 1\nv_lshl_add_u32 v160, v161, 1, v160")
        A("v_bfe_u32 v161, v0, 4, 1\nv_add_u32 v160, v160, v161\nv_cvt_f32_u32 v160, v160")
        A("s_mov_b32 s62, 0x80008000\nv_mul_lo_u32 v165, v161, s62")
        A("v_bfe_u32 v161, v0, 5, 1\nv_cvt_f32_u32 v161, v161")
        A("v_mul_f32 v163, 0x3d000000, v160\nv_mul_f32 v164, 0x41000000, v161\nv_mul_f32 v164, v164, v163")
        for j in range(8):
            A("v_cos_f32 v%d, v164\nv_sin_f32 v%d, v164" % (128+j, 136+j))
            if j < 7: A("v_add_f32 v164, v164, v163")
        for j in range(4):
            A("v_cvt_pk_bf16_f32 v%d, v%d, v%d\nv_cvt_pk_bf16_f32 v%d, v%d, v%d" % (8+j, 128+2*j, 129+2*j, 16+j, 136+2*j, 137+2*j))
        for j in range(4):
            A("v_xor_b32 v%d, v165, v%d\nv_xor_b32 v%d, v165, v%d\nv_xor_b32 v%d, s62, v%d" % (12+j, 8+j, 20+j, 16+j, 24+j, 16+j))
            A("v_xor_b32 v%d, s62, v%d" % (28+j, 20+j))
        A("v_mul_f32 v163, 0x3b000000, v160\nv_mul_f32 v166, 4.0, v161\nv_mul_f32 v164, v166, v163")
        for j in range(8):
            A("v_cos_f32 v%d, v164\nv_sin_f32 v%d, v164" % (32+j, 40+j))
            if j == 3: A("v_fmamk_f32 v164, v163, 0x40a00000, v164")
            elif j < 7: A("v_add_f32 v164, v164, v163")
        A("v_bfe_u32 v160, v0, 1, 4\nv_cvt_f32_u32 v160, v160\nv_mul_f32 v163, 0x3d800000, v160\nv_fma_f32 v164, v166, v163, v162")
        for j in range(8):
            A("v_cos_f32 v%d, v164\nv_sin_f32 v%d, v164" % (128+j, 136+j))
            if j == 3: A("v_fmamk_f32 v164, v163, 0x40a00000, v164")
            elif j < 7: A("v_add_f32 v164, v164, v163")
        for j in range(4):
            A("v_cvt_pk_bf16_f32 v%d, v%d, v%d\nv_cvt_pk_bf16_f32 v%d, v%d, v%d" % (48+j, 128+2*j, 129+2*j, 52+j, 136+2*j, 137+2*j))
        A("v_mul_u32_u24 v2, 2064, v61\nv_and_b32 v3, 8, v0\nv_lshl_add_u32 v2, v3, 7, v2\nv_lshl_add_u32 v2, v63, 3, v2\nv_bfe_u32 v3, v0, 5, 1\nv_lshl_add_u32 v2, v3, 3, v2")
        A("s_lshl_b32 s3, s6, 8\nv_add_u32 v2, s3, v2")
        A("v_lshlrev_b32 v3, 8, v3\nv_lshl_add_u32 v3, v63, 6, v3\nv_lshl_add_u32 v3, v57, 4, v3\ns_mul_i32 s3, s6, 4128\nv_add_u32 v3, s3, v3")
        A("v_bfe_u32 v62, v0, 2, 3\nv_lshlrev_b32 v62, 19, v62\nv_and_b32 v160, 3, v0\nv_lshl_add_u32 v62, v160, 4, v62")
        A("v_bfe_u32 v160, v0, 4, 2\nv_and_b32 v160, 2, v160\nv_xor_b32 v160, s40, v160\nv_and_b32 v160, 3, v160\nv_lshl_add_u32 v62, v160, 6, v62\nv_xor_b32 v63, 64, v62")
        A("s_lshl_b32 s3, s7, 2\ns_add_u32 s3, s3, s6\ns_lshl_b32 s3, s3, 15\ns_lshl_b32 s41, s40, 8\ns_add_u32 s3, s3, s41\ns_add_u32 s3, s3, %d" % W_V)
        s.addbase(28, 38, "s3"); s.addbase(30, 28, "0x4000")
        A("s_mov_b32 s46, 0x05040100\ns_mov_b32 s47, 0x07060302")
        A("s_waitcnt lgkmcnt(0)")
        A("s_mul_i32 s44, s44, %d\ns_add_u32 s44, s44, %d\ns_mul_i32 s45, s45, %d\ns_add_u32 s45, s45, %d" % (LCG_A, LCG_C, LCG_A, LCG_C))
        for jj in range(4):
            A.wait(vm=("x", 2*jj+1))
            if jj == 3: s.stamp(2)
            for c in range(8):
                A("v_perm_b32 v%d, v%d, v%d, s%d" % (96+4*c+jj, 64+4*(2*jj+1)+(c >> 1), 64+4*(2*jj)+(c >> 1), 46+(c & 1)))
                if jj == 3 and c >= 2: A("v_mfma_f32_16x16x32_bf16 %s, %s, v[4:7], 0" % (vr(128+4*(c-2), 4), vr(96+4*(c-2), 4)))
        for c in (6, 7): A("v_mfma_f32_16x16x32_bf16 %s, %s, v[4:7], 0" % (vr(128+4*c, 4), vr(96+4*c, 4)))
        for c in range(8):
            A("v_cvt_pk_bf16_f32 v%d, v%d, v%d\nv_cvt_pk_bf16_f32 v%d, v%d, v%d" % (160+2*c, 128+4*c, 129+4*c, 161+2*c, 130+4*c, 131+4*c))
            A("ds_write_b64 v2, %s offset:%d" % (vr(160+2*c, 2), X1+16*c))
        A("s_waitcnt lgkmcnt(0)\ns_barrier")
        s.stamp(3)
        for ri in range(2):
            for ks in range(2):
                A("ds_read_b128 %s, v3 offset:%d" % (vr(64+8*ri+4*ks, 4), X1+ri*2064+ks*512), ("a", ri, ks))
        RE, IM = 96, 112
        first = True
        for ri in range(2):
            for ks in range(2):
                A.wait(lg=("a", ri, ks))
                a = vr(64+8*ri+4*ks, 4)
                bre = (8 if ri == 0 else 16)+4*ks; bim = (24 if ri == 0 else 8)+4*ks
                A("v_mfma_f32_32x32x16_bf16 %s, %s, %s, %s" % (vr(RE, 16), a, vr(bre, 4), "0" if first else vr(RE, 16)))
                A("v_mfma_f32_32x32x16_bf16 %s, %s, %s, %s" % (vr(IM, 16), a, vr(bim, 4), "0" if first else vr(IM, 16)))
                first = False
        for row in range(2):
            for p in range(4):
                o = 8*row+2*p
                A("v_pk_mul_f32 %s, %s, %s" % (vr(128+o, 2), vr(RE+o, 2), vr(32+2*p, 2)))
            for p in range(4):
                o = 8*row+2*p
                A("v_pk_mul_f32 %s, %s, %s" % (vr(144+o, 2), vr(IM+o, 2), vr(32+2*p, 2)))
            for p in range(4):
                o = 8*row+2*p
                A("v_pk_fma_f32 %s, %s, %s, %s" % (vr(128+o, 2), vr(IM+o, 2), vr(40+2*p, 2), vr(128+o, 2)))
            for p in range(4):
                o = 8*row+2*p
                A("v_pk_fma_f32 %s, %s, %s, %s neg_lo:[1,0,0] neg_hi:[1,0,0]" % (vr(144+o, 2), vr(RE+o, 2), vr(40+2*p, 2), vr(144+o, 2)))
            for ri in range(2):
                for p in range(4):
                    o = 128+16*ri+8*row+2*p
                    A("v_cvt_pk_bf16_f32 v%d, v%d, v%d" % (160+8*row+4*ri+p, o, o+1))
            d = vr(64+16*row, 16)
            A("v_mfma_f32_32x32x16_bf16 %s, %s, v[48:51], 0" % (d, vr(160+8*row, 4)))
            A("v_mfma_f32_32x32x16_bf16 %s, %s, v[52:55], %s" % (d, vr(164+8*row, 4), d))
        for row in range(2):
            for io in range(2):
                for p in range(4):
                    o = 64+16*row+8*io+2*p
                    A("v_cvt_pk_bf16_f32 v%d, v%d, v%d" % (208+8*row+4*io+p, o, o+1))
                A("global_store_dwordx4 v%d, %s, s[%d:%d] sc1" % (62+io, vr(208+8*row+4*io, 4), 28+2*row, 29+2*row), "vst")
        s.stamp(4)
        A("s_mov_b32 s62, 0xffff0000")
        A.wait(vm="q")
        QF = 192
        for p in range(2): A("v_lshlrev_b32 v%d, 16, v%d\nv_and_b32 v%d, s62, v%d" % (186+2*p, 184+p, 187+2*p, 184+p))
        for i in range(8): A("v_lshlrev_b32 v%d, 16, v%d\nv_and_b32 v%d, s62, v%d" % (QF+2*i, 176+i, QF+2*i+1, 176+i))
        for i in range(8): A("v_pk_mul_f32 %s, %s, %s" % (vr(128+2*i, 2), vr(QF+2*i, 2), vr(186+2*(i & 1), 2)))
        for i in range(8): A("v_cvt_pk_bf16_f32 v%d, v%d, v%d" % (144+i, 128+2*i, 129+2*i))
        for i in range(8): A("v_lshlrev_b32 v%d, 16, v%d\nv_and_b32 v%d, s62, v%d" % (128+2*i, 144+i, 129+2*i, 144+i))
        for r in range(4): A("v_pk_add_f32 %s, %s, %s" % (vr(128+4*r, 2), vr(128+4*r, 2), vr(130+4*r, 2)))
        for r in range(4): A("v_add_f32 v%d, v%d, v%d" % (144+r, 128+4*r, 129+4*r))
        for sh in (8, 4, 2, 1):
            for r in range(4): A("v_add_f32_dpp v%d, v%d, v%d row_ror:%d row_mask:0xf bank_mask:0xf" % (144+r, 144+r, 144+r, sh))
        A("s_lshl_b32 s3, s5, 11\ns_lshl_b32 s41, s6, 6\ns_add_u32 s3, s3, s41\ns_add_u32 s3, s3, %d" % W_G); s.addbase(28, 38, "s3")
        A("s_lshl_b32 s3, s4, 8\nv_lshlrev_b32 v2, 4, v56\nv_lshl_add_u32 v3, v61, 8, v2\nv_add_u32 v2, s3, v2")
        A("s_mov_b32 exec_lo, 0x00010001\ns_mov_b32 exec_hi, 0x00010001")
        A("global_store_dwordx4 v2, v[144:147], s[28:29] sc1", "vst")
        A("s_mov_b64 exec, -1")
        A("s_lshl_b32 s3, s6, 4\nv_add_u32 v160, s3, v57\nv_cvt_f32_u32 v160, v160\nv_mul_f32 v163, 0x3c800000, v160")
        A("v_cvt_f32_u32 v161, v56\nv_add_f32 v161, v161, v161\nv_mul_f32 v164, v161, v163")
        def cf(i):
            A("v_cos_f32 v166, v164\nv_sin_f32 v167, v164")
            if i < 15: A("v_fmamk_f32 v164, v163, 0x40e00000, v164" if i & 1 else "v_add_f32 v164, v164, v163")
            A("v_cvt_pk_bf16_f32 v%d, v166, v167" % (4+i))
        for i in range(8): cf(i)
        A("s_waitcnt vmcnt(0)\ns_barrier")
        s.stamp(5)
        A("s_cmp_lg_u32 s6, 0\ns_cbranch_scc1 L_b_nf")
        A("s_lshl_b32 s3, s40, 7\nv_mov_b32 v20, s3\nv_mov_b32 v21, s44\ns_mov_b64 exec, 1")
        A("global_store_dword v20, v21, s[60:61] sc1")
        A("s_mov_b64 exec, -1\nL_b_nf:")
        for i in range(8, 16): cf(i)
        A("v_bfe_u32 v24, v0, 3, 3\nv_lshlrev_b32 v20, 8, v24\nv_and_b32 v24, 3, v24\nv_lshl_add_u32 v20, v24, 6, v20")
        A("v_and_b32 v24, 2, v0\nv_lshl_add_u32 v20, v24, 4, v20\nv_and_b32 v24, 4, v0\nv_lshl_add_u32 v20, v24, 2, v20\nv_and_b32 v24, 1, v0\nv_lshl_add_u32 v20, v24, 3, v20")
        for nu in range(1, 4): A("v_xor_b32 v%d, %d, v20" % (20+nu, 64*nu))
        A("s_lshl_b32 s3, s6, 12\nv_lshl_add_u32 v24, v1, 4, s3\ns_add_u32 s3, s3, %d\ns_mov_b32 m0, s3" % VL)
        A("s_lshl_b32 s3, s4, 5\ns_add_u32 s3, s3, s5\ns_lshl_b32 s3, s3, 14\ns_add_u32 s3, s3, %d" % W_V); s.addbase(30, 38, "s3")
        A("v_lshrrev_b32 v25, 2, v1\nv_lshlrev_b32 v25, 14, v25\nv_bfe_u32 v26, v0, 4, 2\nv_and_b32 v26, 2, v26\nv_xor_b32 v26, v26, v0\nv_and_b32 v26, 3, v26\nv_lshl_add_u32 v25, v26, 4, v25")
        A("s_lshl_b32 s3, s4, 18\ns_lshl_b32 s41, s5, 8\ns_add_u32 s3, s3, s41\ns_lshl_b32 s41, s6, 6\ns_add_u32 s3, s3, s41\ns_add_u32 s3, s3, %d" % W_R)
        s.addbase(52, 38, "s3"); s.addbase(54, 52, "0x2000")
        A("v_bfe_u32 v26, v0, 2, 2\nv_and_b32 v26, 2, v26\nv_xor_b32 v26, v26, v56\nv_lshlrev_b32 v26, 4, v26\nv_lshl_add_u32 v26, v57, 6, v26\ns_lshl_b32 s41, s6, 11\nv_add_u32 v26, s41, v26")
        s.poll("L_b_pv", 27, 60, 60, 44, sleep=2)
        s.stamp(6)
        for i in range(4): A("global_load_lds_dwordx4 v24, s[30:31] offset:%d sc1" % (1024*i), "vd")
        A("global_load_dwordx4 v[144:147], v3, s[28:29] sc1", "g")
        A.wait(vm="vd")
        A("s_barrier")
        s.stamp(7)
        VF = lambda nu, k: 64+16*nu+4*k
        for nu in range(4):
            for k in range(4):
                for jj in range(2):
                    A("ds_read_b64_tr_b16 %s, v%d offset:%d" % (vr(VF(nu, k)+2*jj, 2), 20+nu, VL+4096*k+2048*jj), ("t", nu, k))
            if nu == 0:
                A.wait(vm="g")
                for sh in (4, 2, 1):
                    for r in range(4): A("v_add_f32_dpp v%d, v%d, v%d row_ror:%d row_mask:0xf bank_mask:0xf" % (144+r, 144+r, 144+r, sh))
            if nu >= 1:
                for k in range(4):
                    A.wait(lg=("t", nu-1, k))
                    acc = vr(128+4*(nu-1), 4)
                    A("v_mfma_f32_16x16x32_bf16 %s, %s, %s, %s" % (acc, vr(4+4*k, 4), vr(VF(nu-1, k), 4), acc if k else "0"))
        for k in range(4):
            A.wait(lg=("t", 3, k))
            A("v_mfma_f32_16x16x32_bf16 v[140:143], %s, %s, %s" % (vr(4+4*k, 4), vr(VF(3, k), 4), "v[140:143]" if k else "0"))
        for p in range(2): A("v_cvt_pk_bf16_f32 v%d, v%d, v%d" % (148+p, 144+2*p, 145+2*p))
        for p in range(2): A("v_lshlrev_b32 v%d, 16, v%d\nv_and_b32 v%d, s62, v%d" % (144+2*p, 148+p, 145+2*p, 148+p))
        for r in range(4): A("v_mul_f32 v%d, 0xbfb8aa3b, v%d" % (144+r, 144+r))
        for r in range(4): A("v_exp_f32 v%d, v%d" % (144+r, 144+r))
        for r in range(4): A("v_add_f32 v%d, 1.0, v%d" % (144+r, 144+r))
        for r in range(4): A("v_rcp_f32 v%d, v%d" % (144+r, 144+r))
        for p in range(2): A("v_cvt_pk_bf16_f32 v%d, v%d, v%d" % (148+p, 144+2*p, 145+2*p))
        for p in range(2): A("v_lshlrev_b32 v%d, 16, v%d\nv_and_b32 v%d, s62, v%d" % (144+2*p, 148+p, 145+2*p, 148+p))
        for r in range(4): A("v_sub_f32 v%d, 1.0, v%d" % (152+r, 144+r))
        for p in range(2): A("v_cvt_pk_bf16_f32 v%d, v%d, v%d" % (148+p, 152+2*p, 153+2*p))
        for p in range(2): A("v_lshlrev_b32 v%d, 16, v%d\nv_and_b32 v%d, s62, v%d" % (152+2*p, 148+p, 153+2*p, 148+p))
        for r in range(4):
            for nu in range(4):
                A("v_mul_f32 v%d, v%d, v%d" % (QF+4*r+nu, QF+4*r+nu, 144+r))
        for r in range(4):
            for nu in range(4):
                A("v_mul_f32 v%d, v%d, v%d" % (160+4*r+nu, 128+4*nu+r, 152+r))
        A("s_add_u32 s3, s41, %d\ns_mov_b32 m0, s3" % YL)
        s.stamp(8)
        s.poll("L_b_py", 27, 59, 58, 45)
        s.stamp(9)
        A("global_load_lds_dwordx4 v25, s[52:53] sc1")
        A("s_add_u32 s3, s41, %d\ns_mov_b32 m0, s3" % (YL+1024))
        A("global_load_lds_dwordx4 v25, s[54:55] sc1")
        A("s_waitcnt vmcnt(0)")
        for pp in range(2): A("ds_read_b128 %s, v26 offset:%d" % (vr(64+4*pp, 4), YL+1024*pp), ("y", pp))
        A("s_waitcnt lgkmcnt(0)")
        s.stamp(10)
        for r in range(4):
            for pp in range(2):
                o = 4*r+2*pp
                A("v_lshlrev_b32 v%d, 16, v%d\nv_and_b32 v%d, s62, v%d" % (72+o, 64+4*pp+r, 73+o, 64+4*pp+r))
            for pp in range(2):
                o = 4*r+2*pp
                A("v_pk_fma_f32 %s, %s, %s, %s" % (vr(160+o, 2), vr(QF+o, 2), vr(72+o, 2), vr(160+o, 2)))
            for pp in range(2):
                o = 4*r+2*pp
                A("v_cvt_pk_bf16_f32 v%d, v%d, v%d" % (96+2*r+pp, 160+o, 161+o))
            A("buffer_store_dwordx2 %s, v58, s[12:15], %s offen" % (vr(96+2*r, 2), qso[r]))
        A("s_and_b32 s3, s5, 7\ns_or_b32 s3, s3, s6\ns_cmp_lg_u32 s3, 0\ns_cbranch_scc1 L_b_ne")
        A("v_mov_b32 v2, s43\nv_mov_b32 v3, s45\ns_mov_b64 exec, 1")
        A("global_store_dword v2, v3, s[38:39] sc1")
        A("L_b_ne:")
        s.stamps_out(1, 12)
        A("L_end:\ns_endpgm")

    def build(s):
        A = s.A
        A.raw("; @launch grid=(512,1,1) block=(256,1,1) lds=%d" % LDS)
        A.raw('.amdgcn_target "amdgcn-amd-amdhsa--gfx950"\n.text\n.globl %s\n.p2align 8\n.type %s,@function\n%s:' % (KN, KN, KN))
        s.prologue(); s.roleA(); s.roleB()
        A.raw(".p2align 8\n.fill 4096, 4, 0xbf810000")
        A.raw('.section .rodata,"a"\n.p2align 6\n.amdhsa_kernel %s\n.amdhsa_next_free_vgpr 256\n.amdhsa_next_free_sgpr 102\n.amdhsa_accum_offset 256\n.amdhsa_group_segment_fixed_size 0\n.amdhsa_kernarg_size 120\n.amdhsa_user_sgpr_count 2\n.amdhsa_user_sgpr_kernarg_segment_ptr 1\n.amdhsa_system_sgpr_workgroup_id_x 1\n.end_amdhsa_kernel' % KN)
        return A.finish()

if __name__ == "__main__":
    out = sys.argv[1]
    cfg = {}
    for a in sys.argv[2:]:
        k, v = a.split("=")
        cfg[k] = {"True": True, "False": False}.get(v, v)
    g = G(**cfg)
    open(out, "w").write(g.build())
    print(out, "nops inserted", g.A.nops, file=sys.stderr)
```

```python
import sys
from dsl import Asm
KN = "gated_mix__ssm_conv_h3__spectral_fnet__prompt_kernel"
W_E   = 0
W_FU  = 8192
W_FY  = 12288
W_FV  = 32768
W_G   = 0x80000
W_R   = 0x100000
W_V   = 0x400000
STAMP_OFF = 200<<20
LCG_A, LCG_C = 1664525, 1013904223
UL = 0; HL = 9216; RED = HL + 16640; LDS_A = RED + 4*8448
X1 = 0; VL = 16640; YL = VL + 16384; LDS_B = YL + 8192
LDS = max(LDS_A, LDS_B)
SPIN = 40000

def vr(a, n): return "v[%d:%d]" % (a, a+n-1)

class G:
    def __init__(s, **cfg):
        s.cfg = dict(stamps=False, loc="sc1", nt=" nt", pre=True)
        s.cfg.update(cfg)
        s.A = Asm(); s.nst = 0
    def stamp(s, i):
        if s.cfg["stamps"]: s.A("s_memrealtime s[%d:%d]" % (64+2*i, 65+2*i))
    def stamps_out(s, role, n):
        if not s.cfg["stamps"]: return
        A = s.A
        A("s_waitcnt vmcnt(0) lgkmcnt(0)")
        s.stamp(n-1)
        A("s_waitcnt lgkmcnt(0)")
        A("s_cmp_lg_u32 s6, 0\ns_cbranch_scc1 L_end")
        if s.cfg.get("probe"):
            pr, pi = [int(x) for x in s.cfg["probe"].split(".")]
            if pr == role:
                A("s_sub_u32 s3, s%d, s64\ns_lshl_b32 s3, s3, 2\ns_add_u32 s3, s3, 5000" % (64+2*pi))
                A("L_probe:\ns_memrealtime s[40:41]\ns_waitcnt lgkmcnt(0)\ns_sub_u32 s40, s40, s64\ns_cmp_lt_u32 s40, s3\ns_cbranch_scc1 L_probe")
            return
        A("s_add_u32 s38, s38, %d\ns_addc_u32 s39, s39, 0" % (STAMP_OFF))
        A("s_lshl_b32 s3, s2, 7\nv_mov_b32 v1, s3\ns_mov_b64 exec, 1")
        for j in range(n):
            A("v_mov_b32 v2, s%d\nv_mov_b32 v3, s%d\nglobal_store_dwordx2 v1, v[2:3], s[38:39] offset:%d\ns_nop 1" % (64+2*j, 65+2*j, 8*j))
    def poll(s, name, vdst, vaddr, sbase, snonce, sleep=0):
        A = s.A
        A("s_mov_b32 s3, 0")
        A("%s:" % name)
        A("global_load_dword v%d, v%d, s[%d:%d] sc1" % (vdst, vaddr, sbase, sbase+1))
        A("s_waitcnt vmcnt(0)")
        A("v_cmp_ne_u32 vcc, s%d, v%d" % (snonce, vdst))
        A("s_cbranch_vccz %s_ok" % name)
        if sleep: A("s_sleep %d" % sleep)
        A("s_add_u32 s3, s3, 1\ns_cmp_lt_u32 s3, %d\ns_cbranch_scc1 %s" % (SPIN, name))
        A("%s_ok:" % name)
    def srd(s, d, base, size):
        s.A("s_mov_b32 s%d, s%d\ns_mov_b32 s%d, s%d\ns_mov_b32 s%d, 0x%x\ns_mov_b32 s%d, 0x20000" % (d, base, d+1, base+1, d+2, size, d+3))
    def addbase(s, d, base, soff):
        s.A("s_add_u32 s%d, s%d, %s\ns_addc_u32 s%d, s%d, 0" % (d, base, soff, d+1, base+1))

    def prologue(s):
        A = s.A
        s.stamp(0)
        A("s_load_dwordx16 s[16:31], s[0:1], 0\ns_load_dwordx8 s[32:39], s[0:1], 88")
        A("s_cmp_ge_u32 s2, 512\ns_cbranch_scc1 L_end")
        A("s_getpc_b64 s[40:41]")
        A("s_and_b32 s4, s2, 7\ns_bfe_u32 s5, s2, 0x50003")
        A("s_lshr_b32 s3, s2, 3\ns_lshl_b32 s3, s3, 8\nv_and_b32 v1, 1, v0\nv_lshl_add_u32 v1, v1, 7, s3")
        A("global_load_dword v255, v1, s[40:41]", "pf")
        A("v_lshrrev_b32 v2, 6, v0\nv_and_b32 v1, 63, v0\nv_readfirstlane_b32 s6, v2")
        A("s_cmp_ge_u32 s2, 256\ns_cbranch_scc1 L_roleB")

    def roleA(s):
        A = s.A; cfg = s.cfg; nt = cfg["nt"]; loc = (" " + cfg["loc"]) if cfg["loc"] else ""
        A("s_lshl_b32 s40, s5, 16\ns_lshl_b32 s3, s4, 7\ns_add_u32 s40, s40, s3")
        A("v_lshrrev_b32 v3, 5, v0\nv_lshlrev_b32 v3, 13, v3\nv_and_b32 v4, 31, v0\nv_lshl_add_u32 v2, v4, 2, v3")
        A("v_add_u32 v2, s40, v2\nv_subrev_u32 v3, 3072, v2")
        A("s_lshl_b32 s3, s4, 9\nv_lshl_add_u32 v5, v4, 4, s3")
        A("v_lshlrev_b32 v6, 4, v0")
        A("s_lshl_b32 s41, s4, 5\ns_add_u32 s41, s41, s5")
        A("s_lshl_b32 s42, s41, 13\ns_add_u32 s43, s42, 4096\ns_lshl_b32 s44, s41, 2\ns_movk_i32 s45, 4096")
        A("v_and_b32 v7, 3, v0\nv_lshlrev_b32 v7, 7, v7\nv_add_u32 v7, s3, v7")
        A("s_waitcnt lgkmcnt(0)")
        s.stamp(1)
        s.srd(8, 18, 2 << 20);
        A("global_load_dword v9, v7, s[38:39] sc1", "E")
        KR = 10
        for i in range(3): A("buffer_load_dword v%d, v3, s[8:11], 0 offen offset:%d%s" % (KR+i, 1024*i, nt), "k")
        for i in range(8): A("buffer_load_dword v%d, v2, s[8:11], %s offen offset:%d%s" % (KR+3+i, "s45" if i >= 4 else "0", 1024*(i & 3), nt), "k")
        A("global_load_dwordx4 v[30:33], v5, s[22:23]", "k")
        s.srd(12, 20, 2 << 20)
        VR = 22
        for i in range(8): A("buffer_load_dword v%d, v2, s[12:15], %s offen offset:%d%s" % (VR+i, "s45" if i >= 4 else "0", 1024*(i & 3), nt), "v")
        s.srd(48, 24, 2 << 20)
        A("buffer_load_dwordx4 v[36:39], v6, s[48:51], s42 offen offset:4" + nt, "h")
        A("buffer_load_dwordx4 v[40:43], v6, s[48:51], s43 offen offset:4" + nt, "h")
        A("buffer_load_dword v34, v6, s[48:51], s42 offen" + nt, "h")
        A("buffer_load_dword v35, v6, s[48:51], s43 offen" + nt, "h")
        A("s_load_dword s46, s[26:27], s44")
        A("s_add_u32 s3, s42, %d" % W_R); s.addbase(52, 38, "s3")
        A("s_lshl_b32 s3, s4, 18\ns_add_u32 s3, s3, %d" % W_R); s.addbase(54, 38, "s3")
        s.addbase(56, 54, "0x20000")
        A("s_lshl_b32 s3, s4, 7\ns_add_u32 s3, s3, %d" % W_FU); s.addbase(58, 38, "s3")
        s.addbase(60, 38, "%d" % W_FY)
        A("v_and_b32 v44, 31, v0\nv_lshlrev_b32 v44, 2, v44")
        if cfg["pre"]:
            A("v_lshlrev_b32 v45, 5, v0")
            A("global_load_dword v254, v45, s[52:53] sc1", "pre")
            A("global_load_dword v253, v44, s[58:59] sc1", "pre")
        A("v_mov_b32 v46, 0\nv_lshlrev_b32 v47, 2, v0\nds_write_b32 v47, v46 offset:%d" % UL)
        A("s_cmp_lg_u32 s6, 0\ns_cbranch_scc1 L_a_nz")
        A("v_bfe_u32 v47, v0, 3, 2\nv_mul_u32_u24 v47, 4160, v47\nv_and_b32 v48, 7, v0\nv_lshl_add_u32 v47, v48, 2, v47\nds_write_b32 v47, v46 offset:%d" % HL)
        A("L_a_nz:")
        A("s_lshl_b32 s47, s6, 11")
        A("v_bfe_u32 v47, v0, 5, 1\nv_bfe_u32 v48, v0, 1, 2\nv_xor_b32 v47, v47, v48\nv_lshlrev_b32 v47, 4, v47\nv_lshl_add_u32 v47, v4, 6, v47")
        A("v_add_u32 v47, s47, v47\nv_xor_b32 v48, 32, v47\nv_lshl_add_u32 v49, v1, 4, s47")
        A("v_lshrrev_b32 v8, 3, v0\nv_xor_b32 v8, v8, v0\nv_xor_b32 v8, s5, v8\nv_and_b32 v8, 3, v8\nv_lshlrev_b32 v8, 4, v8")
        A("v_lshrrev_b32 v21, 2, v1\nv_lshl_add_u32 v8, v21, 13, v8\ns_lshl_b32 s3, s5, 2\ns_add_u32 s3, s3, s6\ns_lshl_b32 s3, s3, 6\nv_add_u32 v8, s3, v8")
        A("s_mov_b32 s62, 0xffff0000")
        A.wait(vm="E")
        A("s_mov_b32 s3, %d\nv_mul_lo_u32 v9, v9, s3\nv_add_u32 v9, %d, v9\nv_readfirstlane_b32 s63, v9" % (LCG_A, LCG_C))
        KP, W, S, VP = 50, 72, 80, 96
        A.wait(vm="k")
        s.stamp(2)
        for t in range(4):
            for c in range(2):
                src = 30 + 2*c + (t >> 1)
                A(("v_and_b32 v%d, s62, v%d" if t & 1 else "v_lshlrev_b32 v%d, 16, v%d") % (W+2*t+c, src))
        for i in range(11):
            A("v_lshlrev_b32 v%d, 16, v%d\nv_and_b32 v%d, s62, v%d" % (KP+2*i, KR+i, KP+2*i+1, KR+i))
        for t in (3, 2, 1, 0):
            for r in range(8):
                k = vr(KP+2*(r+3-t), 2); w = vr(W+2*t, 2); d = vr(S+2*r, 2)
                A("v_pk_mul_f32 %s, %s, %s" % (d, k, w) if t == 3 else "v_pk_fma_f32 %s, %s, %s, %s" % (d, k, w, d))
        A.wait(vm="v")
        for r in range(8):
            A("v_lshlrev_b32 v%d, 16, v%d\nv_and_b32 v%d, s62, v%d" % (VP+2*r, VR+r, VP+2*r+1, VR+r))
        for r in range(8):
            A("v_pk_mul_f32 %s, %s, %s" % (vr(S+2*r, 2), vr(S+2*r, 2), vr(VP+2*r, 2)))
        for c in range(2):
            for j in range(4):
                A("v_cvt_pk_bf16_f32 v%d, v%d, v%d" % (112+4*c+j, S+2*(7-2*j)+c, S+2*(6-2*j)+c))
            A("ds_write_b128 v%d, %s offset:%d" % (47+c, vr(112+4*c, 4), RED))
        A("ds_read_b128 v[120:123], v49 offset:%d" % RED, "sh0")
        A("ds_read_b128 v[124:127], v49 offset:%d" % (RED+1024), "sh1")
        A("s_waitcnt lgkmcnt(0)")
        A("global_store_dwordx4 v8, v[120:123], s[54:55]" + loc, "ust")
        A("global_store_dwordx4 v8, v[124:127], s[56:57]" + loc, "ust")
        s.stamp(3)
        A.wait(vm="h")
        for c in range(2):
            d = [34+c] + [36+4*c+k for k in range(4)]
            for k in range(4): A("v_alignbit_b32 v%d, v%d, v%d, 16" % (50+4*c+k, d[k+1], d[k]))
            A("ds_write_b128 v6, %s offset:%d" % (vr(50+4*c, 4), HL+c*8320+32))
            A("ds_write_b128 v6, %s offset:%d" % (vr(36+4*c, 4), HL+c*8320+4160+32))
        A("s_cmp_lg_u32 s6, 0\ns_cbranch_scc1 L_a_nh")
        A("s_lshl_b32 s3, s46, 16\ns_and_b32 s7, s46, s62")
        for c in range(2):
            A("v_lshlrev_b32 v60, 16, v%d\nv_add_f32 v60, %s, v60\nv_cvt_pk_bf16_f32 v60, v60, v60" % (34+c, "s7" if c else "s3"))
            A("v_bfi_b32 v%d, s62, v%d, v60\nv_and_b32 v%d, s62, v60" % (62+2*c, 34+c, 61+2*c))
        A("s_mov_b64 exec, 1")
        for c in range(2):
            A("ds_write_b32 v6, v%d offset:%d" % (61+2*c, HL+c*8320+28))
            A("ds_write_b32 v6, v%d offset:%d" % (62+2*c, HL+c*8320+4160+28))
        A("s_mov_b64 exec, -1")
        A("L_a_nh:")
        A("s_lshr_b32 s3, s6, 1\ns_mul_i32 s7, s3, 8320\ns_and_b32 s40, s6, 1\ns_lshl_b32 s41, s40, 8\ns_add_u32 s7, s7, s41\ns_add_u32 s7, s7, %d" % HL)
        A("v_and_b32 v10, 1, v0\nv_mul_u32_u24 v10, 4160, v10\nv_lshrrev_b32 v11, 1, v1\nv_lshl_add_u32 v10, v11, 2, v10\nv_add_u32 v10, s7, v10")
        for i in range(1, 4): A("v_add_u32 v%d, %d, v10" % (10+i, 1024*i))
        A("v_and_b32 v18, 3, v0\nv_bfe_u32 v19, v0, 2, 1\nv_lshl_add_u32 v18, v18, 1, v19\nv_and_b32 v19, 8, v0\nv_add_u32 v18, v18, v19")
        A("v_lshrrev_b32 v19, 4, v1\nv_sub_u32 v18, v18, v19\ns_lshl_b32 s41, s40, 3\ns_sub_u32 s41, 16, s41\nv_add_u32 v18, s41, v18")
        A("s_lshl_b32 s3, s3, 1\ns_add_u32 s3, s3, 1")
        for bb in range(2):
            if bb: A("v_subrev_u32 v18, 4, v18")
            A("v_lshrrev_b32 v19, 2, v18\nv_xor_b32 v19, s3, v19\nv_and_b32 v19, 3, v19\nv_lshlrev_b32 v19, 4, v19\nv_lshl_add_u32 v%d, v18, 6, v19" % (14+2*bb))
            A("v_xor_b32 v%d, 16, v%d" % (15+2*bb, 14+2*bb))
        A("s_add_u32 s3, s47, %d\ns_mov_b32 m0, s3" % (UL+1024))
        A("s_waitcnt vmcnt(0) lgkmcnt(0)\ns_barrier")
        s.stamp(4)
        A("s_cmp_lg_u32 s6, 0\ns_cbranch_scc1 L_a_nf")
        A("s_lshl_b32 s3, s5, 2\nv_mov_b32 v19, s3\ns_mov_b64 exec, 1")
        A("global_store_dword v19, v9, s[58:59]" + loc)
        A("s_mov_b64 exec, -1\nL_a_nf:")
        HB = lambda q: 32+32*q
        UB = lambda q: 160+32*(q & 1)
        ACC = 224
        def hread(q, a, half):
            bb, hf = q >> 1, q & 1
            o = 128*(a & 1)+32*bb+4*hf+2*half
            A("ds_read2_b32 %s, v%d offset0:%d offset1:%d" % (vr(HB(q)+4*a+2*half, 2), 10+(a >> 1), o, o+1), ("h", q, a))
        def uread(q, z):
            A("ds_read_b128 %s, v%d offset:%d" % (vr(UB(q)+4*z, 4), 14+q, UL+1024*z), ("u", q, z))
        A("v_mov_b32 v20, v44\nv_mov_b32 v21, v49")
        for q in range(2):
            for a in range(8):
                hread(q, a, 0); hread(q, a, 1)
        A("s_mul_i32 s3, s6, 8448\nv_lshrrev_b32 v22, 5, v1\nv_add_u32 v22, v22, v1\nv_lshl_add_u32 v22, v22, 4, s3")
        A("v_and_b32 v23, 15, v0\nv_mul_u32_u24 v23, 528, v23\nv_lshrrev_b32 v24, 4, v1\nv_lshl_add_u32 v23, v24, 4, v23\ns_lshl_b32 s3, s6, 7\nv_add_u32 v23, s3, v23")
        s.poll("L_a_pu", 19, 20, 58, 63)
        s.stamp(5)
        A("global_load_lds_dwordx4 v21, s[52:53] sc1\nglobal_load_lds_dwordx4 v21, s[52:53] offset:1024 sc1")
        A("s_waitcnt vmcnt(0) lgkmcnt(0)\ns_barrier")
        s.stamp(6)
        for z in range(8): uread(0, z)
        for q in range(4):
            side = []
            if q < 3: side += [("u", q+1, z) for z in range(8)]
            if q < 2: side += [("h", q+2, a, hh) for a in range(8) for hh in range(2)]
            pend = []
            n = 0
            for i in range(8):
                A.wait(lg=[("u", q, i), ("h", q, i)])
                for a in range(i+1):
                    acc = vr(ACC+4*i, 4)
                    A("v_mfma_f32_16x16x32_bf16 %s, %s, %s, %s" % (acc, vr(UB(q)+4*(i-a), 4), vr(HB(q)+4*a, 4), "0" if (q == 0 and a == 0) else acc))
                    n += 1
                    if n >= (10 if q == 0 else 2) and side:
                        it = side.pop(0)
                        if it[0] == "u": uread(it[1], it[2])
                        else: hread(it[1], it[2], it[3])
                    if pend and n >= pend[0][1]:
                        t = pend.pop(0)[0]
                        A("ds_write_b128 v22, %s offset:%d" % (vr(ACC+4*t, 4), RED+1056*t))
                if q == 3: pend.append((i, n+8))
            assert not side
            for t, _ in pend: A("ds_write_b128 v22, %s offset:%d" % (vr(ACC+4*t, 4), RED+1056*t))
        A("s_waitcnt lgkmcnt(0)\ns_barrier")
        s.stamp(7)
        for io in range(2):
            for ws in range(4):
                A("ds_read_b128 %s, v23 offset:%d" % (vr(32+16*io+4*ws, 4), RED+ws*8448+io*64), ("r", io))
        for io in range(2):
            b = 32+16*io
            A.wait(lg=("r", io))
            for c in range(2):
                for p in range(2):
                    A("v_pk_add_f32 %s, %s, %s" % (vr(b+8*c+2*p, 2), vr(b+8*c+2*p, 2), vr(b+8*c+4+2*p, 2)))
            for r in range(4): A("v_cvt_pk_bf16_f32 v%d, v%d, v%d" % (64+4*io+r, b+r, b+8+r))
            A("global_store_dwordx4 v21, %s, s[52:53] offset:%d%s" % (vr(64+4*io, 4), 1024*io, loc))
        A("s_lshl_b32 s3, s5, 2\nv_add_u32 v7, s3, v7")
        A("s_waitcnt vmcnt(0)\ns_barrier")
        s.stamp(8)
        A("s_cmp_lg_u32 s6, 0\ns_cbranch_scc1 L_end")
        A("s_mov_b64 exec, 15")
        A("global_store_dword v7, v9, s[60:61]" + loc)
        s.stamps_out(0, 10)
        A("s_endpgm")

    def roleB(s):
        A = s.A; cfg = s.cfg; nt = cfg["nt"]
        A.reset_counters(); A.vm = ["pf"]
        A("L_roleB:")
        A("s_lshr_b32 s7, s5, 3\ns_and_b32 s3, s5, 7\ns_lshl_b32 s40, s4, 3\ns_add_u32 s40, s40, s3")
        A("v_and_b32 v2, 3, v0\nv_bfe_u32 v3, v0, 2, 1\nv_lshl_add_u32 v2, v2, 1, v3\nv_and_b32 v3, 8, v0\nv_add_u32 v2, v2, v3")
        A("v_lshrrev_b32 v56, 4, v1\nv_and_b32 v57, 15, v0")
        A("v_lshlrev_b32 v3, 19, v56\nv_lshl_add_u32 v2, v2, 4, v3\ns_lshl_b32 s3, s40, 10\ns_lshl_b32 s41, s6, 8\ns_add_u32 s3, s3, s41\nv_add_u32 v2, s3, v2")
        A("s_lshl_b32 s3, s5, 10\ns_lshl_b32 s41, s6, 19\ns_add_u32 s3, s3, s41\ns_lshl_b32 s41, s4, 7\ns_add_u32 s3, s3, s41")
        A("v_lshlrev_b32 v58, 17, v56\nv_lshl_add_u32 v58, v57, 3, v58\nv_add_u32 v58, s3, v58\nv_lshl_add_u32 v3, v57, 3, s41")
        for j in range(1, 8): A("s_mov_b32 s%d, 0x%x" % (48+j, 65536*j))
        A("s_mov_b32 s56, 0x8000\ns_mov_b32 s57, 0x18000")
        A("s_lshl_b32 s42, s7, 7\ns_lshl_b32 s43, s4, 9\ns_add_u32 s43, s43, s42")
        A("s_waitcnt lgkmcnt(0)")
        s.stamp(1)
        s.srd(8, 16, 2 << 20)
        for j in range(8): A("buffer_load_dwordx4 %s, v2, s[8:11], %s offen" % (vr(64+4*j, 4), "s%d" % (48+j) if j else "0"), ("x", j))
        qso = ["0", "s56", "s49", "s57"]
        for r in range(4): A("buffer_load_dwordx2 %s, v58, s[8:11], %s offen" % (vr(176+2*r, 2), qso[r]), "q")
        A("global_load_dwordx2 v[184:185], v3, s[32:33]", "q")
        A("s_load_dword s44, s[38:39], s42\ns_load_dword s45, s[38:39], s43")
        s.srd(12, 34, 2 << 20)
        A("s_add_u32 s3, s43, %d" % W_FY); s.addbase(58, 38, "s3")
        A("s_lshl_b32 s3, s7, 13\ns_add_u32 s3, s3, %d" % W_FV); s.addbase(60, 38, "s3")
        A("v_and_b32 v59, 31, v0\nv_lshlrev_b32 v59, 2, v59")
        A("s_lshl_b32 s3, s6, 4\nv_add_u32 v60, s3, v57\nv_and_b32 v61, 7, v0\ns_and_b32 s3, s5, 7\nv_lshl_add_u32 v62, v61, 3, s3")
        A("v_and_b32 v63, 16, v0\nv_cmp_eq_u32 vcc, 0, v63\nv_cndmask_b32 v60, v62, v60, vcc\nv_lshlrev_b32 v60, 7, v60")
        if cfg["pre"]:
            A("global_load_dword v254, v59, s[58:59] sc1", "pre")
            A("global_load_dword v253, v60, s[60:61] sc1", "pre")
        A("v_and_b32 v160, 6, v0\nv_bfe_u32 v161, v0, 3, 1\ns_lshl_b32 s3, s7, 3\nv_add3_u32 v160, v160, v161, s3\nv_cvt_f32_u32 v160, v160")
        A("v_lshl_add_u32 v161, v56, 9, s40\nv_cvt_f32_u32 v161, v161\nv_and_b32 v162, 1, v0\nv_cvt_f32_u32 v162, v162\nv_mul_f32 v162, 0.25, v162")
        A("v_mul_f32 v163, 0x3a000000, v160\nv_fma_f32 v164, v163, v161, v162\nv_mul_f32 v163, 0x3d000000, v160")
        for j in range(8):
            A("v_cos_f32 v%d, v164" % (168+j))
            if j < 7: A("v_add_f32 v164, v164, v163")
        for j in range(4): A("v_cvt_pk_bf16_f32 v%d, v%d, v%d" % (4+j, 168+2*j, 169+2*j))
        A("v_and_b32 v160, 8, v0\nv_lshlrev_b32 v160, 1, v160\nv_and_b32 v161, 3, v0\nv_lshl_add_u32 v160, v161, 2, v160\nv_bfe_u32 v161, v0, 2, 1\nv_lshl_add_u32 v160, v161, 1, v160")
        A("v_bfe_u32 v161, v0, 4, 1\nv_add_u32 v160, v160, v161\nv_cvt_f32_u32 v160, v160")
        A("s_mov_b32 s62, 0x80008000\nv_mul_lo_u32 v165, v161, s62")
        A("v_bfe_u32 v161, v0, 5, 1\nv_cvt_f32_u32 v161, v161")
        A("v_mul_f32 v163, 0x3d000000, v160\nv_mul_f32 v164, 0x41000000, v161\nv_mul_f32 v164, v164, v163")
        for j in range(8):
            A("v_cos_f32 v%d, v164\nv_sin_f32 v%d, v164" % (128+j, 136+j))
            if j < 7: A("v_add_f32 v164, v164, v163")
        for j in range(4):
            A("v_cvt_pk_bf16_f32 v%d, v%d, v%d\nv_cvt_pk_bf16_f32 v%d, v%d, v%d" % (8+j, 128+2*j, 129+2*j, 16+j, 136+2*j, 137+2*j))
        for j in range(4):
            A("v_xor_b32 v%d, v165, v%d\nv_xor_b32 v%d, v165, v%d\nv_xor_b32 v%d, s62, v%d" % (12+j, 8+j, 20+j, 16+j, 24+j, 16+j))
            A("v_xor_b32 v%d, s62, v%d" % (28+j, 20+j))
        A("v_mul_f32 v163, 0x3b000000, v160\nv_mul_f32 v166, 4.0, v161\nv_mul_f32 v164, v166, v163")
        for j in range(8):
            A("v_cos_f32 v%d, v164\nv_sin_f32 v%d, v164" % (32+j, 40+j))
            if j == 3: A("v_fmamk_f32 v164, v163, 0x40a00000, v164")
            elif j < 7: A("v_add_f32 v164, v164, v163")
        A("v_bfe_u32 v160, v0, 1, 4\nv_cvt_f32_u32 v160, v160\nv_mul_f32 v163, 0x3d800000, v160\nv_fma_f32 v164, v166, v163, v162")
        for j in range(8):
            A("v_cos_f32 v%d, v164\nv_sin_f32 v%d, v164" % (128+j, 136+j))
            if j == 3: A("v_fmamk_f32 v164, v163, 0x40a00000, v164")
            elif j < 7: A("v_add_f32 v164, v164, v163")
        for j in range(4):
            A("v_cvt_pk_bf16_f32 v%d, v%d, v%d\nv_cvt_pk_bf16_f32 v%d, v%d, v%d" % (48+j, 128+2*j, 129+2*j, 52+j, 136+2*j, 137+2*j))
        A("v_mul_u32_u24 v2, 2064, v61\nv_and_b32 v3, 8, v0\nv_lshl_add_u32 v2, v3, 7, v2\nv_lshl_add_u32 v2, v63, 3, v2\nv_bfe_u32 v3, v0, 5, 1\nv_lshl_add_u32 v2, v3, 3, v2")
        A("s_lshl_b32 s3, s6, 8\nv_add_u32 v2, s3, v2")
        A("v_lshlrev_b32 v3, 8, v3\nv_lshl_add_u32 v3, v63, 6, v3\nv_lshl_add_u32 v3, v57, 4, v3\ns_mul_i32 s3, s6, 4128\nv_add_u32 v3, s3, v3")
        A("v_bfe_u32 v62, v0, 2, 3\nv_lshlrev_b32 v62, 19, v62\nv_and_b32 v160, 3, v0\nv_lshl_add_u32 v62, v160, 4, v62")
        A("v_bfe_u32 v160, v0, 4, 2\nv_and_b32 v160, 2, v160\nv_xor_b32 v160, s40, v160\nv_and_b32 v160, 3, v160\nv_lshl_add_u32 v62, v160, 6, v62\nv_xor_b32 v63, 64, v62")
        A("s_lshl_b32 s3, s7, 2\ns_add_u32 s3, s3, s6\ns_lshl_b32 s3, s3, 15\ns_lshl_b32 s41, s40, 8\ns_add_u32 s3, s3, s41\ns_add_u32 s3, s3, %d" % W_V)
        s.addbase(28, 38, "s3"); s.addbase(30, 28, "0x4000")
        A("s_mov_b32 s46, 0x05040100\ns_mov_b32 s47, 0x07060302")
        A("s_waitcnt lgkmcnt(0)")
        A("s_mul_i32 s44, s44, %d\ns_add_u32 s44, s44, %d\ns_mul_i32 s45, s45, %d\ns_add_u32 s45, s45, %d" % (LCG_A, LCG_C, LCG_A, LCG_C))
        for jj in range(4):
            A.wait(vm=("x", 2*jj+1))
            if jj == 3: s.stamp(2)
            for c in range(8):
                A("v_perm_b32 v%d, v%d, v%d, s%d" % (96+4*c+jj, 64+4*(2*jj+1)+(c >> 1), 64+4*(2*jj)+(c >> 1), 46+(c & 1)))
                if jj == 3 and c >= 2: A("v_mfma_f32_16x16x32_bf16 %s, %s, v[4:7], 0" % (vr(128+4*(c-2), 4), vr(96+4*(c-2), 4)))
        for c in (6, 7): A("v_mfma_f32_16x16x32_bf16 %s, %s, v[4:7], 0" % (vr(128+4*c, 4), vr(96+4*c, 4)))
        for c in range(8):
            A("v_cvt_pk_bf16_f32 v%d, v%d, v%d\nv_cvt_pk_bf16_f32 v%d, v%d, v%d" % (160+2*c, 128+4*c, 129+4*c, 161+2*c, 130+4*c, 131+4*c))
            A("ds_write_b64 v2, %s offset:%d" % (vr(160+2*c, 2), X1+16*c))
        A("s_waitcnt lgkmcnt(0)\ns_barrier")
        s.stamp(3)
        for ri in range(2):
            for ks in range(2):
                A("ds_read_b128 %s, v3 offset:%d" % (vr(64+8*ri+4*ks, 4), X1+ri*2064+ks*512), ("a", ri, ks))
        RE, IM = 96, 112
        first = True
        for ri in range(2):
            for ks in range(2):
                A.wait(lg=("a", ri, ks))
                a = vr(64+8*ri+4*ks, 4)
                bre = (8 if ri == 0 else 16)+4*ks; bim = (24 if ri == 0 else 8)+4*ks
                A("v_mfma_f32_32x32x16_bf16 %s, %s, %s, %s" % (vr(RE, 16), a, vr(bre, 4), "0" if first else vr(RE, 16)))
                A("v_mfma_f32_32x32x16_bf16 %s, %s, %s, %s" % (vr(IM, 16), a, vr(bim, 4), "0" if first else vr(IM, 16)))
                first = False
        for row in range(2):
            for p in range(4):
                o = 8*row+2*p
                A("v_pk_mul_f32 %s, %s, %s" % (vr(128+o, 2), vr(RE+o, 2), vr(32+2*p, 2)))
            for p in range(4):
                o = 8*row+2*p
                A("v_pk_mul_f32 %s, %s, %s" % (vr(144+o, 2), vr(IM+o, 2), vr(32+2*p, 2)))
            for p in range(4):
                o = 8*row+2*p
                A("v_pk_fma_f32 %s, %s, %s, %s" % (vr(128+o, 2), vr(IM+o, 2), vr(40+2*p, 2), vr(128+o, 2)))
            for p in range(4):
                o = 8*row+2*p
                A("v_pk_fma_f32 %s, %s, %s, %s neg_lo:[1,0,0] neg_hi:[1,0,0]" % (vr(144+o, 2), vr(RE+o, 2), vr(40+2*p, 2), vr(144+o, 2)))
            for ri in range(2):
                for p in range(4):
                    o = 128+16*ri+8*row+2*p
                    A("v_cvt_pk_bf16_f32 v%d, v%d, v%d" % (160+8*row+4*ri+p, o, o+1))
            d = vr(64+16*row, 16)
            A("v_mfma_f32_32x32x16_bf16 %s, %s, v[48:51], 0" % (d, vr(160+8*row, 4)))
            A("v_mfma_f32_32x32x16_bf16 %s, %s, v[52:55], %s" % (d, vr(164+8*row, 4), d))
        for row in range(2):
            for io in range(2):
                for p in range(4):
                    o = 64+16*row+8*io+2*p
                    A("v_cvt_pk_bf16_f32 v%d, v%d, v%d" % (208+8*row+4*io+p, o, o+1))
                A("global_store_dwordx4 v%d, %s, s[%d:%d] sc1" % (62+io, vr(208+8*row+4*io, 4), 28+2*row, 29+2*row), "vst")
        s.stamp(4)
        A("s_mov_b32 s62, 0xffff0000")
        A.wait(vm="q")
        QF = 192
        for p in range(2): A("v_lshlrev_b32 v%d, 16, v%d\nv_and_b32 v%d, s62, v%d" % (186+2*p, 184+p, 187+2*p, 184+p))
        for i in range(8): A("v_lshlrev_b32 v%d, 16, v%d\nv_and_b32 v%d, s62, v%d" % (QF+2*i, 176+i, QF+2*i+1, 176+i))
        for i in range(8): A("v_pk_mul_f32 %s, %s, %s" % (vr(128+2*i, 2), vr(QF+2*i, 2), vr(186+2*(i & 1), 2)))
        for i in range(8): A("v_cvt_pk_bf16_f32 v%d, v%d, v%d" % (144+i, 128+2*i, 129+2*i))
        for i in range(8): A("v_lshlrev_b32 v%d, 16, v%d\nv_and_b32 v%d, s62, v%d" % (128+2*i, 144+i, 129+2*i, 144+i))
        for r in range(4): A("v_pk_add_f32 %s, %s, %s" % (vr(128+4*r, 2), vr(128+4*r, 2), vr(130+4*r, 2)))
        for r in range(4): A("v_add_f32 v%d, v%d, v%d" % (144+r, 128+4*r, 129+4*r))
        for sh in (8, 4, 2, 1):
            for r in range(4): A("v_add_f32_dpp v%d, v%d, v%d row_ror:%d row_mask:0xf bank_mask:0xf" % (144+r, 144+r, 144+r, sh))
        A("s_lshl_b32 s3, s5, 11\ns_lshl_b32 s41, s6, 6\ns_add_u32 s3, s3, s41\ns_add_u32 s3, s3, %d" % W_G); s.addbase(28, 38, "s3")
        A("s_lshl_b32 s3, s4, 8\nv_lshlrev_b32 v2, 4, v56\nv_lshl_add_u32 v3, v61, 8, v2\nv_add_u32 v2, s3, v2")
        A("s_mov_b32 exec_lo, 0x00010001\ns_mov_b32 exec_hi, 0x00010001")
        A("global_store_dwordx4 v2, v[144:147], s[28:29] sc1", "vst")
        A("s_mov_b64 exec, -1")
        A("s_lshl_b32 s3, s6, 4\nv_add_u32 v160, s3, v57\nv_cvt_f32_u32 v160, v160\nv_mul_f32 v163, 0x3c800000, v160")
        A("v_cvt_f32_u32 v161, v56\nv_add_f32 v161, v161, v161\nv_mul_f32 v164, v161, v163")
        def cf(i):
            A("v_cos_f32 v166, v164\nv_sin_f32 v167, v164")
            if i < 15: A("v_fmamk_f32 v164, v163, 0x40e00000, v164" if i & 1 else "v_add_f32 v164, v164, v163")
            A("v_cvt_pk_bf16_f32 v%d, v166, v167" % (4+i))
        for i in range(8): cf(i)
        A("s_waitcnt vmcnt(0)\ns_barrier")
        s.stamp(5)
        A("s_cmp_lg_u32 s6, 0\ns_cbranch_scc1 L_b_nf")
        A("s_lshl_b32 s3, s40, 7\nv_mov_b32 v20, s3\nv_mov_b32 v21, s44\ns_mov_b64 exec, 1")
        A("global_store_dword v20, v21, s[60:61] sc1")
        A("s_mov_b64 exec, -1\nL_b_nf:")
        for i in range(8, 16): cf(i)
        A("v_bfe_u32 v24, v0, 3, 3\nv_lshlrev_b32 v20, 8, v24\nv_and_b32 v24, 3, v24\nv_lshl_add_u32 v20, v24, 6, v20")
        A("v_and_b32 v24, 2, v0\nv_lshl_add_u32 v20, v24, 4, v20\nv_and_b32 v24, 4, v0\nv_lshl_add_u32 v20, v24, 2, v20\nv_and_b32 v24, 1, v0\nv_lshl_add_u32 v20, v24, 3, v20")
        for nu in range(1, 4): A("v_xor_b32 v%d, %d, v20" % (20+nu, 64*nu))
        A("s_lshl_b32 s3, s6, 12\nv_lshl_add_u32 v24, v1, 4, s3\ns_add_u32 s3, s3, %d\ns_mov_b32 m0, s3" % VL)
        A("s_lshl_b32 s3, s4, 5\ns_add_u32 s3, s3, s5\ns_lshl_b32 s3, s3, 14\ns_add_u32 s3, s3, %d" % W_V); s.addbase(30, 38, "s3")
        A("v_lshrrev_b32 v25, 2, v1\nv_lshlrev_b32 v25, 14, v25\nv_bfe_u32 v26, v0, 4, 2\nv_and_b32 v26, 2, v26\nv_xor_b32 v26, v26, v0\nv_and_b32 v26, 3, v26\nv_lshl_add_u32 v25, v26, 4, v25")
        A("s_lshl_b32 s3, s4, 18\ns_lshl_b32 s41, s5, 8\ns_add_u32 s3, s3, s41\ns_lshl_b32 s41, s6, 6\ns_add_u32 s3, s3, s41\ns_add_u32 s3, s3, %d" % W_R)
        s.addbase(52, 38, "s3"); s.addbase(54, 52, "0x2000")
        A("v_bfe_u32 v26, v0, 2, 2\nv_and_b32 v26, 2, v26\nv_xor_b32 v26, v26, v56\nv_lshlrev_b32 v26, 4, v26\nv_lshl_add_u32 v26, v57, 6, v26\ns_lshl_b32 s41, s6, 11\nv_add_u32 v26, s41, v26")
        s.poll("L_b_pv", 27, 60, 60, 44, sleep=2)
        s.stamp(6)
        for i in range(4): A("global_load_lds_dwordx4 v24, s[30:31] offset:%d sc1" % (1024*i), "vd")
        A("global_load_dwordx4 v[144:147], v3, s[28:29] sc1", "g")
        A.wait(vm="vd")
        A("s_barrier")
        s.stamp(7)
        VF = lambda nu, k: 64+16*nu+4*k
        for nu in range(4):
            for k in range(4):
                for jj in range(2):
                    A("ds_read_b64_tr_b16 %s, v%d offset:%d" % (vr(VF(nu, k)+2*jj, 2), 20+nu, VL+4096*k+2048*jj), ("t", nu, k))
            if nu == 0:
                A.wait(vm="g")
                for sh in (4, 2, 1):
                    for r in range(4): A("v_add_f32_dpp v%d, v%d, v%d row_ror:%d row_mask:0xf bank_mask:0xf" % (144+r, 144+r, 144+r, sh))
            if nu >= 1:
                for k in range(4):
                    A.wait(lg=("t", nu-1, k))
                    acc = vr(128+4*(nu-1), 4)
                    A("v_mfma_f32_16x16x32_bf16 %s, %s, %s, %s" % (acc, vr(4+4*k, 4), vr(VF(nu-1, k), 4), acc if k else "0"))
        for k in range(4):
            A.wait(lg=("t", 3, k))
            A("v_mfma_f32_16x16x32_bf16 v[140:143], %s, %s, %s" % (vr(4+4*k, 4), vr(VF(3, k), 4), "v[140:143]" if k else "0"))
        for p in range(2): A("v_cvt_pk_bf16_f32 v%d, v%d, v%d" % (148+p, 144+2*p, 145+2*p))
        for p in range(2): A("v_lshlrev_b32 v%d, 16, v%d\nv_and_b32 v%d, s62, v%d" % (144+2*p, 148+p, 145+2*p, 148+p))
        for r in range(4): A("v_mul_f32 v%d, 0xbfb8aa3b, v%d" % (144+r, 144+r))
        for r in range(4): A("v_exp_f32 v%d, v%d" % (144+r, 144+r))
        for r in range(4): A("v_add_f32 v%d, 1.0, v%d" % (144+r, 144+r))
        for r in range(4): A("v_rcp_f32 v%d, v%d" % (144+r, 144+r))
        for p in range(2): A("v_cvt_pk_bf16_f32 v%d, v%d, v%d" % (148+p, 144+2*p, 145+2*p))
        for p in range(2): A("v_lshlrev_b32 v%d, 16, v%d\nv_and_b32 v%d, s62, v%d" % (144+2*p, 148+p, 145+2*p, 148+p))
        for r in range(4): A("v_sub_f32 v%d, 1.0, v%d" % (152+r, 144+r))
        for p in range(2): A("v_cvt_pk_bf16_f32 v%d, v%d, v%d" % (148+p, 152+2*p, 153+2*p))
        for p in range(2): A("v_lshlrev_b32 v%d, 16, v%d\nv_and_b32 v%d, s62, v%d" % (152+2*p, 148+p, 153+2*p, 148+p))
        for r in range(4):
            for nu in range(4):
                A("v_mul_f32 v%d, v%d, v%d" % (QF+4*r+nu, QF+4*r+nu, 144+r))
        for r in range(4):
            for nu in range(4):
                A("v_mul_f32 v%d, v%d, v%d" % (160+4*r+nu, 128+4*nu+r, 152+r))
        A("s_add_u32 s3, s41, %d\ns_mov_b32 m0, s3" % YL)
        s.stamp(8)
        s.poll("L_b_py", 27, 59, 58, 45)
        s.stamp(9)
        A("global_load_lds_dwordx4 v25, s[52:53] sc1")
        A("s_add_u32 s3, s41, %d\ns_mov_b32 m0, s3" % (YL+1024))
        A("global_load_lds_dwordx4 v25, s[54:55] sc1")
        A("s_waitcnt vmcnt(0)")
        for pp in range(2): A("ds_read_b128 %s, v26 offset:%d" % (vr(64+4*pp, 4), YL+1024*pp), ("y", pp))
        A("s_waitcnt lgkmcnt(0)")
        s.stamp(10)
        for r in range(4):
            for pp in range(2):
                o = 4*r+2*pp
                A("v_lshlrev_b32 v%d, 16, v%d\nv_and_b32 v%d, s62, v%d" % (72+o, 64+4*pp+r, 73+o, 64+4*pp+r))
            for pp in range(2):
                o = 4*r+2*pp
                A("v_pk_fma_f32 %s, %s, %s, %s" % (vr(160+o, 2), vr(QF+o, 2), vr(72+o, 2), vr(160+o, 2)))
            for pp in range(2):
                o = 4*r+2*pp
                A("v_cvt_pk_bf16_f32 v%d, v%d, v%d" % (96+2*r+pp, 160+o, 161+o))
            A("buffer_store_dwordx2 %s, v58, s[12:15], %s offen" % (vr(96+2*r, 2), qso[r]))
        A("s_and_b32 s3, s5, 7\ns_or_b32 s3, s3, s6\ns_cmp_lg_u32 s3, 0\ns_cbranch_scc1 L_b_ne")
        A("v_mov_b32 v2, s43\nv_mov_b32 v3, s45\ns_mov_b64 exec, 1")
        A("global_store_dword v2, v3, s[38:39] sc1")
        A("L_b_ne:")
        s.stamps_out(1, 12)
        A("L_end:\ns_endpgm")

    def build(s):
        A = s.A
        A.raw("; @launch grid=(512,1,1) block=(256,1,1) lds=%d" % LDS)
        A.raw('.amdgcn_target "amdgcn-amd-amdhsa--gfx950"\n.text\n.globl %s\n.p2align 8\n.type %s,@function\n%s:' % (KN, KN, KN))
        s.prologue(); s.roleA(); s.roleB()
        A.raw(".p2align 8\n.fill 4096, 4, 0xbf810000")
        A.raw('.section .rodata,"a"\n.p2align 6\n.amdhsa_kernel %s\n.amdhsa_next_free_vgpr 256\n.amdhsa_next_free_sgpr 102\n.amdhsa_accum_offset 256\n.amdhsa_group_segment_fixed_size 0\n.amdhsa_kernarg_size 120\n.amdhsa_user_sgpr_count 2\n.amdhsa_user_sgpr_kernarg_segment_ptr 1\n.amdhsa_system_sgpr_workgroup_id_x 1\n.end_amdhsa_kernel' % KN)
        return A.finish()

if __name__ == "__main__":
    out = sys.argv[1]
    cfg = {}
    for a in sys.argv[2:]:
        k, v = a.split("=")
        cfg[k] = {"True": True, "False": False}.get(v, v)
    g = G(**cfg)
    open(out, "w").write(g.build())
    print(out, "nops inserted", g.A.nops, file=sys.stderr)
```

```python
import sys
from dsl import Asm
KN = "gated_mix__ssm_conv_h3__spectral_fnet__prompt_kernel"
W_C   = 0
W_FV  = 32768
W_G   = 0x80000
W_R   = 0x100000
W_V   = 0x400000
STAMP_OFF = 200<<20
LCG_A, LCG_C = 1664525, 1013904223
UL = 0; HL = 9216; RED = HL + 16640; LDS_A = RED + 4*8448
X1 = 0; VL = 16640; YL = VL + 16384; LDS_B = YL + 8192
LDS = max(LDS_A, LDS_B)
SPIN = 40000

def vr(a, n): return "v[%d:%d]" % (a, a+n-1)

class G:
    def __init__(s, **cfg):
        s.cfg = dict(stamps=False, loc="dyn", nt=" nt", pre=True, xnt="", qnt="", prent="", ont="", vsleep=4, qat=5, preat=3, hlate=True, tlb=False, vfl='sc1', vhalf=False)
        s.cfg.update(cfg)
        s.A = Asm(); s.nst = 0; s.tail = []
    def stamp(s, i):
        if s.cfg["stamps"]: s.A("s_memrealtime s[%d:%d]" % (64+2*i, 65+2*i))
    def stamps_out(s, role, n):
        if not s.cfg["stamps"]: return
        A = s.A
        A("s_waitcnt vmcnt(0) lgkmcnt(0)")
        s.stamp(n-1)
        A("s_waitcnt lgkmcnt(0)")
        A("s_cmp_lg_u32 s6, 0\ns_cbranch_scc1 L_end")
        if s.cfg.get("probe"):
            pr, pi = [int(x) for x in s.cfg["probe"].split(".")]
            if pr == role:
                A("s_sub_u32 s3, s%d, s64\ns_lshl_b32 s3, s3, 2\ns_add_u32 s3, s3, 5000" % (64+2*pi))
                A("L_probe:\ns_memrealtime s[40:41]\ns_waitcnt lgkmcnt(0)\ns_sub_u32 s40, s40, s64\ns_cmp_lt_u32 s40, s3\ns_cbranch_scc1 L_probe")
            return
        A("s_add_u32 s38, s38, %d\ns_addc_u32 s39, s39, 0" % (STAMP_OFF))
        A("s_lshl_b32 s3, s2, 7\nv_mov_b32 v1, s3\ns_mov_b64 exec, 1")
        for j in range(n):
            A("v_mov_b32 v2, s%d\nv_mov_b32 v3, s%d\nglobal_store_dwordx2 v1, v[2:3], s[38:39] offset:%d\ns_nop 1" % (64+2*j, 65+2*j, 8*j))
    def poll(s, name, vdst, vaddr, sbase, snonce, sleep=0, masked=False, off=0):
        A = s.A
        A("s_mov_b32 s3, 0")
        A("%s:" % name)
        A("global_load_dword v%d, v%d, s[%d:%d] offset:%d sc1" % (vdst, vaddr, sbase, sbase+1, off))
        A("s_waitcnt vmcnt(0)")
        A("v_cmp_ne_u32 vcc, s%d, v%d" % (snonce, vdst))
        A("s_cbranch_vccz %s_ok" % name)
        if masked: A("s_mov_b64 exec, vcc")
        if sleep: A("s_sleep %d" % sleep)
        A("s_add_u32 s3, s3, 1\ns_cmp_lt_u32 s3, %d\ns_cbranch_scc1 %s" % (SPIN, name))
        A("%s_ok:" % name)
        if masked: A("s_mov_b64 exec, -1")
    def dual(s, name, sflag, lines, tag=None):
        A = s.A; m = s.cfg["loc"]
        if m != "dyn":
            for l in lines: A(l + " " + m, tag)
            return
        A("s_cmp_eq_u32 s%d, 1\ns_cbranch_scc0 %s_far" % (sflag, name))
        for l in lines: A(l, tag)
        A("%s_back:" % name)
        s.tail.append("%s_far:\n" % name + "\n".join(l + " sc1" for l in lines) + "\ns_branch %s_back" % name)
    def srd(s, d, base, size):
        s.A("s_mov_b32 s%d, s%d\ns_mov_b32 s%d, s%d\ns_mov_b32 s%d, 0x%x\ns_mov_b32 s%d, 0x20000" % (d, base, d+1, base+1, d+2, size, d+3))
    def addbase(s, d, base, soff):
        s.A("s_add_u32 s%d, s%d, %s\ns_addc_u32 s%d, s%d, 0" % (d, base, soff, d+1, base+1))

    def prologue(s):
        A = s.A
        s.stamp(0)
        A("s_load_dwordx16 s[16:31], s[0:1], 0\ns_load_dwordx8 s[32:39], s[0:1], 88")
        A("s_cmp_ge_u32 s2, 512\ns_cbranch_scc1 L_end")
        A("s_getpc_b64 s[40:41]")
        A("s_and_b32 s4, s2, 7\ns_bfe_u32 s5, s2, 0x50003")
        A("s_lshr_b32 s3, s2, 3\ns_lshl_b32 s3, s3, 8\nv_and_b32 v1, 1, v0\nv_lshl_add_u32 v1, v1, 7, s3")
        A("global_load_dword v255, v1, s[40:41]", "pf")
        A("v_lshrrev_b32 v2, 6, v0\nv_and_b32 v1, 63, v0\nv_readfirstlane_b32 s6, v2")
        A("s_cmp_ge_u32 s2, 256\ns_cbranch_scc1 L_roleA")

    def roleA(s):
        A = s.A; cfg = s.cfg; nt = cfg["nt"]; loc = (" " + cfg["loc"]) if cfg["loc"] else ""
        A.reset_counters(); A.vm = ["pf"]
        A("L_roleA:")
        A("s_lshl_b32 s40, s5, 16\ns_lshl_b32 s3, s4, 7\ns_add_u32 s40, s40, s3")
        A("v_lshrrev_b32 v3, 5, v0\nv_lshlrev_b32 v3, 13, v3\nv_and_b32 v4, 31, v0\nv_lshl_add_u32 v2, v4, 2, v3")
        A("v_add_u32 v2, s40, v2\nv_subrev_u32 v3, 3072, v2")
        A("s_lshl_b32 s3, s4, 9\nv_lshl_add_u32 v5, v4, 4, s3")
        A("v_lshlrev_b32 v6, 4, v0")
        A("s_lshl_b32 s41, s4, 5\ns_add_u32 s41, s41, s5")
        A("s_lshl_b32 s42, s41, 13\ns_add_u32 s43, s42, 4096\ns_lshl_b32 s44, s41, 2\ns_movk_i32 s45, 4096")
        A("s_lshl_b32 s60, s4, 10\ns_getreg_b32 s7, hwreg(HW_REG_XCC_ID, 0, 4)\ns_lshl_b32 s3, s5, 2\nv_mov_b32 v7, s3\ns_or_b32 s7, s7, 0x80")
        A("v_and_b32 v45, 3, v0\nv_lshl_add_u32 v45, v45, 7, s60")
        A("s_waitcnt lgkmcnt(0)")
        s.stamp(1)
        A("s_load_dword s63, s[38:39], s60")
        A("global_load_dword v253, v45, s[38:39] offset:128 sc1", "pre")
        s.srd(8, 18, 2 << 20)
        KR = 10
        for i in range(3): A("buffer_load_dword v%d, v3, s[8:11], 0 offen offset:%d%s" % (KR+i, 1024*i, nt), "k")
        for i in range(8): A("buffer_load_dword v%d, v2, s[8:11], %s offen offset:%d%s" % (KR+3+i, "s45" if i >= 4 else "0", 1024*(i & 3), nt), "k")
        A("global_load_dwordx4 v[30:33], v5, s[22:23]", "k")
        s.srd(12, 20, 2 << 20)
        VR = 22
        for i in range(8): A("buffer_load_dword v%d, v2, s[12:15], %s offen offset:%d%s" % (VR+i, "s45" if i >= 4 else "0", 1024*(i & 3), nt), "v")
        s.srd(48, 24, 2 << 20)
        def hloads():
            A("buffer_load_dwordx4 v[36:39], v6, s[48:51], s42 offen offset:4" + nt, "h")
            A("buffer_load_dwordx4 v[40:43], v6, s[48:51], s43 offen offset:4" + nt, "h")
            A("buffer_load_dword v34, v6, s[48:51], s42 offen" + nt, "h")
            A("buffer_load_dword v35, v6, s[48:51], s43 offen" + nt, "h")
        if not cfg['hlate']: hloads()
        A("s_load_dword s46, s[26:27], s44")
        A("s_add_u32 s3, s42, %d" % W_R); s.addbase(52, 38, "s3")
        A("s_lshl_b32 s3, s4, 18\ns_add_u32 s3, s3, %d" % W_R); s.addbase(54, 38, "s3")
        s.addbase(56, 54, "0x20000")
        s.addbase(58, 38, "s60")
        A("v_and_b32 v44, 31, v0\nv_lshlrev_b32 v44, 2, v44")
        A("v_mov_b32 v46, 0\nv_lshlrev_b32 v47, 2, v0\nds_write_b32 v47, v46 offset:%d" % UL)
        A("s_cmp_lg_u32 s6, 0\ns_cbranch_scc1 L_a_nz")
        A("v_bfe_u32 v47, v0, 3, 2\nv_mul_u32_u24 v47, 4160, v47\nv_and_b32 v48, 7, v0\nv_lshl_add_u32 v47, v48, 2, v47\nds_write_b32 v47, v46 offset:%d" % HL)
        A("L_a_nz:")
        A("s_lshl_b32 s47, s6, 11")
        A("v_bfe_u32 v47, v0, 5, 1\nv_bfe_u32 v48, v0, 1, 2\nv_xor_b32 v47, v47, v48\nv_lshlrev_b32 v47, 4, v47\nv_lshl_add_u32 v47, v4, 6, v47")
        A("v_add_u32 v47, s47, v47\nv_xor_b32 v48, 32, v47\nv_lshl_add_u32 v49, v1, 4, s47")
        A("v_lshrrev_b32 v8, 3, v0\nv_xor_b32 v8, v8, v0\nv_xor_b32 v8, s5, v8\nv_and_b32 v8, 3, v8\nv_lshlrev_b32 v8, 4, v8")
        A("v_lshrrev_b32 v21, 2, v1\nv_lshl_add_u32 v8, v21, 13, v8\ns_lshl_b32 s3, s5, 2\ns_add_u32 s3, s3, s6\ns_lshl_b32 s3, s3, 6\nv_add_u32 v8, s3, v8")
        A("s_mov_b32 s62, 0xffff0000")
        A("s_waitcnt lgkmcnt(0)")
        A("s_mul_i32 s63, s63, %d\ns_add_u32 s63, s63, %d\ns_add_u32 s98, s63, s7\nv_mov_b32 v9, s98\ns_mov_b32 s99, s98" % (LCG_A, LCG_C))
        A.wait(vm="pre")
        A("s_cmp_lg_u32 s6, 0\ns_cbranch_scc1 L_a_na\ns_mov_b64 exec, 1")
        A.raw("global_store_dword v7, v9, s[58:59] offset:512")
        A("s_mov_b64 exec, -1\nL_a_na:\ns_mov_b32 s97, 0")
        KP, W, S, VP = 50, 72, 80, 96
        A.wait(vm="k")
        s.stamp(2)
        A("global_load_dword v45, v44, s[58:59] offset:512 sc1", "ann")
        if cfg['hlate']: hloads()
        for t in range(4):
            for c in range(2):
                src = 30 + 2*c + (t >> 1)
                A(("v_and_b32 v%d, s62, v%d" if t & 1 else "v_lshlrev_b32 v%d, 16, v%d") % (W+2*t+c, src))
        for i in range(11):
            A("v_lshlrev_b32 v%d, 16, v%d\nv_and_b32 v%d, s62, v%d" % (KP+2*i, KR+i, KP+2*i+1, KR+i))
        for t in (3, 2, 1, 0):
            for r in range(8):
                k = vr(KP+2*(r+3-t), 2); w = vr(W+2*t, 2); d = vr(S+2*r, 2)
                A("v_pk_mul_f32 %s, %s, %s" % (d, k, w) if t == 3 else "v_pk_fma_f32 %s, %s, %s, %s" % (d, k, w, d))
        A("v_mov_b32 v9, s63\ns_mov_b32 s96, 1")
        A.wait(vm="v")
        s.stamp(10)
        for r in range(8):
            A("v_lshlrev_b32 v%d, 16, v%d\nv_and_b32 v%d, s62, v%d" % (VP+2*r, VR+r, VP+2*r+1, VR+r))
        for r in range(8):
            A("v_pk_mul_f32 %s, %s, %s" % (vr(S+2*r, 2), vr(S+2*r, 2), vr(VP+2*r, 2)))
        for c in range(2):
            for j in range(4):
                A("v_cvt_pk_bf16_f32 v%d, v%d, v%d" % (112+4*c+j, S+2*(7-2*j)+c, S+2*(6-2*j)+c))
            A("ds_write_b128 v%d, %s offset:%d" % (47+c, vr(112+4*c, 4), RED))
        A("ds_read_b128 v[120:123], v49 offset:%d" % RED, "sh0")
        A("ds_read_b128 v[124:127], v49 offset:%d" % (RED+1024), "sh1")
        A.wait(vm="ann")
        A("L_a_chk:\nv_cmp_ne_u32 vcc, s98, v45\ns_cbranch_vccnz L_a_miss\nL_a_chkd:")
        s.tail.append("L_a_miss:\ns_add_u32 s97, s97, 1\ns_cmp_ge_u32 s97, 6\ns_cselect_b32 s96, 0, 1\ns_cbranch_scc1 L_a_chkd\nglobal_load_dword v45, v44, s[58:59] offset:512 sc1\ns_waitcnt vmcnt(0)\ns_branch L_a_chk")
        A("s_waitcnt lgkmcnt(0)")
        s.dual("L_a_us", 96, ["global_store_dwordx4 v8, v[120:123], s[54:55]", "global_store_dwordx4 v8, v[124:127], s[56:57]"], "ust")
        s.stamp(3)
        A.wait(vm="h")
        s.stamp(9)
        for c in range(2):
            d = [34+c] + [36+4*c+k for k in range(4)]
            for k in range(4): A("v_alignbit_b32 v%d, v%d, v%d, 16" % (50+4*c+k, d[k+1], d[k]))
            A("ds_write_b128 v6, %s offset:%d" % (vr(50+4*c, 4), HL+c*8320+32))
            A("ds_write_b128 v6, %s offset:%d" % (vr(36+4*c, 4), HL+c*8320+4160+32))
        A("s_cmp_lg_u32 s6, 0\ns_cbranch_scc1 L_a_nh")
        A("s_lshl_b32 s3, s46, 16\ns_and_b32 s7, s46, s62")
        for c in range(2):
            A("v_lshlrev_b32 v60, 16, v%d\nv_add_f32 v60, %s, v60\nv_cvt_pk_bf16_f32 v60, v60, v60" % (34+c, "s7" if c else "s3"))
            A("v_bfi_b32 v%d, s62, v%d, v60\nv_and_b32 v%d, s62, v60" % (62+2*c, 34+c, 61+2*c))
        A("s_mov_b64 exec, 1")
        for c in range(2):
            A("ds_write_b32 v6, v%d offset:%d" % (61+2*c, HL+c*8320+28))
            A("ds_write_b32 v6, v%d offset:%d" % (62+2*c, HL+c*8320+4160+28))
        A("s_mov_b64 exec, -1")
        A("L_a_nh:")
        A("s_lshr_b32 s3, s6, 1\ns_mul_i32 s7, s3, 8320\ns_and_b32 s40, s6, 1\ns_lshl_b32 s41, s40, 8\ns_add_u32 s7, s7, s41\ns_add_u32 s7, s7, %d" % HL)
        A("v_and_b32 v10, 1, v0\nv_mul_u32_u24 v10, 4160, v10\nv_lshrrev_b32 v11, 1, v1\nv_lshl_add_u32 v10, v11, 2, v10\nv_add_u32 v10, s7, v10")
        for i in range(1, 4): A("v_add_u32 v%d, %d, v10" % (10+i, 1024*i))
        A("v_and_b32 v18, 3, v0\nv_bfe_u32 v19, v0, 2, 1\nv_lshl_add_u32 v18, v18, 1, v19\nv_and_b32 v19, 8, v0\nv_add_u32 v18, v18, v19")
        A("v_lshrrev_b32 v19, 4, v1\nv_sub_u32 v18, v18, v19\ns_lshl_b32 s41, s40, 3\ns_sub_u32 s41, 16, s41\nv_add_u32 v18, s41, v18")
        A("s_lshl_b32 s3, s3, 1\ns_add_u32 s3, s3, 1")
        for bb in range(2):
            if bb: A("v_subrev_u32 v18, 4, v18")
            A("v_lshrrev_b32 v19, 2, v18\nv_xor_b32 v19, s3, v19\nv_and_b32 v19, 3, v19\nv_lshlrev_b32 v19, 4, v19\nv_lshl_add_u32 v%d, v18, 6, v19" % (14+2*bb))
            A("v_xor_b32 v%d, 16, v%d" % (15+2*bb, 14+2*bb))
        A("s_add_u32 s3, s47, %d\ns_mov_b32 m0, s3" % (UL+1024))
        A("s_waitcnt vmcnt(0) lgkmcnt(0)\ns_barrier")
        s.stamp(4)
        A("s_cmp_lg_u32 s6, 0\ns_cbranch_scc1 L_a_nf")
        A("s_mov_b64 exec, 1")
        s.dual("L_a_uf", 96, ["global_store_dword v7, v9, s[58:59] offset:128"])
        A("s_mov_b64 exec, -1\nL_a_nf:")
        HB = lambda q: 32+32*q
        UB = lambda q: 160+32*(q & 1)
        ACC = 224
        def hread(q, a, half):
            bb, hf = q >> 1, q & 1
            o = 128*(a & 1)+32*bb+4*hf+2*half
            A("ds_read2_b32 %s, v%d offset0:%d offset1:%d" % (vr(HB(q)+4*a+2*half, 2), 10+(a >> 1), o, o+1), ("h", q, a))
        def uread(q, z):
            A("ds_read_b128 %s, v%d offset:%d" % (vr(UB(q)+4*z, 4), 14+q, UL+1024*z), ("u", q, z))
        A("v_mov_b32 v20, v44\nv_mov_b32 v21, v49")
        for q in range(2):
            for a in range(8):
                hread(q, a, 0); hread(q, a, 1)
        A("s_mul_i32 s3, s6, 8448\nv_lshrrev_b32 v22, 5, v1\nv_add_u32 v22, v22, v1\nv_lshl_add_u32 v22, v22, 4, s3")
        A("v_and_b32 v23, 15, v0\nv_mul_u32_u24 v23, 528, v23\nv_lshrrev_b32 v24, 4, v1\nv_lshl_add_u32 v23, v24, 4, v23\ns_lshl_b32 s3, s6, 7\nv_add_u32 v23, s3, v23")
        s.poll("L_a_pu", 19, 20, 58, 63, off=128)
        s.stamp(5)
        A("global_load_lds_dwordx4 v21, s[52:53] sc1\nglobal_load_lds_dwordx4 v21, s[52:53] offset:1024 sc1")
        A("s_waitcnt vmcnt(0) lgkmcnt(0)\ns_barrier")
        s.stamp(6)
        for z in range(8): uread(0, z)
        A("global_load_dword v19, v20, s[58:59] offset:384 sc1", "ann")
        for q in range(4):
            side = []
            if q < 3: side += [("u", q+1, z) for z in range(8)]
            if q < 2: side += [("h", q+2, a, hh) for a in range(8) for hh in range(2)]
            pend = []
            n = 0
            for i in range(8):
                A.wait(lg=[("u", q, i), ("h", q, i)])
                for a in range(i+1):
                    acc = vr(ACC+4*i, 4)
                    A("v_mfma_f32_16x16x32_bf16 %s, %s, %s, %s" % (acc, vr(UB(q)+4*(i-a), 4), vr(HB(q)+4*a, 4), "0" if (q == 0 and a == 0) else acc))
                    n += 1
                    if n >= (10 if q == 0 else 2) and side:
                        it = side.pop(0)
                        if it[0] == "u": uread(it[1], it[2])
                        else: hread(it[1], it[2], it[3])
                    if pend and n >= pend[0][1]:
                        t = pend.pop(0)[0]
                        A("ds_write_b128 v22, %s offset:%d" % (vr(ACC+4*t, 4), RED+1056*t))
                if q == 3: pend.append((i, n+8))
            assert not side
            for t, _ in pend: A("ds_write_b128 v22, %s offset:%d" % (vr(ACC+4*t, 4), RED+1056*t))
        A("s_waitcnt vmcnt(0)\nv_cmp_ne_u32 vcc, s98, v19\ns_cmp_eq_u64 vcc, 0\ns_cselect_b32 s96, s96, 0")
        A("s_waitcnt lgkmcnt(0)\ns_barrier")
        s.stamp(7)
        for io in range(2):
            for ws in range(4):
                A("ds_read_b128 %s, v23 offset:%d" % (vr(32+16*io+4*ws, 4), RED+ws*8448+io*64), ("r", io))
        for io in range(2):
            b = 32+16*io
            A.wait(lg=("r", io))
            for c in range(2):
                for p in range(2):
                    A("v_pk_add_f32 %s, %s, %s" % (vr(b+8*c+2*p, 2), vr(b+8*c+2*p, 2), vr(b+8*c+4+2*p, 2)))
            for r in range(4): A("v_cvt_pk_bf16_f32 v%d, v%d, v%d" % (64+4*io+r, b+r, b+8+r))
            s.dual("L_a_ys%d" % io, 96, ["global_store_dwordx4 v21, %s, s[52:53] offset:%d" % (vr(64+4*io, 4), 1024*io)])
        A("s_waitcnt vmcnt(0)\ns_barrier")
        s.stamp(8)
        A("s_cmp_lg_u32 s6, 0\ns_cbranch_scc1 L_end")
        A("s_mov_b64 exec, 1")
        s.dual("L_a_yf", 96, ["global_store_dword v7, v9, s[58:59] offset:256"])
        s.stamps_out(1, 12)
        A("s_endpgm")

    def roleB(s):
        A = s.A; cfg = s.cfg; nt = cfg["nt"]
        A("s_lshr_b32 s7, s5, 3\ns_and_b32 s3, s5, 7\ns_lshl_b32 s40, s4, 3\ns_add_u32 s40, s40, s3")
        A("v_and_b32 v2, 3, v0\nv_bfe_u32 v3, v0, 2, 1\nv_lshl_add_u32 v2, v2, 1, v3\nv_and_b32 v3, 8, v0\nv_add_u32 v2, v2, v3")
        A("v_lshrrev_b32 v56, 4, v1\nv_and_b32 v57, 15, v0")
        A("v_lshlrev_b32 v3, 19, v56\nv_lshl_add_u32 v2, v2, 4, v3\ns_lshl_b32 s3, s40, 10\ns_lshl_b32 s41, s6, 8\ns_add_u32 s3, s3, s41\nv_add_u32 v2, s3, v2")
        A("s_lshl_b32 s3, s5, 10\ns_lshl_b32 s41, s6, 19\ns_add_u32 s3, s3, s41\ns_lshl_b32 s41, s4, 7\ns_add_u32 s3, s3, s41")
        A("v_lshlrev_b32 v58, 17, v56\nv_lshl_add_u32 v58, v57, 3, v58\nv_add_u32 v58, s3, v58\nv_and_b32 v3, 0x3ff, v2")
        A("s_lshl_b32 s48, s7, 17")
        for j in range(1, 8): A("s_xor_b32 s%d, s48, 0x%x" % (48+j, 65536*j))
        A("s_mov_b32 s56, 0x8000\ns_mov_b32 s57, 0x18000\ns_mov_b32 s42, 0x10000\ns_lshl_b32 s43, s4, 10")
        A("s_waitcnt lgkmcnt(0)")
        s.stamp(1)
        s.srd(8, 16, 2 << 20)
        XR = lambda j: (224+4*j) if j < 2 else (64+4*j)
        for j in range(8): A("buffer_load_dwordx4 %s, v2, s[8:11], %s offen %s" % (vr(XR(j), 4), "s%d" % (48+j), cfg["xnt"]), ("x", j))
        qso = ["0", "s56", "s42", "s57"]
        def late(at):
            if cfg["pre"] and int(cfg["preat"]) == at:
                A("global_load_dword v252, v252, s[38:39] sc1 " + cfg["prent"], "pre")
            if int(cfg["qat"]) == at:
                for r in range(4): A("buffer_load_dwordx2 %s, v58, s[8:11], %s offen %s" % (vr(176+2*r, 2), qso[r], cfg["qnt"]), "q")
        A("global_load_dwordx4 v[184:187], v3, s[32:33]", "gw")
        A("s_lshl_b32 s3, s4, 5\ns_add_u32 s3, s3, s5\ns_lshl_b32 s3, s3, 13\ns_add_u32 s3, s3, %d\nv_lshl_add_u32 v252, v0, 5, s3" % W_R)
        late(1)
        if cfg["tlb"]:
            A("v_and_b32 v251, 3, v0\nv_lshlrev_b32 v251, 21, v251\nv_add_u32 v251, 0x1ff000, v251\nglobal_load_dword v251, v251, s[38:39]", "pre")
            A("v_mov_b32 v250, 0\nglobal_load_dword v250, v250, s[34:35]", "pre")
        A("s_load_dword s44, s[38:39], 0\ns_load_dword s45, s[38:39], s43")
        s.srd(12, 34, 2 << 20)
        s.addbase(58, 38, "s43")
        s.addbase(60, 38, "%d" % W_FV)
        A("v_and_b32 v59, 31, v0\nv_lshlrev_b32 v59, 2, v59")
        A("s_lshl_b32 s3, s7, 2\ns_add_u32 s3, s3, s6\ns_lshl_b32 s3, s3, 4\nv_add_u32 v60, s3, v57\nv_and_b32 v61, 7, v0\nv_lshl_add_u32 v62, v61, 5, s5")
        A("v_and_b32 v63, 16, v0\nv_cmp_eq_u32 vcc, 0, v63\nv_cndmask_b32 v60, v62, v60, vcc\nv_lshlrev_b32 v60, 7, v60")
        if cfg["pre"]:
            A("global_load_dword v253, v60, s[60:61] sc1", "pre")
        A("v_and_b32 v160, 6, v0\nv_bfe_u32 v161, v0, 3, 1\ns_lshl_b32 s3, s7, 3\nv_add3_u32 v160, v160, v161, s3\nv_cvt_f32_u32 v160, v160")
        A("v_lshl_add_u32 v161, v56, 9, s40\nv_cvt_f32_u32 v161, v161\nv_and_b32 v162, 1, v0\nv_cvt_f32_u32 v162, v162\nv_mul_f32 v162, 0.25, v162")
        A("v_mul_f32 v163, 0x3a000000, v160\nv_fma_f32 v165, v163, v161, v162\nv_mul_f32 v163, 0x3d000000, v160\nv_mul_f32 v166, 0x35000000, v160")
        for j in range(8):
            if j & 1: A("v_add_f32 v164, v164, v163")
            else: A("v_cvt_f32_u32 v164, s%d\nv_fma_f32 v164, v164, v166, v165" % (48+j))
            A("v_cos_f32 v%d, v164" % (168+j))
        for j in range(4): A("v_cvt_pk_bf16_f32 v%d, v%d, v%d" % (4+j, 168+2*j, 169+2*j))
        A("v_and_b32 v160, 8, v0\nv_lshlrev_b32 v160, 1, v160\nv_and_b32 v161, 3, v0\nv_lshl_add_u32 v160, v161, 2, v160\nv_bfe_u32 v161, v0, 2, 1\nv_lshl_add_u32 v160, v161, 1, v160")
        A("v_bfe_u32 v161, v0, 4, 1\nv_add_u32 v160, v160, v161\nv_cvt_f32_u32 v160, v160")
        A("s_mov_b32 s62, 0x80008000\nv_mul_lo_u32 v165, v161, s62")
        A("v_bfe_u32 v161, v0, 5, 1\nv_cvt_f32_u32 v161, v161")
        A("v_mul_f32 v163, 0x3d000000, v160\nv_mul_f32 v164, 0x41000000, v161\nv_mul_f32 v164, v164, v163")
        for j in range(8):
            A("v_cos_f32 v%d, v164\nv_sin_f32 v%d, v164" % (128+j, 136+j))
            if j < 7: A("v_add_f32 v164, v164, v163")
        for j in range(4):
            A("v_cvt_pk_bf16_f32 v%d, v%d, v%d\nv_cvt_pk_bf16_f32 v%d, v%d, v%d" % (8+j, 128+2*j, 129+2*j, 16+j, 136+2*j, 137+2*j))
        for j in range(4):
            A("v_xor_b32 v%d, v165, v%d\nv_xor_b32 v%d, v165, v%d\nv_xor_b32 v%d, s62, v%d" % (12+j, 8+j, 20+j, 16+j, 24+j, 16+j))
            A("v_xor_b32 v%d, s62, v%d" % (28+j, 20+j))
        A("v_mul_f32 v163, 0x3b000000, v160\nv_mul_f32 v166, 4.0, v161\nv_mul_f32 v164, v166, v163")
        for j in range(8):
            A("v_cos_f32 v%d, v164\nv_sin_f32 v%d, v164" % (32+j, 40+j))
            if j == 3: A("v_fmamk_f32 v164, v163, 0x40a00000, v164")
            elif j < 7: A("v_add_f32 v164, v164, v163")
        A("v_bfe_u32 v160, v0, 1, 4\nv_cvt_f32_u32 v160, v160\nv_mul_f32 v163, 0x3d800000, v160\nv_fma_f32 v164, v166, v163, v162")
        for j in range(8):
            A("v_cos_f32 v%d, v164\nv_sin_f32 v%d, v164" % (128+j, 136+j))
            if j == 3: A("v_fmamk_f32 v164, v163, 0x40a00000, v164")
            elif j < 7: A("v_add_f32 v164, v164, v163")
        for j in range(4):
            A("v_cvt_pk_bf16_f32 v%d, v%d, v%d\nv_cvt_pk_bf16_f32 v%d, v%d, v%d" % (48+j, 128+2*j, 129+2*j, 52+j, 136+2*j, 137+2*j))
        A("v_mul_u32_u24 v2, 2064, v61\nv_and_b32 v3, 8, v0\nv_lshl_add_u32 v2, v3, 7, v2\nv_lshl_add_u32 v2, v63, 3, v2\nv_bfe_u32 v3, v0, 5, 1\nv_lshl_add_u32 v2, v3, 3, v2")
        A("s_lshl_b32 s3, s6, 8\nv_add_u32 v2, s3, v2")
        A("v_lshlrev_b32 v3, 8, v3\nv_lshl_add_u32 v3, v63, 6, v3\nv_lshl_add_u32 v3, v57, 4, v3\ns_mul_i32 s3, s6, 4128\nv_add_u32 v3, s3, v3")
        A("v_bfe_u32 v62, v0, 2, 3\nv_lshlrev_b32 v62, 19, v62\nv_and_b32 v160, 3, v0\nv_lshl_add_u32 v62, v160, 4, v62")
        A("v_bfe_u32 v160, v0, 4, 2\nv_and_b32 v160, 2, v160\nv_xor_b32 v160, s40, v160\nv_and_b32 v160, 3, v160\nv_lshl_add_u32 v62, v160, 6, v62\nv_xor_b32 v63, 64, v62")
        A("s_lshl_b32 s3, s7, 2\ns_add_u32 s3, s3, s6\ns_lshl_b32 s3, s3, 15\ns_lshl_b32 s41, s40, 8\ns_add_u32 s3, s3, s41\ns_add_u32 s3, s3, %d" % W_V)
        s.addbase(28, 38, "s3"); s.addbase(30, 28, "0x4000")
        A("s_mov_b32 s46, 0x05040100\ns_mov_b32 s47, 0x07060302")
        A("s_waitcnt lgkmcnt(0)")
        A("s_mul_i32 s44, s44, %d\ns_add_u32 s44, s44, %d\ns_mul_i32 s45, s45, %d\ns_add_u32 s45, s45, %d" % (LCG_A, LCG_C, LCG_A, LCG_C))
        A("s_getreg_b32 s3, hwreg(HW_REG_XCC_ID, 0, 4)\ns_or_b32 s3, s3, 0x80\ns_add_u32 s3, s3, s45\nv_mov_b32 v161, s3\ns_lshl_b32 s3, s5, 2\nv_mov_b32 v160, s3")
        A("s_cmp_lg_u32 s6, 0\ns_cbranch_scc1 L_b_na\ns_mov_b64 exec, 1")
        A.raw("global_store_dword v160, v161, s[58:59] offset:384")
        A("s_mov_b64 exec, -1\nL_b_na:")
        for jj in range(4):
            A.wait(vm=("x", 2*jj+1))
            if jj == 3:
                s.stamp(2)
                late(2)
            for c in range(8):
                A("v_perm_b32 v%d, v%d, v%d, s%d" % (96+4*c+jj, XR(2*jj+1)+(c >> 1), XR(2*jj)+(c >> 1), 46+(c & 1)))
                if jj == 3 and c >= 2: A("v_mfma_f32_16x16x32_bf16 %s, %s, v[4:7], 0" % (vr(128+4*(c-2), 4), vr(96+4*(c-2), 4)))
        for c in (6, 7): A("v_mfma_f32_16x16x32_bf16 %s, %s, v[4:7], 0" % (vr(128+4*c, 4), vr(96+4*c, 4)))
        for c in range(8):
            A("v_cvt_pk_bf16_f32 v%d, v%d, v%d\nv_cvt_pk_bf16_f32 v%d, v%d, v%d" % (160+2*c, 128+4*c, 129+4*c, 161+2*c, 130+4*c, 131+4*c))
            A("ds_write_b64 v2, %s offset:%d" % (vr(160+2*c, 2), X1+16*c))
        A("s_waitcnt lgkmcnt(0)\ns_barrier")
        s.stamp(3)
        for ri in range(2):
            for ks in range(2):
                A("ds_read_b128 %s, v3 offset:%d" % (vr(64+8*ri+4*ks, 4), X1+ri*2064+ks*512), ("a", ri, ks))
        late(3)
        RE, IM = 96, 112
        first = True
        for ri in range(2):
            for ks in range(2):
                A.wait(lg=("a", ri, ks))
                a = vr(64+8*ri+4*ks, 4)
                bre = (8 if ri == 0 else 16)+4*ks; bim = (24 if ri == 0 else 8)+4*ks
                A("v_mfma_f32_32x32x16_bf16 %s, %s, %s, %s" % (vr(RE, 16), a, vr(bre, 4), "0" if first else vr(RE, 16)))
                A("v_mfma_f32_32x32x16_bf16 %s, %s, %s, %s" % (vr(IM, 16), a, vr(bim, 4), "0" if first else vr(IM, 16)))
                first = False
        for row in range(2):
            for p in range(4):
                o = 8*row+2*p
                A("v_pk_mul_f32 %s, %s, %s" % (vr(128+o, 2), vr(RE+o, 2), vr(32+2*p, 2)))
            for p in range(4):
                o = 8*row+2*p
                A("v_pk_mul_f32 %s, %s, %s" % (vr(144+o, 2), vr(IM+o, 2), vr(32+2*p, 2)))
            for p in range(4):
                o = 8*row+2*p
                A("v_pk_fma_f32 %s, %s, %s, %s" % (vr(128+o, 2), vr(IM+o, 2), vr(40+2*p, 2), vr(128+o, 2)))
            for p in range(4):
                o = 8*row+2*p
                A("v_pk_fma_f32 %s, %s, %s, %s neg_lo:[1,0,0] neg_hi:[1,0,0]" % (vr(144+o, 2), vr(RE+o, 2), vr(40+2*p, 2), vr(144+o, 2)))
            for ri in range(2):
                for p in range(4):
                    o = 128+16*ri+8*row+2*p
                    A("v_cvt_pk_bf16_f32 v%d, v%d, v%d" % (160+8*row+4*ri+p, o, o+1))
            d = vr(64+16*row, 16)
            A("v_mfma_f32_32x32x16_bf16 %s, %s, v[48:51], 0" % (d, vr(160+8*row, 4)))
            A("v_mfma_f32_32x32x16_bf16 %s, %s, v[52:55], %s" % (d, vr(164+8*row, 4), d))
        for row in range(2):
            for io in range(2):
                for p in range(4):
                    o = 64+16*row+8*io+2*p
                    A("v_cvt_pk_bf16_f32 v%d, v%d, v%d" % (208+8*row+4*io+p, o, o+1))
                A("global_store_dwordx4 v%d, %s, s[%d:%d] %s" % (62+io, vr(208+8*row+4*io, 4), 28+2*row, 29+2*row, cfg["vfl"].replace("_"," ")), "vst") if (row == 0 or not cfg["vhalf"]) else None
        s.stamp(4)
        late(4)
        A("s_mov_b32 s62, 0xffff0000")
        A.wait(vm="gw")
        QF = 192
        for p in range(4): A("v_lshlrev_b32 v%d, 16, v%d\nv_and_b32 v%d, s62, v%d" % (152+2*p, 184+p, 153+2*p, 184+p))
        for i in range(8): A("v_lshlrev_b32 v%d, 16, v%d\nv_and_b32 v%d, s62, v%d" % (128+2*i, 224+i, 129+2*i, 224+i))
        for i in range(8): A("v_pk_mul_f32 %s, %s, %s" % (vr(128+2*i, 2), vr(128+2*i, 2), vr(152+2*(i & 3), 2)))
        for i in range(8): A("v_cvt_pk_bf16_f32 v%d, v%d, v%d" % (144+i, 128+2*i, 129+2*i))
        for i in range(8): A("v_lshlrev_b32 v%d, 16, v%d\nv_and_b32 v%d, s62, v%d" % (128+2*i, 144+i, 129+2*i, 144+i))
        for i in range(4): A("v_pk_add_f32 %s, %s, %s" % (vr(128+4*i, 2), vr(128+4*i, 2), vr(130+4*i, 2)))
        for i in range(2): A("v_pk_add_f32 %s, %s, %s" % (vr(128+8*i, 2), vr(128+8*i, 2), vr(132+8*i, 2)))
        for i in range(2): A("v_add_f32 v%d, v%d, v%d" % (144+i, 128+8*i, 129+8*i))
        A("s_lshl_b32 s3, s40, 2\ns_add_u32 s3, s3, s7\ns_lshl_b32 s3, s3, 2\ns_add_u32 s3, s3, s6\ns_lshl_b32 s3, s3, 5")
        fill = ["v_lshl_add_u32 v2, v56, 3, s3", "v_and_b32 v3, 3, v0", "v_lshlrev_b32 v3, 5, v3", "v_lshl_add_u32 v3, v56, 7, v3"]
        for sh in (8, 4, 2, 1):
            for r in range(2): A("v_add_f32_dpp v%d, v%d, v%d row_ror:%d row_mask:0xf bank_mask:0xf" % (144+r, 144+r, 144+r, sh))
            A(fill.pop(0))
        s.addbase(28, 38, "%d" % W_G)
        A("s_mov_b32 exec_lo, 0x00010001\ns_mov_b32 exec_hi, 0x00010001")
        A("global_store_dwordx2 v2, v[144:145], s[28:29] sc1", "vst")
        A("s_mov_b64 exec, -1")
        A("v_and_b32 v2, 4, v0\nv_lshl_add_u32 v3, v2, 12, v3\ns_lshl_b32 s3, s5, 9\ns_lshl_b32 s41, s6, 3\ns_add_u32 s3, s3, s41\nv_add_u32 v3, s3, v3")
        A("s_lshl_b32 s3, s6, 4\nv_add_u32 v160, s3, v57\nv_cvt_f32_u32 v160, v160\nv_mul_f32 v163, 0x3c800000, v160")
        A("v_cvt_f32_u32 v161, v56\nv_add_f32 v161, v161, v161\nv_mul_f32 v164, v161, v163")
        def cf(i):
            A("v_cos_f32 v166, v164\nv_sin_f32 v167, v164")
            if i < 15: A("v_fmamk_f32 v164, v163, 0x40e00000, v164" if i & 1 else "v_add_f32 v164, v164, v163")
            A("v_cvt_pk_bf16_f32 v%d, v166, v167" % (4+i))
        for i in range(8): cf(i)
        A("s_waitcnt vmcnt(0)\ns_barrier")
        s.stamp(5)
        A("s_cmp_lg_u32 s6, 0\ns_cbranch_scc1 L_b_nf")
        A("s_lshl_b32 s3, s7, 6\ns_add_u32 s3, s3, s40\ns_lshl_b32 s3, s3, 7\nv_mov_b32 v20, s3\nv_mov_b32 v21, s44\ns_mov_b64 exec, 1")
        A("global_store_dword v20, v21, s[60:61] sc1")
        A("s_mov_b64 exec, -1\nL_b_nf:")
        late(5)
        for i in range(8, 16): cf(i)
        A("v_bfe_u32 v24, v0, 3, 3\nv_lshlrev_b32 v20, 8, v24\nv_and_b32 v24, 3, v24\nv_lshl_add_u32 v20, v24, 6, v20")
        A("v_and_b32 v24, 2, v0\nv_lshl_add_u32 v20, v24, 4, v20\nv_and_b32 v24, 4, v0\nv_lshl_add_u32 v20, v24, 2, v20\nv_and_b32 v24, 1, v0\nv_lshl_add_u32 v20, v24, 3, v20")
        for nu in range(1, 4): A("v_xor_b32 v%d, %d, v20" % (20+nu, 64*nu))
        A("s_lshl_b32 s3, s6, 12\nv_lshl_add_u32 v24, v1, 4, s3\ns_add_u32 s3, s3, %d\ns_mov_b32 m0, s3" % VL)
        A("s_lshl_b32 s3, s4, 5\ns_add_u32 s3, s3, s5\ns_lshl_b32 s3, s3, 14\ns_add_u32 s3, s3, %d" % W_V); s.addbase(30, 38, "s3")
        A("v_lshrrev_b32 v25, 2, v1\nv_lshlrev_b32 v25, 14, v25\nv_bfe_u32 v26, v0, 4, 2\nv_and_b32 v26, 2, v26\nv_xor_b32 v26, v26, v0\nv_and_b32 v26, 3, v26\nv_lshl_add_u32 v25, v26, 4, v25")
        A("s_lshl_b32 s3, s4, 18\ns_lshl_b32 s41, s5, 8\ns_add_u32 s3, s3, s41\ns_lshl_b32 s41, s6, 6\ns_add_u32 s3, s3, s41\ns_add_u32 s3, s3, %d" % W_R)
        s.addbase(52, 38, "s3"); s.addbase(54, 52, "0x2000")
        A("v_bfe_u32 v26, v0, 2, 2\nv_and_b32 v26, 2, v26\nv_xor_b32 v26, v26, v56\nv_lshlrev_b32 v26, 4, v26\nv_lshl_add_u32 v26, v57, 6, v26\ns_lshl_b32 s41, s6, 11\nv_add_u32 v26, s41, v26")
        s.poll("L_b_pv", 27, 60, 60, 44, sleep=int(cfg["vsleep"]), masked=True)
        s.stamp(6)
        for i in range(4): A("global_load_lds_dwordx4 v24, s[30:31] offset:%d sc1" % (1024*i), "vd")
        A("global_load_dwordx2 v[144:145], v3, s[28:29] sc1", "g")
        late(6)
        A("s_cmp_eq_u32 s5, 0\ns_cbranch_scc1 L_b_all\nL_b_allback:")
        sv = (list(A.vm), list(A.lg)); keep = A.L; A.L = []
        A("L_b_all:\nv_lshlrev_b32 v28, 7, v0")
        s.poll("L_b_pa", 27, 28, 60, 44, sleep=4, masked=True)
        A("s_branch L_b_allback")
        s.tail.append("\n".join(i.text for i in A.L)); A.L = keep; A.vm, A.lg = sv
        A.wait(vm="vd")
        A("s_barrier")
        s.stamp(7)
        VF = lambda nu, k: 64+16*nu+4*k
        for nu in range(4):
            for k in range(4):
                for jj in range(2):
                    A("ds_read_b64_tr_b16 %s, v%d offset:%d" % (vr(VF(nu, k)+2*jj, 2), 20+nu, VL+4096*k+2048*jj), ("t", nu, k))
            if nu == 0:
                A.wait(vm="g")
                for qp in ("[1,0,3,2]", "[2,3,0,1]"):
                    for r in range(2): A("v_add_f32_dpp v%d, v%d, v%d quad_perm:%s row_mask:0xf bank_mask:0xf" % (144+r, 144+r, 144+r, qp))
                A("v_cvt_pk_bf16_f32 v148, v144, v145\nv_lshlrev_b32 v144, 16, v148\nv_and_b32 v145, s62, v148")
                for r in range(2): A("v_mul_f32 v%d, 0xbfb8aa3b, v%d" % (144+r, 144+r))
                for r in range(2): A("v_exp_f32 v%d, v%d" % (144+r, 144+r))
                for r in range(2): A("v_add_f32 v%d, 1.0, v%d" % (144+r, 144+r))
                for r in range(2): A("v_rcp_f32 v%d, v%d" % (144+r, 144+r))
                A("v_cvt_pk_bf16_f32 v150, v144, v145\nv_mov_b32 v148, v150\nv_mov_b32 v149, v150")
                A("v_mov_b32_dpp v148, v150 row_ror:4 row_mask:0xf bank_mask:0xa\nv_mov_b32_dpp v149, v150 row_ror:4 row_mask:0xf bank_mask:0x5")
            if nu >= 1:
                for k in range(4):
                    A.wait(lg=("t", nu-1, k))
                    acc = vr(128+4*(nu-1), 4)
                    A("v_mfma_f32_16x16x32_bf16 %s, %s, %s, %s" % (acc, vr(4+4*k, 4), vr(VF(nu-1, k), 4), acc if k else "0"))
        for k in range(4):
            A.wait(lg=("t", 3, k))
            A("v_mfma_f32_16x16x32_bf16 v[140:143], %s, %s, %s" % (vr(4+4*k, 4), vr(VF(3, k), 4), "v[140:143]" if k else "0"))
        for b in range(2): A("v_lshlrev_b32 v%d, 16, v%d\nv_and_b32 v%d, s62, v%d" % (144+b, 148+b, 146+b, 148+b))
        A.wait(vm="q")
        for i in range(8): A("v_lshlrev_b32 v%d, 16, v%d\nv_and_b32 v%d, s62, v%d" % (QF+2*i, 176+i, QF+2*i+1, 176+i))
        for r in range(4): A("v_sub_f32 v%d, 1.0, v%d" % (152+r, 144+r))
        for p in range(2): A("v_cvt_pk_bf16_f32 v%d, v%d, v%d" % (148+p, 152+2*p, 153+2*p))
        for p in range(2): A("v_lshlrev_b32 v%d, 16, v%d\nv_and_b32 v%d, s62, v%d" % (152+2*p, 148+p, 153+2*p, 148+p))
        for r in range(4):
            for nu in range(4):
                A("v_mul_f32 v%d, v%d, v%d" % (QF+4*r+nu, QF+4*r+nu, 144+r))
        for r in range(4):
            for nu in range(4):
                A("v_mul_f32 v%d, v%d, v%d" % (160+4*r+nu, 128+4*nu+r, 152+r))
        A("s_add_u32 s3, s41, %d\ns_mov_b32 m0, s3" % YL)
        s.stamp(8)
        s.poll("L_b_py", 27, 59, 58, 45, off=256)
        s.stamp(9)
        A("global_load_lds_dwordx4 v25, s[52:53] sc1")
        A("s_add_u32 s3, s41, %d\ns_mov_b32 m0, s3" % (YL+1024))
        A("global_load_lds_dwordx4 v25, s[54:55] sc1")
        A("s_waitcnt vmcnt(0)")
        for pp in range(2): A("ds_read_b128 %s, v26 offset:%d" % (vr(64+4*pp, 4), YL+1024*pp), ("y", pp))
        A("s_or_b32 s3, s5, s6\ns_cbranch_scc0 L_b_ep\nL_b_epback:")
        s.tail.append("L_b_ep:\nv_mov_b32 v2, 0\nv_mov_b32 v3, s45\ns_mov_b64 exec, 1\nglobal_store_dword v2, v3, s[58:59] sc1\ns_mov_b64 exec, -1\ns_branch L_b_epback")
        A("s_waitcnt lgkmcnt(0)")
        s.stamp(10)
        for r in range(4):
            for pp in range(2):
                o = 4*r+2*pp
                A("v_lshlrev_b32 v%d, 16, v%d\nv_and_b32 v%d, s62, v%d" % (72+o, 64+4*pp+r, 73+o, 64+4*pp+r))
            for pp in range(2):
                o = 4*r+2*pp
                A("v_pk_fma_f32 %s, %s, %s, %s" % (vr(160+o, 2), vr(QF+o, 2), vr(72+o, 2), vr(160+o, 2)))
            for pp in range(2):
                o = 4*r+2*pp
                A("v_cvt_pk_bf16_f32 v%d, v%d, v%d" % (96+2*r+pp, 160+o, 161+o))
            A("buffer_store_dwordx2 %s, v58, s[12:15], %s offen %s" % (vr(96+2*r, 2), qso[r], cfg["ont"]))
        s.stamps_out(0, 12)
        A("L_end:\ns_endpgm")

    def build(s):
        A = s.A
        A.raw("; @launch grid=(512,1,1) block=(256,1,1) lds=%d" % LDS)
        A.raw('.amdgcn_target "amdgcn-amd-amdhsa--gfx950"\n.text\n.globl %s\n.p2align 8\n.type %s,@function\n%s:' % (KN, KN, KN))
        s.prologue(); s.roleB(); s.roleA()
        for t in s.tail: A(t)
        A.raw(".p2align 8\n.fill 4096, 4, 0xbf810000")
        A.raw('.section .rodata,"a"\n.p2align 6\n.amdhsa_kernel %s\n.amdhsa_next_free_vgpr 256\n.amdhsa_next_free_sgpr 102\n.amdhsa_accum_offset 256\n.amdhsa_group_segment_fixed_size 0\n.amdhsa_kernarg_size 120\n.amdhsa_user_sgpr_count 2\n.amdhsa_user_sgpr_kernarg_segment_ptr 1\n.amdhsa_system_sgpr_workgroup_id_x 1\n.end_amdhsa_kernel' % KN)
        return A.finish()

if __name__ == "__main__":
    out = sys.argv[1]
    cfg = {}
    for a in sys.argv[2:]:
        k, v = a.split("=")
        cfg[k] = {"True": True, "False": False}.get(v, v)
    g = G(**cfg)
    open(out, "w").write(g.build())
    print(out, "nops inserted", g.A.nops, file=sys.stderr)
```

```python
import sys
from dsl import Asm
KN = "gated_mix__ssm_conv_h3__spectral_fnet__prompt_kernel"
W_E   = 0
W_C   = 4096
W_G   = 0x8000
W_FV  = 0x20000
W_R   = 0x100000
W_V   = 0x400000
FAR   = 0x700000
STAMP_OFF = 200<<20
LCG_A, LCG_C = 1664525, 1013904223
UL = 0; HL = 9216; RED = HL + 16640; X1 = RED + 4*8448; VL = X1; GL = X1 + 16512; YL = UL; LDS = X1 + 16640
SPIN = 40000
NEAR_TRIES = 24

def vr(a, n): return "v[%d:%d]" % (a, a+n-1)

class G:
    def __init__(s, **cfg):
        s.cfg = dict(stamps=False, nt=" nt", pre=True, xnt="nt", qnt="nt", prent="nt", ont="", vsleep=2, bar0=2, first="A",
                     vflag="late", prioA=0, prioB=0, prioC=0, far=False)
        s.cfg.update(cfg)
        s.A = Asm(); s.tail = []
    def stamp(s, i):
        if s.cfg["stamps"]: s.A("s_memrealtime s[%d:%d]" % (64+2*i, 65+2*i))
    def stamps_out(s, role, n):
        if not s.cfg["stamps"]: return
        A = s.A
        A("s_waitcnt vmcnt(0) lgkmcnt(0)")
        s.stamp(n-1)
        A("s_waitcnt lgkmcnt(0)")
        A("s_cmp_lg_u32 s6, %d\ns_cbranch_scc1 L_end" % int(s.cfg.get("sw", 0)))
        if s.cfg.get("probe"):
            pr, pi = [int(x) for x in s.cfg["probe"].split(".")]
            if pr == role:
                A("s_sub_u32 s3, s%d, s64\ns_lshl_b32 s3, s3, 2\ns_add_u32 s3, s3, 5000" % (64+2*pi))
                A("L_probe:\ns_memrealtime s[40:41]\ns_waitcnt lgkmcnt(0)\ns_sub_u32 s40, s40, s64\ns_cmp_lt_u32 s40, s3\ns_cbranch_scc1 L_probe")
            return
        A("s_add_u32 s38, s38, %d\ns_addc_u32 s39, s39, 0" % (STAMP_OFF + role*256*128))
        A("s_lshl_b32 s3, s2, 7\nv_mov_b32 v1, s3\ns_mov_b64 exec, 1")
        for j in range(n):
            A("v_mov_b32 v2, s%d\nv_mov_b32 v3, s%d\nglobal_store_dwordx2 v1, v[2:3], s[38:39] offset:%d\ns_nop 1" % (64+2*j, 65+2*j, 8*j))
    def side(s, fn):
        A = s.A; sv = (list(A.vm), list(A.lg)); keep = A.L; A.L = []
        fn()
        s.tail.append("\n".join(i.text for i in A.L)); A.L = keep; A.vm, A.lg = sv
    def poll(s, name, vdst, vaddr, sbase, snonce, sleep=0, masked=False, off=0):
        A = s.A
        A("s_mov_b32 s3, 0")
        A("%s:" % name)
        A("global_load_dword v%d, v%d, s[%d:%d] offset:%d sc1" % (vdst, vaddr, sbase, sbase+1, off))
        A("s_waitcnt vmcnt(0)")
        A("v_cmp_ne_u32 vcc, s%d, v%d" % (snonce, vdst))
        A("s_cbranch_vccz %s_ok" % name)
        if masked: A("s_mov_b64 exec, vcc")
        if sleep: A("s_sleep %d" % sleep)
        A("s_add_u32 s3, s3, 1\ns_cmp_lt_u32 s3, %d\ns_cbranch_scc1 %s" % (SPIN, name))
        A("%s_ok:" % name)
        if masked: A("s_mov_b64 exec, -1")
    def srd(s, d, base, size):
        s.A("s_mov_b32 s%d, s%d\ns_mov_b32 s%d, s%d\ns_mov_b32 s%d, 0x%x\ns_mov_b32 s%d, 0x20000" % (d, base, d+1, base+1, d+2, size, d+3))
    def addbase(s, d, base, soff):
        s.A("s_add_u32 s%d, s%d, %s\ns_addc_u32 s%d, s%d, 0" % (d, base, soff, d+1, base+1))
    def tags(s):
        s.A("s_getreg_b32 s3, hwreg(HW_REG_XCC_ID, 0, 4)\ns_mul_i32 s44, s44, %d\ns_add_u32 s44, s44, %d\ns_add_u32 s45, s44, s3\ns_add_u32 s45, s45, 1" % (LCG_A, LCG_C))

    def prologue(s):
        A = s.A
        s.stamp(0)
        A("s_load_dwordx16 s[16:31], s[0:1], 0\ns_load_dwordx8 s[32:39], s[0:1], 88")
        A("s_cmp_ge_u32 s2, 256\ns_cbranch_scc1 L_end")
        A("s_getpc_b64 s[40:41]")
        A("s_and_b32 s4, s2, 7\ns_lshr_b32 s5, s2, 3")
        A("v_lshrrev_b32 v2, 6, v0\ns_lshl_b32 s3, s5, 9\nv_lshl_add_u32 v1, v2, 6, s3\nv_readfirstlane_b32 s7, v2")
        A("global_load_dword v255, v1, s[40:41]", "pf")
        A("v_and_b32 v1, 63, v0\nv_and_b32 v0, 255, v0\ns_and_b32 s6, s7, 3")
        A("s_cmp_ge_u32 s7, 4\ns_cbranch_scc1 L_role2")

    def roleA_head(s):
        A = s.A; cfg = s.cfg; nt = cfg["nt"]
        A.reset_counters(); A.vm = ["pf"]
        A("s_lshl_b32 s40, s5, 16\ns_lshl_b32 s3, s4, 7\ns_add_u32 s40, s40, s3")
        A("v_lshrrev_b32 v3, 5, v0\nv_lshlrev_b32 v3, 13, v3\nv_and_b32 v4, 31, v0\nv_lshl_add_u32 v2, v4, 2, v3")
        A("v_add_u32 v2, s40, v2\nv_subrev_u32 v3, 3072, v2")
        A("s_lshl_b32 s3, s4, 9\nv_lshl_add_u32 v5, v4, 4, s3")
        A("v_lshlrev_b32 v6, 4, v0")
        A("s_lshl_b32 s41, s4, 5\ns_add_u32 s41, s41, s5")
        A("s_lshl_b32 s42, s41, 13\ns_add_u32 s43, s42, 4096\ns_lshl_b32 s41, s41, 2\ns_movk_i32 s7, 4096")
        A("s_waitcnt lgkmcnt(0)")
        s.stamp(1)
        s.srd(8, 18, 2 << 20)
        for i in range(3): A("buffer_load_dword v%d, v3, s[8:11], 0 offen offset:%d%s" % (10+i, 1024*i, nt), "k")
        for i in range(8): A("buffer_load_dword v%d, v2, s[8:11], %s offen offset:%d%s" % (13+i, "s7" if i >= 4 else "0", 1024*(i & 3), nt), "k")
        A("global_load_dwordx4 v[30:33], v5, s[22:23]", "k")
        A("s_load_dword s44, s[38:39], 0\ns_load_dword s46, s[26:27], s41")
        s.vmA = list(A.vm)
    def roleA(s):
        A = s.A; cfg = s.cfg; nt = cfg["nt"]
        A.reset_counters(); A.vm = list(s.vmA)
        KR, VR = 10, 22
        s.srd(12, 20, 2 << 20)
        s.srd(48, 24, 2 << 20)
        A("s_add_u32 s3, s42, %d" % W_R); s.addbase(52, 38, "s3")
        A("s_lshl_b32 s3, s4, 11\ns_add_u32 s3, s3, %d" % W_C); s.addbase(58, 38, "s3")
        A("v_lshlrev_b32 v45, 5, v0\nv_lshlrev_b32 v44, 3, v1\nv_lshlrev_b32 v46, 2, v0")
        for _ in range(int(cfg["bar0"])): A("s_barrier")
        for i in range(8): A("buffer_load_dword v%d, v2, s[12:15], %s offen offset:%d%s" % (VR+i, "s7" if i >= 4 else "0", 1024*(i & 3), nt), "v")
        A("buffer_load_dwordx4 v[36:39], v6, s[48:51], s42 offen offset:4" + nt, "h")
        A("buffer_load_dwordx4 v[40:43], v6, s[48:51], s43 offen offset:4" + nt, "h")
        A("buffer_load_dword v34, v6, s[48:51], s42 offen" + nt, "h")
        A("buffer_load_dword v35, v6, s[48:51], s43 offen" + nt, "h")
        A("global_load_dword v253, v46, s[58:59] sc1", "pre")
        if cfg["pre"]: A("global_load_dword v254, v45, s[52:53] sc1 " + cfg["prent"], "pre")
        s.stamp(11)
        A("s_lshl_b32 s3, s4, 18\ns_add_u32 s3, s3, %d" % W_R); s.addbase(54, 38, "s3")
        s.addbase(56, 54, "0x20000")
        A("v_mov_b32 v45, 0\nds_write_b32 v46, v45 offset:%d" % UL)
        A("v_bfe_u32 v47, v0, 3, 2\nv_mul_u32_u24 v47, 4160, v47\nv_and_b32 v48, 7, v0\nv_lshl_add_u32 v47, v48, 2, v47\nds_write_b32 v47, v45 offset:%d" % HL)
        A("s_lshl_b32 s47, s6, 11")
        A("v_bfe_u32 v47, v0, 5, 1\nv_bfe_u32 v48, v0, 1, 2\nv_xor_b32 v47, v47, v48\nv_lshlrev_b32 v47, 4, v47\nv_lshl_add_u32 v47, v4, 6, v47")
        A("v_add_u32 v47, s47, v47\nv_xor_b32 v48, 32, v47")
        A("v_lshrrev_b32 v8, 3, v0\nv_xor_b32 v8, v8, v0\nv_xor_b32 v8, s5, v8\nv_and_b32 v8, 3, v8\nv_lshlrev_b32 v8, 4, v8")
        A("v_lshrrev_b32 v21, 2, v1\nv_lshl_add_u32 v8, v21, 13, v8\ns_lshl_b32 s3, s5, 2\ns_add_u32 s3, s3, s6\ns_lshl_b32 s60, s3, 2\ns_lshl_b32 s3, s3, 6\nv_add_u32 v8, s3, v8")
        A("v_lshl_add_u32 v21, v1, 4, s47\nv_mov_b32 v7, s60\ns_mov_b32 s62, 0xffff0000")
        A("s_add_u32 s3, s47, %d\ns_mov_b32 m0, s3" % (UL+1024))
        KP, W, S, VP = 50, 72, 80, 96
        A.wait(vm="k")
        s.stamp(2)
        for t in range(4):
            for c in range(2):
                src = 30 + 2*c + (t >> 1)
                A(("v_and_b32 v%d, s62, v%d" if t & 1 else "v_lshlrev_b32 v%d, 16, v%d") % (W+2*t+c, src))
        for i in range(11):
            A("v_lshlrev_b32 v%d, 16, v%d\nv_and_b32 v%d, s62, v%d" % (KP+2*i, KR+i, KP+2*i+1, KR+i))
        for t in (3, 2, 1, 0):
            for r in range(8):
                k = vr(KP+2*(r+3-t), 2); w = vr(W+2*t, 2); d = vr(S+2*r, 2)
                A("v_pk_mul_f32 %s, %s, %s" % (d, k, w) if t == 3 else "v_pk_fma_f32 %s, %s, %s, %s" % (d, k, w, d))
        A("s_lshr_b32 s3, s6, 1\ns_mul_i32 s7, s3, 8320\ns_and_b32 s40, s6, 1\ns_lshl_b32 s41, s40, 8\ns_add_u32 s7, s7, s41\ns_add_u32 s7, s7, %d" % HL)
        A("v_and_b32 v10, 1, v0\nv_mul_u32_u24 v10, 4160, v10\nv_lshrrev_b32 v11, 1, v1\nv_lshl_add_u32 v10, v11, 2, v10\nv_add_u32 v10, s7, v10")
        for i in range(1, 4): A("v_add_u32 v%d, %d, v10" % (10+i, 1024*i))
        A("v_and_b32 v18, 3, v0\nv_bfe_u32 v19, v0, 2, 1\nv_lshl_add_u32 v18, v18, 1, v19\nv_and_b32 v19, 8, v0\nv_add_u32 v18, v18, v19")
        A("v_lshrrev_b32 v19, 4, v1\nv_sub_u32 v18, v18, v19\ns_lshl_b32 s41, s40, 3\ns_sub_u32 s41, 16, s41\nv_add_u32 v18, s41, v18")
        A("s_lshl_b32 s3, s3, 1\ns_add_u32 s3, s3, 1")
        for bb in range(2):
            if bb: A("v_subrev_u32 v18, 4, v18")
            A("v_lshrrev_b32 v19, 2, v18\nv_xor_b32 v19, s3, v19\nv_and_b32 v19, 3, v19\nv_lshlrev_b32 v19, 4, v19\nv_lshl_add_u32 v%d, v18, 6, v19" % (14+2*bb))
            A("v_xor_b32 v%d, 16, v%d" % (15+2*bb, 14+2*bb))
        A("s_mul_i32 s3, s6, 8448\nv_lshrrev_b32 v2, 5, v1\nv_add_u32 v2, v2, v1\nv_lshl_add_u32 v2, v2, 4, s3")
        A("v_and_b32 v3, 15, v0\nv_mul_u32_u24 v3, 528, v3\nv_lshrrev_b32 v5, 4, v1\nv_lshl_add_u32 v3, v5, 4, v3\ns_lshl_b32 s3, s6, 7\nv_add_u32 v3, s3, v3")
        A("s_lshl_b32 s60, s5, 2\ns_add_u32 s60, s60, s3")
        A("s_waitcnt lgkmcnt(0)")
        s.tags()
        A("v_mov_b32 v9, s45\ns_mov_b32 s96, 0")
        s.stamp(12)
        A("s_barrier")
        A.wait(vm="v")
        s.stamp(10)
        for r in range(8):
            A("v_lshlrev_b32 v%d, 16, v%d\nv_and_b32 v%d, s62, v%d" % (VP+2*r, VR+r, VP+2*r+1, VR+r))
        for r in range(8):
            A("v_pk_mul_f32 %s, %s, %s" % (vr(S+2*r, 2), vr(S+2*r, 2), vr(VP+2*r, 2)))
        for c in range(2):
            for j in range(4):
                A("v_cvt_pk_bf16_f32 v%d, v%d, v%d" % (112+4*c+j, S+2*(7-2*j)+c, S+2*(6-2*j)+c))
            A("ds_write_b128 v%d, %s offset:%d" % (47+c, vr(112+4*c, 4), RED))
        A("ds_read_b128 v[120:123], v21 offset:%d" % RED, "sh0")
        A("ds_read_b128 v[124:127], v21 offset:%d" % (RED+1024), "sh1")
        ust = ["global_store_dwordx4 v8, v[120:123], s[54:55]", "global_store_dwordx4 v8, v[124:127], s[56:57]"]
        A.wait(lg="sh0"); A(ust[0], "ust")
        A.wait(lg="sh1"); A(ust[1], "ust")
        s.stamp(3)
        A.wait(vm="h")
        s.stamp(9)
        for c in range(2):
            d = [34+c] + [36+4*c+k for k in range(4)]
            A("ds_write_b128 v6, %s offset:%d" % (vr(36+4*c, 4), HL+c*8320+4160+32))
            for k in range(4): A("v_alignbit_b32 v%d, v%d, v%d, 16" % (50+4*c+k, d[k+1], d[k]))
            A("ds_write_b128 v6, %s offset:%d" % (vr(50+4*c, 4), HL+c*8320+32))
        A("s_cmp_eq_u32 s6, 0\ns_cbranch_scc1 L_a_h0\nL_a_h0back:")
        def h0():
            A("L_a_h0:\ns_lshl_b32 s3, s46, 16\ns_and_b32 s7, s46, s62\ns_mov_b64 exec, 1")
            for c in range(2):
                A("v_lshlrev_b32 v60, 16, v%d\nv_add_f32 v60, %s, v60\nv_cvt_pk_bf16_f32 v60, v60, v60" % (34+c, "s7" if c else "s3"))
                A("v_bfi_b32 v%d, s62, v%d, v60\nv_and_b32 v%d, s62, v60" % (62+2*c, 34+c, 61+2*c))
                A("ds_write_b32 v6, v%d offset:%d" % (61+2*c, HL+c*8320+28))
                A("ds_write_b32 v6, v%d offset:%d" % (62+2*c, HL+c*8320+4160+28))
            A("s_mov_b64 exec, -1\ns_branch L_a_h0back")
        s.side(h0)
        A("s_waitcnt vmcnt(0)")
        s.stamp(4)
        A("s_mov_b64 exec, 1\nglobal_store_dword v7, v9, s[58:59]\ns_mov_b64 exec, -1")
        A("s_mov_b32 s3, 0")
        if cfg["far"]: A("s_branch L_a_far")
        A("L_a_pu:\nglobal_load_dwordx2 v[22:23], v44, s[58:59] sc1\ns_waitcnt vmcnt(0)")
        A("v_cmp_ne_u32 vcc, s45, v22\nv_cmp_ne_u32 s[40:41], s45, v23\ns_or_b64 vcc, vcc, s[40:41]\ns_cbranch_scc1 L_a_miss\nL_a_pu_ok:")
        def far():
            A("L_a_miss:\ns_add_u32 s3, s3, 1\ns_cmp_lt_u32 s3, %d\ns_cbranch_scc1 L_a_pu" % NEAR_TRIES)
            A("L_a_far:\nv_mov_b32 v26, s44\nv_add_u32 v8, %d, v8" % FAR)
            for l in ust: A(l + " sc1")
            A("s_waitcnt vmcnt(0)\ns_mov_b64 exec, 1\nglobal_store_dword v7, v26, s[58:59] offset:1024 sc1\ns_mov_b64 exec, -1")
            A("L_a_pf:\nglobal_load_dwordx2 v[24:25], v44, s[58:59] offset:1024 sc1\ns_waitcnt vmcnt(0)\nglobal_load_dwordx2 v[22:23], v44, s[58:59] sc1\ns_waitcnt vmcnt(0)")
            A("v_cmp_ne_u32 vcc, s45, v22\nv_cmp_ne_u32 s[40:41], s45, v23\ns_or_b64 vcc, vcc, s[40:41]\ns_cbranch_scc0 L_a_pu_ok")
            A("v_cmp_ne_u32 vcc, s44, v24\nv_cmp_ne_u32 s[40:41], s44, v25\ns_or_b64 vcc, vcc, s[40:41]\ns_cbranch_scc0 L_a_isfar")
            A("s_sleep 8\ns_add_u32 s3, s3, 1\ns_cmp_lt_u32 s3, %d\ns_cbranch_scc1 L_a_pf" % SPIN)
            A("L_a_isfar:\ns_mov_b32 s96, 1\nv_mov_b32 v9, s44")
            s.addbase(52, 52, "%d" % FAR)
            A("s_branch L_a_pu_ok")
        s.side(far)
        s.stamp(5)
        A("global_load_lds_dwordx4 v21, s[52:53] sc1\nglobal_load_lds_dwordx4 v21, s[52:53] offset:1024 sc1")
        A("v_mov_b32 v7, s60")
        if int(cfg["prioC"]): A("s_setprio %d" % int(cfg["prioC"]))
        A("s_waitcnt vmcnt(0) lgkmcnt(0)\ns_barrier")
        s.stamp(6)
        if cfg.get("cyc"): A("s_memtime s[98:99]")
        if cfg.get("al"): A.raw(".p2align 3")
        HB = lambda q: 32+32*q
        UB = lambda q: 160+32*(q & 1)
        ACC = 224
        def hread(q, a, half):
            bb, hf = q >> 1, q & 1
            o = 128*(a & 1)+32*bb+4*hf+2*half
            A("ds_read2_b32 %s, v%d offset0:%d offset1:%d" % (vr(HB(q)+4*a+2*half, 2), 10+(a >> 1), o, o+1), ("f", q, a))
        def uread(q, z):
            A("ds_read_b128 %s, v%d offset:%d" % (vr(UB(q)+4*z, 4), 14+q, UL+1024*z), ("f", q, z))
        todo = [(q, a, k) for q in range(4) for a in range(8) for k in range(3)]
        def feed(n, q):
            for _ in range(n):
                if todo and todo[0][0] <= q+1:
                    qq, a, k = todo.pop(0)
                    if cfg.get("nords") and qq > 0: continue
                    if k == 0: uread(qq, a)
                    else: hread(qq, a, k-1)
        feed(15, 0)
        for q in range(4):
            pend = []; n = 0
            for i in range(8):
                while todo and todo[0][:2] <= (q, i): feed(1, q)
                n0 = len(A.L); A.wait(lg=("f", q, i))
                if cfg.get("al") and len(A.L) > n0: A("s_nop 0")
                for a in range(i+1):
                    acc = vr(ACC+4*i, 4)
                    A("v_mfma_f32_16x16x32_bf16 %s, %s, %s, %s" % (acc, vr(UB(q)+4*(i-a), 4), vr(HB(q)+4*a, 4), "0" if (q == 0 and a == 0) else acc))
                    n += 1
                    if q == 0 or n >= 2: feed(1, q)
                    if pend and n >= pend[0][1]:
                        t = pend.pop(0)[0]
                        A("ds_write_b128 v2, %s offset:%d" % (vr(ACC+4*t, 4), RED+1056*t))
                if q == 3: pend.append((i, n+8))
            for t, _ in pend: A("ds_write_b128 v2, %s offset:%d" % (vr(ACC+4*t, 4), RED+1056*t))
        assert not todo
        s.stamp(13)
        if cfg.get("cyc"): A("s_memtime s[92:93]\ns_waitcnt lgkmcnt(0)\ns_sub_u32 s92, s92, s98\ns_add_u32 s92, s92, s64\ns_mov_b32 s93, s65")
        A("s_waitcnt lgkmcnt(0)\ns_barrier")
        s.stamp(7)
        for io in range(2):
            for ws in range(4):
                A("ds_read_b128 %s, v3 offset:%d" % (vr(32+16*io+4*ws, 4), RED+ws*8448+io*64), ("r", io))
        yst = ["global_store_dwordx4 v21, %s, s[52:53] offset:%d" % (vr(64+4*io, 4), 1024*io) for io in range(2)]
        def ysum(io):
            b = 32+16*io
            A.wait(lg=("r", io))
            for c in range(2):
                for p in range(2):
                    A("v_pk_add_f32 %s, %s, %s" % (vr(b+8*c+2*p, 2), vr(b+8*c+2*p, 2), vr(b+8*c+4+2*p, 2)))
            for r in range(4): A("v_cvt_pk_bf16_f32 v%d, v%d, v%d" % (64+4*io+r, b+r, b+8+r))
        A("s_cmp_eq_u32 s96, 1\ns_cbranch_scc1 L_a_yfar")
        def yfar():
            A("L_a_yfar:")
            for io in range(2):
                ysum(io); A(yst[io] + " sc1")
            A("s_waitcnt vmcnt(0)\ns_mov_b64 exec, 1\nglobal_store_dword v7, v9, s[58:59] offset:1536 sc1\ns_branch L_a_done")
        s.side(yfar)
        for io in range(2):
            ysum(io); A(yst[io])
        A("s_mov_b64 exec, 1\ns_waitcnt vmcnt(0)")
        s.stamp(8)
        A("global_store_dword v7, v9, s[58:59] offset:512")
        A("L_a_done:")
        s.stamps_out(1, 16)
        A("s_endpgm")

    def roleB_head(s):
        A = s.A; cfg = s.cfg
        A.reset_counters(); A.vm = ["pf"]
        A("s_lshr_b32 s7, s5, 3\ns_and_b32 s3, s5, 7\ns_lshl_b32 s40, s4, 3\ns_add_u32 s40, s40, s3")
        A("v_and_b32 v2, 3, v0\nv_bfe_u32 v3, v0, 2, 1\nv_lshl_add_u32 v2, v2, 1, v3\nv_and_b32 v3, 8, v0\nv_add_u32 v2, v2, v3")
        A("s_sub_u32 s63, 128, s40\ns_cmp_eq_u32 s40, 0\ns_cselect_b32 s63, 64, s63\ns_sub_u32 s3, s63, s40\nv_lshrrev_b32 v3, 5, v1\nv_mul_u32_u24 v240, s3, v3\nv_add_u32 v240, s40, v240")
        A("v_and_b32 v63, 16, v0\nv_lshl_add_u32 v241, v63, 6, v240\ns_lshl_b32 s41, s6, 8\nv_lshl_add_u32 v3, v2, 4, s41\nv_lshl_add_u32 v2, v241, 10, v3")
        A("s_lshl_b32 s48, s7, 18\ns_xor_b32 s49, s48, 0x20000")
        A("s_waitcnt lgkmcnt(0)")
        s.stamp(1)
        s.srd(8, 16, 2 << 20)
        s.xload(range(2))
        A("global_load_dwordx4 v[184:187], v3, s[32:33]", "gw")
        A("s_load_dword s44, s[38:39], 0")
        s.vmB = list(A.vm)
    def XR(s, j): return (224+4*j) if j < 2 else (64+4*j)
    def xload(s, js):
        for j in js: s.A("buffer_load_dwordx4 %s, v2, s[8:11], s%d offen %s" % (vr(s.XR(j), 4), 48+j, s.cfg["xnt"]), ("x", j))
    def roleB(s):
        A = s.A; cfg = s.cfg; XR = s.XR
        A.reset_counters(); A.vm = list(s.vmB)
        for j in range(2, 8): A("s_xor_b32 s%d, s48, 0x%x" % (48+j, 131072*j))
        if int(cfg["bar0"]) >= 1: A("s_barrier")
        s.xload(range(2, 8))
        if int(cfg["bar0"]) >= 2: A("s_barrier")
        s.stamp(11)
        A("v_lshrrev_b32 v56, 4, v1\nv_and_b32 v57, 15, v0\nv_and_b32 v61, 7, v0")
        A("v_bfe_u32 v160, v0, 1, 2\ns_lshl_b32 s3, s7, 2\nv_add_u32 v160, s3, v160\nv_cvt_f32_u32 v160, v160")
        A("v_cvt_f32_u32 v161, v241\nv_and_b32 v167, 1, v0\nv_cvt_f32_u32 v162, v167\nv_mul_f32 v162, 0.25, v162")
        A("v_mul_f32 v163, 0x3a000000, v160\nv_fma_f32 v165, v163, v161, v162\nv_mul_f32 v163, 0x3d800000, v160\nv_mul_f32 v166, 0x35000000, v160")
        for j in range(8):
            if j & 1: A("v_add_f32 v164, v164, v163")
            else: A("v_cvt_f32_u32 v164, s%d\nv_fma_f32 v164, v164, v166, v165" % (48+j))
            A("v_cos_f32 v%d, v164" % (168+j))
        for j in range(4): A("v_cvt_pk_bf16_f32 v%d, v%d, v%d" % (4+j, 168+2*j, 169+2*j))
        A("s_mov_b32 exec_lo, 0xff00ff00\ns_mov_b32 exec_hi, 0x00ff00ff\nv_mov_b64 v[4:5], 0\nv_mov_b64 v[6:7], 0\ns_mov_b64 exec, -1")
        A("v_and_b32 v160, 8, v0\nv_lshlrev_b32 v160, 1, v160\nv_and_b32 v161, 3, v0\nv_lshl_add_u32 v160, v161, 2, v160\nv_bfe_u32 v161, v0, 2, 1\nv_lshl_add_u32 v160, v161, 1, v160")
        A("v_bfe_u32 v161, v0, 4, 1\nv_add_u32 v160, v160, v161\nv_cvt_f32_u32 v160, v160")
        A("s_mov_b32 s62, 0x80008000\nv_mul_lo_u32 v165, v161, s62")
        A("v_bfe_u32 v161, v0, 5, 1\nv_cvt_f32_u32 v161, v161")
        A("v_mul_f32 v163, 0x3d000000, v160\nv_mul_f32 v164, 0x41000000, v161\nv_mul_f32 v164, v164, v163")
        for j in range(8):
            A("v_cos_f32 v%d, v164\nv_sin_f32 v%d, v164" % (128+j, 136+j))
            if j < 7: A("v_add_f32 v164, v164, v163")
        for j in range(4):
            A("v_cvt_pk_bf16_f32 v%d, v%d, v%d\nv_cvt_pk_bf16_f32 v%d, v%d, v%d" % (8+j, 128+2*j, 129+2*j, 16+j, 136+2*j, 137+2*j))
        for j in range(4):
            A("v_xor_b32 v%d, v165, v%d\nv_xor_b32 v%d, v165, v%d\nv_xor_b32 v%d, s62, v%d" % (12+j, 8+j, 20+j, 16+j, 24+j, 16+j))
            A("v_xor_b32 v%d, s62, v%d" % (28+j, 20+j))
        A("v_mul_f32 v163, 0x3b000000, v160\nv_mul_f32 v166, 4.0, v161\nv_mul_f32 v164, v166, v163")
        for j in range(8):
            A("v_cos_f32 v%d, v164\nv_sin_f32 v%d, v164" % (32+j, 40+j))
            if j == 3: A("v_fmamk_f32 v164, v163, 0x40a00000, v164")
            elif j < 7: A("v_add_f32 v164, v164, v163")
        A("s_cmp_eq_u32 s40, 0\ns_cselect_b32 s3, 0, 1.0\nv_mul_f32 v162, s3, v162\nv_mul_lo_u32 v165, v167, s62")
        A("v_bfe_u32 v160, v0, 1, 4\nv_cvt_f32_u32 v160, v160\nv_mul_f32 v163, 0x3d800000, v160\nv_fma_f32 v164, v166, v163, v162")
        for j in range(8):
            A("v_cos_f32 v%d, v164\nv_sin_f32 v%d, v164" % (128+j, 136+j))
            if j == 3: A("v_fmamk_f32 v164, v163, 0x40a00000, v164")
            elif j < 7: A("v_add_f32 v164, v164, v163")
        for j in range(4):
            A("v_cvt_pk_bf16_f32 v%d, v%d, v%d\nv_cvt_pk_bf16_f32 v%d, v%d, v%d" % (48+j, 128+2*j, 129+2*j, 52+j, 136+2*j, 137+2*j))
        A("s_cmp_eq_u32 s40, 0\ns_cbranch_scc1 L_b_s0")
        for j in range(8): A("v_xor_b32 v%d, v165, v%d" % (232+j, 48+j))
        A("L_b_s0back:")
        s.tail.append("L_b_s0:\nv_cmp_eq_u32 vcc, 0, v167\ns_nop 1\n" + "\n".join("v_cndmask_b32 v%d, v%d, v167, vcc\nv_cndmask_b32 v%d, 0, v%d, vcc" % (232+j, 48+j, 48+j, 48+j) for j in range(8)) + "\ns_branch L_b_s0back")
        A("v_mul_u32_u24 v2, 2064, v61\nv_and_b32 v3, 8, v0\nv_lshl_add_u32 v2, v3, 7, v2\nv_lshl_add_u32 v2, v63, 3, v2\nv_bfe_u32 v3, v0, 5, 1\nv_lshl_add_u32 v2, v3, 3, v2")
        A("v_add_u32 v2, s41, v2")
        A("v_lshlrev_b32 v3, 8, v3\nv_lshl_add_u32 v3, v63, 6, v3\nv_lshl_add_u32 v3, v57, 4, v3\ns_mul_i32 s3, s6, 4128\nv_add_u32 v3, s3, v3")
        A("v_bfe_u32 v62, v0, 2, 3\nv_lshlrev_b32 v62, 18, v62\nv_and_b32 v160, 3, v0\nv_lshl_add_u32 v62, v160, 4, v62")
        A("v_and_b32 v160, 2, v56\nv_xor_b32 v160, s40, v160\nv_and_b32 v160, 3, v160\nv_lshl_add_u32 v62, v160, 6, v62\nv_xor_b32 v63, 64, v62")
        A("s_lshl_b32 s3, s7, 2\ns_add_u32 s3, s3, s6\ns_lshl_b32 s3, s3, 6\ns_add_u32 s43, s3, s40\ns_lshl_b32 s3, s43, 8\ns_add_u32 s3, s3, %d" % W_V)
        s.addbase(28, 38, "s3")
        A("s_mov_b32 s46, 0x05040100\ns_mov_b32 s47, 0x07060302\ns_mov_b32 s62, 0xffff0000")
        s.stamp(12)
        A.wait(vm="gw")
        s.stamp(13)
        for p in range(4): A("v_lshlrev_b32 v%d, 16, v%d\nv_and_b32 v%d, s62, v%d" % (152+2*p, 184+p, 153+2*p, 184+p))
        for i in range(8): A("v_lshlrev_b32 v%d, 16, v%d\nv_and_b32 v%d, s62, v%d" % (128+2*i, 224+i, 129+2*i, 224+i))
        for i in range(8): A("v_pk_mul_f32 %s, %s, %s" % (vr(128+2*i, 2), vr(128+2*i, 2), vr(152+2*(i & 3), 2)))
        for i in range(8): A("v_cvt_pk_bf16_f32 v%d, v%d, v%d" % (144+i, 128+2*i, 129+2*i))
        for i in range(8): A("v_lshlrev_b32 v%d, 16, v%d\nv_and_b32 v%d, s62, v%d" % (128+2*i, 144+i, 129+2*i, 144+i))
        for i in range(4): A("v_pk_add_f32 %s, %s, %s" % (vr(128+4*i, 2), vr(128+4*i, 2), vr(130+4*i, 2)))
        for i in range(2): A("v_pk_add_f32 %s, %s, %s" % (vr(128+8*i, 2), vr(128+8*i, 2), vr(132+8*i, 2)))
        for i in range(2): A("v_add_f32 v%d, v%d, v%d" % (144+i, 128+8*i, 129+8*i))
        perm = lambda jj, c: A("v_perm_b32 v%d, v%d, v%d, s%d" % (96+4*c+jj, XR(2*jj+1)+(c >> 1), XR(2*jj)+(c >> 1), 46+(c & 1)))
        for n, sh in enumerate((8, 4, 2, 1)):
            perm(0, 2*n); perm(0, 2*n+1)
            for r in range(2): A("v_add_f32_dpp v%d, v%d, v%d row_ror:%d row_mask:0xf bank_mask:0xf" % (144+r, 144+r, 144+r, sh))
        A("s_lshl_b32 s3, s6, 2\ns_add_u32 s3, s3, %d\nv_lshl_add_u32 v146, v56, 5, s3" % GL)
        A("ds_write2_b32 v146, v144, v145 offset0:0 offset1:4")
        for jj in range(1, 4):
            A.wait(vm=("x", 2*jj+1))
            if jj == 3: s.stamp(2)
            if jj == 1: s.stamp(14)
            for c in range(8):
                perm(jj, c)
                if jj == 3 and c >= 2: A("v_mfma_f32_16x16x32_bf16 %s, %s, v[4:7], 0" % (vr(128+4*(c-2), 4), vr(96+4*(c-2), 4)))
        for c in (6, 7): A("v_mfma_f32_16x16x32_bf16 %s, %s, v[4:7], 0" % (vr(128+4*c, 4), vr(96+4*c, 4)))
        for c in range(8):
            A("v_cvt_pk_bf16_f32 v%d, v%d, v%d\nv_cvt_pk_bf16_f32 v%d, v%d, v%d" % (160+2*c, 128+4*c, 129+4*c, 161+2*c, 130+4*c, 131+4*c))
            A("ds_write_b64 v2, %s offset:%d" % (vr(160+2*c, 2), X1+16*c))
        A("s_waitcnt lgkmcnt(0)\ns_barrier")
        s.stamp(3)
        for ri in range(2):
            for ks in range(2):
                A("ds_read_b128 %s, v3 offset:%d" % (vr(64+8*ri+4*ks, 4), X1+ri*2064+ks*512), ("a", ri, ks))
        A("v_lshlrev_b32 v2, 4, v61\nv_add_u32 v2, %d, v2\nds_read_b128 v[188:191], v2" % GL, "gp")
        s.tags()
        RE, IM = 96, 112
        first = True
        for ri in range(2):
            for ks in range(2):
                A.wait(lg=("a", ri, ks))
                a = vr(64+8*ri+4*ks, 4)
                bre = (8 if ri == 0 else 16)+4*ks; bim = (24 if ri == 0 else 8)+4*ks
                A("v_mfma_f32_32x32x16_bf16 %s, %s, %s, %s" % (vr(RE, 16), a, vr(bre, 4), "0" if first else vr(RE, 16)))
                A("v_mfma_f32_32x32x16_bf16 %s, %s, %s, %s" % (vr(IM, 16), a, vr(bim, 4), "0" if first else vr(IM, 16)))
                first = False
        A.wait(lg="gp")
        A("v_pk_add_f32 v[188:189], v[188:189], v[190:191]\nv_add_f32 v188, v188, v189")
        A("v_cvt_pk_bf16_f32 v188, 0, v188\nv_mul_f32 v188, 0xbfb8aa3b, v188\nv_exp_f32 v188, v188\nv_mov_b32 v189, s44\nv_add_f32 v188, 1.0, v188\nv_rcp_f32 v188, v188")
        A("s_nop 0\nv_cvt_pk_bf16_f32 v188, 0, v188\nv_sub_f32 v190, 1.0, v188\nv_cvt_pk_bf16_f32 v188, v190, v188")
        for row in range(2):
            for p in range(4):
                o = 8*row+2*p
                A("v_pk_mul_f32 %s, %s, %s" % (vr(128+o, 2), vr(RE+o, 2), vr(32+2*p, 2)))
            for p in range(4):
                o = 8*row+2*p
                A("v_pk_mul_f32 %s, %s, %s" % (vr(144+o, 2), vr(IM+o, 2), vr(32+2*p, 2)))
            for p in range(4):
                o = 8*row+2*p
                A("v_pk_fma_f32 %s, %s, %s, %s" % (vr(128+o, 2), vr(IM+o, 2), vr(40+2*p, 2), vr(128+o, 2)))
            for p in range(4):
                o = 8*row+2*p
                A("v_pk_fma_f32 %s, %s, %s, %s neg_lo:[1,0,0] neg_hi:[1,0,0]" % (vr(144+o, 2), vr(RE+o, 2), vr(40+2*p, 2), vr(144+o, 2)))
            for ri in range(2):
                for p in range(4):
                    o = 128+16*ri+8*row+2*p
                    A("v_cvt_pk_bf16_f32 v%d, v%d, v%d" % (160+8*row+4*ri+p, o, o+1))
            d = vr(64, 16); cb = 232 if row else 48
            A("v_mfma_f32_32x32x16_bf16 %s, %s, %s, %s" % (d, vr(160+8*row, 4), vr(cb, 4), d if row else "0"))
            A("v_mfma_f32_32x32x16_bf16 %s, %s, %s, %s" % (d, vr(164+8*row, 4), vr(cb+4, 4), d))
        A("s_lshl_b32 s3, s6, 5\ns_lshr_b32 s41, s5, 4\ns_add_u32 s3, s3, s41\nv_lshl_add_u32 v128, v57, 1, s3\nv_cvt_f32_u32 v128, v128\nv_mul_f32 v131, 0x3c000000, v128")
        A("v_cvt_f32_u32 v129, v56\nv_add_f32 v129, v129, v129\nv_mul_f32 v132, v129, v131")
        for io in range(2):
            for p in range(4):
                o = 64+8*io+2*p
                A("v_cvt_pk_bf16_f32 v%d, v%d, v%d" % (208+4*io+p, o, o+1))
            A("global_store_dwordx4 v%d, %s, s[28:29] sc1" % (62+io, vr(208+4*io, 4)), "vst")
        s.stamp(4)
        for i in range(16):
            A("v_cos_f32 v134, v132\nv_sin_f32 v135, v132")
            if i < 15: A("v_fmamk_f32 v132, v131, 0x40e00000, v132" if i & 1 else "v_add_f32 v132, v132, v131")
            A("v_cvt_pk_bf16_f32 v%d, v134, v135" % (4+i))
        A("s_lshl_b32 s41, s41, 31\ns_or_b32 s41, s41, 0x3f803f80\ns_mov_b64 exec, 0xffff\nv_mov_b32 v4, s41\ns_mov_b64 exec, -1")
        A("s_sub_u32 s3, s63, s40\nv_bfe_u32 v2, v0, 2, 1\nv_mul_u32_u24 v2, s3, v2\nv_add_u32 v2, s40, v2\nv_and_b32 v3, 31, v2\nv_lshrrev_b32 v2, 5, v2\nv_lshl_add_u32 v2, v3, 6, v2")
        A("v_and_b32 v3, 2, v0\nv_lshl_add_u32 v2, v3, 4, v2\nv_and_b32 v3, 1, v0\nv_lshl_add_u32 v2, v3, 2, v2\ns_lshl_b32 s3, s7, 6\nv_lshl_add_u32 v2, v2, 3, s3")
        s.addbase(28, 38, "%d" % W_G)
        A("s_lshl_b32 s3, s5, 9\nv_lshrrev_b32 v3, 2, v0\nv_lshl_add_u32 v3, v3, 3, s3")
        s.addbase(60, 38, "%d" % W_FV)
        A("s_lshl_b32 s3, s43, 7\nv_mov_b32 v59, s3\ns_and_b32 s43, s5, 15\ns_lshl_b32 s3, s43, 2\ns_add_u32 s3, s3, s6\ns_lshl_b32 s3, s3, 11\nv_lshl_add_u32 v60, v57, 7, s3")
        def vflag():
            A("s_mov_b64 exec, 1\nglobal_store_dword v59, v189, s[60:61] sc1")
            A("s_cmp_lg_u32 s6, 0\ns_cbranch_scc1 L_b_ng\ns_mov_b64 exec, 0xff")
            A.raw("global_store_dwordx2 v2, v[188:189], s[28:29] sc1")
            A("L_b_ng:\ns_mov_b64 exec, -1")
        if cfg["vflag"] == "early":
            A("s_waitcnt vmcnt(0)"); vflag()
        A("s_lshl_b32 s3, s5, 10\ns_lshl_b32 s41, s6, 19\ns_add_u32 s3, s3, s41\ns_lshl_b32 s41, s4, 7\ns_add_u32 s3, s3, s41")
        A("v_lshlrev_b32 v58, 17, v56\nv_lshl_add_u32 v58, v57, 3, v58\nv_add_u32 v58, s3, v58")
        A("s_mov_b32 s56, 0x8000\ns_mov_b32 s57, 0x18000\ns_mov_b32 s42, 0x10000")
        qso = ["0", "s56", "s42", "s57"]
        s.srd(12, 34, 2 << 20)
        A("v_bfe_u32 v24, v0, 3, 3\nv_lshlrev_b32 v20, 8, v24\nv_and_b32 v24, 3, v24\nv_lshl_add_u32 v20, v24, 6, v20")
        A("v_and_b32 v24, 2, v0\nv_lshl_add_u32 v20, v24, 4, v20\nv_and_b32 v24, 4, v0\nv_lshl_add_u32 v20, v24, 2, v20\nv_and_b32 v24, 1, v0\nv_lshl_add_u32 v20, v24, 3, v20\nv_add_u32 v20, %d, v20" % VL)
        for nu in range(1, 4): A("v_xor_b32 v%d, %d, v20" % (20+nu, 64*nu))
        A("s_lshl_b32 s3, s6, 12\nv_lshl_add_u32 v24, v1, 4, s3\ns_add_u32 s3, s3, %d\ns_mov_b32 m0, s3" % VL)
        A("s_lshl_b32 s3, s4, 4\ns_add_u32 s3, s3, s43\ns_lshl_b32 s3, s3, 14\ns_add_u32 s3, s3, %d" % W_V); s.addbase(30, 38, "s3")
        A("v_lshrrev_b32 v25, 2, v1\nv_lshlrev_b32 v25, 14, v25\nv_and_b32 v26, 2, v56\nv_xor_b32 v26, v26, v0\nv_and_b32 v26, 3, v26\nv_lshl_add_u32 v25, v26, 4, v25")
        A("s_lshl_b32 s3, s4, 18\ns_lshl_b32 s41, s5, 8\ns_add_u32 s3, s3, s41\ns_lshl_b32 s41, s6, 6\ns_add_u32 s3, s3, s41\ns_add_u32 s3, s3, %d" % W_R)
        s.addbase(52, 38, "s3"); s.addbase(54, 52, "0x1c00")
        A("v_bfe_u32 v26, v0, 2, 2\nv_and_b32 v26, 2, v26\nv_xor_b32 v26, v26, v56\nv_lshlrev_b32 v26, 4, v26\nv_lshl_add_u32 v26, v57, 6, v26\ns_lshl_b32 s41, s6, 11\nv_add_u32 v26, s41, v26")
        A("s_lshl_b32 s3, s4, 11\ns_lshl_b32 s43, s7, 7\ns_add_u32 s3, s3, s43\ns_add_u32 s3, s3, %d" % (W_C+512)); s.addbase(58, 38, "s3")
        A("v_and_b32 v28, 31, v0\nv_lshlrev_b32 v28, 2, v28")
        if cfg["vflag"] != "early": A("s_waitcnt vmcnt(0)")
        s.stamp(5)
        A("s_barrier")
        if cfg["vflag"] != "early": vflag()
        QF = 192
        for r in range(4): A("buffer_load_dwordx2 %s, v58, s[8:11], %s offen %s" % (vr(176+2*r, 2), qso[r], cfg["qnt"]), "q")
        s.poll("L_b_pv", 27, 60, 60, 44, sleep=int(cfg["vsleep"]), masked=True)
        s.stamp(6)
        for i in range(4): A("global_load_lds_dwordx4 v24, s[30:31] offset:%d sc1" % (1024*i), "vd")
        A("L_b_pg:\nglobal_load_dwordx2 v[144:145], v3, s[28:29] sc1")
        for i in range(8): A("v_lshlrev_b32 v%d, 16, v%d\nv_and_b32 v%d, s62, v%d" % (QF+2*i, 176+i, QF+2*i+1, 176+i))
        A("s_or_b32 s43, s2, s6\ns_cbranch_scc0 L_b_all")
        def allflags():
            A("L_b_all:\nv_lshlrev_b32 v32, 7, v1")
            for t in range(1, 4): A("v_add_u32 v%d, %d, v32" % (32+t, t*4*64*128))
            A("L_b_pa:")
            for t in range(4): A("global_load_dword v%d, v%d, s[60:61] sc1" % (36+t, 32+t))
            A("s_waitcnt vmcnt(0)")
            for t in range(4): A("v_xor_b32 v%d, s44, v%d" % (36+t, 36+t))
            A("v_or3_b32 v36, v36, v37, v38\nv_or_b32 v36, v36, v39\nv_cmp_ne_u32 vcc, 0, v36\ns_cbranch_vccz L_b_pa_ok\ns_mov_b64 exec, vcc")
            A("s_sleep 4\ns_add_u32 s3, s3, 1\ns_cmp_lt_u32 s3, %d\ns_cbranch_scc1 L_b_pa" % SPIN)
            A("L_b_pa_ok:\ns_mov_b64 exec, 1\nv_mov_b32 v29, 0\nglobal_store_dword v29, v189, s[38:39] sc1\ns_mov_b64 exec, -1\ns_branch L_b_allback")
        s.side(allflags)
        A("s_waitcnt vmcnt(0)\nL_b_allback:\nv_cmp_ne_u32 vcc, s44, v145\ns_cbranch_vccnz L_b_gmiss\nL_b_gok:")
        s.tail.append("L_b_gmiss:\ns_add_u32 s3, s3, 1\ns_cmp_lt_u32 s3, %d\ns_cbranch_scc0 L_b_gok\ns_sleep 2\nglobal_load_dwordx2 v[144:145], v3, s[28:29] sc1\ns_waitcnt vmcnt(0)\nv_cmp_ne_u32 vcc, s44, v145\ns_cbranch_vccnz L_b_gmiss\ns_branch L_b_gok" % SPIN)
        A("v_lshlrev_b32 v145, 16, v144\nv_and_b32 v144, s62, v144")
        A("s_add_u32 s3, s41, %d\ns_mov_b32 m0, s3" % YL)
        for r in range(4):
            for nu in range(4):
                A("v_mul_f32_dpp v%d, v144, v%d row_newbcast:%d row_mask:0xf bank_mask:0xf" % (QF+4*r+nu, QF+4*r+nu, 4*r))
        s.stamp(7)
        A("s_barrier")
        VF = lambda nu, k: 64+16*nu+4*k
        def fin(nu):
            for k in range(4):
                A.wait(lg=("t", nu, k))
                acc = vr(128+4*nu, 4)
                A("v_mfma_f32_16x16x32_bf16 %s, %s, %s, %s" % (acc, vr(4+4*k, 4), vr(VF(nu, k), 4), acc if k else "0"))
        def scale(nu):
            for r in range(4):
                A("v_mul_f32_dpp v%d, v145, v%d row_newbcast:%d row_mask:0xf bank_mask:0xf" % (160+4*r+nu, 128+4*nu+r, 4*r))
        for nu in range(4):
            for k in range(4):
                for jj in range(2):
                    A("ds_read_b64_tr_b16 %s, v%d offset:%d" % (vr(VF(nu, k)+2*jj, 2), 20+nu, 4096*k+2048*jj), ("t", nu, k))
            if nu >= 1: fin(nu-1)
        fin(3)
        for nu in range(4): scale(nu)
        s.stamp(8)
        A("s_mov_b32 s3, 0")
        A("L_b_py:\nglobal_load_dword v27, v28, s[58:59] sc1\ns_waitcnt vmcnt(0)\nv_cmp_ne_u32 vcc, s45, v27\ns_cbranch_vccnz L_b_ymiss\nL_b_py_ok:")
        def ymiss():
            A("L_b_ymiss:\ns_add_u32 s3, s3, 1\ns_cmp_lt_u32 s3, %d\ns_cbranch_scc1 L_b_py" % NEAR_TRIES)
            A("L_b_pyf:\nglobal_load_dword v27, v28, s[58:59] sc1\nglobal_load_dword v29, v28, s[58:59] offset:1024 sc1\ns_waitcnt vmcnt(0)")
            A("v_cmp_ne_u32 vcc, s45, v27\ns_cbranch_vccz L_b_py_ok\nv_cmp_ne_u32 vcc, s44, v29\ns_cbranch_vccz L_b_isfar")
            A("s_sleep 8\ns_add_u32 s3, s3, 1\ns_cmp_lt_u32 s3, %d\ns_cbranch_scc1 L_b_pyf" % SPIN)
            A("L_b_isfar:\nv_add_u32 v25, %d, v25\ns_branch L_b_py_ok" % FAR)
        s.side(ymiss)
        s.stamp(9)
        A("global_load_lds_dwordx4 v25, s[52:53] sc1", ("yd", 0))
        A("global_load_lds_dwordx4 v25, s[54:55] offset:1024 sc1", ("yd", 1))
        for pp in range(2):
            A.wait(vm=("yd", pp))
            A("ds_read_b128 %s, v26 offset:%d" % (vr(64+4*pp, 4), YL+1024*pp), ("y", pp))
        for pp in range(2):
            A.wait(lg=("y", pp))
            if pp: s.stamp(10)
            for r in range(4):
                o = 4*r+2*pp
                A("v_lshlrev_b32 v%d, 16, v%d\nv_and_b32 v%d, s62, v%d" % (72+o, 64+4*pp+r, 73+o, 64+4*pp+r))
                A("v_pk_fma_f32 %s, %s, %s, %s" % (vr(160+o, 2), vr(QF+o, 2), vr(72+o, 2), vr(160+o, 2)))
                A("v_cvt_pk_bf16_f32 v%d, v%d, v%d" % (96+2*r+pp, 160+o, 161+o))
                if pp: A("buffer_store_dwordx2 %s, v58, s[12:15], %s offen %s" % (vr(96+2*r, 2), qso[r], cfg["ont"]))
        s.stamps_out(0, 16)
        A("L_end:\ns_endpgm")

    def build(s):
        A = s.A
        A.raw("; @launch grid=(256,1,1) block=(512,1,1) lds=%d" % LDS)
        A.raw('.amdgcn_target "amdgcn-amd-amdhsa--gfx950"\n.text\n.globl %s\n.p2align 8\n.type %s,@function\n%s:' % (KN, KN, KN))
        s.prologue()
        h1, h2, b1, b2 = (s.roleA_head, s.roleB_head, s.roleA, s.roleB) if s.cfg["first"] == "A" else (s.roleB_head, s.roleA_head, s.roleB, s.roleA)
        h1(); A("s_branch L_body1\nL_role2:"); h2(); b2(); A("L_body1:"); b1()
        for t in s.tail: A(t)
        A.raw(".p2align 8\n.fill 4096, 4, 0xbf810000")
        A.raw('.section .rodata,"a"\n.p2align 6\n.amdhsa_kernel %s\n.amdhsa_next_free_vgpr 256\n.amdhsa_next_free_sgpr 102\n.amdhsa_accum_offset 256\n.amdhsa_group_segment_fixed_size 0\n.amdhsa_kernarg_size 120\n.amdhsa_user_sgpr_count 2\n.amdhsa_user_sgpr_kernarg_segment_ptr 1\n.amdhsa_system_sgpr_workgroup_id_x 1\n.end_amdhsa_kernel' % KN)
        return A.finish()

if __name__ == "__main__":
    out = sys.argv[1]
    cfg = {}
    for a in sys.argv[2:]:
        k, v = a.split("=")
        cfg[k] = {"True": True, "False": False}.get(v, v)
    g = G(**cfg)
    open(out, "w").write(g.build())
    print(out, "nops inserted", g.A.nops, file=sys.stderr)
```

```python
import sys
from dsl import Asm
KN = "gated_mix__ssm_conv_h3__spectral_fnet__prompt_kernel"
W_E   = 0
W_C   = 4096
W_M   = 0x20000
W_R   = 0x100000
W_V   = 0x400000
FAR   = 0x700000
STAMP_OFF = 200<<20
LCG_A, LCG_C = 1664525, 1013904223
UL = 0; HL = 9216; RED = HL + 16640; X1 = RED + 4*8448; VL = X1; GL = RED + 24576; YL = HL; CL = RED + 8192; LDS = X1 + 32768
SPIN = 40000
NEAR_TRIES = 24

def vr(a, n): return "v[%d:%d]" % (a, a+n-1)

class G:
    def __init__(s, **cfg):
        s.cfg = dict(stamps=False, nt=" nt", pre=True, xnt="nt", qnt="nt", prent="nt", ont="", vsleep=2, bar0=1, first="B", vat=1, hat=1, pat=1, bxat=9, hpre=2, gat="late", vmode="early", seq="gHfakBmqc.b", seqA="dfpHxy", dec=False, xfirst=False, ypre=0, mpre=False, kpk=False, upk=False,
                     vflag="after", prioA=1, prioB=2, prioC=0, far=False)
        s.cfg.update(cfg)
        s.A = Asm(); s.tail = []
    def stamp(s, i):
        if s.cfg["stamps"]: s.A("%s s[%d:%d]" % ("s_memtime" if s.cfg.get("clk") else "s_memrealtime", 64+2*i, 65+2*i))
    def stamps_out(s, role, n):
        if not s.cfg["stamps"]: return
        A = s.A
        A("s_waitcnt vmcnt(0) lgkmcnt(0)")
        s.stamp(n-1)
        A("s_waitcnt lgkmcnt(0)")
        A("s_cmp_lg_u32 s6, %d\ns_cbranch_scc1 L_end" % int(s.cfg.get("sw", 0)))
        if s.cfg.get("probe"):
            pr, pi = [int(x) for x in s.cfg["probe"].split(".")]
            if pr == role:
                if s.cfg.get("wb"): A("s_sleep 100\nbuffer_wbl2 sc1\ns_waitcnt vmcnt(0)")
                A("s_sub_u32 s3, s%d, s64\ns_lshl_b32 s3, s3, 2\ns_add_u32 s3, s3, 5000" % (64+2*pi))
                A("L_probe:\ns_memrealtime s[40:41]\ns_waitcnt lgkmcnt(0)\ns_sub_u32 s40, s40, s64\ns_cmp_lt_u32 s40, s3\ns_cbranch_scc1 L_probe")
            return
        A("s_add_u32 s38, s38, %d\ns_addc_u32 s39, s39, 0" % (STAMP_OFF + role*256*128))
        A("s_lshl_b32 s3, s2, 7\nv_mov_b32 v1, s3\ns_mov_b64 exec, 1")
        for j in range(n):
            A("v_mov_b32 v2, s%d\nv_mov_b32 v3, s%d\nglobal_store_dwordx2 v1, v[2:3], s[38:39] offset:%d\ns_nop 1" % (64+2*j, 65+2*j, 8*j))
    def side(s, fn):
        A = s.A; sv = (list(A.vm), list(A.lg)); keep = A.L; A.L = []
        fn()
        s.tail.append("\n".join(i.text for i in A.L)); A.L = keep; A.vm, A.lg = sv
    def poll(s, name, vdst, vaddr, sbase, snonce, sleep=0, masked=False, off=0):
        A = s.A
        A("s_mov_b32 s3, 0")
        A("%s:" % name)
        A("global_load_dword v%d, v%d, s[%d:%d] offset:%d sc1" % (vdst, vaddr, sbase, sbase+1, off))
        A("s_waitcnt vmcnt(0)")
        A("v_cmp_ne_u32 vcc, s%d, v%d" % (snonce, vdst))
        A("s_cbranch_vccz %s_ok" % name)
        if masked: A("s_mov_b64 exec, vcc")
        if sleep: A("s_sleep %d" % sleep)
        A("s_add_u32 s3, s3, 1\ns_cmp_lt_u32 s3, %d\ns_cbranch_scc1 %s" % (SPIN, name))
        A("%s_ok:" % name)
        if masked: A("s_mov_b64 exec, -1")
    def srd(s, d, base, size):
        s.A("s_mov_b32 s%d, s%d\ns_mov_b32 s%d, s%d\ns_mov_b32 s%d, 0x%x\ns_mov_b32 s%d, 0x20000" % (d, base, d+1, base+1, d+2, size, d+3))
    def addbase(s, d, base, soff):
        s.A("s_add_u32 s%d, s%d, %s\ns_addc_u32 s%d, s%d, 0" % (d, base, soff, d+1, base+1))
    def tags(s):
        s.A("s_getreg_b32 s3, hwreg(HW_REG_XCC_ID, 0, 4)\ns_mul_i32 s44, s44, %d\ns_add_u32 s44, s44, %d\ns_add_u32 s45, s44, s3\ns_add_u32 s45, s45, 1" % (LCG_A, LCG_C))

    def prologue(s):
        A = s.A
        s.stamp(0)
        A("s_load_dwordx16 s[16:31], s[0:1], 0\ns_load_dwordx8 s[32:39], s[0:1], 88")
        A("s_cmp_ge_u32 s2, 256\ns_cbranch_scc1 L_end")
        A("s_getpc_b64 s[40:41]")
        A("s_and_b32 s4, s2, 7\ns_lshr_b32 s5, s2, 3")
        A("v_lshrrev_b32 v2, 6, v0\ns_lshl_b32 s3, s5, 9\nv_lshl_add_u32 v1, v2, 6, s3\nv_readfirstlane_b32 s7, v2")
        A("global_load_dword v255, v1, s[40:41]", "pf")
        A("v_and_b32 v1, 63, v0\nv_and_b32 v0, 255, v0\ns_and_b32 s6, s7, 3")
        A("s_cmp_ge_u32 s7, 4\ns_cbranch_scc1 L_role2")

    def roleA_head(s):
        A = s.A; cfg = s.cfg; nt = cfg["nt"]
        A.reset_counters(); A.vm = ["pf"]
        A("s_lshl_b32 s40, s5, 16\ns_lshl_b32 s3, s4, 7\ns_add_u32 s40, s40, s3")
        A("v_lshrrev_b32 v3, 5, v0\nv_and_b32 v4, 31, v0\nv_lshl_add_u32 v3, v3, 13, s40\nv_lshl_add_u32 v2, v4, 2, v3\nv_add_u32 v3, -3072, v2")
        A("s_lshl_b32 s3, s4, 9\nv_lshl_add_u32 v5, v4, 4, s3")
        A("s_lshl_b32 s41, s4, 5\ns_add_u32 s41, s41, s5")
        A("s_lshl_b32 s42, s41, 13\ns_add_u32 s43, s42, 4096\ns_lshl_b32 s41, s41, 2\ns_movk_i32 s7, 4096\nv_mov_b32 v45, 0\nv_mov_b32 v49, s41")
        A("s_mov_b32 s10, 0x200000\ns_mov_b32 s11, 0x20000\ns_mov_b32 s50, 0x200000\ns_mov_b32 s51, 0x20000")
        A("s_waitcnt lgkmcnt(0)")
        s.stamp(1)
        A("s_mov_b64 s[8:9], s[18:19]")
        if cfg["xfirst"]: A("s_barrier")
        for i in range(3): A("buffer_load_dword v%d, v3, s[8:11], 0 offen offset:%d%s" % (10+i, 1024*i, nt), "k")
        for i in range(8): A("buffer_load_dword v%d, v2, s[8:11], %s offen offset:%d%s" % (13+i, "s7" if i >= 4 else "0", 1024*(i & 3), nt), "k")
        A("global_load_dwordx4 v[30:33], v5, s[22:23]", "k")
        A("global_load_dword v9, v45, s[38:39] sc1", "k")
        A("global_load_dword v49, v49, s[26:27]", "k")
        s.vmA = list(A.vm)
    def roleA(s):
        A = s.A; cfg = s.cfg; nt = cfg["nt"]
        A.reset_counters(); A.vm = list(s.vmA)
        KR, VR = 10, 22
        MASK = "0xffff0000"
        A("s_mov_b64 s[48:49], s[24:25]"); s.addbase(20, 20, "s7")
        A("s_add_u32 s3, s42, %d" % W_R); s.addbase(52, 38, "s3")
        A("s_lshl_b32 s3, s4, 11\ns_add_u32 s3, s3, %d" % W_C); s.addbase(58, 38, "s3")
        A("v_lshlrev_b32 v46, 2, v0\nv_lshlrev_b32 v6, 4, v0\nv_add_u32 v252, v6, v6")
        def loads(at):
            if int(cfg["vat"]) == at:
                for i in range(8): A("global_load_dword v%d, v2, s[20:21] offset:%d%s" % (VR+i, 1024*i-4096, nt), ("v", i))
            if int(cfg["hat"]) == at:
                A("buffer_load_dwordx4 v[36:39], v6, s[48:51], s42 offen offset:4" + nt, "h")
                A("buffer_load_dwordx4 v[40:43], v6, s[48:51], s43 offen offset:4" + nt, "h")
                A("buffer_load_dword v34, v6, s[48:51], s42 offen" + nt, "h")
                A("buffer_load_dword v35, v6, s[48:51], s43 offen" + nt, "h")
            if int(cfg["pat"]) == at:
                A("global_load_dword v253, v46, s[58:59] sc1", "pre")
                if cfg["pre"]: A("global_load_dword v254, v252, s[52:53] sc1 " + cfg["prent"], "pre")
        loads(0)
        A("ds_write_b32 v46, v45 offset:%d" % UL)
        A("s_mul_i32 s3, s6, 4160\nv_min_u32 v48, 6, v1\nv_lshl_add_u32 v47, v48, 2, s3\nds_write_b32 v47, v45 offset:%d" % HL)
        A("s_lshl_b32 s47, s6, 11\ns_lshl_b32 s60, s5, 2\ns_add_u32 s60, s60, s6\ns_lshl_b32 s3, s60, 6\ns_lshl_b32 s61, s4, 18\ns_add_u32 s3, s3, s61\ns_add_u32 s3, s3, %d" % W_R)
        s.addbase(54, 38, "s3"); s.addbase(56, 54, "0x20000")
        A("v_lshlrev_b32 v44, 3, v1\nv_lshrrev_b32 v47, 1, v1\nv_and_b32 v47, 16, v47\nv_and_b32 v48, 48, v44\nv_xor_b32 v47, v47, v48\nv_lshl_add_u32 v47, v4, 6, v47")
        A("v_add_u32 v47, s47, v47\nv_xor_b32 v48, 32, v47\nv_lshl_add_u32 v21, v1, 4, s47")
        A("v_add_u32 v8, v1, v1\nv_xor_b32 v8, v8, v6\ns_lshl_b32 s3, s5, 4\nv_xor_b32 v8, s3, v8\nv_and_b32 v8, 48, v8\nv_and_b32 v5, 60, v1\nv_lshl_add_u32 v8, v5, 11, v8")
        A("s_lshl_b32 s60, s60, 2\nv_mov_b32 v7, s60\ns_add_u32 m0, s47, %d" % (UL+1024))
        A("s_waitcnt lgkmcnt(0)\ns_barrier")
        if int(cfg["prioA"]): A("s_setprio %d" % int(cfg["prioA"]))
        loads(1)
        s.stamp(11)
        if int(cfg["bxat"]) == -1: A("s_barrier")
        KP, W, S, VP = 50, 72, 80, 96
        A.wait(vm="k")
        s.stamp(2)
        for t in range(4):
            for c in range(2):
                src = 30 + 2*c + (t >> 1)
                A(("v_and_b32 v%d, " + MASK + ", v%d" if t & 1 else "v_lshlrev_b32 v%d, 16, v%d") % (W+2*t+c, src))
        for i in range(11):
            A("v_lshlrev_b32 v%d, 16, v%d\nv_and_b32 v%d, %s, v%d" % (KP+2*i, KR+i, KP+2*i+1, MASK, KR+i))
        for t in (3, 2, 1, 0):
            for r in range(8):
                if cfg["kpk"]:
                    k = vr(KP+2*(r+3-t), 2); w = vr(W+2*t, 2); d = vr(S+2*r, 2)
                    A("v_pk_mul_f32 %s, %s, %s" % (d, k, w) if t == 3 else "v_pk_fma_f32 %s, %s, %s, %s" % (d, k, w, d))
                else:
                    for c in range(2): A("%s v%d, v%d, v%d" % ("v_mul_f32" if t == 3 else "v_fmac_f32", S+2*r+c, KP+2*(r+3-t)+c, W+2*t+c))
        loads(2)
        s.stamp(12)
        if int(cfg["bxat"]) == 0: A("s_barrier")
        for r in range(8):
            if r in (0, 4): A.wait(vm=("v", r+3))
            if r == 4: s.stamp(10)
            A("v_lshlrev_b32 v%d, 16, v%d\nv_and_b32 v%d, %s, v%d" % (VP+2*r, VR+r, VP+2*r+1, MASK, VR+r))
            if cfg["upk"]: A("v_pk_mul_f32 %s, %s, %s" % (vr(S+2*r, 2), vr(S+2*r, 2), vr(VP+2*r, 2)))
            else:
                for c in range(2): A("v_mul_f32 v%d, v%d, v%d" % (S+2*r+c, S+2*r+c, VP+2*r+c))
            if r & 1:
                j = (7-r)//2
                for c in range(2): A("v_cvt_pk_bf16_f32 v%d, v%d, v%d" % (112+4*c+j, S+2*r+c, S+2*(r-1)+c))
        for c in range(2): A("ds_write_b128 v%d, %s offset:%d" % (47+c, vr(112+4*c, 4), RED))
        A("ds_read_b128 v[240:243], v21 offset:%d" % RED, "sh0")
        A("ds_read_b128 v[244:247], v21 offset:%d" % (RED+1024), "sh1")
        A("v_readfirstlane_b32 s44, v9\nv_readfirstlane_b32 s46, v49\ns_mov_b32 s96, 0")
        s.tags()
        A("v_mov_b32 v9, s45\nv_mov_b32 v20, v44")
        A("s_lshr_b32 s61, s6, 1\ns_mul_i32 s7, s61, 7808\ns_lshl_b32 s41, s6, 8\ns_add_u32 s7, s7, s41\ns_add_u32 s7, s7, %d" % HL)
        A("v_and_b32 v10, 1, v0\nv_mul_u32_u24 v10, 4158, v10\nv_lshl_add_u32 v10, v1, 1, v10\nv_add_u32 v10, s7, v10")
        ust = ["global_store_dwordx4 v8, v[240:243], s[54:55]", "global_store_dwordx4 v8, v[244:247], s[56:57]"]
        A.wait(lg="sh0"); A(ust[0], "ust")
        A.wait(lg="sh1"); A(ust[1], "ust")
        s.stamp(3)
        A.wait(vm="h")
        s.stamp(9)
        for c in range(2):
            d = [34+c] + [36+4*c+k for k in range(4)]
            A("ds_write_b128 v6, %s offset:%d" % (vr(36+4*c, 4), HL+c*8320+4160+32))
            for k in range(4): A("v_alignbit_b32 v%d, v%d, v%d, 16" % (50+4*c+k, d[k+1], d[k]))
            A("ds_write_b128 v6, %s offset:%d" % (vr(50+4*c, 4), HL+c*8320+32))
        A("s_cmp_eq_u32 s6, 0\ns_cbranch_scc1 L_a_h0\nL_a_h0back:")
        def h0():
            A("L_a_h0:\ns_mov_b32 s62, 0xffff0000\ns_lshl_b32 s3, s46, 16\ns_and_b32 s7, s46, s62\ns_mov_b64 exec, 1")
            for c in range(2):
                A("v_lshlrev_b32 v60, 16, v%d\nv_add_f32 v60, %s, v60\nv_cvt_pk_bf16_f32 v60, v60, v60" % (34+c, "s7" if c else "s3"))
                A("v_bfi_b32 v%d, s62, v%d, v60\nv_and_b32 v%d, s62, v60" % (62+2*c, 34+c, 61+2*c))
                A("ds_write_b32 v6, v%d offset:%d" % (61+2*c, HL+c*8320+28))
                A("ds_write_b32 v6, v%d offset:%d" % (62+2*c, HL+c*8320+4160+28))
            A("s_mov_b64 exec, -1\ns_branch L_a_h0back")
        s.side(h0)
        for i in range(1, 4): A("v_add_u32 v%d, %d, v10" % (10+i, 1024*i))
        HB = lambda q: 32+32*q
        UB = lambda q: 160+32*(q & 1)
        ACC = 224
        def hread(q, a, half):
            bb, hf = q >> 1, q & 1
            o = 128*(a & 1)+32*bb+4*hf+2*half
            A("ds_read2_b32 %s, v%d offset0:%d offset1:%d" % (vr(HB(q)+4*a+2*half, 2), 10+(a >> 1), o, o+1), ("f", q, a))
        def uread(q, z):
            A("ds_read_b128 %s, v%d offset:%d" % (vr(UB(q)+4*z, 4), 14+q, UL+1024*z), ("f", q, z))
        npre = int(cfg["hpre"])
        def hpre(qs):
            for q in qs:
                for a in range(8): hread(q, a, 0); hread(q, a, 1)
        def addr2():
            A("v_and_b32 v18, 3, v0\nv_bfe_u32 v19, v0, 2, 1\nv_lshl_add_u32 v18, v18, 1, v19\nv_and_b32 v19, 8, v0\nv_lshrrev_b32 v5, 4, v1\nv_sub_u32 v19, v19, v5")
            A("s_and_b32 s41, s6, 1\ns_lshl_b32 s41, s41, 3\ns_sub_u32 s41, 16, s41\nv_add3_u32 v18, v18, v19, s41\ns_lshl_b32 s3, s61, 5\ns_add_u32 s3, s3, 16")
            for bb in range(2):
                if bb: A("v_add_u32 v18, -4, v18")
                A("v_lshlrev_b32 v19, 2, v18\nv_xor_b32 v19, s3, v19\nv_and_b32 v19, 48, v19\nv_lshl_add_u32 v%d, v18, 6, v19" % (14+2*bb))
                A("v_xor_b32 v%d, 16, v%d" % (15+2*bb, 14+2*bb))
            A("s_mul_i32 s3, s6, 8448\nv_lshrrev_b32 v2, 5, v1\nv_add_u32 v2, v2, v1\nv_lshl_add_u32 v2, v2, 4, s3")
            A("s_lshl_b32 s3, s6, 7\nv_and_b32 v3, 15, v0\nv_mul_u32_u24 v3, 528, v3\nv_and_b32 v5, 48, v0\nv_add3_u32 v3, v3, v5, s3")
            A("s_lshl_b32 s60, s5, 2\ns_add_u32 s60, s60, s3")
        def barH():
            A("s_waitcnt lgkmcnt(0)\ns_barrier"); s.stamp(14)
        def flag():
            A("s_mov_b64 exec, 1\ns_waitcnt vmcnt(0)"); s.stamp(4)
            A("global_store_dword v7, v9, s[58:59]\ns_mov_b64 exec, -1")
        def poll1(): A("global_load_dwordx2 v[22:23], v20, s[58:59] sc1")
        steps = dict(H=barH, x=lambda: hpre(range(1)), y=lambda: hpre(range(1, npre)), d=addr2, f=flag, p=poll1)
        for ch in cfg["seqA"]: steps[ch]()
        A("s_mov_b32 s3, 0")
        if cfg["far"]: A("s_branch L_a_far")
        A("L_a_pu:\ns_waitcnt vmcnt(0)")
        A("v_cmp_ne_u32 vcc, s45, v22\nv_cmp_ne_u32 s[40:41], s45, v23\ns_or_b64 vcc, vcc, s[40:41]\ns_cbranch_scc1 L_a_miss\nL_a_pu_ok:")
        def far():
            A("L_a_miss:\nglobal_load_dwordx2 v[22:23], v20, s[58:59] sc1\ns_add_u32 s3, s3, 1\ns_cmp_lt_u32 s3, %d\ns_cbranch_scc1 L_a_pu" % NEAR_TRIES)
            A("L_a_far:\nv_mov_b32 v26, s44\nv_add_u32 v8, %d, v8" % FAR)
            for l in ust: A(l + " sc1")
            A("s_waitcnt vmcnt(0)\ns_mov_b64 exec, 1\nglobal_store_dword v7, v26, s[58:59] offset:1024 sc1\ns_mov_b64 exec, -1")
            A("L_a_pf:\nglobal_load_dwordx2 v[24:25], v20, s[58:59] offset:1024 sc1\ns_waitcnt vmcnt(0)\nglobal_load_dwordx2 v[22:23], v20, s[58:59] sc1\ns_waitcnt vmcnt(0)")
            A("v_cmp_ne_u32 vcc, s45, v22\nv_cmp_ne_u32 s[40:41], s45, v23\ns_or_b64 vcc, vcc, s[40:41]\ns_cbranch_scc0 L_a_pu_ok")
            A("v_cmp_ne_u32 vcc, s44, v24\nv_cmp_ne_u32 s[40:41], s44, v25\ns_or_b64 vcc, vcc, s[40:41]\ns_cbranch_scc0 L_a_isfar")
            A("s_sleep 8\ns_add_u32 s3, s3, 1\ns_cmp_lt_u32 s3, %d\ns_cbranch_scc1 L_a_pf" % SPIN)
            A("L_a_isfar:\ns_mov_b32 s96, 1\nv_mov_b32 v9, s44")
            s.addbase(52, 52, "%d" % FAR)
            A("s_branch L_a_pu_ok")
        s.side(far)
        s.stamp(5)
        A("global_load_lds_dwordx4 v21, s[52:53] sc1\nglobal_load_lds_dwordx4 v21, s[52:53] offset:1024 sc1")
        A("v_mov_b32 v7, s60\nv_mov_b32 v5, s6\nv_mov_b32 v4, 1\nv_mov_b32 v26, 0\nv_mov_b32 v27, 0x01010101")
        if int(cfg["prioC"]): A("s_setprio %d" % int(cfg["prioC"]))
        A("s_waitcnt vmcnt(0) lgkmcnt(0)\ns_barrier")
        s.stamp(6)
        if cfg.get("cyc"): A("s_memtime s[98:99]")
        if cfg.get("al"): A.raw(".p2align 3")
        todo = [(q, a, k) for q in range(4) for a in range(8) for k in range(3) if k == 0 or q >= npre]
        def feed(n, q):
            for _ in range(n):
                if todo and todo[0][0] <= q+1:
                    qq, a, k = todo.pop(0)
                    if cfg.get("nords") and qq > 0: continue
                    if k == 0: uread(qq, a)
                    else: hread(qq, a, k-1)
        feed(8 if npre else 15, 0)
        for q in range(4):
            pend = []; n = 0
            for i in range(8):
                while todo and todo[0][:2] <= (q, i): feed(1, q)
                n0 = len(A.L); A.wait(lg=[("f", q, i)] if q == 0 else [("f", q, z) for z in range(8)])
                if cfg.get("al") and len(A.L) > n0: A("s_nop 0")
                for a in range(i+1):
                    acc = vr(ACC+4*i, 4)
                    A("v_mfma_f32_16x16x32_bf16 %s, %s, %s, %s" % (acc, vr(UB(q)+4*(i-a), 4), vr(HB(q)+4*a, 4), "0" if (q == 0 and a == 0) else acc))
                    n += 1
                    if (q == 0 and not npre) or n >= (8 if q == 0 else 2): feed(1, q)
                    if pend and n >= pend[0][1]:
                        t = pend.pop(0)[0]
                        A("ds_write_b128 v2, %s offset:%d" % (vr(ACC+4*t, 4), RED+1056*t))
                if q == 3: pend.append((i, n+8))
            for t, _ in pend: A("ds_write_b128 v2, %s offset:%d" % (vr(ACC+4*t, 4), RED+1056*t))
        assert not todo
        s.stamp(13)
        if cfg.get("cyc"): A("s_memtime s[92:93]\ns_waitcnt lgkmcnt(0)\ns_sub_u32 s92, s92, s98\ns_add_u32 s92, s92, s64\ns_mov_b32 s93, s65")
        def rreads():
            for io in range(2):
                for ws in range(4):
                    A("ds_read_b128 %s, v3 offset:%d" % (vr(32+16*io+4*ws, 4), RED+ws*8448+io*64), ("r", io))
        if cfg["dec"]:
            A("ds_write_b8 v5, v4 offset:%d" % UL)
            A("ds_read_b32 v28, v26 offset:%d" % UL, "cnt")
            rreads()
            A.wait(lg="cnt")
            A("v_cmp_ne_u32 vcc, v27, v28\ns_cbranch_vccnz L_a_rw\nL_a_rok:")
            def rw():
                A("L_a_rw:\nds_read_b32 v28, v26 offset:%d\ns_waitcnt lgkmcnt(0)\nv_cmp_ne_u32 vcc, v27, v28\ns_cbranch_vccnz L_a_rw" % UL)
                rreads()
                A("s_branch L_a_rok")
            s.side(rw)
        else:
            A("s_waitcnt lgkmcnt(0)\ns_barrier")
            rreads()
        s.stamp(7)
        yst = ["global_store_dwordx4 v21, %s, s[52:53] offset:%d" % (vr(64+4*io, 4), 1024*io) for io in range(2)]
        def ysum(io):
            b = 32+16*io
            A.wait(lg=("r", io))
            for c in range(2):
                for p in range(2):
                    A("v_pk_add_f32 %s, %s, %s" % (vr(b+8*c+2*p, 2), vr(b+8*c+2*p, 2), vr(b+8*c+4+2*p, 2)))
            for r in range(4): A("v_cvt_pk_bf16_f32 v%d, v%d, v%d" % (64+4*io+r, b+r, b+8+r))
        A("s_cmp_eq_u32 s96, 1\ns_cbranch_scc1 L_a_yfar")
        def yfar():
            A("L_a_yfar:")
            for io in range(2):
                ysum(io); A(yst[io] + " sc1")
            A("s_waitcnt vmcnt(0)\ns_mov_b64 exec, 1\nglobal_store_dword v7, v9, s[58:59] offset:1536 sc1\ns_branch L_a_done")
        s.side(yfar)
        for io in range(2):
            ysum(io); A(yst[io])
        A("s_mov_b64 exec, 1\ns_waitcnt vmcnt(0)")
        s.stamp(8)
        A("global_store_dword v7, v9, s[58:59] offset:512")
        A("L_a_done:")
        s.stamps_out(1, 16)
        A("s_endpgm")

    def roleB_head(s):
        A = s.A; cfg = s.cfg
        A.reset_counters(); A.vm = ["pf"]
        A("s_lshr_b32 s7, s5, 4\ns_and_b32 s3, s5, 15\ns_lshl_b32 s40, s4, 4\ns_add_u32 s40, s40, s3")
        A("v_and_b32 v2, 3, v0\nv_bfe_u32 v3, v0, 2, 1\nv_lshl_add_u32 v2, v2, 1, v3\nv_and_b32 v3, 8, v0\nv_add_u32 v2, v2, v3")
        A("s_sub_u32 s63, 256, s40\ns_cmp_eq_u32 s40, 0\ns_cselect_b32 s63, 128, s63\ns_sub_u32 s3, s63, s40\nv_lshrrev_b32 v3, 5, v1\nv_mul_u32_u24 v240, s3, v3\nv_add_u32 v240, s40, v240")
        A("v_and_b32 v242, 16, v0\nv_lshl_add_u32 v241, v242, 6, v240\ns_lshl_b32 s41, s6, 8\nv_lshl_add_u32 v3, v2, 4, s41\nv_lshl_add_u32 v2, v241, 10, v3")
        A("s_lshl_b32 s48, s7, 19\ns_xor_b32 s49, s48, 0x40000\ns_xor_b32 s50, s48, 0x80000\ns_xor_b32 s51, s48, 0xc0000\nv_mov_b32 v190, 0")
        A("s_waitcnt lgkmcnt(0)")
        s.stamp(1)
        s.srd(8, 16, 2 << 20)
        s.xload(range(4))
        if cfg["xfirst"]: A("s_barrier")
        A("global_load_dwordx4 v[184:187], v3, s[32:33]", "gw")
        A("global_load_dword v190, v190, s[38:39] sc1", "gw")
        s.vmB = list(A.vm)
    def XR(s, j): return (224+4*j) if j < 2 else (64+4*j)
    def xload(s, js):
        for j in js: s.A("buffer_load_dwordx4 %s, v2, s[8:11], s%d offen %s" % (vr(s.XR(j), 4), 48+j, s.cfg["xnt"]), ("x", j))
    def roleB(s):
        A = s.A; cfg = s.cfg; XR = s.XR
        A.reset_counters(); A.vm = list(s.vmB)
        KQ, NF, QO, MS, MP, L7, VS = 232, 233, 234, 235, 236, 237, 238
        A("v_lshlrev_b32 v243, 4, v1\nv_bfe_u32 v161, v0, 5, 1\nv_cvt_f32_u32 v161, v161\nv_and_b32 v167, 1, v0\ns_mov_b32 s62, 0x80008000")
        def put(f0, n):
            for f in range(f0, f0+n): A("ds_write_b128 v243, %s offset:%d" % (vr(4+4*f, 4), CL+1024*f))
        def trig(c, sn, jump):
            for j in range(8):
                A("v_cos_f32 v%d, v164\nv_sin_f32 v%d, v164" % (c+j, sn+j))
                if jump and j == 3: A("v_fmamk_f32 v164, v163, 0x40a00000, v164")
                elif j < 7: A("v_add_f32 v164, v164, v163")
        def pack(c, sn):
            for j in range(4):
                A("v_cvt_pk_bf16_f32 v%d, v%d, v%d\nv_cvt_pk_bf16_f32 v%d, v%d, v%d" % (c+j, 128+2*j, 129+2*j, sn+j, 136+2*j, 137+2*j))
        A("s_cmp_ge_u32 s6, 2\ns_cbranch_scc1 L_b_c23")
        A("v_and_b32 v160, 8, v0\nv_lshlrev_b32 v160, 1, v160\nv_and_b32 v162, 3, v0\nv_lshl_add_u32 v160, v162, 2, v160\nv_bfe_u32 v162, v0, 2, 1\nv_lshl_add_u32 v160, v162, 1, v160")
        A("v_bfe_u32 v162, v0, 4, 1\nv_add_u32 v160, v160, v162\nv_cvt_f32_u32 v160, v160")
        A("s_cmp_eq_u32 s6, 1\ns_cbranch_scc1 L_b_c1")
        A("v_mul_lo_u32 v165, v162, s62\nv_mul_f32 v163, 0x3d000000, v160\nv_mul_f32 v164, 0x41000000, v161\nv_mul_f32 v164, v164, v163")
        trig(128, 136, False); pack(8, 16)
        for j in range(4):
            A("v_xor_b32 v%d, v165, v%d\nv_xor_b32 v%d, v165, v%d\nv_xor_b32 v%d, s62, v%d" % (12+j, 8+j, 20+j, 16+j, 24+j, 16+j))
            A("v_xor_b32 v%d, s62, v%d" % (28+j, 20+j))
        put(1, 6)
        A("s_branch L_b_cd\nL_b_c1:")
        A("v_mul_f32 v163, 0x3b000000, v160\nv_mul_f32 v166, 4.0, v161\nv_mul_f32 v164, v166, v163")
        trig(32, 40, True)
        A("s_nop 0")
        put(7, 4)
        A("s_branch L_b_cd\nL_b_c23:\nv_cvt_f32_u32 v162, v167\nv_mul_f32 v162, 0.25, v162\ns_cmp_eq_u32 s6, 3\ns_cbranch_scc1 L_b_c3")
        A("s_cmp_eq_u32 s40, 0\ns_cselect_b32 s3, 0, 1.0\nv_mul_f32 v162, s3, v162\nv_mul_lo_u32 v165, v167, s62\nv_mul_f32 v166, 4.0, v161")
        A("v_bfe_u32 v160, v0, 1, 4\nv_cvt_f32_u32 v160, v160\nv_mul_f32 v163, 0x3d800000, v160\nv_fma_f32 v164, v166, v163, v162")
        trig(128, 136, True); pack(48, 52)
        A("s_cbranch_scc1 L_b_s0")
        for j in range(8): A("v_xor_b32 v%d, v165, v%d" % (56+j, 48+j))
        A("L_b_s0back:")
        s.tail.append("L_b_s0:\nv_cmp_eq_u32 vcc, 0, v167\ns_nop 1\n" + "\n".join("v_cndmask_b32 v%d, v%d, v167, vcc\nv_cndmask_b32 v%d, 0, v%d, vcc" % (56+j, 48+j, 48+j, 48+j) for j in range(8)) + "\ns_branch L_b_s0back")
        put(11, 4)
        A("s_branch L_b_cd\nL_b_c3:")
        A("v_bfe_u32 v160, v0, 1, 2\ns_lshl_b32 s3, s7, 2\nv_add_u32 v160, s3, v160\nv_cvt_f32_u32 v160, v160\nv_cvt_f32_u32 v161, v241")
        A("v_mul_f32 v163, 0x3a000000, v160\nv_fma_f32 v165, v163, v161, v162\nv_mul_f32 v166, 0x35000000, v160")
        for j in range(4):
            A("v_cvt_f32_u32 v164, s%d\nv_fma_f32 v164, v164, v166, v165\nv_cos_f32 v%d, v164" % (48+j, 168+j))
        for j in range(2): A("v_cvt_pk_bf16_f32 v%d, v%d, v%d" % (4+j, 168+2*j, 169+2*j))
        A("s_mov_b32 exec_lo, 0xff00ff00\ns_mov_b32 exec_hi, 0x00ff00ff\nv_mov_b64 v[4:5], 0\ns_mov_b64 exec, -1")
        put(0, 1)
        A("L_b_cd:")
        s.stamp(11)
        A("s_waitcnt lgkmcnt(0)\ns_barrier")
        for f in range(15): A("ds_read_b128 %s, v243 offset:%d" % (vr(4+4*f, 4), CL+1024*f), "c")
        A("v_lshrrev_b32 v%d, 4, v1\nv_and_b32 v%d, 15, v0\nv_and_b32 v%d, 7, v0" % (KQ, NF, L7))
        A("v_mul_u32_u24 v2, 2064, v%d\nv_and_b32 v3, 8, v0\nv_lshl_add_u32 v2, v3, 7, v2\nv_lshl_add_u32 v2, v242, 3, v2\nv_bfe_u32 v3, v0, 5, 1\nv_lshl_add_u32 v2, v3, 3, v2" % L7)
        A("v_add_u32 v2, s41, v2")
        A("v_lshlrev_b32 v3, 8, v3\nv_lshl_add_u32 v3, v242, 6, v3\nv_lshl_add_u32 v3, v%d, 4, v3\ns_mul_i32 s3, s6, 4128\nv_add_u32 v3, s3, v3" % NF)
        A("v_bfe_u32 v238, v0, 2, 3\nv_lshlrev_b32 v238, 18, v238\nv_and_b32 v160, 3, v0\nv_lshl_add_u32 v238, v160, 4, v238")
        A("v_and_b32 v160, 2, v%d\nv_xor_b32 v160, s40, v160\nv_and_b32 v160, 3, v160\nv_lshl_add_u32 v238, v160, 6, v238\nv_xor_b32 v239, 64, v238" % KQ)
        A("s_lshl_b32 s3, s7, 2\ns_add_u32 s3, s3, s6\ns_lshl_b32 s3, s3, 7\ns_add_u32 s43, s3, s40\ns_lshl_b32 s3, s43, 8\ns_add_u32 s3, s3, %d" % W_V)
        s.addbase(28, 38, "s3")
        A("s_mov_b32 s46, 0x05040100\ns_mov_b32 s47, 0x07060302\ns_mov_b32 s62, 0xffff0000")
        A("v_mov_b32 v244, s6\nv_mov_b32 v245, 1\nv_mov_b32 v246, 0")
        if cfg["mpre"]: A("s_lshl_b32 s3, s43, 7\ns_add_u32 s3, s3, %d\nv_mov_b32 v250, s3\nglobal_load_dword v250, v250, s[38:39]" % W_M, "mp")
        s.stamp(12)
        perm = lambda jj, c: A("v_perm_b32 v%d, v%d, v%d, s%d" % (96+2*c+jj, XR(2*jj+1)+(c >> 1), XR(2*jj)+(c >> 1), 46+(c & 1)))
        def gpart():
            GW, GX = 176, 192
            A.wait(vm="gw")
            for p in range(4): A("v_lshlrev_b32 v%d, 16, v%d\nv_and_b32 v%d, s62, v%d" % (GW+2*p, 184+p, GW+1+2*p, 184+p))
            for i in range(8): A("v_lshlrev_b32 v%d, 16, v%d\nv_and_b32 v%d, s62, v%d" % (GX+2*i, 224+i, GX+1+2*i, 224+i))
            for i in range(8): A("v_pk_mul_f32 %s, %s, %s" % (vr(GX+2*i, 2), vr(GX+2*i, 2), vr(GW+2*(i & 3), 2)))
            for i in range(16): A("v_cvt_pk_bf16_f32 v%d, 0, v%d" % (GX+i, GX+i))
            for i in range(4): A("v_pk_add_f32 %s, %s, %s" % (vr(GX+4*i, 2), vr(GX+4*i, 2), vr(GX+2+4*i, 2)))
            for i in range(2): A("v_pk_add_f32 %s, %s, %s" % (vr(GX+8*i, 2), vr(GX+8*i, 2), vr(GX+4+8*i, 2)))
            for i in range(2): A("v_add_f32 v%d, v%d, v%d" % (GW+i, GX+8*i, GX+1+8*i))
            A("s_lshl_b32 s3, s6, 2\ns_add_u32 s3, s3, %d" % GL)
            fill = ["v_lshl_add_u32 v178, v%d, 5, s3" % KQ, "v_lshlrev_b32 v191, 4, v%d" % L7, "v_add_u32 v191, %d, v191" % GL]
            for sh in (8, 4, 2, 1):
                for r in range(2): A("v_add_f32_dpp v%d, v%d, v%d row_ror:%d row_mask:0xf bank_mask:0xf" % (GW+r, GW+r, GW+r, sh))
                if fill: A(fill.pop(0))
            A("ds_write2_b32 v178, v176, v177 offset0:0 offset1:4")
        def gfin():
            A.wait(lg="gp")
            A("v_pk_add_f32 v[188:189], v[188:189], v[190:191]\nv_add_f32 v188, v188, v189")
            A("v_cvt_pk_bf16_f32 v188, 0, v188\nv_mul_f32 v188, 0xbfb8aa3b, v188\nv_exp_f32 v188, v188\nv_mov_b32 v189, s44\nv_add_f32 v188, 1.0, v188\nv_rcp_f32 v188, v188")
            A("v_cvt_pk_bf16_f32 v188, 0, v188\nv_sub_f32 v190, 1.0, v188\nv_cvt_pk_bf16_f32 v188, v190, v188")
        gearly = cfg["gat"] == "early"
        if gearly: gpart()
        if int(cfg["prioB"]): A("s_setprio %d" % int(cfg["prioB"]))
        mfA = lambda c: A("v_mfma_f32_16x16x16_bf16 %s, %s, v[4:5], 0" % (vr(128+4*c, 4), vr(96+2*c, 2)))
        def outA(c):
            A("v_cvt_pk_bf16_f32 v%d, v%d, v%d\nv_cvt_pk_bf16_f32 v%d, v%d, v%d" % (160+2*c, 128+4*c, 129+4*c, 161+2*c, 130+4*c, 131+4*c))
            A("ds_write_b64 v2, %s offset:%d" % (vr(160+2*c, 2), X1+16*c))
        A.wait(vm=("x", 1)); s.stamp(13)
        for c in range(8): perm(0, c)
        A.wait(vm=("x", 3), lg="c"); s.stamp(2)
        for op in "p0 p1 p2 m0 p3 p4 m1 p5 p6 m2 p7 m3 m4 o0 m5 o1 m6 o2 m7 o3 o4 o5 o6 o7".split():
            {"p": lambda c: perm(1, c), "m": mfA, "o": outA}[op[0]](int(op[1]))
        def areads():
            for ri in range(2):
                for ks in range(2):
                    A("ds_read_b128 %s, v3 offset:%d" % (vr(64+8*ri+4*ks, 4), X1+ri*2064+ks*512), ("a", ri, ks))
        if int(cfg["bxat"]) == 9:
            A("ds_write_b8 v244, v245 offset:%d" % (UL+8))
            A("ds_read_b32 v247, v246 offset:%d" % (UL+8), "cnt")
            areads()
            A.wait(lg="cnt")
            A("v_cmp_ne_u32 vcc, 0x01010101, v247\ns_cbranch_vccnz L_b_xw\nL_b_xok:")
            def xw():
                A("L_b_xw:\nds_read_b32 v247, v246 offset:%d\ns_waitcnt lgkmcnt(0)\nv_cmp_ne_u32 vcc, 0x01010101, v247\ns_cbranch_vccnz L_b_xw" % (UL+8))
                areads()
                A("s_branch L_b_xok")
            s.side(xw)
        else:
            A("s_waitcnt lgkmcnt(0)\ns_barrier")
            areads()
        s.stamp(3)
        def tg():
            A.wait(vm="gw")
            A("v_readfirstlane_b32 s44, v190")
            s.tags()
        if gearly: tg()
        if gearly: A("ds_read_b128 v[188:191], v191", "gp")
        RE, IM = 96, 112
        M32 = "v_mfma_f32_32x32x16_bf16 %s, %s, %s, %s"
        for n in range(4):
            ri, ks = n >> 1, n & 1
            A.wait(lg=("a", ri, ks))
            A(M32 % (vr(RE, 16), vr(64+8*ri+4*ks, 4), vr((8 if ri == 0 else 16)+4*ks, 4), vr(RE, 16) if n else "0"))
        muls = []
        for o in range(16):
            muls.append("v_mul_f32 v%d, v%d, v%d" % (128+o, RE+o, 32+(o & 7)))
            muls.append("v_mul_f32_e64 v%d, -v%d, v%d" % (144+o, RE+o, 40+(o & 7)))
        for n in range(4):
            ri, ks = n >> 1, n & 1
            A(M32 % (vr(IM, 16), vr(64+8*ri+4*ks, 4), vr((24 if ri == 0 else 8)+4*ks, 4), vr(IM, 16) if n else "0"))
            if n == 0 and gearly: gfin()
            for _ in range((0, 6, 6, 20)[n]): A(muls.pop(0))
        for o in range(0, 16, 2):
            A("v_pk_fma_f32 %s, %s, %s, %s" % (vr(128+o, 2), vr(IM+o, 2), vr(40+(o & 7), 2), vr(128+o, 2)))
            A("v_pk_fma_f32 %s, %s, %s, %s" % (vr(144+o, 2), vr(IM+o, 2), vr(32+(o & 7), 2), vr(144+o, 2)))
        def cv(n):
            row, ri = n >> 1, n & 1
            for p in range(4):
                o = 128+16*ri+8*row+2*p
                A("v_cvt_pk_bf16_f32 v%d, v%d, v%d" % (160+4*n+p, o, o+1))
        cv(0); cv(1)
        for n in range(4):
            A(M32 % (vr(64, 16), vr(160+4*n, 4), vr(48+4*n, 4), vr(64, 16) if n else "0"))
            if n < 2: cv(n+2)
        s.addbase(60, 38, "%d" % W_M)
        A("s_lshl_b32 s3, s43, 7\nv_lshl_add_u32 v%d, v%d, 3, s3" % (MS, L7))
        vmode = cfg["vmode"]
        def vstore(io): A("global_store_dwordx4 v%d, %s, s[28:29] sc1" % (VS+io, vr(208+4*io, 4)), "vst")
        def msg(): A("s_mov_b64 exec, 0xff\nglobal_store_dwordx2 v%d, v[188:189], s[60:61] sc1\ns_mov_b64 exec, -1" % MS, "msg")
        for io in range(2):
            for p in range(4):
                o = 64+8*io+2*p
                A("v_cvt_pk_bf16_f32 v%d, v%d, v%d" % (208+4*io+p, o, o+1))
            if vmode != "after": vstore(io)
        if int(cfg["prioB"]): A("s_setprio 0")
        s.stamp(4)
        if not gearly: tg()
        qso = ["0", "s56", "s42", "s57"]
        def setup0():
            A("v_lshl_add_u32 v129, v%d, 3, v%d\ns_and_b32 s3, s5, 7\ns_lshl_b32 s3, s3, 2\ns_add_u32 s3, s3, s6\ns_lshl_b32 s3, s3, 12\nv_lshl_add_u32 v%d, v129, 7, s3" % (KQ, L7, MP))
            A("v_and_b32 v128, 3, v0\nv_lshl_add_u32 v129, v128, 5, s5\nv_lshl_add_u32 v129, v242, 3, v129\nv_sub_u32 v130, 256, v129\nv_min_u32 v129, v130, v129\nv_and_b32 v129, 127, v129\nv_lshlrev_b32 v129, 7, v129")
            A("v_lshl_add_u32 v129, v242, 1, v129\nv_bfe_u32 v130, v0, 5, 1\nv_lshlrev_b32 v130, 3, v130\ns_and_b32 s3, s6, 1\ns_lshl_b32 s3, s3, 2\ns_add_u32 s3, s3, s6\ns_lshl_b32 s3, s3, 14\ns_lshr_b32 s41, s6, 1\ns_lshl_b32 s41, s41, 4\ns_add_u32 s3, s3, s41\nv_add3_u32 v129, v129, v130, s3")
            A("s_mov_b32 exec_lo, 0xff00ff00\ns_mov_b32 exec_hi, 0xff00ff00\nv_mov_b32 v%d, v129\ns_mov_b64 exec, -1" % MP)
            A("s_lshl_b32 s3, s5, 10\ns_lshl_b32 s41, s6, 19\ns_add_u32 s3, s3, s41\ns_lshl_b32 s41, s4, 7\ns_add_u32 s3, s3, s41")
            A("v_lshlrev_b32 v234, 17, v%d\nv_lshl_add_u32 v234, v%d, 3, v234\nv_add_u32 v234, s3, v234" % (KQ, NF))
            A("s_mov_b32 s56, 0x8000\ns_mov_b32 s57, 0x18000\ns_mov_b32 s42, 0x10000")
            A("s_lshl_b32 s3, s6, 13\nv_lshl_add_u32 v44, v1, 4, s3\ns_add_u32 s3, s3, %d\ns_mov_b32 m0, s3" % VL)
            A("s_and_b32 s43, s5, 7\ns_lshl_b32 s3, s4, 3\ns_add_u32 s3, s3, s43\ns_lshl_b32 s3, s3, 15\ns_add_u32 s3, s3, %d" % W_V); s.addbase(30, 38, "s3")
        def setup1():
            A("s_lshl_b32 s3, s6, 6\ns_lshr_b32 s41, s5, 3\ns_add_u32 s3, s3, s41\nv_lshl_add_u32 v128, v%d, 2, s3\nv_cvt_f32_u32 v128, v128\nv_mul_f32 v131, 0x3b800000, v128" % NF)
            A("v_cvt_f32_u32 v129, v%d\nv_add_f32 v129, v129, v129\nv_mul_f32 v132, v129, v131" % KQ)
            for i in range(16):
                A("v_cos_f32 v134, v132\nv_sin_f32 v135, v132")
                if i < 15: A("v_fmamk_f32 v132, v131, 0x40e00000, v132" if i & 1 else "v_add_f32 v132, v132, v131")
                A("v_cvt_pk_bf16_f32 v%d, v134, v135" % (4+i))
            A("s_and_b32 s3, s41, 1\ns_lshl_b32 s3, s3, 4\ns_cmp_eq_u32 s41, 1\ns_cselect_b32 s43, 0x8000, 0\ns_cmp_eq_u32 s41, 2\ns_cselect_b32 s43, 0x80008000, s43\ns_cmp_eq_u32 s41, 3\ns_cselect_b32 s43, 0x80000000, s43")
            for i in range(16): A("v_alignbit_b32 v%d, v%d, v%d, s3" % (20+i, 4+i, 4+i))
            for i in range(16): A("v_xor_b32 v%d, s43, v%d" % (20+i, 20+i))
            A("s_lshl_b32 s41, s41, 31\ns_or_b32 s41, s41, 0x3f803f80\ns_mov_b64 exec, 0xffff\nv_mov_b32 v4, s41\ns_mov_b64 exec, -1")
        def setup2():
            s.srd(12, 34, 2 << 20)
            A("v_bfe_u32 v45, v0, 3, 3\nv_lshlrev_b32 v40, 8, v45\nv_and_b32 v45, 3, v45\nv_lshl_add_u32 v40, v45, 6, v40")
            A("v_and_b32 v45, 2, v0\nv_lshl_add_u32 v40, v45, 4, v40\nv_and_b32 v45, 4, v0\nv_lshl_add_u32 v40, v45, 2, v40\nv_and_b32 v45, 1, v0\nv_lshl_add_u32 v40, v45, 3, v40\nv_add_u32 v40, %d, v40" % VL)
            for nu in range(1, 4): A("v_xor_b32 v%d, %d, v40" % (40+nu, 64*nu))
            A("v_lshrrev_b32 v45, 2, v1\nv_lshlrev_b32 v45, 14, v45\nv_and_b32 v46, 2, v%d\nv_xor_b32 v46, v46, v0\nv_and_b32 v46, 3, v46\nv_lshl_add_u32 v45, v46, 4, v45" % KQ)
            A("s_lshl_b32 s3, s4, 18\ns_lshl_b32 s41, s5, 8\ns_add_u32 s3, s3, s41\ns_lshl_b32 s41, s6, 6\ns_add_u32 s3, s3, s41\ns_add_u32 s3, s3, %d" % W_R)
            s.addbase(52, 38, "s3"); s.addbase(54, 52, "0x1c00")
            A("v_bfe_u32 v46, v0, 2, 2\nv_and_b32 v46, 2, v46\nv_xor_b32 v46, v46, v%d\nv_lshlrev_b32 v46, 4, v46\nv_lshl_add_u32 v46, v%d, 6, v46\ns_lshl_b32 s41, s6, 11\nv_add_u32 v46, s41, v46" % (KQ, NF))
            A("s_lshl_b32 s3, s4, 11\ns_lshr_b32 s43, s5, 3\ns_lshl_b32 s43, s43, 7\ns_add_u32 s3, s3, s43\ns_add_u32 s3, s3, %d" % (W_C+512)); s.addbase(58, 38, "s3")
            A("v_and_b32 v48, 31, v0\nv_lshlrev_b32 v48, 2, v48")
        QF = 192
        def qload():
            for r in range(4): A("buffer_load_dwordx2 %s, v234, s[8:11], %s offen %s" % (vr(176+2*r, 2), qso[r], cfg["qnt"]), "q")
        def bar2():
            s.stamp(5); A("s_barrier")
        def ack():
            A.wait(vm="vst"); s.stamp(14)
        def barH(): A("s_waitcnt lgkmcnt(0)\ns_barrier")
        def gf(): A("ds_read_b128 v[188:191], v191", "gp"); gfin()
        steps = dict(g=gpart, H=barH, f=gf, a=setup0, b=setup1, c=setup2, q=qload, B=bar2, k=ack, m=msg, v=lambda: (vstore(0), vstore(1)))
        seq1, seq2 = cfg["seq"].split(".")
        for ch in seq1: steps[ch]()
        A("s_mov_b32 s3, 0\nL_b_pv:\nglobal_load_dwordx2 v[144:145], v%d, s[60:61] sc1\ns_waitcnt vmcnt(0)" % MP)
        A("v_cmp_ne_u32 vcc, s44, v145\ns_cbranch_vccz L_b_pv_ok\ns_mov_b64 exec, vcc\ns_sleep %d" % int(cfg["vsleep"]))
        A("s_add_u32 s3, s3, 1\ns_cmp_lt_u32 s3, %d\ns_cbranch_scc1 L_b_pv\nL_b_pv_ok:\ns_mov_b64 exec, -1" % SPIN)
        s.stamp(6)
        for i in range(8):
            if i == 4: A("s_add_u32 m0, m0, 4096\nv_add_u32 v44, 4096, v44")
            A("global_load_lds_dwordx4 v44, s[30:31] offset:%d sc1" % (1024*(i & 3)), "vd")
        for ch in seq2: steps[ch]()
        A.wait(vm="q")
        for i in range(8): A("v_lshlrev_b32 v%d, 16, v%d\nv_and_b32 v%d, s62, v%d" % (QF+2*i, 176+i, QF+2*i+1, 176+i))
        A("v_lshlrev_b32 v145, 16, v144\nv_and_b32 v144, s62, v144")
        A("s_lshl_b32 s43, s6, 11\ns_add_u32 m0, s43, %d" % YL)
        for r in range(4):
            for nu in range(4):
                A("v_mul_f32_dpp v%d, v144, v%d row_newbcast:%d row_mask:0xf bank_mask:0xf" % (QF+4*r+nu, QF+4*r+nu, 8+r))
        A("v_mov_b32 v50, s6\nv_mov_b32 v51, 1\nv_mov_b32 v49, 0\nv_mov_b32 v52, 0x01010101")
        A("s_or_b32 s43, s2, s6\ns_cbranch_scc0 L_b_all")
        def allflags():
            A("L_b_all:\ns_mov_b32 s3, 0\nv_lshlrev_b32 v60, 7, v1")
            for t in range(1, 4): A("v_add_u32 v%d, %d, v60" % (60+t, ((t >> 1)*512+(t & 1)*64)*128))
            A("L_b_pa:")
            for t in range(4): A("global_load_dword v%d, v%d, s[60:61] offset:4 sc1" % (56+t, 60+t))
            A("s_waitcnt vmcnt(0)")
            for t in range(4): A("v_xor_b32 v%d, s44, v%d" % (56+t, 56+t))
            A("v_or3_b32 v56, v56, v57, v58\nv_or_b32 v56, v56, v59\nv_cmp_ne_u32 vcc, 0, v56\ns_cbranch_vccz L_b_pa_ok\ns_mov_b64 exec, vcc")
            A("s_sleep 4\ns_add_u32 s3, s3, 1\ns_cmp_lt_u32 s3, %d\ns_cbranch_scc1 L_b_pa" % SPIN)
            A("L_b_pa_ok:\ns_mov_b64 exec, 1\nv_mov_b32 v49, 0\nglobal_store_dword v49, v189, s[38:39] sc1\ns_mov_b64 exec, -1\ns_branch L_b_allback")
        s.side(allflags)
        ydma = ["global_load_lds_dwordx4 v45, s[52:53] sc1", "global_load_lds_dwordx4 v45, s[54:55] offset:1024 sc1"]
        A("s_waitcnt vmcnt(0)\nL_b_allback:")
        s.stamp(7)
        if cfg["dec"]:
            A("ds_write_b8 v50, v51 offset:%d" % (UL+4))
            A("L_b_vw:\nds_read_b64 v[54:55], v49 offset:%d\ns_waitcnt lgkmcnt(0)\nv_and_b32 v54, v54, v55\nv_cmp_ne_u32 vcc, v52, v54\ns_cbranch_vccnz L_b_vs" % UL)
            s.tail.append("L_b_vs:\ns_sleep 1\ns_branch L_b_vw")
        else: A("s_barrier")
        VF = lambda n: 64+4*(n % 16)
        def scale(nu):
            for r in range(4):
                A("v_mul_f32_dpp v%d, v145, v%d row_newbcast:%d row_mask:0xf bank_mask:0xf" % (160+4*r+nu, 128+4*nu+r, 8+r))
        def trd(n):
            for jj in range(2):
                A("ds_read_b64_tr_b16 %s, v%d offset:%d" % (vr(VF(n)+2*jj, 2), 40+(n >> 3), 4096*(n & 7)+2048*jj), ("t", n))
        ahead = 8
        for n in range(ahead): trd(n)
        for n in range(32):
            if n % 2 == 0: A.wait(lg=("t", n+1))
            acc = vr(128+4*(n >> 3), 4)
            A("v_mfma_f32_16x16x32_bf16 %s, %s, %s, %s" % (acc, vr(4+4*(n & 7), 4), vr(VF(n), 4), acc if n & 7 else "0"))
            if n+ahead < 32: trd(n+ahead)
            if n in (25, 27, 29): scale((n-25)//2)
            if cfg["ypre"] and n == int(cfg["ypre"]): A("global_load_dword v47, v48, s[58:59] sc1\ns_mov_b32 s97, 0")
            if cfg["ypre"] and n == int(cfg["ypre"])+12:
                A("s_waitcnt vmcnt(0)\nv_cmp_ne_u32 vcc, s45, v47\ns_cbranch_vccnz L_b_nopre")
                for l in ydma: A.raw(l)
                A("s_mov_b32 s97, 1\nL_b_nopre:")
        scale(3)
        s.stamp(8)
        if cfg["ypre"]: A("s_cmp_eq_u32 s97, 1\ns_cbranch_scc1 L_b_yin")
        A("s_mov_b32 s3, 0")
        A("L_b_py:\nglobal_load_dword v47, v48, s[58:59] sc1\ns_waitcnt vmcnt(0)\nv_cmp_ne_u32 vcc, s45, v47\ns_cbranch_vccnz L_b_ymiss\nL_b_py_ok:")
        def ymiss():
            A("L_b_ymiss:\ns_add_u32 s3, s3, 1\ns_cmp_lt_u32 s3, %d\ns_cbranch_scc1 L_b_py" % NEAR_TRIES)
            A("L_b_pyf:\nglobal_load_dword v47, v48, s[58:59] sc1\nglobal_load_dword v49, v48, s[58:59] offset:1024 sc1\ns_waitcnt vmcnt(0)")
            A("v_cmp_ne_u32 vcc, s45, v47\ns_cbranch_vccz L_b_py_ok\nv_cmp_ne_u32 vcc, s44, v49\ns_cbranch_vccz L_b_isfar")
            A("s_sleep 8\ns_add_u32 s3, s3, 1\ns_cmp_lt_u32 s3, %d\ns_cbranch_scc1 L_b_pyf" % SPIN)
            A("L_b_isfar:\nv_add_u32 v45, %d, v45\ns_branch L_b_py_ok" % FAR)
        s.side(ymiss)
        s.stamp(9)
        for pp in range(2): A(ydma[pp], ("yd", pp))
        A("L_b_yin:")
        for pp in range(2):
            A.wait(vm=("yd", pp))
            A("ds_read_b128 %s, v46 offset:%d" % (vr(64+4*pp, 4), YL+1024*pp), ("y", pp))
        for pp in range(2):
            A.wait(lg=("y", pp))
            if pp: s.stamp(10)
            for r in range(4):
                o = 4*r+2*pp
                A("v_lshlrev_b32 v%d, 16, v%d\nv_and_b32 v%d, s62, v%d" % (72+o, 64+4*pp+r, 73+o, 64+4*pp+r))
                A("v_pk_fma_f32 %s, %s, %s, %s" % (vr(160+o, 2), vr(QF+o, 2), vr(72+o, 2), vr(160+o, 2)))
                A("v_cvt_pk_bf16_f32 v%d, v%d, v%d" % (96+2*r+pp, 160+o, 161+o))
                if pp: A("buffer_store_dwordx2 %s, v234, s[12:15], %s offen %s" % (vr(96+2*r, 2), qso[r], cfg["ont"]))
        s.stamps_out(0, 16)
        A("L_end:\ns_endpgm")

    def build(s):
        A = s.A
        A.raw("; @launch grid=(256,1,1) block=(512,1,1) lds=%d" % LDS)
        A.raw('.amdgcn_target "amdgcn-amd-amdhsa--gfx950"\n.text\n.globl %s\n.p2align 8\n.type %s,@function\n%s:' % (KN, KN, KN))
        s.prologue()
        h1, h2, b1, b2 = (s.roleA_head, s.roleB_head, s.roleA, s.roleB) if s.cfg["first"] == "A" else (s.roleB_head, s.roleA_head, s.roleB, s.roleA)
        h1(); A("s_branch L_body1\nL_role2:"); h2(); b2(); A("L_body1:"); b1()
        for t in s.tail: A(t)
        A.raw(".p2align 8\n.fill 4096, 4, 0xbf810000")
        A.raw('.section .rodata,"a"\n.p2align 6\n.amdhsa_kernel %s\n.amdhsa_next_free_vgpr 256\n.amdhsa_next_free_sgpr 102\n.amdhsa_accum_offset 256\n.amdhsa_group_segment_fixed_size 0\n.amdhsa_kernarg_size 120\n.amdhsa_user_sgpr_count 2\n.amdhsa_user_sgpr_kernarg_segment_ptr 1\n.amdhsa_system_sgpr_workgroup_id_x 1\n.end_amdhsa_kernel' % KN)
        return A.finish()

if __name__ == "__main__":
    out = sys.argv[1]
    cfg = {}
    for a in sys.argv[2:]:
        k, v = a.split("=")
        cfg[k] = {"True": True, "False": False}.get(v, v)
    g = G(**cfg)
    open(out, "w").write(g.build())
    print(out, "nops inserted", g.A.nops, file=sys.stderr)
```

```python
import sys
from dsl import Asm
KN = "gated_mix__ssm_conv_h3__spectral_fnet__prompt_kernel"
W_E   = 0
W_C   = 4096
W_M   = 0x20000
W_R   = 0x100000
W_V   = 0x400000
FAR   = 0x700000
STAMP_OFF = 200<<20
LCG_A, LCG_C = 1664525, 1013904223
UL = 0; HL = 9216; RED = HL + 16640; X1 = RED + 4*8448; VL = X1; GL = RED + 24576; YL = HL; CL = RED + 8192; LDS = X1 + 32768
SPIN = 40000
NEAR_TRIES = 24

def vr(a, n): return "v[%d:%d]" % (a, a+n-1)

class G:
    def __init__(s, **cfg):
        s.cfg = dict(stamps=False, nt=" nt", pre=True, xnt="nt", qnt="nt", prent="nt", ont="", vsleep=2, bar0=1, first="B", vat=0, hat=0, pat=0, bxat=8, hpre=2, gat="early", vmode="after", seq="HvackBmqb.e.", seqA="fpHxdy", dec=False, nb=8, cmeet=True, xfirst=False, ypre=0, mpre=False, kpk=True, upk=True,
                     vflag="after", prioA=1, prioB=0, prioC=0, far=False)
        s.cfg.update(cfg)
        s.A = Asm(); s.tail = []
    def stamp(s, i):
        if s.cfg.get("probe") and i not in (0, int(s.cfg["probe"].split(".")[1])): return
        if s.cfg["stamps"]: s.A("%s s[%d:%d]" % ("s_memtime" if s.cfg.get("clk") else "s_memrealtime", 64+2*i, 65+2*i))
    def stamps_out(s, role, n):
        if not s.cfg["stamps"]: return
        A = s.A
        A("s_waitcnt vmcnt(0) lgkmcnt(0)")
        s.stamp(n-1)
        A("s_waitcnt lgkmcnt(0)")
        A("s_cmp_lg_u32 s6, %d\ns_cbranch_scc1 L_end" % int(s.cfg.get("sw", 0)))
        if s.cfg.get("probe"):
            pr, pi = [int(x) for x in s.cfg["probe"].split(".")]
            if pr == role:
                if s.cfg.get("skew"):
                    A("s_mov_b64 exec, 1\nv_mov_b32 v1, 0\nv_mov_b32 v2, s%d\nv_not_b32 v3, s64\nglobal_atomic_umax v1, v2, s[36:37] sc1\nglobal_atomic_umax v1, v3, s[36:37] offset:128 sc1\ns_waitcnt vmcnt(0)" % (64+2*pi))
                    A("L_probe0:\ns_memrealtime s[40:41]\ns_waitcnt lgkmcnt(0)\ns_sub_u32 s40, s40, s64\ns_cmp_lt_u32 s40, 3000\ns_cbranch_scc1 L_probe0")
                    A("global_load_dword v2, v1, s[36:37] sc1\nglobal_load_dword v3, v1, s[36:37] offset:128 sc1\ns_waitcnt vmcnt(0)\nv_not_b32 v3, v3\nv_readfirstlane_b32 s42, v2\nv_readfirstlane_b32 s64, v3\ns_nop 3")
                    A("s_sub_u32 s3, s42, s64\ns_min_u32 s3, s3, 1500\ns_mul_i32 s3, s3, %d\ns_add_u32 s3, s3, 5000" % int(s.cfg["skew"]))
                    A("L_probe:\ns_memrealtime s[40:41]\ns_waitcnt lgkmcnt(0)\ns_sub_u32 s40, s40, s64\ns_cmp_lt_u32 s40, s3\ns_cbranch_scc1 L_probe")
                    return
                if s.cfg.get("wb"): A("s_sleep 100\nbuffer_wbl2 sc1\ns_waitcnt vmcnt(0)")
                A("s_sub_u32 s3, s%d, s64\ns_lshl_b32 s3, s3, 2\ns_add_u32 s3, s3, 5000" % (64+2*pi))
                A("L_probe:\ns_memrealtime s[40:41]\ns_waitcnt lgkmcnt(0)\ns_sub_u32 s40, s40, s64\ns_cmp_lt_u32 s40, s3\ns_cbranch_scc1 L_probe")
            return
        A("s_add_u32 s38, s38, %d\ns_addc_u32 s39, s39, 0" % (STAMP_OFF + role*256*128))
        A("s_lshl_b32 s3, s2, 7\nv_mov_b32 v1, s3\ns_mov_b64 exec, 1")
        for j in range(n):
            A("v_mov_b32 v2, s%d\nv_mov_b32 v3, s%d\nglobal_store_dwordx2 v1, v[2:3], s[38:39] offset:%d\ns_nop 1" % (64+2*j, 65+2*j, 8*j))
    def side(s, fn):
        A = s.A; sv = (list(A.vm), list(A.lg)); keep = A.L; A.L = []
        fn()
        s.tail.append("\n".join(i.text for i in A.L)); A.L = keep; A.vm, A.lg = sv
    def poll(s, name, vdst, vaddr, sbase, snonce, sleep=0, masked=False, off=0):
        A = s.A
        A("s_mov_b32 s3, 0")
        A("%s:" % name)
        A("global_load_dword v%d, v%d, s[%d:%d] offset:%d sc1" % (vdst, vaddr, sbase, sbase+1, off))
        A("s_waitcnt vmcnt(0)")
        A("v_cmp_ne_u32 vcc, s%d, v%d" % (snonce, vdst))
        A("s_cbranch_vccz %s_ok" % name)
        if masked: A("s_mov_b64 exec, vcc")
        if sleep: A("s_sleep %d" % sleep)
        A("s_add_u32 s3, s3, 1\ns_cmp_lt_u32 s3, %d\ns_cbranch_scc1 %s" % (SPIN, name))
        A("%s_ok:" % name)
        if masked: A("s_mov_b64 exec, -1")
    def srd(s, d, base, size):
        s.A("s_mov_b32 s%d, s%d\ns_mov_b32 s%d, s%d\ns_mov_b32 s%d, 0x%x\ns_mov_b32 s%d, 0x20000" % (d, base, d+1, base+1, d+2, size, d+3))
    def addbase(s, d, base, soff):
        s.A("s_add_u32 s%d, s%d, %s\ns_addc_u32 s%d, s%d, 0" % (d, base, soff, d+1, base+1))
    def tags(s):
        s.A("s_getreg_b32 s3, hwreg(HW_REG_XCC_ID, 0, 4)\ns_mul_i32 s44, s44, %d\ns_add_u32 s44, s44, %d\ns_add_u32 s45, s44, s3\ns_add_u32 s45, s45, 1" % (LCG_A, LCG_C))

    def prologue(s):
        A = s.A
        s.stamp(0)
        A("s_load_dwordx16 s[16:31], s[0:1], 0\ns_load_dwordx8 s[32:39], s[0:1], 88")
        A("s_cmp_ge_u32 s2, 256\ns_cbranch_scc1 L_end")
        A("s_getpc_b64 s[40:41]")
        A("s_and_b32 s4, s2, 7\ns_lshr_b32 s5, s2, 3")
        A("v_lshrrev_b32 v2, 6, v0\ns_lshl_b32 s3, s5, 9\nv_lshl_add_u32 v1, v2, 6, s3\nv_readfirstlane_b32 s7, v2")
        A("global_load_dword v255, v1, s[40:41]", "pf")
        A("v_and_b32 v1, 63, v0\nv_and_b32 v0, 255, v0\ns_and_b32 s6, s7, 3")
        if s.cfg["cmeet"]:
            A("v_lshlrev_b32 v46, 2, v0\nv_mov_b32 v45, 0\nds_write_b32 v46, v45 offset:%d" % UL)
        A("s_cmp_ge_u32 s7, 4\ns_cbranch_scc1 L_role2")

    def roleA_head(s):
        A = s.A; cfg = s.cfg; nt = cfg["nt"]
        A.reset_counters(); A.vm = ["pf"]
        A("s_lshl_b32 s40, s5, 16\ns_lshl_b32 s3, s4, 7\ns_add_u32 s40, s40, s3")
        A("v_lshrrev_b32 v3, 5, v0\nv_and_b32 v4, 31, v0\nv_lshl_add_u32 v3, v3, 13, s40\nv_lshl_add_u32 v2, v4, 2, v3\nv_add_u32 v3, -3072, v2")
        A("s_lshl_b32 s3, s4, 9\nv_lshl_add_u32 v5, v4, 4, s3")
        A("s_lshl_b32 s41, s4, 5\ns_add_u32 s41, s41, s5")
        A("s_lshl_b32 s42, s41, 13\ns_add_u32 s43, s42, 4096\ns_lshl_b32 s41, s41, 2\ns_movk_i32 s7, 4096\nv_mov_b32 v45, 0\nv_mov_b32 v49, s41")
        A("s_mov_b32 s10, 0x200000\ns_mov_b32 s11, 0x20000\ns_mov_b32 s50, 0x200000\ns_mov_b32 s51, 0x20000")
        A("s_waitcnt lgkmcnt(0)")
        if cfg["cmeet"] and not cfg["xfirst"]: A("s_barrier")
        s.stamp(1)
        A("s_mov_b64 s[8:9], s[18:19]")
        if cfg["xfirst"]: A("s_barrier")
        for i in range(3): A("buffer_load_dword v%d, v3, s[8:11], 0 offen offset:%d%s" % (10+i, 1024*i, nt), "k")
        for i in range(8): A("buffer_load_dword v%d, v2, s[8:11], %s offen offset:%d%s" % (13+i, "s7" if i >= 4 else "0", 1024*(i & 3), nt), "k")
        A("global_load_dwordx4 v[30:33], v5, s[22:23]", "k")
        A("global_load_dword v9, v45, s[38:39] sc1", "k")
        A("global_load_dword v49, v49, s[26:27]", "k")
        s.vmA = list(A.vm)
    def roleA(s):
        A = s.A; cfg = s.cfg; nt = cfg["nt"]
        A.reset_counters(); A.vm = list(s.vmA)
        KR, VR = 10, 22
        MASK = "0xffff0000"
        A("s_mov_b64 s[48:49], s[24:25]"); s.addbase(20, 20, "s7")
        A("s_add_u32 s3, s42, %d" % W_R); s.addbase(52, 38, "s3")
        A("s_lshl_b32 s3, s4, 11\ns_add_u32 s3, s3, %d" % W_C); s.addbase(58, 38, "s3")
        A("v_lshlrev_b32 v46, 2, v0\nv_lshlrev_b32 v6, 4, v0\nv_add_u32 v252, v6, v6")
        def loads(at):
            if int(cfg["vat"]) == at:
                for i in range(8): A("global_load_dword v%d, v2, s[20:21] offset:%d%s" % (VR+i, 1024*i-4096, nt), ("v", i))
            if int(cfg["hat"]) == at:
                A("buffer_load_dwordx4 v[36:39], v6, s[48:51], s42 offen offset:4" + nt, "h")
                A("buffer_load_dwordx4 v[40:43], v6, s[48:51], s43 offen offset:4" + nt, "h")
                A("buffer_load_dword v34, v6, s[48:51], s42 offen" + nt, "h")
                A("buffer_load_dword v35, v6, s[48:51], s43 offen" + nt, "h")
            if int(cfg["pat"]) == at:
                A("global_load_dword v253, v46, s[58:59] sc1", "pre")
                if cfg["pre"]: A("global_load_dword v254, v252, s[52:53] sc1 " + cfg["prent"], "pre")
        loads(0)
        if not cfg["cmeet"]: A("ds_write_b32 v46, v45 offset:%d" % UL)
        A("s_mul_i32 s3, s6, 4160\nv_min_u32 v48, 6, v1\nv_lshl_add_u32 v47, v48, 2, s3\nds_write_b32 v47, v45 offset:%d" % HL)
        A("s_lshl_b32 s47, s6, 11\ns_lshl_b32 s60, s5, 2\ns_add_u32 s60, s60, s6\ns_lshl_b32 s3, s60, 6\ns_lshl_b32 s61, s4, 18\ns_add_u32 s3, s3, s61\ns_add_u32 s3, s3, %d" % W_R)
        s.addbase(54, 38, "s3"); s.addbase(56, 54, "0x20000")
        A("v_lshlrev_b32 v44, 3, v1\nv_lshrrev_b32 v47, 1, v1\nv_and_b32 v47, 16, v47\nv_and_b32 v48, 48, v44\nv_xor_b32 v47, v47, v48\nv_lshl_add_u32 v47, v4, 6, v47")
        A("v_add_u32 v47, s47, v47\nv_xor_b32 v48, 32, v47\nv_lshl_add_u32 v21, v1, 4, s47")
        A("v_add_u32 v8, v1, v1\nv_xor_b32 v8, v8, v6\ns_lshl_b32 s3, s5, 4\nv_xor_b32 v8, s3, v8\nv_and_b32 v8, 48, v8\nv_and_b32 v5, 60, v1\nv_lshl_add_u32 v8, v5, 11, v8")
        A("s_lshl_b32 s60, s60, 2\nv_mov_b32 v7, s60\ns_add_u32 m0, s47, %d" % (UL+1024))
        if not cfg["cmeet"]: A("s_waitcnt lgkmcnt(0)\ns_barrier")
        if int(cfg["prioA"]): A("s_setprio %d" % int(cfg["prioA"]))
        loads(1)
        s.stamp(11)
        if int(cfg["bxat"]) == -1: A("s_barrier")
        KP, W, S, VP = 50, 72, 80, 96
        A.wait(vm="k")
        s.stamp(2)
        for t in range(4):
            for c in range(2):
                src = 30 + 2*c + (t >> 1)
                A(("v_and_b32 v%d, " + MASK + ", v%d" if t & 1 else "v_lshlrev_b32 v%d, 16, v%d") % (W+2*t+c, src))
        for i in range(11):
            A("v_lshlrev_b32 v%d, 16, v%d\nv_and_b32 v%d, %s, v%d" % (KP+2*i, KR+i, KP+2*i+1, MASK, KR+i))
        for t in (3, 2, 1, 0):
            for r in range(8):
                if cfg["kpk"]:
                    k = vr(KP+2*(r+3-t), 2); w = vr(W+2*t, 2); d = vr(S+2*r, 2)
                    A("v_pk_mul_f32 %s, %s, %s" % (d, k, w) if t == 3 else "v_pk_fma_f32 %s, %s, %s, %s" % (d, k, w, d))
                else:
                    for c in range(2): A("%s v%d, v%d, v%d" % ("v_mul_f32" if t == 3 else "v_fmac_f32", S+2*r+c, KP+2*(r+3-t)+c, W+2*t+c))
        loads(2)
        s.stamp(12)
        if int(cfg["bxat"]) == 0: A("s_barrier")
        for r in range(8):
            if r in (0, 4): A.wait(vm=("v", r+3))
            if r == 4: s.stamp(10)
            A("v_lshlrev_b32 v%d, 16, v%d\nv_and_b32 v%d, %s, v%d" % (VP+2*r, VR+r, VP+2*r+1, MASK, VR+r))
            if cfg["upk"]: A("v_pk_mul_f32 %s, %s, %s" % (vr(S+2*r, 2), vr(S+2*r, 2), vr(VP+2*r, 2)))
            else:
                for c in range(2): A("v_mul_f32 v%d, v%d, v%d" % (S+2*r+c, S+2*r+c, VP+2*r+c))
            if r & 1:
                j = (7-r)//2
                for c in range(2): A("v_cvt_pk_bf16_f32 v%d, v%d, v%d" % (112+4*c+j, S+2*r+c, S+2*(r-1)+c))
        for c in range(2): A("ds_write_b128 v%d, %s offset:%d" % (47+c, vr(112+4*c, 4), RED))
        A("ds_read_b128 v[240:243], v21 offset:%d" % RED, "sh0")
        A("ds_read_b128 v[244:247], v21 offset:%d" % (RED+1024), "sh1")
        A("v_readfirstlane_b32 s44, v9\nv_readfirstlane_b32 s46, v49\ns_mov_b32 s96, 0")
        s.tags()
        A("v_mov_b32 v9, s45\nv_mov_b32 v20, v44")
        A("s_lshr_b32 s61, s6, 1\ns_mul_i32 s7, s61, 7808\ns_lshl_b32 s41, s6, 8\ns_add_u32 s7, s7, s41\ns_add_u32 s7, s7, %d" % HL)
        A("v_and_b32 v10, 1, v0\nv_mul_u32_u24 v10, 4158, v10\nv_lshl_add_u32 v10, v1, 1, v10\nv_add_u32 v10, s7, v10")
        ust = ["global_store_dwordx4 v8, v[240:243], s[54:55]", "global_store_dwordx4 v8, v[244:247], s[56:57]"]
        A.wait(lg="sh0"); A(ust[0], "ust")
        A.wait(lg="sh1"); A(ust[1], "ust")
        s.stamp(3)
        A.wait(vm="h")
        s.stamp(9)
        for c in range(2):
            d = [34+c] + [36+4*c+k for k in range(4)]
            A("ds_write_b128 v6, %s offset:%d" % (vr(36+4*c, 4), HL+c*8320+4160+32))
            for k in range(4): A("v_alignbit_b32 v%d, v%d, v%d, 16" % (50+4*c+k, d[k+1], d[k]))
            A("ds_write_b128 v6, %s offset:%d" % (vr(50+4*c, 4), HL+c*8320+32))
        A("s_cmp_eq_u32 s6, 0\ns_cbranch_scc1 L_a_h0\nL_a_h0back:")
        def h0():
            A("L_a_h0:\ns_mov_b32 s62, 0xffff0000\ns_lshl_b32 s3, s46, 16\ns_and_b32 s7, s46, s62\ns_mov_b64 exec, 1")
            for c in range(2):
                A("v_lshlrev_b32 v60, 16, v%d\nv_add_f32 v60, %s, v60\nv_cvt_pk_bf16_f32 v60, v60, v60" % (34+c, "s7" if c else "s3"))
                A("v_bfi_b32 v%d, s62, v%d, v60\nv_and_b32 v%d, s62, v60" % (62+2*c, 34+c, 61+2*c))
                A("ds_write_b32 v6, v%d offset:%d" % (61+2*c, HL+c*8320+28))
                A("ds_write_b32 v6, v%d offset:%d" % (62+2*c, HL+c*8320+4160+28))
            A("s_mov_b64 exec, -1\ns_branch L_a_h0back")
        s.side(h0)
        for i in range(1, 4): A("v_add_u32 v%d, %d, v10" % (10+i, 1024*i))
        HB = lambda q: 32+32*q
        UB = lambda q: 160+32*(q & 1)
        ACC = 224
        def hread(q, a, half):
            bb, hf = q >> 1, q & 1
            o = 128*(a & 1)+32*bb+4*hf+2*half
            A("ds_read2_b32 %s, v%d offset0:%d offset1:%d" % (vr(HB(q)+4*a+2*half, 2), 10+(a >> 1), o, o+1), ("f", q, a))
        def uread(q, z):
            A("ds_read_b128 %s, v%d offset:%d" % (vr(UB(q)+4*z, 4), 14+q, UL+1024*z), ("f", q, z))
        npre = int(cfg["hpre"])
        def hpre(qs):
            for q in qs:
                for a in range(8): hread(q, a, 0); hread(q, a, 1)
        def addr2():
            A("v_and_b32 v18, 3, v0\nv_bfe_u32 v19, v0, 2, 1\nv_lshl_add_u32 v18, v18, 1, v19\nv_and_b32 v19, 8, v0\nv_lshrrev_b32 v5, 4, v1\nv_sub_u32 v19, v19, v5")
            A("s_and_b32 s41, s6, 1\ns_lshl_b32 s41, s41, 3\ns_sub_u32 s41, 16, s41\nv_add3_u32 v18, v18, v19, s41\ns_lshl_b32 s3, s61, 5\ns_add_u32 s3, s3, 16")
            for bb in range(2):
                if bb: A("v_add_u32 v18, -4, v18")
                A("v_lshlrev_b32 v19, 2, v18\nv_xor_b32 v19, s3, v19\nv_and_b32 v19, 48, v19\nv_lshl_add_u32 v%d, v18, 6, v19" % (14+2*bb))
                A("v_xor_b32 v%d, 16, v%d" % (15+2*bb, 14+2*bb))
            A("s_mul_i32 s3, s6, 8448\nv_lshrrev_b32 v2, 5, v1\nv_add_u32 v2, v2, v1\nv_lshl_add_u32 v2, v2, 4, s3")
            A("s_lshl_b32 s3, s6, 7\nv_and_b32 v3, 15, v0\nv_mul_u32_u24 v3, 528, v3\nv_and_b32 v5, 48, v0\nv_add3_u32 v3, v3, v5, s3")
            A("s_lshl_b32 s60, s5, 2\ns_add_u32 s60, s60, s3")
        def barH():
            A("s_waitcnt lgkmcnt(0)\ns_barrier"); s.stamp(14)
        def flag():
            A("s_mov_b64 exec, 1\ns_waitcnt vmcnt(0)"); s.stamp(4)
            A("global_store_dword v7, v9, s[58:59]\ns_mov_b64 exec, -1")
        def poll1(): A("global_load_dwordx2 v[22:23], v20, s[58:59] sc1")
        steps = dict(H=barH, x=lambda: hpre(range(1)), y=lambda: hpre(range(1, npre)), d=addr2, f=flag, p=poll1)
        for ch in cfg["seqA"]: steps[ch]()
        A("s_mov_b32 s3, 0")
        if cfg["far"]: A("s_branch L_a_far")
        A("L_a_pu:\ns_waitcnt vmcnt(0)")
        A("v_cmp_ne_u32 vcc, s45, v22\nv_cmp_ne_u32 s[40:41], s45, v23\ns_or_b64 vcc, vcc, s[40:41]\ns_cbranch_scc1 L_a_miss\nL_a_pu_ok:")
        def far():
            A("L_a_miss:\nglobal_load_dwordx2 v[22:23], v20, s[58:59] sc1\ns_add_u32 s3, s3, 1\ns_cmp_lt_u32 s3, %d\ns_cbranch_scc1 L_a_pu" % NEAR_TRIES)
            A("L_a_far:\nv_mov_b32 v26, s44\nv_add_u32 v8, %d, v8" % FAR)
            for l in ust: A(l + " sc1")
            A("s_waitcnt vmcnt(0)\ns_mov_b64 exec, 1\nglobal_store_dword v7, v26, s[58:59] offset:1024 sc1\ns_mov_b64 exec, -1")
            A("L_a_pf:\nglobal_load_dwordx2 v[24:25], v20, s[58:59] offset:1024 sc1\ns_waitcnt vmcnt(0)\nglobal_load_dwordx2 v[22:23], v20, s[58:59] sc1\ns_waitcnt vmcnt(0)")
            A("v_cmp_ne_u32 vcc, s45, v22\nv_cmp_ne_u32 s[40:41], s45, v23\ns_or_b64 vcc, vcc, s[40:41]\ns_cbranch_scc0 L_a_pu_ok")
            A("v_cmp_ne_u32 vcc, s44, v24\nv_cmp_ne_u32 s[40:41], s44, v25\ns_or_b64 vcc, vcc, s[40:41]\ns_cbranch_scc0 L_a_isfar")
            A("s_sleep 8\ns_add_u32 s3, s3, 1\ns_cmp_lt_u32 s3, %d\ns_cbranch_scc1 L_a_pf" % SPIN)
            A("L_a_isfar:\ns_mov_b32 s96, 1\nv_mov_b32 v9, s44")
            s.addbase(52, 52, "%d" % FAR)
            A("s_branch L_a_pu_ok")
        s.side(far)
        s.stamp(5)
        A("global_load_lds_dwordx4 v21, s[52:53] sc1\nglobal_load_lds_dwordx4 v21, s[52:53] offset:1024 sc1")
        A("v_mov_b32 v7, s60\nv_mov_b32 v5, s6\nv_mov_b32 v4, 1\nv_mov_b32 v26, 0\nv_mov_b32 v27, 0x01010101")
        if int(cfg["prioC"]): A("s_setprio %d" % int(cfg["prioC"]))
        A("s_waitcnt vmcnt(0) lgkmcnt(0)\ns_barrier")
        s.stamp(6)
        if cfg.get("cyc"): A("s_memtime s[98:99]")
        if cfg.get("al"): A.raw(".p2align 3")
        todo = [(q, a, k) for q in range(4) for a in range(8) for k in range(3) if k == 0 or q >= npre]
        def feed(n, q):
            for _ in range(n):
                if todo and todo[0][0] <= q+1:
                    qq, a, k = todo.pop(0)
                    if cfg.get("nords") and qq > 0: continue
                    if k == 0: uread(qq, a)
                    else: hread(qq, a, k-1)
        feed(8 if npre else 15, 0)
        for q in range(4):
            pend = []; n = 0
            for i in range(8):
                while todo and todo[0][:2] <= (q, i): feed(1, q)
                n0 = len(A.L); A.wait(lg=[("f", q, i)] if q == 0 else [("f", q, z) for z in range(8)])
                if cfg.get("al") and len(A.L) > n0: A("s_nop 0")
                for a in range(i+1):
                    acc = vr(ACC+4*i, 4)
                    A("v_mfma_f32_16x16x32_bf16 %s, %s, %s, %s" % (acc, vr(UB(q)+4*(i-a), 4), vr(HB(q)+4*a, 4), "0" if (q == 0 and a == 0) else acc))
                    n += 1
                    if (q == 0 and not npre) or n >= (8 if q == 0 else 2): feed(1, q)
                    if pend and n >= pend[0][1]:
                        t = pend.pop(0)[0]
                        A("ds_write_b128 v2, %s offset:%d" % (vr(ACC+4*t, 4), RED+1056*t))
                if q == 3: pend.append((i, n+8))
            for t, _ in pend: A("ds_write_b128 v2, %s offset:%d" % (vr(ACC+4*t, 4), RED+1056*t))
        assert not todo
        s.stamp(13)
        if cfg.get("cyc"): A("s_memtime s[92:93]\ns_waitcnt lgkmcnt(0)\ns_sub_u32 s92, s92, s98\ns_add_u32 s92, s92, s64\ns_mov_b32 s93, s65")
        def rreads():
            for io in range(2):
                for ws in range(4):
                    A("ds_read_b128 %s, v3 offset:%d" % (vr(32+16*io+4*ws, 4), RED+ws*8448+io*64), ("r", io))
        if cfg["dec"]:
            A("ds_write_b8 v5, v4 offset:%d" % UL)
            A("ds_read_b32 v28, v26 offset:%d" % UL, "cnt")
            rreads()
            A.wait(lg="cnt")
            A("v_cmp_ne_u32 vcc, v27, v28\ns_cbranch_vccnz L_a_rw\nL_a_rok:")
            def rw():
                A("L_a_rw:\nds_read_b32 v28, v26 offset:%d\ns_waitcnt lgkmcnt(0)\nv_cmp_ne_u32 vcc, v27, v28\ns_cbranch_vccnz L_a_rw" % UL)
                rreads()
                A("s_branch L_a_rok")
            s.side(rw)
        else:
            A("s_waitcnt lgkmcnt(0)\ns_barrier")
            rreads()
        s.stamp(7)
        yst = ["global_store_dwordx4 v21, %s, s[52:53] offset:%d" % (vr(64+4*io, 4), 1024*io) for io in range(2)]
        def ysum(io):
            b = 32+16*io
            A.wait(lg=("r", io))
            for c in range(2):
                for p in range(2):
                    A("v_pk_add_f32 %s, %s, %s" % (vr(b+8*c+2*p, 2), vr(b+8*c+2*p, 2), vr(b+8*c+4+2*p, 2)))
            for r in range(4): A("v_cvt_pk_bf16_f32 v%d, v%d, v%d" % (64+4*io+r, b+r, b+8+r))
        A("s_cmp_eq_u32 s96, 1\ns_cbranch_scc1 L_a_yfar")
        def yfar():
            A("L_a_yfar:")
            for io in range(2):
                ysum(io); A(yst[io] + " sc1")
            A("s_waitcnt vmcnt(0)\ns_mov_b64 exec, 1\nglobal_store_dword v7, v9, s[58:59] offset:1536 sc1\ns_branch L_a_done")
        s.side(yfar)
        for io in range(2):
            ysum(io); A(yst[io])
        A("s_mov_b64 exec, 1\ns_waitcnt vmcnt(0)")
        s.stamp(8)
        A("global_store_dword v7, v9, s[58:59] offset:512")
        A("L_a_done:")
        s.stamps_out(1, 16)
        A("s_endpgm")

    def roleB_head(s):
        A = s.A; cfg = s.cfg
        A.reset_counters(); A.vm = ["pf"]
        A("s_lshr_b32 s7, s5, 4\ns_and_b32 s3, s5, 15\ns_lshl_b32 s40, s4, 4\ns_add_u32 s40, s40, s3")
        A("v_and_b32 v2, 3, v0\nv_bfe_u32 v3, v0, 2, 1\nv_lshl_add_u32 v2, v2, 1, v3\nv_and_b32 v3, 8, v0\nv_add_u32 v2, v2, v3")
        A("s_sub_u32 s63, 256, s40\ns_cmp_eq_u32 s40, 0\ns_cselect_b32 s63, 128, s63\ns_sub_u32 s3, s63, s40\nv_lshrrev_b32 v3, 5, v1\nv_mul_u32_u24 v240, s3, v3\nv_add_u32 v240, s40, v240")
        A("v_and_b32 v242, 16, v0\nv_lshl_add_u32 v241, v242, 6, v240\ns_lshl_b32 s41, s6, 8\nv_lshl_add_u32 v3, v2, 4, s41\nv_lshl_add_u32 v2, v241, 10, v3")
        A("s_lshl_b32 s48, s7, 19\ns_xor_b32 s49, s48, 0x40000\ns_xor_b32 s50, s48, 0x80000\ns_xor_b32 s51, s48, 0xc0000\nv_mov_b32 v190, 0")
        A("s_mov_b32 s10, 0x200000\ns_mov_b32 s11, 0x20000\nv_mov_b32 v244, s6\nv_mov_b32 v245, 1\nv_mov_b32 v246, 0")
        A("s_waitcnt lgkmcnt(0)")
        if cfg["cmeet"] and not cfg["xfirst"]: A("s_barrier")
        s.stamp(1)
        A("s_mov_b64 s[8:9], s[16:17]")
        s.xload(range(4))
        if cfg["xfirst"]: A("s_barrier")
        A("global_load_dwordx4 v[184:187], v3, s[32:33]", "gw")
        A("global_load_dword v190, v190, s[38:39] sc1", "gw")
        s.vmB = list(A.vm)
    def XR(s, j): return (224+4*j) if j < 2 else (64+4*j)
    def xload(s, js):
        for j in js: s.A("buffer_load_dwordx4 %s, v2, s[8:11], s%d offen %s" % (vr(s.XR(j), 4), 48+j, s.cfg["xnt"]), ("x", j))
    def roleB(s):
        A = s.A; cfg = s.cfg; XR = s.XR
        A.reset_counters(); A.vm = list(s.vmB)
        KQ, NF, QO, MS, MP, L7, VS = 232, 233, 234, 235, 236, 237, 238
        A("v_lshlrev_b32 v243, 4, v1\nv_bfe_u32 v161, v0, 5, 1\nv_cvt_f32_u32 v161, v161\nv_and_b32 v167, 1, v0\ns_mov_b32 s62, 0x80008000")
        def put(f0, n):
            for f in range(f0, f0+n): A("ds_write_b128 v243, %s offset:%d" % (vr(4+4*f, 4), CL+1024*f))
        def trig(c, sn, jump):
            for j in range(8):
                A("v_cos_f32 v%d, v164\nv_sin_f32 v%d, v164" % (c+j, sn+j))
                if jump and j == 3: A("v_fmamk_f32 v164, v163, 0x40a00000, v164")
                elif j < 7: A("v_add_f32 v164, v164, v163")
        def pack(c, sn):
            for j in range(4):
                A("v_cvt_pk_bf16_f32 v%d, v%d, v%d\nv_cvt_pk_bf16_f32 v%d, v%d, v%d" % (c+j, 128+2*j, 129+2*j, sn+j, 136+2*j, 137+2*j))
        A("s_cmp_ge_u32 s6, 2\ns_cbranch_scc1 L_b_c23")
        A("v_and_b32 v160, 8, v0\nv_lshlrev_b32 v160, 1, v160\nv_and_b32 v162, 3, v0\nv_lshl_add_u32 v160, v162, 2, v160\nv_bfe_u32 v162, v0, 2, 1\nv_lshl_add_u32 v160, v162, 1, v160")
        A("v_bfe_u32 v162, v0, 4, 1\nv_add_u32 v160, v160, v162\nv_cvt_f32_u32 v160, v160")
        A("s_cmp_eq_u32 s6, 1\ns_cbranch_scc1 L_b_c1")
        A("v_mul_lo_u32 v165, v162, s62\nv_mul_f32 v163, 0x3d000000, v160\nv_mul_f32 v164, 0x41000000, v161\nv_mul_f32 v164, v164, v163")
        trig(128, 136, False); pack(8, 16)
        for j in range(4):
            A("v_xor_b32 v%d, v165, v%d\nv_xor_b32 v%d, v165, v%d\nv_xor_b32 v%d, s62, v%d" % (12+j, 8+j, 20+j, 16+j, 24+j, 16+j))
            A("v_xor_b32 v%d, s62, v%d" % (28+j, 20+j))
        put(1, 6)
        A("s_branch L_b_cd\nL_b_c1:")
        A("v_mul_f32 v163, 0x3b000000, v160\nv_mul_f32 v166, 4.0, v161\nv_mul_f32 v164, v166, v163")
        trig(32, 40, True)
        A("s_nop 0")
        put(7, 4)
        A("s_branch L_b_cd\nL_b_c23:\nv_cvt_f32_u32 v162, v167\nv_mul_f32 v162, 0.25, v162\ns_cmp_eq_u32 s6, 3\ns_cbranch_scc1 L_b_c3")
        A("s_cmp_eq_u32 s40, 0\ns_cselect_b32 s3, 0, 1.0\nv_mul_f32 v162, s3, v162\nv_mul_lo_u32 v165, v167, s62\nv_mul_f32 v166, 4.0, v161")
        A("v_bfe_u32 v160, v0, 1, 4\nv_cvt_f32_u32 v160, v160\nv_mul_f32 v163, 0x3d800000, v160\nv_fma_f32 v164, v166, v163, v162")
        trig(128, 136, True); pack(48, 52)
        A("s_cbranch_scc1 L_b_s0")
        for j in range(8): A("v_xor_b32 v%d, v165, v%d" % (56+j, 48+j))
        A("L_b_s0back:")
        s.tail.append("L_b_s0:\nv_cmp_eq_u32 vcc, 0, v167\ns_nop 1\n" + "\n".join("v_cndmask_b32 v%d, v%d, v167, vcc\nv_cndmask_b32 v%d, 0, v%d, vcc" % (56+j, 48+j, 48+j, 48+j) for j in range(8)) + "\ns_branch L_b_s0back")
        put(11, 4)
        A("s_branch L_b_cd\nL_b_c3:")
        A("v_bfe_u32 v160, v0, 1, 2\ns_lshl_b32 s3, s7, 2\nv_add_u32 v160, s3, v160\nv_cvt_f32_u32 v160, v160\nv_cvt_f32_u32 v161, v241")
        A("v_mul_f32 v163, 0x3a000000, v160\nv_fma_f32 v165, v163, v161, v162\nv_mul_f32 v166, 0x35000000, v160")
        for j in range(4):
            A("v_cvt_f32_u32 v164, s%d\nv_fma_f32 v164, v164, v166, v165\nv_cos_f32 v%d, v164" % (48+j, 168+j))
        for j in range(2): A("v_cvt_pk_bf16_f32 v%d, v%d, v%d" % (4+j, 168+2*j, 169+2*j))
        A("s_mov_b32 exec_lo, 0xff00ff00\ns_mov_b32 exec_hi, 0x00ff00ff\nv_mov_b64 v[4:5], 0\ns_mov_b64 exec, -1")
        put(0, 1)
        A("L_b_cd:")
        def creads():
            for f in range(15): A("ds_read_b128 %s, v243 offset:%d" % (vr(4+4*f, 4), CL+1024*f), "c")
        if cfg["cmeet"]: A("ds_write_b8 v244, v245 offset:%d" % (UL+12))
        else:
            A("s_waitcnt lgkmcnt(0)\ns_barrier")
            creads()
        A("v_lshrrev_b32 v%d, 4, v1\nv_and_b32 v%d, 15, v0\nv_and_b32 v%d, 7, v0" % (KQ, NF, L7))
        A("v_mul_u32_u24 v2, 2064, v%d\nv_and_b32 v3, 8, v0\nv_lshl_add_u32 v2, v3, 7, v2\nv_lshl_add_u32 v2, v242, 3, v2\nv_bfe_u32 v3, v0, 5, 1\nv_lshl_add_u32 v2, v3, 3, v2" % L7)
        A("v_add_u32 v2, s41, v2")
        A("v_lshlrev_b32 v3, 8, v3\nv_lshl_add_u32 v3, v242, 6, v3\nv_lshl_add_u32 v3, v%d, 4, v3\ns_mul_i32 s3, s6, 4128\nv_add_u32 v3, s3, v3" % NF)
        A("v_bfe_u32 v238, v0, 2, 3\nv_lshlrev_b32 v238, 18, v238\nv_and_b32 v160, 3, v0\nv_lshl_add_u32 v238, v160, 4, v238")
        A("v_and_b32 v160, 2, v%d\nv_xor_b32 v160, s40, v160\nv_and_b32 v160, 3, v160\nv_lshl_add_u32 v238, v160, 6, v238\nv_xor_b32 v239, 64, v238" % KQ)
        A("s_lshl_b32 s3, s7, 2\ns_add_u32 s3, s3, s6\ns_lshl_b32 s3, s3, 7\ns_add_u32 s43, s3, s40\ns_lshl_b32 s3, s43, 8\ns_add_u32 s3, s3, %d" % W_V)
        s.addbase(28, 38, "s3")
        A("s_mov_b32 s46, 0x05040100\ns_mov_b32 s47, 0x07060302\ns_mov_b32 s62, 0xffff0000")
        if cfg["mpre"]: A("s_lshl_b32 s3, s43, 7\ns_add_u32 s3, s3, %d\nv_mov_b32 v250, s3\nglobal_load_dword v250, v250, s[38:39]" % W_M, "mp")
        if cfg["cmeet"]:
            A("L_b_cw:\nds_read_b32 v247, v246 offset:%d\ns_waitcnt lgkmcnt(0)\nv_cmp_ne_u32 vcc, 0x01010101, v247\ns_cbranch_vccnz L_b_cw" % (UL+12))
            creads()
        s.stamp(12)
        perm = lambda jj, c: A("v_perm_b32 v%d, v%d, v%d, s%d" % (96+2*c+jj, XR(2*jj+1)+(c >> 1), XR(2*jj)+(c >> 1), 46+(c & 1)))
        def gpart():
            GW, GX = 176, 192
            A.wait(vm="gw")
            for p in range(4): A("v_lshlrev_b32 v%d, 16, v%d\nv_and_b32 v%d, s62, v%d" % (GW+2*p, 184+p, GW+1+2*p, 184+p))
            for i in range(8): A("v_lshlrev_b32 v%d, 16, v%d\nv_and_b32 v%d, s62, v%d" % (GX+2*i, 224+i, GX+1+2*i, 224+i))
            for i in range(8): A("v_pk_mul_f32 %s, %s, %s" % (vr(GX+2*i, 2), vr(GX+2*i, 2), vr(GW+2*(i & 3), 2)))
            for i in range(16): A("v_cvt_pk_bf16_f32 v%d, 0, v%d" % (GX+i, GX+i))
            for i in range(4): A("v_pk_add_f32 %s, %s, %s" % (vr(GX+4*i, 2), vr(GX+4*i, 2), vr(GX+2+4*i, 2)))
            for i in range(2): A("v_pk_add_f32 %s, %s, %s" % (vr(GX+8*i, 2), vr(GX+8*i, 2), vr(GX+4+8*i, 2)))
            for i in range(2): A("v_add_f32 v%d, v%d, v%d" % (GW+i, GX+8*i, GX+1+8*i))
            A("s_lshl_b32 s3, s6, 2\ns_add_u32 s3, s3, %d" % GL)
            fill = ["v_lshl_add_u32 v178, v%d, 5, s3" % KQ, "v_lshlrev_b32 v191, 4, v%d" % L7, "v_add_u32 v191, %d, v191" % GL]
            for sh in (8, 4, 2, 1):
                for r in range(2): A("v_add_f32_dpp v%d, v%d, v%d row_ror:%d row_mask:0xf bank_mask:0xf" % (GW+r, GW+r, GW+r, sh))
                if fill: A(fill.pop(0))
            A("ds_write2_b32 v178, v176, v177 offset0:0 offset1:4")
        def gfin():
            A.wait(lg="gp")
            A("v_pk_add_f32 v[188:189], v[188:189], v[190:191]\nv_add_f32 v188, v188, v189")
            A("v_cvt_pk_bf16_f32 v188, 0, v188\nv_mul_f32 v188, 0xbfb8aa3b, v188\nv_exp_f32 v188, v188\nv_mov_b32 v189, s44\nv_add_f32 v188, 1.0, v188\nv_rcp_f32 v188, v188")
            A("v_cvt_pk_bf16_f32 v188, 0, v188\nv_sub_f32 v190, 1.0, v188\nv_cvt_pk_bf16_f32 v188, v190, v188")
        gearly = cfg["gat"] == "early"
        if gearly: gpart()
        if int(cfg["prioB"]): A("s_setprio %d" % int(cfg["prioB"]))
        mfA = lambda c: A("v_mfma_f32_16x16x16_bf16 %s, %s, v[4:5], 0" % (vr(128+4*c, 4), vr(96+2*c, 2)))
        def outA(c):
            A("v_cvt_pk_bf16_f32 v%d, v%d, v%d\nv_cvt_pk_bf16_f32 v%d, v%d, v%d" % (160+2*c, 128+4*c, 129+4*c, 161+2*c, 130+4*c, 131+4*c))
            A("ds_write_b64 v2, %s offset:%d" % (vr(160+2*c, 2), X1+16*c))
        A.wait(vm=("x", 1)); s.stamp(13)
        for c in range(8): perm(0, c)
        A.wait(vm=("x", 3), lg="c"); s.stamp(2)
        for op in "p0 p1 p2 m0 p3 p4 m1 p5 p6 m2 p7 m3 m4 o0 m5 o1 m6 o2 m7 o3 o4 o5 o6 o7".split():
            {"p": lambda c: perm(1, c), "m": mfA, "o": outA}[op[0]](int(op[1]))
        def areads():
            for ri in range(2):
                for ks in range(2):
                    A("ds_read_b128 %s, v3 offset:%d" % (vr(64+8*ri+4*ks, 4), X1+ri*2064+ks*512), ("a", ri, ks))
        if int(cfg["bxat"]) == 8:
            A("ds_write_b8 v244, v245 offset:%d" % (UL+8))
            A("L_b_xw:\nds_read_b32 v247, v246 offset:%d\ns_waitcnt lgkmcnt(0)\nv_cmp_ne_u32 vcc, 0x01010101, v247\ns_cbranch_vccnz L_b_xw" % (UL+8))
            areads()
        elif int(cfg["bxat"]) == 9:
            A("ds_write_b8 v244, v245 offset:%d" % (UL+8))
            A("ds_read_b32 v247, v246 offset:%d" % (UL+8), "cnt")
            areads()
            A.wait(lg="cnt")
            A("v_cmp_ne_u32 vcc, 0x01010101, v247\ns_cbranch_vccnz L_b_xw\nL_b_xok:")
            def xw():
                A("L_b_xw:\nds_read_b32 v247, v246 offset:%d\ns_waitcnt lgkmcnt(0)\nv_cmp_ne_u32 vcc, 0x01010101, v247\ns_cbranch_vccnz L_b_xw" % (UL+8))
                areads()
                A("s_branch L_b_xok")
            s.side(xw)
        else:
            A("s_waitcnt lgkmcnt(0)\ns_barrier")
            areads()
        s.stamp(3)
        def tg():
            A.wait(vm="gw")
            A("v_readfirstlane_b32 s44, v190")
            s.tags()
        if gearly: tg()
        if gearly: A("ds_read_b128 v[188:191], v191", "gp")
        RE, IM = 96, 112
        M32 = "v_mfma_f32_32x32x16_bf16 %s, %s, %s, %s"
        for n in range(4):
            ri, ks = n >> 1, n & 1
            A.wait(lg=("a", ri, ks))
            A(M32 % (vr(RE, 16), vr(64+8*ri+4*ks, 4), vr((8 if ri == 0 else 16)+4*ks, 4), vr(RE, 16) if n else "0"))
        muls = []
        for o in range(16):
            muls.append("v_mul_f32 v%d, v%d, v%d" % (128+o, RE+o, 32+(o & 7)))
            muls.append("v_mul_f32_e64 v%d, -v%d, v%d" % (144+o, RE+o, 40+(o & 7)))
        for n in range(4):
            ri, ks = n >> 1, n & 1
            A(M32 % (vr(IM, 16), vr(64+8*ri+4*ks, 4), vr((24 if ri == 0 else 8)+4*ks, 4), vr(IM, 16) if n else "0"))
            if n == 0 and gearly: gfin()
            for _ in range((0, 6, 6, 20)[n]): A(muls.pop(0))
        for o in range(0, 16, 2):
            A("v_pk_fma_f32 %s, %s, %s, %s" % (vr(128+o, 2), vr(IM+o, 2), vr(40+(o & 7), 2), vr(128+o, 2)))
            A("v_pk_fma_f32 %s, %s, %s, %s" % (vr(144+o, 2), vr(IM+o, 2), vr(32+(o & 7), 2), vr(144+o, 2)))
        def cv(n):
            row, ri = n >> 1, n & 1
            for p in range(4):
                o = 128+16*ri+8*row+2*p
                A("v_cvt_pk_bf16_f32 v%d, v%d, v%d" % (160+4*n+p, o, o+1))
        cv(0); cv(1)
        for n in range(4):
            A(M32 % (vr(64, 16), vr(160+4*n, 4), vr(48+4*n, 4), vr(64, 16) if n else "0"))
            if n < 2: cv(n+2)
        s.addbase(60, 38, "%d" % W_M)
        A("s_lshl_b32 s3, s43, 7\nv_lshl_add_u32 v%d, v%d, 3, s3" % (MS, L7))
        vmode = cfg["vmode"]
        def vstore(io): A("global_store_dwordx4 v%d, %s, s[28:29] sc1" % (VS+io, vr(208+4*io, 4)), "vst")
        def msg(): A("s_mov_b64 exec, 0xff\nglobal_store_dwordx2 v%d, v[188:189], s[60:61] sc1\ns_mov_b64 exec, -1" % MS, "msg")
        for io in range(2):
            for p in range(4):
                o = 64+8*io+2*p
                A("v_cvt_pk_bf16_f32 v%d, v%d, v%d" % (208+4*io+p, o, o+1))
            if vmode != "after": vstore(io)
        if int(cfg["prioB"]): A("s_setprio 0")
        s.stamp(4)
        if not gearly: tg()
        qso = ["0", "s56", "s42", "s57"]
        def setup0():
            A("v_lshl_add_u32 v129, v%d, 3, v%d\ns_and_b32 s3, s5, 7\ns_lshl_b32 s3, s3, 2\ns_add_u32 s3, s3, s6\ns_lshl_b32 s3, s3, 12\nv_lshl_add_u32 v%d, v129, 7, s3" % (KQ, L7, MP))
            A("v_and_b32 v128, 3, v0\nv_lshl_add_u32 v129, v128, 5, s5\nv_lshl_add_u32 v129, v242, 3, v129\nv_sub_u32 v130, 256, v129\nv_min_u32 v129, v130, v129\nv_and_b32 v129, 127, v129\nv_lshlrev_b32 v129, 7, v129")
            A("v_lshl_add_u32 v129, v242, 1, v129\nv_bfe_u32 v130, v0, 5, 1\nv_lshlrev_b32 v130, 3, v130\ns_and_b32 s3, s6, 1\ns_lshl_b32 s3, s3, 2\ns_add_u32 s3, s3, s6\ns_lshl_b32 s3, s3, 14\ns_lshr_b32 s41, s6, 1\ns_lshl_b32 s41, s41, 4\ns_add_u32 s3, s3, s41\nv_add3_u32 v129, v129, v130, s3")
            A("s_mov_b32 exec_lo, 0xff00ff00\ns_mov_b32 exec_hi, 0xff00ff00\nv_mov_b32 v%d, v129\ns_mov_b64 exec, -1" % MP)
            A("s_lshl_b32 s3, s5, 10\ns_lshl_b32 s41, s6, 19\ns_add_u32 s3, s3, s41\ns_lshl_b32 s41, s4, 7\ns_add_u32 s3, s3, s41")
            A("v_lshlrev_b32 v234, 17, v%d\nv_lshl_add_u32 v234, v%d, 3, v234\nv_add_u32 v234, s3, v234" % (KQ, NF))
            A("s_mov_b32 s56, 0x8000\ns_mov_b32 s57, 0x18000\ns_mov_b32 s42, 0x10000")
            A("s_lshl_b32 s3, s6, 13\nv_lshl_add_u32 v44, v1, 4, s3\ns_add_u32 s3, s3, %d\ns_mov_b32 m0, s3" % VL)
            A("s_and_b32 s43, s5, 7\ns_lshl_b32 s3, s4, 3\ns_add_u32 s3, s3, s43\ns_lshl_b32 s3, s3, 15\ns_add_u32 s3, s3, %d" % W_V); s.addbase(30, 38, "s3")
        def cf(lo, hi):
            for i in range(lo, hi):
                A("v_cos_f32 v134, v132\nv_sin_f32 v135, v132")
                if i < 15: A("v_fmamk_f32 v132, v131, 0x40e00000, v132" if i & 1 else "v_add_f32 v132, v132, v131")
                A("v_cvt_pk_bf16_f32 v%d, v134, v135" % (4+i))
        nb = int(cfg["nb"])
        def setup1():
            A("s_lshl_b32 s3, s6, 6\ns_lshr_b32 s41, s5, 3\ns_add_u32 s3, s3, s41\nv_lshl_add_u32 v128, v%d, 2, s3\nv_cvt_f32_u32 v128, v128\nv_mul_f32 v131, 0x3b800000, v128" % NF)
            A("v_cvt_f32_u32 v129, v%d\nv_add_f32 v129, v129, v129\nv_mul_f32 v132, v129, v131" % KQ)
            cf(0, nb)
        def setup1b():
            cf(nb, 16)
            A("s_lshr_b32 s41, s5, 3\ns_and_b32 s3, s41, 1\ns_lshl_b32 s3, s3, 4\ns_cmp_eq_u32 s41, 1\ns_cselect_b32 s43, 0x8000, 0\ns_cmp_eq_u32 s41, 2\ns_cselect_b32 s43, 0x80008000, s43\ns_cmp_eq_u32 s41, 3\ns_cselect_b32 s43, 0x80000000, s43\nv_mov_b32 v133, s43")
            for i in range(16): A("v_alignbit_b32 v%d, v%d, v%d, s3\nv_xor_b32 v%d, v133, v%d" % (20+i, 4+i, 4+i, 20+i, 20+i))
            A("s_lshl_b32 s41, s41, 31\ns_or_b32 s41, s41, 0x3f803f80\ns_mov_b64 exec, 0xffff\nv_mov_b32 v4, s41\ns_mov_b64 exec, -1")
        def setup2():
            s.srd(12, 34, 2 << 20)
            A("v_bfe_u32 v45, v0, 3, 3\nv_lshlrev_b32 v40, 8, v45\nv_and_b32 v45, 3, v45\nv_lshl_add_u32 v40, v45, 6, v40")
            A("v_and_b32 v45, 2, v0\nv_lshl_add_u32 v40, v45, 4, v40\nv_and_b32 v45, 4, v0\nv_lshl_add_u32 v40, v45, 2, v40\nv_and_b32 v45, 1, v0\nv_lshl_add_u32 v40, v45, 3, v40\nv_add_u32 v40, %d, v40" % VL)
            for nu in range(1, 4): A("v_xor_b32 v%d, %d, v40" % (40+nu, 64*nu))
            A("v_lshrrev_b32 v45, 2, v1\nv_lshlrev_b32 v45, 14, v45\nv_and_b32 v46, 2, v%d\nv_xor_b32 v46, v46, v0\nv_and_b32 v46, 3, v46\nv_lshl_add_u32 v45, v46, 4, v45" % KQ)
            A("s_lshl_b32 s3, s4, 18\ns_lshl_b32 s41, s5, 8\ns_add_u32 s3, s3, s41\ns_lshl_b32 s41, s6, 6\ns_add_u32 s3, s3, s41\ns_add_u32 s3, s3, %d" % W_R)
            s.addbase(52, 38, "s3"); s.addbase(54, 52, "0x1c00")
            A("v_bfe_u32 v46, v0, 2, 2\nv_and_b32 v46, 2, v46\nv_xor_b32 v46, v46, v%d\nv_lshlrev_b32 v46, 4, v46\nv_lshl_add_u32 v46, v%d, 6, v46\ns_lshl_b32 s41, s6, 11\nv_add_u32 v46, s41, v46" % (KQ, NF))
            A("s_lshl_b32 s3, s4, 11\ns_lshr_b32 s43, s5, 3\ns_lshl_b32 s43, s43, 7\ns_add_u32 s3, s3, s43\ns_add_u32 s3, s3, %d" % (W_C+512)); s.addbase(58, 38, "s3")
            A("v_and_b32 v48, 31, v0\nv_lshlrev_b32 v48, 2, v48")
        QF = 192
        def qload():
            for r in range(4): A("buffer_load_dwordx2 %s, v234, s[8:11], %s offen %s" % (vr(176+2*r, 2), qso[r], cfg["qnt"]), "q")
        def bar2():
            s.stamp(5); A("s_barrier")
        def ack():
            A.wait(vm="vst"); s.stamp(14)
        def barH(): A("s_waitcnt lgkmcnt(0)\ns_barrier")
        def gf(): A("ds_read_b128 v[188:191], v191", "gp"); gfin()
        steps = dict(g=gpart, H=barH, f=gf, a=setup0, b=setup1, e=setup1b, c=setup2, q=qload, B=bar2, k=ack, m=msg, v=lambda: (vstore(0), vstore(1)))
        seq1, seq15, seq2 = cfg["seq"].split(".")
        for ch in seq1: steps[ch]()
        s.stamp(11)
        A("global_load_dwordx2 v[144:145], v%d, s[60:61] sc1" % MP)
        for ch in seq15: steps[ch]()
        A("s_mov_b32 s3, 0\nL_b_pv:\ns_waitcnt vmcnt(0)")
        A("v_cmp_ne_u32 vcc, s44, v145\ns_cbranch_vccz L_b_pv_ok\ns_mov_b64 exec, vcc\ns_sleep %d" % int(cfg["vsleep"]))
        A("global_load_dwordx2 v[144:145], v%d, s[60:61] sc1" % MP)
        A("s_add_u32 s3, s3, 1\ns_cmp_lt_u32 s3, %d\ns_cbranch_scc1 L_b_pv\nL_b_pv_ok:\ns_mov_b64 exec, -1" % SPIN)
        s.stamp(6)
        for i in range(8):
            if i == 4: A("s_add_u32 m0, m0, 4096\nv_add_u32 v44, 4096, v44")
            A("global_load_lds_dwordx4 v44, s[30:31] offset:%d sc1" % (1024*(i & 3)), "vd")
        for ch in seq2: steps[ch]()
        A.wait(vm="q")
        for i in range(8): A("v_lshlrev_b32 v%d, 16, v%d\nv_and_b32 v%d, s62, v%d" % (QF+2*i, 176+i, QF+2*i+1, 176+i))
        A("v_lshlrev_b32 v145, 16, v144\nv_and_b32 v144, s62, v144")
        A("s_lshl_b32 s43, s6, 11\ns_add_u32 m0, s43, %d" % YL)
        for r in range(4):
            for nu in range(4):
                A("v_mul_f32_dpp v%d, v144, v%d row_newbcast:%d row_mask:0xf bank_mask:0xf" % (QF+4*r+nu, QF+4*r+nu, 8+r))
        A("v_mov_b32 v50, s6\nv_mov_b32 v51, 1\nv_mov_b32 v49, 0\nv_mov_b32 v52, 0x01010101")
        A("s_or_b32 s43, s2, s6\ns_cbranch_scc0 L_b_all")
        def allflags():
            A("L_b_all:\ns_mov_b32 s3, 0\nv_lshlrev_b32 v60, 7, v1")
            for t in range(1, 4): A("v_add_u32 v%d, %d, v60" % (60+t, ((t >> 1)*512+(t & 1)*64)*128))
            A("L_b_pa:")
            for t in range(4): A("global_load_dword v%d, v%d, s[60:61] offset:4 sc1" % (56+t, 60+t))
            A("s_waitcnt vmcnt(0)")
            for t in range(4): A("v_xor_b32 v%d, s44, v%d" % (56+t, 56+t))
            A("v_or3_b32 v56, v56, v57, v58\nv_or_b32 v56, v56, v59\nv_cmp_ne_u32 vcc, 0, v56\ns_cbranch_vccz L_b_pa_ok\ns_mov_b64 exec, vcc")
            A("s_sleep 4\ns_add_u32 s3, s3, 1\ns_cmp_lt_u32 s3, %d\ns_cbranch_scc1 L_b_pa" % SPIN)
            A("L_b_pa_ok:\ns_mov_b64 exec, 1\nv_mov_b32 v49, 0\nglobal_store_dword v49, v189, s[38:39] sc1\ns_mov_b64 exec, -1\ns_branch L_b_allback")
        s.side(allflags)
        ydma = ["global_load_lds_dwordx4 v45, s[52:53] sc1", "global_load_lds_dwordx4 v45, s[54:55] offset:1024 sc1"]
        A("s_waitcnt vmcnt(0)\nL_b_allback:")
        s.stamp(7)
        if cfg["dec"]:
            A("ds_write_b8 v50, v51 offset:%d" % (UL+4))
            A("L_b_vw:\nds_read_b64 v[54:55], v49 offset:%d\ns_waitcnt lgkmcnt(0)\nv_and_b32 v54, v54, v55\nv_cmp_ne_u32 vcc, v52, v54\ns_cbranch_vccnz L_b_vs" % UL)
            s.tail.append("L_b_vs:\ns_sleep 1\ns_branch L_b_vw")
        else: A("s_barrier")
        VF = lambda n: 64+4*(n % 16)
        def scale(nu):
            for r in range(4):
                A("v_mul_f32_dpp v%d, v145, v%d row_newbcast:%d row_mask:0xf bank_mask:0xf" % (160+4*r+nu, 128+4*nu+r, 8+r))
        def trd(n):
            for jj in range(2):
                A("ds_read_b64_tr_b16 %s, v%d offset:%d" % (vr(VF(n)+2*jj, 2), 40+(n >> 3), 4096*(n & 7)+2048*jj), ("t", n))
        ahead = 8
        for n in range(ahead): trd(n)
        for n in range(32):
            if n % 2 == 0: A.wait(lg=("t", n+1))
            acc = vr(128+4*(n >> 3), 4)
            A("v_mfma_f32_16x16x32_bf16 %s, %s, %s, %s" % (acc, vr(4+4*(n & 7), 4), vr(VF(n), 4), acc if n & 7 else "0"))
            if n+ahead < 32: trd(n+ahead)
            if n in (25, 27, 29): scale((n-25)//2)
            if cfg["ypre"] and n == int(cfg["ypre"]): A("global_load_dword v47, v48, s[58:59] sc1\ns_mov_b32 s97, 0")
            if cfg["ypre"] and n == int(cfg["ypre"])+12:
                A("s_waitcnt vmcnt(0)\nv_cmp_ne_u32 vcc, s45, v47\ns_cbranch_vccnz L_b_nopre")
                for l in ydma: A.raw(l)
                A("s_mov_b32 s97, 1\nL_b_nopre:")
        scale(3)
        s.stamp(8)
        if cfg["ypre"]: A("s_cmp_eq_u32 s97, 1\ns_cbranch_scc1 L_b_yin")
        A("s_mov_b32 s3, 0")
        A("L_b_py:\nglobal_load_dword v47, v48, s[58:59] sc1\ns_waitcnt vmcnt(0)\nv_cmp_ne_u32 vcc, s45, v47\ns_cbranch_vccnz L_b_ymiss\nL_b_py_ok:")
        def ymiss():
            A("L_b_ymiss:\ns_add_u32 s3, s3, 1\ns_cmp_lt_u32 s3, %d\ns_cbranch_scc1 L_b_py" % NEAR_TRIES)
            A("L_b_pyf:\nglobal_load_dword v47, v48, s[58:59] sc1\nglobal_load_dword v49, v48, s[58:59] offset:1024 sc1\ns_waitcnt vmcnt(0)")
            A("v_cmp_ne_u32 vcc, s45, v47\ns_cbranch_vccz L_b_py_ok\nv_cmp_ne_u32 vcc, s44, v49\ns_cbranch_vccz L_b_isfar")
            A("s_sleep 8\ns_add_u32 s3, s3, 1\ns_cmp_lt_u32 s3, %d\ns_cbranch_scc1 L_b_pyf" % SPIN)
            A("L_b_isfar:\nv_add_u32 v45, %d, v45\ns_branch L_b_py_ok" % FAR)
        s.side(ymiss)
        s.stamp(9)
        for pp in range(2): A(ydma[pp], ("yd", pp))
        A("L_b_yin:")
        for pp in range(2):
            A.wait(vm=("yd", pp))
            A("ds_read_b128 %s, v46 offset:%d" % (vr(64+4*pp, 4), YL+1024*pp), ("y", pp))
        for pp in range(2):
            A.wait(lg=("y", pp))
            if pp: s.stamp(10)
            for r in range(4):
                o = 4*r+2*pp
                A("v_lshlrev_b32 v%d, 16, v%d\nv_and_b32 v%d, s62, v%d" % (72+o, 64+4*pp+r, 73+o, 64+4*pp+r))
                A("v_pk_fma_f32 %s, %s, %s, %s" % (vr(160+o, 2), vr(QF+o, 2), vr(72+o, 2), vr(160+o, 2)))
                A("v_cvt_pk_bf16_f32 v%d, v%d, v%d" % (96+2*r+pp, 160+o, 161+o))
                if pp: A("buffer_store_dwordx2 %s, v234, s[12:15], %s offen %s" % (vr(96+2*r, 2), qso[r], cfg["ont"]))
        s.stamps_out(0, 16)
        A("L_end:\ns_endpgm")

    def build(s):
        A = s.A
        A.raw("; @launch grid=(256,1,1) block=(512,1,1) lds=%d" % LDS)
        A.raw('.amdgcn_target "amdgcn-amd-amdhsa--gfx950"\n.text\n.globl %s\n.p2align 8\n.type %s,@function\n%s:' % (KN, KN, KN))
        s.prologue()
        h1, h2, b1, b2 = (s.roleA_head, s.roleB_head, s.roleA, s.roleB) if s.cfg["first"] == "A" else (s.roleB_head, s.roleA_head, s.roleB, s.roleA)
        h1(); A("s_branch L_body1\nL_role2:"); h2(); b2(); A("L_body1:"); b1()
        for t in s.tail: A(t)
        A.raw(".p2align 8\n.fill 4096, 4, 0xbf810000")
        A.raw('.section .rodata,"a"\n.p2align 6\n.amdhsa_kernel %s\n.amdhsa_next_free_vgpr 256\n.amdhsa_next_free_sgpr 102\n.amdhsa_accum_offset 256\n.amdhsa_group_segment_fixed_size 0\n.amdhsa_kernarg_size 120\n.amdhsa_user_sgpr_count 2\n.amdhsa_user_sgpr_kernarg_segment_ptr 1\n.amdhsa_system_sgpr_workgroup_id_x 1\n.end_amdhsa_kernel' % KN)
        return A.finish()

if __name__ == "__main__":
    out = sys.argv[1]
    cfg = {}
    for a in sys.argv[2:]:
        k, v = a.split("=")
        cfg[k] = {"True": True, "False": False}.get(v, v)
    g = G(**cfg)
    open(out, "w").write(g.build())
    print(out, "nops inserted", g.A.nops, file=sys.stderr)
```

```python
import sys
from dsl import Asm
KN = "gated_mix__ssm_conv_h3__spectral_fnet__prompt_kernel"
W_E   = 0
W_C   = 4096
W_M   = 0x20000
W_R   = 0x100000
W_V   = 0x400000
FAR   = 0x700000
STAMP_OFF = 200<<20
LCG_A, LCG_C = 1664525, 1013904223
UL = 0; HL = 9216; RED = HL + 16640; X1 = RED + 4*8448; VL = X1; GL = RED + 24576; YL = HL; CL = RED + 8192; LDS = X1 + 32768
SPIN = 40000
NEAR_TRIES = 24

def vr(a, n): return "v[%d:%d]" % (a, a+n-1)

class G:
    def __init__(s, **cfg):
        s.cfg = dict(stamps=False, nt=" nt", pre=True, xnt="nt", qnt="nt", prent="nt", ont="", vsleep=2, bar0=1, first="B", lord="hvpwi..", bxat=8, hpre=2, gat="early", vmode="after", seq="HvackBmqb.e.", seqA="fpHxdy", dec=False, nb=12, cmeet=True, qlate=False, xfirst=False, ypre=0, mpre=False, kpk=True, upk=True,
                     vflag="after", prioA=1, prioB=0, prioC=0, far=False)
        s.cfg.update(cfg)
        s.A = Asm(); s.tail = []
    def stamp(s, i):
        if s.cfg.get("probe") and i not in (0, int(s.cfg["probe"].split(".")[1])): return
        if s.cfg["stamps"]: s.A("%s s[%d:%d]" % ("s_memtime" if s.cfg.get("clk") else "s_memrealtime", 64+2*i, 65+2*i))
    def stamps_out(s, role, n):
        if not s.cfg["stamps"]: return
        A = s.A
        A("s_waitcnt vmcnt(0) lgkmcnt(0)")
        s.stamp(n-1)
        A("s_waitcnt lgkmcnt(0)")
        A("s_cmp_lg_u32 s6, %d\ns_cbranch_scc1 L_end" % int(s.cfg.get("sw", 0)))
        if s.cfg.get("probe"):
            pr, pi = [int(x) for x in s.cfg["probe"].split(".")]
            if pr == role:
                if s.cfg.get("skew"):
                    A("s_mov_b64 exec, 1\nv_mov_b32 v1, 0\nv_mov_b32 v2, s%d\nv_not_b32 v3, s64\nglobal_atomic_umax v1, v2, s[36:37] sc1\nglobal_atomic_umax v1, v3, s[36:37] offset:128 sc1\ns_waitcnt vmcnt(0)" % (64+2*pi))
                    A("L_probe0:\ns_memrealtime s[40:41]\ns_waitcnt lgkmcnt(0)\ns_sub_u32 s40, s40, s64\ns_cmp_lt_u32 s40, 3000\ns_cbranch_scc1 L_probe0")
                    A("global_load_dword v2, v1, s[36:37] sc1\nglobal_load_dword v3, v1, s[36:37] offset:128 sc1\ns_waitcnt vmcnt(0)\nv_not_b32 v3, v3\nv_readfirstlane_b32 s42, v2\nv_readfirstlane_b32 s64, v3\ns_nop 3")
                    A("s_sub_u32 s3, s42, s64\ns_min_u32 s3, s3, 1500\ns_mul_i32 s3, s3, %d\ns_add_u32 s3, s3, 5000" % int(s.cfg["skew"]))
                    A("L_probe:\ns_memrealtime s[40:41]\ns_waitcnt lgkmcnt(0)\ns_sub_u32 s40, s40, s64\ns_cmp_lt_u32 s40, s3\ns_cbranch_scc1 L_probe")
                    return
                if s.cfg.get("wb"): A("s_sleep 100\nbuffer_wbl2 sc1\ns_waitcnt vmcnt(0)")
                A("s_sub_u32 s3, s%d, s64\ns_lshl_b32 s3, s3, 2\ns_add_u32 s3, s3, 5000" % (64+2*pi))
                A("L_probe:\ns_memrealtime s[40:41]\ns_waitcnt lgkmcnt(0)\ns_sub_u32 s40, s40, s64\ns_cmp_lt_u32 s40, s3\ns_cbranch_scc1 L_probe")
            return
        A("s_add_u32 s38, s38, %d\ns_addc_u32 s39, s39, 0" % (STAMP_OFF + role*256*128))
        A("s_lshl_b32 s3, s2, 7\nv_mov_b32 v1, s3\ns_mov_b64 exec, 1")
        for j in range(n):
            A("v_mov_b32 v2, s%d\nv_mov_b32 v3, s%d\nglobal_store_dwordx2 v1, v[2:3], s[38:39] offset:%d\ns_nop 1" % (64+2*j, 65+2*j, 8*j))
    def side(s, fn):
        A = s.A; sv = (list(A.vm), list(A.lg)); keep = A.L; A.L = []
        fn()
        s.tail.append("\n".join(i.text for i in A.L)); A.L = keep; A.vm, A.lg = sv
    def poll(s, name, vdst, vaddr, sbase, snonce, sleep=0, masked=False, off=0):
        A = s.A
        A("s_mov_b32 s3, 0")
        A("%s:" % name)
        A("global_load_dword v%d, v%d, s[%d:%d] offset:%d sc1" % (vdst, vaddr, sbase, sbase+1, off))
        A("s_waitcnt vmcnt(0)")
        A("v_cmp_ne_u32 vcc, s%d, v%d" % (snonce, vdst))
        A("s_cbranch_vccz %s_ok" % name)
        if masked: A("s_mov_b64 exec, vcc")
        if sleep: A("s_sleep %d" % sleep)
        A("s_add_u32 s3, s3, 1\ns_cmp_lt_u32 s3, %d\ns_cbranch_scc1 %s" % (SPIN, name))
        A("%s_ok:" % name)
        if masked: A("s_mov_b64 exec, -1")
    def srd(s, d, base, size):
        s.A("s_mov_b32 s%d, s%d\ns_mov_b32 s%d, s%d\ns_mov_b32 s%d, 0x%x\ns_mov_b32 s%d, 0x20000" % (d, base, d+1, base+1, d+2, size, d+3))
    def addbase(s, d, base, soff):
        s.A("s_add_u32 s%d, s%d, %s\ns_addc_u32 s%d, s%d, 0" % (d, base, soff, d+1, base+1))
    def tags(s):
        s.A("s_getreg_b32 s3, hwreg(HW_REG_XCC_ID, 0, 4)\ns_mul_i32 s44, s44, %d\ns_add_u32 s44, s44, %d\ns_add_u32 s45, s44, s3\ns_add_u32 s45, s45, 1" % (LCG_A, LCG_C))

    def prologue(s):
        A = s.A
        s.stamp(0)
        A("s_load_dwordx16 s[16:31], s[0:1], 0\ns_load_dwordx8 s[32:39], s[0:1], 88")
        A("s_cmp_ge_u32 s2, 256\ns_cbranch_scc1 L_end")
        A("s_getpc_b64 s[40:41]")
        A("s_and_b32 s4, s2, 7\ns_lshr_b32 s5, s2, 3")
        if s.cfg.get("rot"): A("s_add_u32 s4, s4, %d\ns_and_b32 s4, s4, 7" % int(s.cfg["rot"]))
        A("v_lshrrev_b32 v2, 6, v0\ns_lshl_b32 s3, s5, 9\nv_lshl_add_u32 v1, v2, 6, s3\nv_readfirstlane_b32 s7, v2")
        A("global_load_dword v255, v1, s[40:41]", "pf")
        A("v_and_b32 v1, 63, v0\nv_and_b32 v0, 255, v0\ns_and_b32 s6, s7, 3")
        if s.cfg["cmeet"]:
            A("v_lshlrev_b32 v46, 2, v0\nv_mov_b32 v45, 0\nds_write_b32 v46, v45 offset:%d" % UL)
        A("s_cmp_ge_u32 s7, 4\ns_cbranch_scc1 L_role2")

    def roleA_head(s):
        A = s.A; cfg = s.cfg; nt = cfg["nt"]
        A.reset_counters(); A.vm = ["pf"]
        A("s_lshl_b32 s40, s5, 16\ns_lshl_b32 s3, s4, 7\ns_add_u32 s40, s40, s3")
        A("v_lshrrev_b32 v3, 5, v0\nv_and_b32 v4, 31, v0\nv_lshl_add_u32 v3, v3, 13, s40\nv_lshl_add_u32 v2, v4, 2, v3\nv_add_u32 v3, -3072, v2")
        A("s_lshl_b32 s3, s4, 9\nv_lshl_add_u32 v5, v4, 4, s3")
        A("s_lshl_b32 s41, s4, 5\ns_add_u32 s41, s41, s5")
        A("s_lshl_b32 s42, s41, 13\ns_add_u32 s43, s42, 4096\ns_lshl_b32 s41, s41, 2\ns_movk_i32 s7, 4096\nv_mov_b32 v45, 0\nv_mov_b32 v49, s41")
        A("s_mov_b32 s10, 0x200000\ns_mov_b32 s11, 0x20000\ns_mov_b32 s50, 0x200000\ns_mov_b32 s51, 0x20000")
        A("s_waitcnt lgkmcnt(0)")
        if cfg["cmeet"] and not cfg["xfirst"]: A("s_barrier")
        if cfg.get("wsoff"): s.addbase(38, 38, "%d" % (int(cfg["wsoff"]) << 20))
        s.stamp(1)
        A("s_mov_b64 s[8:9], s[18:19]")
        if cfg["xfirst"]: A("s_barrier")
        for i in range(3): A("buffer_load_dword v%d, v3, s[8:11], 0 offen offset:%d%s" % (10+i, 1024*i, nt), "k")
        for i in range(8): A("buffer_load_dword v%d, v2, s[8:11], %s offen offset:%d%s" % (13+i, "s7" if i >= 4 else "0", 1024*(i & 3), nt), "k")
        A("global_load_dwordx4 v[30:33], v5, s[22:23]", "k")
        A("global_load_dword v9, v45, s[38:39] sc1", "k")
        A("global_load_dword v49, v49, s[26:27]", "k")
        s.vmA = list(A.vm)
    def roleA(s):
        A = s.A; cfg = s.cfg; nt = cfg["nt"]
        A.reset_counters(); A.vm = list(s.vmA)
        KR, VR = 10, 22
        MASK = "0xffff0000"
        A("s_mov_b64 s[48:49], s[24:25]"); s.addbase(20, 20, "s7")
        A("s_add_u32 s3, s42, %d" % W_R); s.addbase(52, 38, "s3")
        A("s_lshl_b32 s3, s4, 11\ns_add_u32 s3, s3, %d" % W_C); s.addbase(58, 38, "s3")
        A("v_lshlrev_b32 v46, 2, v0\nv_lshlrev_b32 v6, 4, v0\nv_add_u32 v252, v6, v6")
        def ld(ch):
            if ch in "vw":
                for i in (range(4) if ch == "v" else range(4, 8)): A("global_load_dword v%d, v2, s[20:21] offset:%d%s" % (VR+i, 1024*i-4096, nt), ("v", i))
            if ch == "h":
                A("buffer_load_dwordx4 v[36:39], v6, s[48:51], s42 offen offset:4" + nt, "h")
                A("buffer_load_dword v34, v6, s[48:51], s42 offen" + nt, "h")
            if ch == "i":
                A("buffer_load_dwordx4 v[40:43], v6, s[48:51], s43 offen offset:4" + nt, "h")
                A("buffer_load_dword v35, v6, s[48:51], s43 offen" + nt, "h")
            if ch == "p":
                A("global_load_dword v253, v46, s[58:59] sc1", "pre")
                if cfg["pre"]: A("global_load_dword v254, v252, s[52:53] sc1 " + cfg["prent"], "pre")
        def loads(at):
            for ch in cfg["lord"].split(".")[at]: ld(ch)
        loads(0)
        if not cfg["cmeet"]: A("ds_write_b32 v46, v45 offset:%d" % UL)
        A("s_mul_i32 s3, s6, 4160\nv_min_u32 v48, 6, v1\nv_lshl_add_u32 v47, v48, 2, s3\nds_write_b32 v47, v45 offset:%d" % HL)
        A("s_lshl_b32 s47, s6, 11\ns_lshl_b32 s60, s5, 2\ns_add_u32 s60, s60, s6\ns_lshl_b32 s3, s60, 6\ns_lshl_b32 s61, s4, 18\ns_add_u32 s3, s3, s61\ns_add_u32 s3, s3, %d" % W_R)
        s.addbase(54, 38, "s3"); s.addbase(56, 54, "0x20000")
        A("v_lshlrev_b32 v44, 3, v1\nv_lshrrev_b32 v47, 1, v1\nv_and_b32 v47, 16, v47\nv_and_b32 v48, 48, v44\nv_xor_b32 v47, v47, v48\nv_lshl_add_u32 v47, v4, 6, v47")
        A("v_add_u32 v47, s47, v47\nv_xor_b32 v48, 32, v47\nv_lshl_add_u32 v21, v1, 4, s47")
        A("v_add_u32 v8, v1, v1\nv_xor_b32 v8, v8, v6\ns_lshl_b32 s3, s5, 4\nv_xor_b32 v8, s3, v8\nv_and_b32 v8, 48, v8\nv_and_b32 v5, 60, v1\nv_lshl_add_u32 v8, v5, 11, v8")
        A("s_lshl_b32 s60, s60, 2\nv_mov_b32 v7, s60\ns_add_u32 m0, s47, %d" % (UL+1024))
        if not cfg["cmeet"]: A("s_waitcnt lgkmcnt(0)\ns_barrier")
        if int(cfg["prioA"]): A("s_setprio %d" % int(cfg["prioA"]))
        loads(1)
        s.stamp(11)
        if int(cfg["bxat"]) == -1: A("s_barrier")
        KP, W, S, VP = 50, 72, 80, 96
        A.wait(vm="k")
        s.stamp(2)
        for t in range(4):
            for c in range(2):
                src = 30 + 2*c + (t >> 1)
                A(("v_and_b32 v%d, " + MASK + ", v%d" if t & 1 else "v_lshlrev_b32 v%d, 16, v%d") % (W+2*t+c, src))
        for i in range(11):
            A("v_lshlrev_b32 v%d, 16, v%d\nv_and_b32 v%d, %s, v%d" % (KP+2*i, KR+i, KP+2*i+1, MASK, KR+i))
        for t in (3, 2, 1, 0):
            for r in range(8):
                if cfg["kpk"]:
                    k = vr(KP+2*(r+3-t), 2); w = vr(W+2*t, 2); d = vr(S+2*r, 2)
                    A("v_pk_mul_f32 %s, %s, %s" % (d, k, w) if t == 3 else "v_pk_fma_f32 %s, %s, %s, %s" % (d, k, w, d))
                else:
                    for c in range(2): A("%s v%d, v%d, v%d" % ("v_mul_f32" if t == 3 else "v_fmac_f32", S+2*r+c, KP+2*(r+3-t)+c, W+2*t+c))
        loads(2)
        s.stamp(12)
        if int(cfg["bxat"]) == 0: A("s_barrier")
        for r in range(8):
            if r in (0, 4): A.wait(vm=("v", r+3))
            if r == 4: s.stamp(10)
            A("v_lshlrev_b32 v%d, 16, v%d\nv_and_b32 v%d, %s, v%d" % (VP+2*r, VR+r, VP+2*r+1, MASK, VR+r))
            if cfg["upk"]: A("v_pk_mul_f32 %s, %s, %s" % (vr(S+2*r, 2), vr(S+2*r, 2), vr(VP+2*r, 2)))
            else:
                for c in range(2): A("v_mul_f32 v%d, v%d, v%d" % (S+2*r+c, S+2*r+c, VP+2*r+c))
            if r & 1:
                j = (7-r)//2
                for c in range(2): A("v_cvt_pk_bf16_f32 v%d, v%d, v%d" % (112+4*c+j, S+2*r+c, S+2*(r-1)+c))
        for c in range(2): A("ds_write_b128 v%d, %s offset:%d" % (47+c, vr(112+4*c, 4), RED))
        A("ds_read_b128 v[240:243], v21 offset:%d" % RED, "sh0")
        A("ds_read_b128 v[244:247], v21 offset:%d" % (RED+1024), "sh1")
        A("v_readfirstlane_b32 s44, v9\nv_readfirstlane_b32 s46, v49\ns_mov_b32 s96, 0")
        s.tags()
        A("v_mov_b32 v9, s45\nv_mov_b32 v20, v44")
        A("s_lshr_b32 s61, s6, 1\ns_mul_i32 s7, s61, 7808\ns_lshl_b32 s41, s6, 8\ns_add_u32 s7, s7, s41\ns_add_u32 s7, s7, %d" % HL)
        A("v_and_b32 v10, 1, v0\nv_mul_u32_u24 v10, 4158, v10\nv_lshl_add_u32 v10, v1, 1, v10\nv_add_u32 v10, s7, v10")
        ust = ["global_store_dwordx4 v8, v[240:243], s[54:55]", "global_store_dwordx4 v8, v[244:247], s[56:57]"]
        A.wait(lg="sh0"); A(ust[0], "ust")
        A.wait(lg="sh1"); A(ust[1], "ust")
        s.stamp(3)
        A.wait(vm="h")
        s.stamp(9)
        for c in range(2):
            d = [34+c] + [36+4*c+k for k in range(4)]
            A("ds_write_b128 v6, %s offset:%d" % (vr(36+4*c, 4), HL+c*8320+4160+32))
            for k in range(4): A("v_alignbit_b32 v%d, v%d, v%d, 16" % (50+4*c+k, d[k+1], d[k]))
            A("ds_write_b128 v6, %s offset:%d" % (vr(50+4*c, 4), HL+c*8320+32))
        A("s_cmp_eq_u32 s6, 0\ns_cbranch_scc1 L_a_h0\nL_a_h0back:")
        def h0():
            A("L_a_h0:\ns_mov_b32 s62, 0xffff0000\ns_lshl_b32 s3, s46, 16\ns_and_b32 s7, s46, s62\ns_mov_b64 exec, 1")
            for c in range(2):
                A("v_lshlrev_b32 v60, 16, v%d\nv_add_f32 v60, %s, v60\nv_cvt_pk_bf16_f32 v60, v60, v60" % (34+c, "s7" if c else "s3"))
                A("v_bfi_b32 v%d, s62, v%d, v60\nv_and_b32 v%d, s62, v60" % (62+2*c, 34+c, 61+2*c))
                A("ds_write_b32 v6, v%d offset:%d" % (61+2*c, HL+c*8320+28))
                A("ds_write_b32 v6, v%d offset:%d" % (62+2*c, HL+c*8320+4160+28))
            A("s_mov_b64 exec, -1\ns_branch L_a_h0back")
        s.side(h0)
        for i in range(1, 4): A("v_add_u32 v%d, %d, v10" % (10+i, 1024*i))
        HB = lambda q: 32+32*q
        UB = lambda q: 160+32*(q & 1)
        ACC = 224
        def hread(q, a, half):
            bb, hf = q >> 1, q & 1
            o = 128*(a & 1)+32*bb+4*hf+2*half
            A("ds_read2_b32 %s, v%d offset0:%d offset1:%d" % (vr(HB(q)+4*a+2*half, 2), 10+(a >> 1), o, o+1), ("f", q, a))
        def uread(q, z):
            A("ds_read_b128 %s, v%d offset:%d" % (vr(UB(q)+4*z, 4), 14+q, UL+1024*z), ("f", q, z))
        npre = int(cfg["hpre"])
        def hpre(qs):
            for q in qs:
                for a in range(8): hread(q, a, 0); hread(q, a, 1)
        def addr2():
            A("v_and_b32 v18, 3, v0\nv_bfe_u32 v19, v0, 2, 1\nv_lshl_add_u32 v18, v18, 1, v19\nv_and_b32 v19, 8, v0\nv_lshrrev_b32 v5, 4, v1\nv_sub_u32 v19, v19, v5")
            A("s_and_b32 s41, s6, 1\ns_lshl_b32 s41, s41, 3\ns_sub_u32 s41, 16, s41\nv_add3_u32 v18, v18, v19, s41\ns_lshl_b32 s3, s61, 5\ns_add_u32 s3, s3, 16")
            for bb in range(2):
                if bb: A("v_add_u32 v18, -4, v18")
                A("v_lshlrev_b32 v19, 2, v18\nv_xor_b32 v19, s3, v19\nv_and_b32 v19, 48, v19\nv_lshl_add_u32 v%d, v18, 6, v19" % (14+2*bb))
                A("v_xor_b32 v%d, 16, v%d" % (15+2*bb, 14+2*bb))
            A("s_mul_i32 s3, s6, 8448\nv_lshrrev_b32 v2, 5, v1\nv_add_u32 v2, v2, v1\nv_lshl_add_u32 v2, v2, 4, s3")
            A("s_lshl_b32 s3, s6, 7\nv_and_b32 v3, 15, v0\nv_mul_u32_u24 v3, 528, v3\nv_and_b32 v5, 48, v0\nv_add3_u32 v3, v3, v5, s3")
            A("s_lshl_b32 s60, s5, 2\ns_add_u32 s60, s60, s3")
        def barH():
            A("s_waitcnt lgkmcnt(0)\ns_barrier"); s.stamp(14)
        def flag():
            A("s_mov_b64 exec, 1\ns_waitcnt vmcnt(0)"); s.stamp(4)
            A("global_store_dword v7, v9, s[58:59]\ns_mov_b64 exec, -1")
        def poll1(): A("global_load_dwordx2 v[22:23], v20, s[58:59] sc1")
        steps = dict(H=barH, x=lambda: hpre(range(1)), y=lambda: hpre(range(1, npre)), d=addr2, f=flag, p=poll1)
        for ch in cfg["seqA"]: steps[ch]()
        A("s_mov_b32 s3, 0")
        if cfg["far"]: A("s_branch L_a_far")
        A("L_a_pu:\ns_waitcnt vmcnt(0)")
        A("v_cmp_ne_u32 vcc, s45, v22\nv_cmp_ne_u32 s[40:41], s45, v23\ns_or_b64 vcc, vcc, s[40:41]\ns_cbranch_scc1 L_a_miss\nL_a_pu_ok:")
        def far():
            A("L_a_miss:\nglobal_load_dwordx2 v[22:23], v20, s[58:59] sc1\ns_add_u32 s3, s3, 1\ns_cmp_lt_u32 s3, %d\ns_cbranch_scc1 L_a_pu" % NEAR_TRIES)
            A("L_a_far:\nv_mov_b32 v26, s44\nv_add_u32 v8, %d, v8" % FAR)
            for l in ust: A(l + " sc1")
            A("s_waitcnt vmcnt(0)\ns_mov_b64 exec, 1\nglobal_store_dword v7, v26, s[58:59] offset:1024 sc1\ns_mov_b64 exec, -1")
            A("L_a_pf:\nglobal_load_dwordx2 v[24:25], v20, s[58:59] offset:1024 sc1\ns_waitcnt vmcnt(0)\nglobal_load_dwordx2 v[22:23], v20, s[58:59] sc1\ns_waitcnt vmcnt(0)")
            A("v_cmp_ne_u32 vcc, s45, v22\nv_cmp_ne_u32 s[40:41], s45, v23\ns_or_b64 vcc, vcc, s[40:41]\ns_cbranch_scc0 L_a_pu_ok")
            A("v_cmp_ne_u32 vcc, s44, v24\nv_cmp_ne_u32 s[40:41], s44, v25\ns_or_b64 vcc, vcc, s[40:41]\ns_cbranch_scc0 L_a_isfar")
            A("s_sleep 8\ns_add_u32 s3, s3, 1\ns_cmp_lt_u32 s3, %d\ns_cbranch_scc1 L_a_pf" % SPIN)
            A("L_a_isfar:\ns_mov_b32 s96, 1\nv_mov_b32 v9, s44")
            s.addbase(52, 52, "%d" % FAR)
            A("s_branch L_a_pu_ok")
        s.side(far)
        s.stamp(5)
        A("global_load_lds_dwordx4 v21, s[52:53] sc1\nglobal_load_lds_dwordx4 v21, s[52:53] offset:1024 sc1")
        A("v_mov_b32 v7, s60\nv_mov_b32 v5, s6\nv_mov_b32 v4, 1\nv_mov_b32 v26, 0\nv_mov_b32 v27, 0x01010101")
        if int(cfg["prioC"]): A("s_setprio %d" % int(cfg["prioC"]))
        A("s_waitcnt vmcnt(0) lgkmcnt(0)\ns_barrier")
        s.stamp(6)
        if cfg.get("cyc"): A("s_memtime s[98:99]")
        if cfg.get("al"): A.raw(".p2align 3")
        todo = [(q, a, k) for q in range(4) for a in range(8) for k in range(3) if k == 0 or q >= npre]
        def feed(n, q):
            for _ in range(n):
                if todo and todo[0][0] <= q+1:
                    qq, a, k = todo.pop(0)
                    if cfg.get("nords") and qq > 0: continue
                    if k == 0: uread(qq, a)
                    else: hread(qq, a, k-1)
        feed(8 if npre else 15, 0)
        for q in range(4):
            pend = []; n = 0
            for i in range(8):
                while todo and todo[0][:2] <= (q, i): feed(1, q)
                n0 = len(A.L); A.wait(lg=[("f", q, i)] if q == 0 else [("f", q, z) for z in range(8)])
                if cfg.get("al") and len(A.L) > n0: A("s_nop 0")
                for a in range(i+1):
                    acc = vr(ACC+4*i, 4)
                    A("v_mfma_f32_16x16x32_bf16 %s, %s, %s, %s" % (acc, vr(UB(q)+4*(i-a), 4), vr(HB(q)+4*a, 4), "0" if (q == 0 and a == 0) else acc))
                    n += 1
                    if (q == 0 and not npre) or n >= (8 if q == 0 else 2): feed(1, q)
                    if pend and n >= pend[0][1]:
                        t = pend.pop(0)[0]
                        A("ds_write_b128 v2, %s offset:%d" % (vr(ACC+4*t, 4), RED+1056*t))
                if q == 3: pend.append((i, n+8))
            for t, _ in pend: A("ds_write_b128 v2, %s offset:%d" % (vr(ACC+4*t, 4), RED+1056*t))
        assert not todo
        s.stamp(13)
        if cfg.get("cyc"): A("s_memtime s[92:93]\ns_waitcnt lgkmcnt(0)\ns_sub_u32 s92, s92, s98\ns_add_u32 s92, s92, s64\ns_mov_b32 s93, s65")
        def rreads():
            for io in range(2):
                for ws in range(4):
                    A("ds_read_b128 %s, v3 offset:%d" % (vr(32+16*io+4*ws, 4), RED+ws*8448+io*64), ("r", io))
        if cfg["dec"]:
            A("ds_write_b8 v5, v4 offset:%d" % UL)
            A("ds_read_b32 v28, v26 offset:%d" % UL, "cnt")
            rreads()
            A.wait(lg="cnt")
            A("v_cmp_ne_u32 vcc, v27, v28\ns_cbranch_vccnz L_a_rw\nL_a_rok:")
            def rw():
                A("L_a_rw:\nds_read_b32 v28, v26 offset:%d\ns_waitcnt lgkmcnt(0)\nv_cmp_ne_u32 vcc, v27, v28\ns_cbranch_vccnz L_a_rw" % UL)
                rreads()
                A("s_branch L_a_rok")
            s.side(rw)
        else:
            A("s_waitcnt lgkmcnt(0)\ns_barrier")
            rreads()
        s.stamp(7)
        yst = ["global_store_dwordx4 v21, %s, s[52:53] offset:%d" % (vr(64+4*io, 4), 1024*io) for io in range(2)]
        def ysum(io):
            b = 32+16*io
            A.wait(lg=("r", io))
            for c in range(2):
                for p in range(2):
                    A("v_pk_add_f32 %s, %s, %s" % (vr(b+8*c+2*p, 2), vr(b+8*c+2*p, 2), vr(b+8*c+4+2*p, 2)))
            for r in range(4): A("v_cvt_pk_bf16_f32 v%d, v%d, v%d" % (64+4*io+r, b+r, b+8+r))
        A("s_cmp_eq_u32 s96, 1\ns_cbranch_scc1 L_a_yfar")
        def yfar():
            A("L_a_yfar:")
            for io in range(2):
                ysum(io); A(yst[io] + " sc1")
            A("s_waitcnt vmcnt(0)\ns_mov_b64 exec, 1\nglobal_store_dword v7, v9, s[58:59] offset:1536 sc1\ns_branch L_a_done")
        s.side(yfar)
        for io in range(2):
            ysum(io); A(yst[io])
        A("s_mov_b64 exec, 1\ns_waitcnt vmcnt(0)")
        s.stamp(8)
        A("global_store_dword v7, v9, s[58:59] offset:512")
        A("L_a_done:")
        s.stamps_out(1, 16)
        A("s_endpgm")

    def roleB_head(s):
        A = s.A; cfg = s.cfg
        A.reset_counters(); A.vm = ["pf"]
        A("s_lshr_b32 s7, s5, 4\ns_and_b32 s3, s5, 15\ns_lshl_b32 s40, s4, 4\ns_add_u32 s40, s40, s3")
        A("v_and_b32 v2, 3, v0\nv_bfe_u32 v3, v0, 2, 1\nv_lshl_add_u32 v2, v2, 1, v3\nv_and_b32 v3, 8, v0\nv_add_u32 v2, v2, v3")
        A("s_sub_u32 s63, 256, s40\ns_cmp_eq_u32 s40, 0\ns_cselect_b32 s63, 128, s63\ns_sub_u32 s3, s63, s40\nv_lshrrev_b32 v3, 5, v1\nv_mul_u32_u24 v240, s3, v3\nv_add_u32 v240, s40, v240")
        A("v_and_b32 v242, 16, v0\nv_lshl_add_u32 v241, v242, 6, v240\ns_lshl_b32 s41, s6, 8\nv_lshl_add_u32 v3, v2, 4, s41\nv_lshl_add_u32 v2, v241, 10, v3")
        A("s_lshl_b32 s48, s7, 19\ns_xor_b32 s49, s48, 0x40000\ns_xor_b32 s50, s48, 0x80000\ns_xor_b32 s51, s48, 0xc0000\nv_mov_b32 v190, 0")
        A("s_mov_b32 s10, 0x200000\ns_mov_b32 s11, 0x20000\nv_mov_b32 v244, s6\nv_mov_b32 v245, 1\nv_mov_b32 v246, 0")
        A("s_waitcnt lgkmcnt(0)")
        if cfg["cmeet"] and not cfg["xfirst"]: A("s_barrier")
        if cfg.get("wsoff"): s.addbase(38, 38, "%d" % (int(cfg["wsoff"]) << 20))
        s.stamp(1)
        A("s_mov_b64 s[8:9], s[16:17]")
        s.xload(range(4))
        if cfg["xfirst"]: A("s_barrier")
        A("global_load_dwordx4 v[184:187], v3, s[32:33]", "gw")
        A("global_load_dword v190, v190, s[38:39] sc1", "gw")
        s.vmB = list(A.vm)
    def XR(s, j): return (224+4*j) if j < 2 else (64+4*j)
    def xload(s, js):
        for j in js: s.A("buffer_load_dwordx4 %s, v2, s[8:11], s%d offen %s" % (vr(s.XR(j), 4), 48+j, s.cfg["xnt"]), ("x", j))
    def roleB(s):
        A = s.A; cfg = s.cfg; XR = s.XR
        A.reset_counters(); A.vm = list(s.vmB)
        KQ, NF, QO, MS, MP, L7, VS = 232, 233, 234, 235, 236, 237, 238
        A("v_lshlrev_b32 v243, 4, v1\nv_bfe_u32 v161, v0, 5, 1\nv_cvt_f32_u32 v161, v161\nv_and_b32 v167, 1, v0\ns_mov_b32 s62, 0x80008000")
        def put(f0, n):
            for f in range(f0, f0+n): A("ds_write_b128 v243, %s offset:%d" % (vr(4+4*f, 4), CL+1024*f))
        def trig(c, sn, jump):
            for j in range(8):
                A("v_cos_f32 v%d, v164\nv_sin_f32 v%d, v164" % (c+j, sn+j))
                if jump and j == 3: A("v_fmamk_f32 v164, v163, 0x40a00000, v164")
                elif j < 7: A("v_add_f32 v164, v164, v163")
        def pack(c, sn):
            for j in range(4):
                A("v_cvt_pk_bf16_f32 v%d, v%d, v%d\nv_cvt_pk_bf16_f32 v%d, v%d, v%d" % (c+j, 128+2*j, 129+2*j, sn+j, 136+2*j, 137+2*j))
        A("s_cmp_ge_u32 s6, 2\ns_cbranch_scc1 L_b_c23")
        A("v_and_b32 v160, 8, v0\nv_lshlrev_b32 v160, 1, v160\nv_and_b32 v162, 3, v0\nv_lshl_add_u32 v160, v162, 2, v160\nv_bfe_u32 v162, v0, 2, 1\nv_lshl_add_u32 v160, v162, 1, v160")
        A("v_bfe_u32 v162, v0, 4, 1\nv_add_u32 v160, v160, v162\nv_cvt_f32_u32 v160, v160")
        A("s_cmp_eq_u32 s6, 1\ns_cbranch_scc1 L_b_c1")
        A("v_mul_lo_u32 v165, v162, s62\nv_mul_f32 v163, 0x3d000000, v160\nv_mul_f32 v164, 0x41000000, v161\nv_mul_f32 v164, v164, v163")
        trig(128, 136, False); pack(8, 16)
        for j in range(4):
            A("v_xor_b32 v%d, v165, v%d\nv_xor_b32 v%d, v165, v%d\nv_xor_b32 v%d, s62, v%d" % (12+j, 8+j, 20+j, 16+j, 24+j, 16+j))
            A("v_xor_b32 v%d, s62, v%d" % (28+j, 20+j))
        put(1, 6)
        A("s_branch L_b_cd\nL_b_c1:")
        A("v_mul_f32 v163, 0x3b000000, v160\nv_mul_f32 v166, 4.0, v161\nv_mul_f32 v164, v166, v163")
        trig(32, 40, True)
        A("s_nop 0")
        put(7, 4)
        A("s_branch L_b_cd\nL_b_c23:\nv_cvt_f32_u32 v162, v167\nv_mul_f32 v162, 0.25, v162\ns_cmp_eq_u32 s6, 3\ns_cbranch_scc1 L_b_c3")
        A("s_cmp_eq_u32 s40, 0\ns_cselect_b32 s3, 0, 1.0\nv_mul_f32 v162, s3, v162\nv_mul_lo_u32 v165, v167, s62\nv_mul_f32 v166, 4.0, v161")
        A("v_bfe_u32 v160, v0, 1, 4\nv_cvt_f32_u32 v160, v160\nv_mul_f32 v163, 0x3d800000, v160\nv_fma_f32 v164, v166, v163, v162")
        trig(128, 136, True); pack(48, 52)
        A("s_cbranch_scc1 L_b_s0")
        for j in range(8): A("v_xor_b32 v%d, v165, v%d" % (56+j, 48+j))
        A("L_b_s0back:")
        s.tail.append("L_b_s0:\nv_cmp_eq_u32 vcc, 0, v167\ns_nop 1\n" + "\n".join("v_cndmask_b32 v%d, v%d, v167, vcc\nv_cndmask_b32 v%d, 0, v%d, vcc" % (56+j, 48+j, 48+j, 48+j) for j in range(8)) + "\ns_branch L_b_s0back")
        put(11, 4)
        A("s_branch L_b_cd\nL_b_c3:")
        A("v_bfe_u32 v160, v0, 1, 2\ns_lshl_b32 s3, s7, 2\nv_add_u32 v160, s3, v160\nv_cvt_f32_u32 v160, v160\nv_cvt_f32_u32 v161, v241")
        A("v_mul_f32 v163, 0x3a000000, v160\nv_fma_f32 v165, v163, v161, v162\nv_mul_f32 v166, 0x35000000, v160")
        for j in range(4):
            A("v_cvt_f32_u32 v164, s%d\nv_fma_f32 v164, v164, v166, v165\nv_cos_f32 v%d, v164" % (48+j, 168+j))
        for j in range(2): A("v_cvt_pk_bf16_f32 v%d, v%d, v%d" % (4+j, 168+2*j, 169+2*j))
        A("s_mov_b32 exec_lo, 0xff00ff00\ns_mov_b32 exec_hi, 0x00ff00ff\nv_mov_b64 v[4:5], 0\ns_mov_b64 exec, -1")
        put(0, 1)
        A("L_b_cd:")
        def creads():
            for f in range(15): A("ds_read_b128 %s, v243 offset:%d" % (vr(4+4*f, 4), CL+1024*f), "c")
        if cfg["cmeet"]: A("ds_write_b8 v244, v245 offset:%d" % (UL+12))
        else:
            A("s_waitcnt lgkmcnt(0)\ns_barrier")
            creads()
        A("v_lshrrev_b32 v%d, 4, v1\nv_and_b32 v%d, 15, v0\nv_and_b32 v%d, 7, v0" % (KQ, NF, L7))
        A("v_mul_u32_u24 v2, 2064, v%d\nv_and_b32 v3, 8, v0\nv_lshl_add_u32 v2, v3, 7, v2\nv_lshl_add_u32 v2, v242, 3, v2\nv_bfe_u32 v3, v0, 5, 1\nv_lshl_add_u32 v2, v3, 3, v2" % L7)
        A("v_add_u32 v2, s41, v2")
        A("v_lshlrev_b32 v3, 8, v3\nv_lshl_add_u32 v3, v242, 6, v3\nv_lshl_add_u32 v3, v%d, 4, v3\ns_mul_i32 s3, s6, 4128\nv_add_u32 v3, s3, v3" % NF)
        A("v_bfe_u32 v238, v0, 2, 3\nv_lshlrev_b32 v238, 18, v238\nv_and_b32 v160, 3, v0\nv_lshl_add_u32 v238, v160, 4, v238")
        A("v_and_b32 v160, 2, v%d\nv_xor_b32 v160, s40, v160\nv_and_b32 v160, 3, v160\nv_lshl_add_u32 v238, v160, 6, v238\nv_xor_b32 v239, 64, v238" % KQ)
        A("s_lshl_b32 s3, s7, 2\ns_add_u32 s3, s3, s6\ns_lshl_b32 s3, s3, 7\ns_add_u32 s43, s3, s40\ns_lshl_b32 s3, s43, 8\ns_add_u32 s3, s3, %d" % W_V)
        s.addbase(28, 38, "s3")
        A("s_mov_b32 s46, 0x05040100\ns_mov_b32 s47, 0x07060302\ns_mov_b32 s62, 0xffff0000")
        if cfg["mpre"]: A("s_lshl_b32 s3, s43, 7\ns_add_u32 s3, s3, %d\nv_mov_b32 v250, s3\nglobal_load_dword v250, v250, s[38:39]" % W_M, "mp")
        if cfg["cmeet"]:
            A("L_b_cw:\nds_read_b32 v247, v246 offset:%d\ns_waitcnt lgkmcnt(0)\nv_cmp_ne_u32 vcc, 0x01010101, v247\ns_cbranch_vccnz L_b_cw" % (UL+12))
            creads()
        s.stamp(12)
        perm = lambda jj, c: A("v_perm_b32 v%d, v%d, v%d, s%d" % (96+2*c+jj, XR(2*jj+1)+(c >> 1), XR(2*jj)+(c >> 1), 46+(c & 1)))
        def gpart():
            GW, GX = 176, 192
            A.wait(vm="gw")
            for p in range(4): A("v_lshlrev_b32 v%d, 16, v%d\nv_and_b32 v%d, s62, v%d" % (GW+2*p, 184+p, GW+1+2*p, 184+p))
            for i in range(8): A("v_lshlrev_b32 v%d, 16, v%d\nv_and_b32 v%d, s62, v%d" % (GX+2*i, 224+i, GX+1+2*i, 224+i))
            for i in range(8): A("v_pk_mul_f32 %s, %s, %s" % (vr(GX+2*i, 2), vr(GX+2*i, 2), vr(GW+2*(i & 3), 2)))
            for i in range(16): A("v_cvt_pk_bf16_f32 v%d, 0, v%d" % (GX+i, GX+i))
            for i in range(4): A("v_pk_add_f32 %s, %s, %s" % (vr(GX+4*i, 2), vr(GX+4*i, 2), vr(GX+2+4*i, 2)))
            for i in range(2): A("v_pk_add_f32 %s, %s, %s" % (vr(GX+8*i, 2), vr(GX+8*i, 2), vr(GX+4+8*i, 2)))
            for i in range(2): A("v_add_f32 v%d, v%d, v%d" % (GW+i, GX+8*i, GX+1+8*i))
            A("s_lshl_b32 s3, s6, 2\ns_add_u32 s3, s3, %d" % GL)
            fill = ["v_lshl_add_u32 v178, v%d, 5, s3" % KQ, "v_lshlrev_b32 v191, 4, v%d" % L7, "v_add_u32 v191, %d, v191" % GL]
            for sh in (8, 4, 2, 1):
                for r in range(2): A("v_add_f32_dpp v%d, v%d, v%d row_ror:%d row_mask:0xf bank_mask:0xf" % (GW+r, GW+r, GW+r, sh))
                if fill: A(fill.pop(0))
            A("ds_write2_b32 v178, v176, v177 offset0:0 offset1:4")
        def gfin():
            A.wait(lg="gp")
            A("v_pk_add_f32 v[188:189], v[188:189], v[190:191]\nv_add_f32 v188, v188, v189")
            A("v_cvt_pk_bf16_f32 v188, 0, v188\nv_mul_f32 v188, 0xbfb8aa3b, v188\nv_exp_f32 v188, v188\nv_mov_b32 v189, s44\nv_add_f32 v188, 1.0, v188\nv_rcp_f32 v188, v188")
            A("v_cvt_pk_bf16_f32 v188, 0, v188\nv_sub_f32 v190, 1.0, v188\nv_cvt_pk_bf16_f32 v188, v190, v188")
        gearly = cfg["gat"] == "early"
        if gearly: gpart()
        if int(cfg["prioB"]): A("s_setprio %d" % int(cfg["prioB"]))
        mfA = lambda c: A("v_mfma_f32_16x16x16_bf16 %s, %s, v[4:5], 0" % (vr(128+4*c, 4), vr(96+2*c, 2)))
        def outA(c):
            A("v_cvt_pk_bf16_f32 v%d, v%d, v%d\nv_cvt_pk_bf16_f32 v%d, v%d, v%d" % (160+2*c, 128+4*c, 129+4*c, 161+2*c, 130+4*c, 131+4*c))
            A("ds_write_b64 v2, %s offset:%d" % (vr(160+2*c, 2), X1+16*c))
        A.wait(vm=("x", 1)); s.stamp(13)
        for c in range(8): perm(0, c)
        A.wait(vm=("x", 3), lg="c"); s.stamp(2)
        for op in "p0 p1 p2 m0 p3 p4 m1 p5 p6 m2 p7 m3 m4 o0 m5 o1 m6 o2 m7 o3 o4 o5 o6 o7".split():
            {"p": lambda c: perm(1, c), "m": mfA, "o": outA}[op[0]](int(op[1]))
        def areads():
            for ri in range(2):
                for ks in range(2):
                    A("ds_read_b128 %s, v3 offset:%d" % (vr(64+8*ri+4*ks, 4), X1+ri*2064+ks*512), ("a", ri, ks))
        if int(cfg["bxat"]) == 8:
            A("ds_write_b8 v244, v245 offset:%d" % (UL+8))
            A("L_b_xw:\nds_read_b32 v247, v246 offset:%d\ns_waitcnt lgkmcnt(0)\nv_cmp_ne_u32 vcc, 0x01010101, v247\ns_cbranch_vccnz L_b_xw" % (UL+8))
            areads()
        elif int(cfg["bxat"]) == 9:
            A("ds_write_b8 v244, v245 offset:%d" % (UL+8))
            A("ds_read_b32 v247, v246 offset:%d" % (UL+8), "cnt")
            areads()
            A.wait(lg="cnt")
            A("v_cmp_ne_u32 vcc, 0x01010101, v247\ns_cbranch_vccnz L_b_xw\nL_b_xok:")
            def xw():
                A("L_b_xw:\nds_read_b32 v247, v246 offset:%d\ns_waitcnt lgkmcnt(0)\nv_cmp_ne_u32 vcc, 0x01010101, v247\ns_cbranch_vccnz L_b_xw" % (UL+8))
                areads()
                A("s_branch L_b_xok")
            s.side(xw)
        else:
            A("s_waitcnt lgkmcnt(0)\ns_barrier")
            areads()
        s.stamp(3)
        def tg():
            A.wait(vm="gw")
            A("v_readfirstlane_b32 s44, v190")
            s.tags()
        if gearly: tg()
        if gearly: A("ds_read_b128 v[188:191], v191", "gp")
        RE, IM = 96, 112
        M32 = "v_mfma_f32_32x32x16_bf16 %s, %s, %s, %s"
        for n in range(4):
            ri, ks = n >> 1, n & 1
            A.wait(lg=("a", ri, ks))
            A(M32 % (vr(RE, 16), vr(64+8*ri+4*ks, 4), vr((8 if ri == 0 else 16)+4*ks, 4), vr(RE, 16) if n else "0"))
        muls = []
        for o in range(16):
            muls.append("v_mul_f32 v%d, v%d, v%d" % (128+o, RE+o, 32+(o & 7)))
            muls.append("v_mul_f32_e64 v%d, -v%d, v%d" % (144+o, RE+o, 40+(o & 7)))
        for n in range(4):
            ri, ks = n >> 1, n & 1
            A(M32 % (vr(IM, 16), vr(64+8*ri+4*ks, 4), vr((24 if ri == 0 else 8)+4*ks, 4), vr(IM, 16) if n else "0"))
            if n == 0 and gearly: gfin()
            for _ in range((0, 6, 6, 20)[n]): A(muls.pop(0))
        for o in range(0, 16, 2):
            A("v_pk_fma_f32 %s, %s, %s, %s" % (vr(128+o, 2), vr(IM+o, 2), vr(40+(o & 7), 2), vr(128+o, 2)))
            A("v_pk_fma_f32 %s, %s, %s, %s" % (vr(144+o, 2), vr(IM+o, 2), vr(32+(o & 7), 2), vr(144+o, 2)))
        def cv(n):
            row, ri = n >> 1, n & 1
            for p in range(4):
                o = 128+16*ri+8*row+2*p
                A("v_cvt_pk_bf16_f32 v%d, v%d, v%d" % (160+4*n+p, o, o+1))
        cv(0); cv(1)
        for n in range(4):
            A(M32 % (vr(64, 16), vr(160+4*n, 4), vr(48+4*n, 4), vr(64, 16) if n else "0"))
            if n < 2: cv(n+2)
        s.addbase(60, 38, "%d" % W_M)
        A("s_lshl_b32 s3, s43, 7\nv_lshl_add_u32 v%d, v%d, 3, s3" % (MS, L7))
        vmode = cfg["vmode"]
        def vstore(io): A("global_store_dwordx4 v%d, %s, s[28:29] sc1" % (VS+io, vr(208+4*io, 4)), "vst")
        def msg(): A("s_mov_b64 exec, 0xff\nglobal_store_dwordx2 v%d, v[188:189], s[60:61] sc1\ns_mov_b64 exec, -1" % MS, "msg")
        for io in range(2):
            for p in range(4):
                o = 64+8*io+2*p
                A("v_cvt_pk_bf16_f32 v%d, v%d, v%d" % (208+4*io+p, o, o+1))
            if vmode != "after": vstore(io)
        if int(cfg["prioB"]): A("s_setprio 0")
        s.stamp(4)
        if not gearly: tg()
        qso = ["0", "s56", "s42", "s57"]
        def setup0():
            A("v_lshl_add_u32 v129, v%d, 3, v%d\ns_and_b32 s3, s5, 7\ns_lshl_b32 s3, s3, 2\ns_add_u32 s3, s3, s6\ns_lshl_b32 s3, s3, 12\nv_lshl_add_u32 v%d, v129, 7, s3" % (KQ, L7, MP))
            A("v_and_b32 v128, 3, v0\nv_lshl_add_u32 v129, v128, 5, s5\nv_lshl_add_u32 v129, v242, 3, v129\nv_sub_u32 v130, 256, v129\nv_min_u32 v129, v130, v129\nv_and_b32 v129, 127, v129\nv_lshlrev_b32 v129, 7, v129")
            A("v_lshl_add_u32 v129, v242, 1, v129\nv_bfe_u32 v130, v0, 5, 1\nv_lshlrev_b32 v130, 3, v130\ns_and_b32 s3, s6, 1\ns_lshl_b32 s3, s3, 2\ns_add_u32 s3, s3, s6\ns_lshl_b32 s3, s3, 14\ns_lshr_b32 s41, s6, 1\ns_lshl_b32 s41, s41, 4\ns_add_u32 s3, s3, s41\nv_add3_u32 v129, v129, v130, s3")
            A("s_mov_b32 exec_lo, 0xff00ff00\ns_mov_b32 exec_hi, 0xff00ff00\nv_mov_b32 v%d, v129\ns_mov_b64 exec, -1" % MP)
            A("s_lshl_b32 s3, s5, 10\ns_lshl_b32 s41, s6, 19\ns_add_u32 s3, s3, s41\ns_lshl_b32 s41, s4, 7\ns_add_u32 s3, s3, s41")
            A("v_lshlrev_b32 v234, 17, v%d\nv_lshl_add_u32 v234, v%d, 3, v234\nv_add_u32 v234, s3, v234" % (KQ, NF))
            A("s_mov_b32 s56, 0x8000\ns_mov_b32 s57, 0x18000\ns_mov_b32 s42, 0x10000")
            A("s_lshl_b32 s3, s6, 13\nv_lshl_add_u32 v44, v1, 4, s3\ns_add_u32 s3, s3, %d\ns_mov_b32 m0, s3" % VL)
            A("s_and_b32 s43, s5, 7\ns_lshl_b32 s3, s4, 3\ns_add_u32 s3, s3, s43\ns_lshl_b32 s3, s3, 15\ns_add_u32 s3, s3, %d" % W_V); s.addbase(30, 38, "s3")
        def cf(lo, hi):
            for i in range(lo, hi):
                A("v_cos_f32 v134, v132\nv_sin_f32 v135, v132")
                if i < 15: A("v_fmamk_f32 v132, v131, 0x40e00000, v132" if i & 1 else "v_add_f32 v132, v132, v131")
                A("v_cvt_pk_bf16_f32 v%d, v134, v135" % (4+i))
        nb = int(cfg["nb"])
        def setup1():
            A("s_lshl_b32 s3, s6, 6\ns_lshr_b32 s41, s5, 3\ns_add_u32 s3, s3, s41\nv_lshl_add_u32 v128, v%d, 2, s3\nv_cvt_f32_u32 v128, v128\nv_mul_f32 v131, 0x3b800000, v128" % NF)
            A("v_cvt_f32_u32 v129, v%d\nv_add_f32 v129, v129, v129\nv_mul_f32 v132, v129, v131" % KQ)
            cf(0, nb)
        def setup1b():
            cf(nb, 16)
            A("s_lshr_b32 s41, s5, 3\ns_and_b32 s3, s41, 1\ns_lshl_b32 s3, s3, 4\ns_cmp_eq_u32 s41, 1\ns_cselect_b32 s43, 0x8000, 0\ns_cmp_eq_u32 s41, 2\ns_cselect_b32 s43, 0x80008000, s43\ns_cmp_eq_u32 s41, 3\ns_cselect_b32 s43, 0x80000000, s43\nv_mov_b32 v133, s43")
            for i in range(16): A("v_alignbit_b32 v%d, v%d, v%d, s3\nv_xor_b32 v%d, v133, v%d" % (20+i, 4+i, 4+i, 20+i, 20+i))
            A("s_lshl_b32 s41, s41, 31\ns_or_b32 s41, s41, 0x3f803f80\ns_mov_b64 exec, 0xffff\nv_mov_b32 v4, s41\ns_mov_b64 exec, -1")
        def setup2():
            s.srd(12, 34, 2 << 20)
            A("v_bfe_u32 v45, v0, 3, 3\nv_lshlrev_b32 v40, 8, v45\nv_and_b32 v45, 3, v45\nv_lshl_add_u32 v40, v45, 6, v40")
            A("v_and_b32 v45, 2, v0\nv_lshl_add_u32 v40, v45, 4, v40\nv_and_b32 v45, 4, v0\nv_lshl_add_u32 v40, v45, 2, v40\nv_and_b32 v45, 1, v0\nv_lshl_add_u32 v40, v45, 3, v40\nv_add_u32 v40, %d, v40" % VL)
            for nu in range(1, 4): A("v_xor_b32 v%d, %d, v40" % (40+nu, 64*nu))
            A("v_lshrrev_b32 v45, 2, v1\nv_lshlrev_b32 v45, 14, v45\nv_and_b32 v46, 2, v%d\nv_xor_b32 v46, v46, v0\nv_and_b32 v46, 3, v46\nv_lshl_add_u32 v45, v46, 4, v45" % KQ)
            A("s_lshl_b32 s3, s4, 18\ns_lshl_b32 s41, s5, 8\ns_add_u32 s3, s3, s41\ns_lshl_b32 s41, s6, 6\ns_add_u32 s3, s3, s41\ns_add_u32 s3, s3, %d" % W_R)
            s.addbase(52, 38, "s3"); s.addbase(54, 52, "0x1c00")
            A("v_bfe_u32 v46, v0, 2, 2\nv_and_b32 v46, 2, v46\nv_xor_b32 v46, v46, v%d\nv_lshlrev_b32 v46, 4, v46\nv_lshl_add_u32 v46, v%d, 6, v46\ns_lshl_b32 s41, s6, 11\nv_add_u32 v46, s41, v46" % (KQ, NF))
            A("s_lshl_b32 s3, s4, 11\ns_lshr_b32 s43, s5, 3\ns_lshl_b32 s43, s43, 7\ns_add_u32 s3, s3, s43\ns_add_u32 s3, s3, %d" % (W_C+512)); s.addbase(58, 38, "s3")
            A("v_and_b32 v48, 31, v0\nv_lshlrev_b32 v48, 2, v48")
        QF = 192
        def qload():
            for r in range(4): A("buffer_load_dwordx2 %s, v234, s[8:11], %s offen %s" % (vr(176+2*r, 2), qso[r], cfg["qnt"]), "q")
        def bar2():
            s.stamp(5); A("s_barrier")
        def ack():
            A.wait(vm="vst"); s.stamp(14)
        def barH(): A("s_waitcnt lgkmcnt(0)\ns_barrier")
        def gf(): A("ds_read_b128 v[188:191], v191", "gp"); gfin()
        steps = dict(g=gpart, H=barH, f=gf, a=setup0, b=setup1, e=setup1b, c=setup2, q=qload, B=bar2, k=ack, m=msg, v=lambda: (vstore(0), vstore(1)))
        seq1, seq15, seq2 = cfg["seq"].split(".")
        for ch in seq1: steps[ch]()
        s.stamp(11)
        A("global_load_dwordx2 v[144:145], v%d, s[60:61] sc1" % MP)
        for ch in seq15: steps[ch]()
        A("s_mov_b32 s3, 0\nL_b_pv:\ns_waitcnt vmcnt(0)")
        A("v_cmp_ne_u32 vcc, s44, v145\ns_cbranch_vccz L_b_pv_ok\ns_mov_b64 exec, vcc\ns_sleep %d" % int(cfg["vsleep"]))
        A("global_load_dwordx2 v[144:145], v%d, s[60:61] sc1" % MP)
        A("s_add_u32 s3, s3, 1\ns_cmp_lt_u32 s3, %d\ns_cbranch_scc1 L_b_pv\nL_b_pv_ok:\ns_mov_b64 exec, -1" % SPIN)
        s.stamp(6)
        for i in range(8):
            if i == 4: A("s_add_u32 m0, m0, 4096\nv_add_u32 v44, 4096, v44")
            A("global_load_lds_dwordx4 v44, s[30:31] offset:%d sc1" % (1024*(i & 3)), "vd")
        for ch in seq2: steps[ch]()
        A("v_lshlrev_b32 v145, 16, v144\nv_and_b32 v144, s62, v144")
        A("s_lshl_b32 s43, s6, 11\ns_add_u32 m0, s43, %d" % YL)
        def gq():
            A.wait(vm="q")
            for i in range(8): A("v_lshlrev_b32 v%d, 16, v%d\nv_and_b32 v%d, 0xffff0000, v%d" % (QF+2*i, 176+i, QF+2*i+1, 176+i))
            for r in range(4):
                for nu in range(4):
                    A("v_mul_f32_dpp v%d, v144, v%d row_newbcast:%d row_mask:0xf bank_mask:0xf" % (QF+4*r+nu, QF+4*r+nu, 8+r))
        if not cfg["qlate"]: gq()
        A("v_mov_b32 v50, s6\nv_mov_b32 v51, 1\nv_mov_b32 v49, 0\nv_mov_b32 v52, 0x01010101")
        A("s_or_b32 s43, s2, s6\ns_cbranch_scc0 L_b_all")
        def allflags():
            A("L_b_all:\ns_mov_b32 s3, 0\nv_lshlrev_b32 v60, 7, v1")
            for t in range(1, 4): A("v_add_u32 v%d, %d, v60" % (60+t, ((t >> 1)*512+(t & 1)*64)*128))
            A("L_b_pa:")
            for t in range(4): A("global_load_dword v%d, v%d, s[60:61] offset:4 sc1" % (56+t, 60+t))
            A("s_waitcnt vmcnt(0)")
            for t in range(4): A("v_xor_b32 v%d, s44, v%d" % (56+t, 56+t))
            A("v_or3_b32 v56, v56, v57, v58\nv_or_b32 v56, v56, v59\nv_cmp_ne_u32 vcc, 0, v56\ns_cbranch_vccz L_b_pa_ok\ns_mov_b64 exec, vcc")
            A("s_sleep 4\ns_add_u32 s3, s3, 1\ns_cmp_lt_u32 s3, %d\ns_cbranch_scc1 L_b_pa" % SPIN)
            A("L_b_pa_ok:\ns_mov_b64 exec, 1\nv_mov_b32 v49, 0\nglobal_store_dword v49, v189, s[38:39] sc1\ns_mov_b64 exec, -1\ns_branch L_b_allback")
        s.side(allflags)
        ydma = ["global_load_lds_dwordx4 v45, s[52:53] sc1", "global_load_lds_dwordx4 v45, s[54:55] offset:1024 sc1"]
        A.wait(vm="vd")
        A("L_b_allback:")
        s.stamp(7)
        if cfg["dec"]:
            A("ds_write_b8 v50, v51 offset:%d" % (UL+4))
            A("L_b_vw:\nds_read_b64 v[54:55], v49 offset:%d\ns_waitcnt lgkmcnt(0)\nv_and_b32 v54, v54, v55\nv_cmp_ne_u32 vcc, v52, v54\ns_cbranch_vccnz L_b_vs" % UL)
            s.tail.append("L_b_vs:\ns_sleep 1\ns_branch L_b_vw")
        else: A("s_barrier")
        VF = lambda n: 64+4*(n % 16)
        def scale(nu):
            for r in range(4):
                A("v_mul_f32_dpp v%d, v145, v%d row_newbcast:%d row_mask:0xf bank_mask:0xf" % (160+4*r+nu, 128+4*nu+r, 8+r))
        def trd(n):
            for jj in range(2):
                A("ds_read_b64_tr_b16 %s, v%d offset:%d" % (vr(VF(n)+2*jj, 2), 40+(n >> 3), 4096*(n & 7)+2048*jj), ("t", n))
        ahead = 8
        for n in range(ahead): trd(n)
        for n in range(32):
            if n % 2 == 0: A.wait(lg=("t", n+1))
            acc = vr(128+4*(n >> 3), 4)
            A("v_mfma_f32_16x16x32_bf16 %s, %s, %s, %s" % (acc, vr(4+4*(n & 7), 4), vr(VF(n), 4), acc if n & 7 else "0"))
            if n+ahead < 32: trd(n+ahead)
            if n in (25, 27, 29): scale((n-25)//2)
            if cfg["ypre"] and n == int(cfg["ypre"]): A("global_load_dword v47, v48, s[58:59] sc1\ns_mov_b32 s97, 0")
            if cfg["ypre"] and n == int(cfg["ypre"])+12:
                A("s_waitcnt vmcnt(0)\nv_cmp_ne_u32 vcc, s45, v47\ns_cbranch_vccnz L_b_nopre")
                for l in ydma: A.raw(l)
                A("s_mov_b32 s97, 1\nL_b_nopre:")
        scale(3)
        if cfg["qlate"]: gq()
        s.stamp(8)
        if cfg["ypre"]: A("s_cmp_eq_u32 s97, 1\ns_cbranch_scc1 L_b_yin")
        A("s_mov_b32 s3, 0")
        A("L_b_py:\nglobal_load_dword v47, v48, s[58:59] sc1\ns_waitcnt vmcnt(0)\nv_cmp_ne_u32 vcc, s45, v47\ns_cbranch_vccnz L_b_ymiss\nL_b_py_ok:")
        def ymiss():
            A("L_b_ymiss:\ns_add_u32 s3, s3, 1\ns_cmp_lt_u32 s3, %d\ns_cbranch_scc1 L_b_py" % NEAR_TRIES)
            A("L_b_pyf:\nglobal_load_dword v47, v48, s[58:59] sc1\nglobal_load_dword v49, v48, s[58:59] offset:1024 sc1\ns_waitcnt vmcnt(0)")
            A("v_cmp_ne_u32 vcc, s45, v47\ns_cbranch_vccz L_b_py_ok\nv_cmp_ne_u32 vcc, s44, v49\ns_cbranch_vccz L_b_isfar")
            A("s_sleep 8\ns_add_u32 s3, s3, 1\ns_cmp_lt_u32 s3, %d\ns_cbranch_scc1 L_b_pyf" % SPIN)
            A("L_b_isfar:\nv_add_u32 v45, %d, v45\ns_branch L_b_py_ok" % FAR)
        s.side(ymiss)
        s.stamp(9)
        for pp in range(2): A(ydma[pp], ("yd", pp))
        A("L_b_yin:")
        for pp in range(2):
            A.wait(vm=("yd", pp))
            A("ds_read_b128 %s, v46 offset:%d" % (vr(64+4*pp, 4), YL+1024*pp), ("y", pp))
        for pp in range(2):
            A.wait(lg=("y", pp))
            if pp: s.stamp(10)
            for r in range(4):
                o = 4*r+2*pp
                A("v_lshlrev_b32 v%d, 16, v%d\nv_and_b32 v%d, s62, v%d" % (72+o, 64+4*pp+r, 73+o, 64+4*pp+r))
                A("v_pk_fma_f32 %s, %s, %s, %s" % (vr(160+o, 2), vr(QF+o, 2), vr(72+o, 2), vr(160+o, 2)))
                A("v_cvt_pk_bf16_f32 v%d, v%d, v%d" % (96+2*r+pp, 160+o, 161+o))
                if pp: A("buffer_store_dwordx2 %s, v234, s[12:15], %s offen %s" % (vr(96+2*r, 2), qso[r], cfg["ont"]))
        s.stamps_out(0, 16)
        A("L_end:\ns_endpgm")

    def build(s):
        A = s.A
        A.raw("; @launch grid=(256,1,1) block=(512,1,1) lds=%d" % LDS)
        A.raw('.amdgcn_target "amdgcn-amd-amdhsa--gfx950"\n.text\n.globl %s\n.p2align 8\n.type %s,@function\n%s:' % (KN, KN, KN))
        s.prologue()
        h1, h2, b1, b2 = (s.roleA_head, s.roleB_head, s.roleA, s.roleB) if s.cfg["first"] == "A" else (s.roleB_head, s.roleA_head, s.roleB, s.roleA)
        h1(); A("s_branch L_body1\nL_role2:"); h2(); b2(); A("L_body1:"); b1()
        for t in s.tail: A(t)
        A.raw(".p2align 8\n.fill 4096, 4, 0xbf810000")
        A.raw('.section .rodata,"a"\n.p2align 6\n.amdhsa_kernel %s\n.amdhsa_next_free_vgpr 256\n.amdhsa_next_free_sgpr 102\n.amdhsa_accum_offset 256\n.amdhsa_group_segment_fixed_size 0\n.amdhsa_kernarg_size 120\n.amdhsa_user_sgpr_count 2\n.amdhsa_user_sgpr_kernarg_segment_ptr 1\n.amdhsa_system_sgpr_workgroup_id_x 1\n.end_amdhsa_kernel' % KN)
        return A.finish()

if __name__ == "__main__":
    out = sys.argv[1]
    cfg = {}
    for a in sys.argv[2:]:
        k, v = a.split("=")
        cfg[k] = {"True": True, "False": False}.get(v, v)
    g = G(**cfg)
    open(out, "w").write(g.build())
    print(out, "nops inserted", g.A.nops, file=sys.stderr)
```

```python
import sys
from dsl import Asm
KN = "gated_mix__ssm_conv_h3__spectral_fnet__prompt_kernel"
W_E   = 0
W_C   = 4096
FARC  = 0x10000
W_R   = 0x100000
W_K   = 0x40000
W_G   = 0x20000
W_V   = 0x400000
FAR   = 0x700000
STAMP_OFF = 200<<20
LCG_A, LCG_C = 1664525, 1013904223
UL = 0; HL = 9216; RED = HL + 16640; X1 = RED + 4*8704; VL = X1; GL = RED + 24576; KL = GL + 256; YL = HL; CL = RED + 8192; LDS = X1 + 16640
M_A, M_V, M_X, M_C, M_TAG = UL, UL+4, UL+8, UL+12, UL+16
SPIN = 40000
NEAR_TRIES = 24
MASK = "0xffff0000"
DPP = "row_mask:0xf bank_mask:0xf"

def vr(a, n): return "v[%d:%d]" % (a, a+n-1)

class G:
    def __init__(s, **cfg):
        s.cfg = dict(stamps=False, nt=" nt", xnt="nt", qnt="nt", prent="nt", ont="", vsleep=2, lord="vwhip", hpre=1, nb=12, ypre=10, rot=3,
                     slab=2048, seq="ac.qObePW.", prioA=1, prioB=0, prioD=3, far=False, ns=8)
        s.cfg.update(cfg)
        s.A = Asm(); s.tail = []
    def stamp(s, i):
        if s.cfg.get("probe") and i not in (0, int(s.cfg["probe"].split(".")[1])): return
        if s.cfg["stamps"]: s.A("%s s[%d:%d]" % ("s_memtime" if s.cfg.get("clk") else "s_memrealtime", 64+2*i, 65+2*i))
    def stamps_out(s, role, n):
        if not s.cfg["stamps"]: return
        A = s.A
        A("s_waitcnt vmcnt(0) lgkmcnt(0)")
        s.stamp(n-1)
        A("s_waitcnt lgkmcnt(0)")
        A("s_cmp_lg_u32 s6, %d\ns_cbranch_scc1 L_end" % int(s.cfg.get("sw", 0)))
        if s.cfg.get("probe"):
            pr, pi = [int(x) for x in s.cfg["probe"].split(".")]
            if pr == role:
                inv = "v_not_b32" if s.cfg.get("ref", "first") == "first" else "v_mov_b32"
                A("s_mov_b64 exec, 1\nv_mov_b32 v1, 0\nv_mov_b32 v2, s%d\n%s v3, s64\nglobal_atomic_umax v1, v2, s[36:37] sc1\nglobal_atomic_umax v1, v3, s[36:37] offset:128 sc1\ns_waitcnt vmcnt(0)" % (64+2*pi, inv))
                A("L_probe0:\ns_memrealtime s[40:41]\ns_waitcnt lgkmcnt(0)\ns_sub_u32 s40, s40, s64\ns_cmp_lt_u32 s40, 3000\ns_cbranch_scc1 L_probe0")
                A("global_load_dword v2, v1, s[36:37] sc1\nglobal_load_dword v3, v1, s[36:37] offset:128 sc1\ns_waitcnt vmcnt(0)\n%s v3, v3\nv_readfirstlane_b32 s42, v2\nv_readfirstlane_b32 s43, v3\ns_nop 3" % inv)
                A("s_sub_u32 s3, s42, s43\ns_min_u32 s3, s3, 1500\ns_mul_i32 s3, s3, %d\ns_add_u32 s3, s3, 5000" % int(s.cfg.get("skew", 5)))
                A("L_probe:\ns_memrealtime s[40:41]\ns_waitcnt lgkmcnt(0)\ns_sub_u32 s40, s40, s64\ns_cmp_lt_u32 s40, s3\ns_cbranch_scc1 L_probe")
            return
        A("s_add_u32 s38, s38, %d\ns_addc_u32 s39, s39, 0" % (STAMP_OFF + role*256*128))
        A("s_lshl_b32 s3, s2, 7\nv_mov_b32 v1, s3\ns_mov_b64 exec, 1")
        for j in range(n):
            A("v_mov_b32 v2, s%d\nv_mov_b32 v3, s%d\nglobal_store_dwordx2 v1, v[2:3], s[38:39] offset:%d\ns_nop 1" % (64+2*j, 65+2*j, 8*j))
    def side(s, fn):
        A = s.A; sv = (list(A.vm), list(A.lg)); keep = A.L; A.L = []
        fn()
        s.tail.append("\n".join(i.text for i in A.L)); A.L = keep; A.vm, A.lg = sv
    def addbase(s, d, base, soff):
        s.A("s_add_u32 s%d, s%d, %s\ns_addc_u32 s%d, s%d, 0" % (d, base, soff, d+1, base+1))
    def meet(s, name, off, vw, vone, vzero, vtmp, arrive=True):
        if arrive: s.A("ds_write_b8 v%d, v%d offset:%d" % (vw, vone, off))
        s.A("%s:\nds_read_b32 v%d, v%d offset:%d\ns_waitcnt lgkmcnt(0)\nv_cmp_ne_u32 vcc, 0x01010101, v%d\ns_cbranch_vccnz %s" % (name, vtmp, vzero, off, vtmp, name))

    def prologue(s):
        A = s.A
        s.stamp(0)
        A("s_load_dwordx16 s[16:31], s[0:1], 0\ns_load_dwordx8 s[32:39], s[0:1], 88")
        A("s_cmp_ge_u32 s2, 256\ns_cbranch_scc1 L_end")
        A("s_getpc_b64 s[40:41]")
        A("s_add_u32 s4, s2, %d\ns_and_b32 s4, s4, 7\ns_lshr_b32 s5, s2, 3" % int(s.cfg["rot"]))
        A("v_lshrrev_b32 v2, 6, v0\ns_lshl_b32 s3, s5, 9\nv_lshl_add_u32 v1, v2, 6, s3\nv_readfirstlane_b32 s7, v2")
        A("global_load_dword v255, v1, s[40:41]", "pf")
        A("v_and_b32 v1, 63, v0\nv_and_b32 v0, 255, v0\ns_and_b32 s6, s7, 3")
        A("v_lshlrev_b32 v46, 2, v0\nv_mov_b32 v45, 0\nds_write_b32 v46, v45 offset:%d" % UL)
        A("s_mov_b32 s10, 0x200000\ns_mov_b32 s11, 0x20000")
        A("s_cmp_ge_u32 s7, 4\ns_cbranch_scc1 L_roleA")

    def roleA(s):
        A = s.A; cfg = s.cfg; nt = cfg["nt"]
        A.reset_counters(); A.vm = ["pf"]
        KR, VR = 10, 22
        A("L_roleA:")
        A("s_lshl_b32 s40, s5, 16\ns_lshl_b32 s3, s4, 7\ns_add_u32 s40, s40, s3")
        A("v_lshrrev_b32 v3, 5, v0\nv_and_b32 v4, 31, v0\nv_lshl_add_u32 v3, v3, 13, s40\nv_lshl_add_u32 v2, v4, 2, v3\nv_add_u32 v3, -3072, v2")
        A("s_lshl_b32 s3, s4, 9\nv_lshl_add_u32 v5, v4, 4, s3")
        A("s_lshl_b32 s41, s4, 5\ns_add_u32 s41, s41, s5")
        A("s_lshl_b32 s42, s41, 13\ns_add_u32 s43, s42, 4096\ns_lshl_b32 s41, s41, 2\ns_movk_i32 s7, 4096\nv_mov_b32 v49, s41")
        A("s_mov_b32 s50, 0x200000\ns_mov_b32 s51, 0x20000")
        A("s_waitcnt lgkmcnt(0)")
        s.stamp(1)
        A("s_mov_b64 s[8:9], s[18:19]")
        for i in range(3): A("buffer_load_dword v%d, v3, s[8:11], 0 offen offset:%d%s" % (KR+i, 1024*i, nt), "k")
        for i in range(8): A("buffer_load_dword v%d, v2, s[8:11], %s offen offset:%d%s" % (KR+3+i, "s7" if i >= 4 else "0", 1024*(i & 3), nt), "k")
        A("global_load_dwordx4 v[30:33], v5, s[22:23]", "k")
        A("global_load_dword v9, v45, s[38:39] sc1", "k")
        A("global_load_dword v49, v49, s[26:27]", "k")
        A("s_barrier")
        A("s_mov_b64 s[48:49], s[24:25]"); s.addbase(20, 20, "s7")
        A("s_add_u32 s3, s42, %d" % W_R); s.addbase(52, 38, "s3")
        A("s_lshl_b32 s3, s4, 12\ns_add_u32 s3, s3, %d" % W_C); s.addbase(58, 38, "s3")
        A("s_lshl_b32 s3, s5, 7\nv_and_b32 v253, 64, v0\nv_add_u32 v253, s3, v253\nv_lshlrev_b32 v6, 4, v0\nv_add_u32 v252, v6, v6")
        for ch in cfg["lord"]:
            if ch in "vw":
                for i in (range(4) if ch == "v" else range(4, 8)): A("global_load_dword v%d, v2, s[20:21] offset:%d%s" % (VR+i, 1024*i-4096, nt), ("v", i))
            if ch == "h":
                A("buffer_load_dwordx4 v[36:39], v6, s[48:51], s42 offen offset:4" + nt, "h")
                A("buffer_load_dword v34, v6, s[48:51], s42 offen" + nt, "h")
            if ch == "i":
                A("buffer_load_dwordx4 v[40:43], v6, s[48:51], s43 offen offset:4" + nt, "h")
                A("buffer_load_dword v35, v6, s[48:51], s43 offen" + nt, "h")
            if ch == "p":
                A("global_load_dword v253, v253, s[58:59] sc1", "pre")
                A("global_load_dword v254, v252, s[52:53] sc1 " + cfg["prent"], "pre")
        A("s_mul_i32 s3, s6, 4160\nv_min_u32 v48, 6, v1\nv_lshl_add_u32 v47, v48, 2, s3\nds_write_b32 v47, v45 offset:%d" % HL)
        A("s_lshl_b32 s47, s6, 11\ns_lshl_b32 s60, s5, 2\ns_add_u32 s60, s60, s6\ns_lshl_b32 s3, s60, 6\ns_lshl_b32 s61, s4, 18\ns_add_u32 s3, s3, s61\ns_add_u32 s3, s3, %d" % W_R)
        s.addbase(54, 38, "s3"); s.addbase(56, 54, "0x20000")
        A("v_lshlrev_b32 v44, 3, v1\nv_lshrrev_b32 v47, 1, v1\nv_and_b32 v47, 16, v47\nv_and_b32 v48, 48, v44\nv_xor_b32 v47, v47, v48\nv_lshl_add_u32 v47, v4, 6, v47")
        A("v_add_u32 v47, s47, v47\nv_xor_b32 v48, 32, v47\nv_lshl_add_u32 v21, v1, 4, s47")
        A("v_add_u32 v8, v1, v1\nv_xor_b32 v8, v8, v6\ns_lshl_b32 s3, s5, 4\nv_xor_b32 v8, s3, v8\nv_and_b32 v8, 48, v8\nv_and_b32 v5, 60, v1\nv_lshl_add_u32 v8, v5, 11, v8")
        A("s_lshl_b32 s60, s60, 2\nv_mov_b32 v7, s60\ns_add_u32 m0, s47, %d" % (UL+1024))
        A("v_and_b32 v238, 15, v0\nv_lshrrev_b32 v235, 4, v1\nv_sub_u32 v238, v238, v235")
        A("s_and_b32 s41, s6, 1\ns_lshl_b32 s41, s41, 3\ns_sub_u32 s41, 16, s41\nv_add_u32 v238, s41, v238\ns_or_b32 s3, s6, 1\ns_lshl_b32 s3, s3, 4")
        for bb in range(2):
            if bb: A("v_add_u32 v238, -4, v238")
            A("v_lshlrev_b32 v239, 2, v238\nv_xor_b32 v239, s3, v239\nv_and_b32 v239, 48, v239\nv_lshl_add_u32 v%d, v238, 6, v239" % (248+2*bb))
            A("v_xor_b32 v%d, 16, v%d" % (249+2*bb, 248+2*bb))
        A("s_mul_i32 s3, s6, 8704\nv_add_u32 v2, v235, v1\nv_lshl_add_u32 v2, v2, 4, s3")
        A("s_lshl_b32 s3, s6, 6\nv_mul_u32_u24 v3, 272, v4\nv_lshrrev_b32 v5, 1, v1\nv_and_b32 v5, 16, v5\nv_add3_u32 v3, v3, v5, s3")
        A("s_lshl_b32 s60, s5, 1\ns_add_u32 s60, s60, s3\ns_lshl_b32 s60, s60, 1")
        A("s_lshr_b32 s61, s6, 1\ns_mul_i32 s61, s61, 7808\ns_lshl_b32 s41, s6, 8\ns_add_u32 s61, s61, s41\ns_add_u32 s61, s61, %d" % HL)
        A("v_and_b32 v234, 1, v0\nv_mul_u32_u24 v234, 4158, v234\nv_lshl_add_u32 v234, v1, 1, v234\nv_add_u32 v234, s61, v234")
        if int(cfg["prioA"]): A("s_setprio %d" % int(cfg["prioA"]))
        s.stamp(11)
        KP, W, S, VP = 50, 72, 80, 96
        A.wait(vm="k")
        s.stamp(2)
        for t in range(4):
            for c in range(2):
                src = 30 + 2*c + (t >> 1)
                A(("v_and_b32 v%d, " + MASK + ", v%d" if t & 1 else "v_lshlrev_b32 v%d, 16, v%d") % (W+2*t+c, src))
        for i in range(11):
            A("v_lshlrev_b32 v%d, 16, v%d\nv_and_b32 v%d, %s, v%d" % (KP+2*i, KR+i, KP+2*i+1, MASK, KR+i))
        for t in (3, 2, 1, 0):
            for r in range(8):
                k = vr(KP+2*(r+3-t), 2); w = vr(W+2*t, 2); d = vr(S+2*r, 2)
                A("v_pk_mul_f32 %s, %s, %s" % (d, k, w) if t == 3 else "v_pk_fma_f32 %s, %s, %s, %s" % (d, k, w, d))
        s.stamp(12)
        for r in range(8):
            if r in (0, 4): A.wait(vm=("v", r+3))
            if r == 4: s.stamp(10)
            A("v_lshlrev_b32 v%d, 16, v%d\nv_and_b32 v%d, %s, v%d" % (VP+2*r, VR+r, VP+2*r+1, MASK, VR+r))
            A("v_pk_mul_f32 %s, %s, %s" % (vr(S+2*r, 2), vr(S+2*r, 2), vr(VP+2*r, 2)))
            if r & 1:
                j = (7-r)//2
                for c in range(2): A("v_cvt_pk_bf16_f32 v%d, v%d, v%d" % (112+4*c+j, S+2*r+c, S+2*(r-1)+c))
        for c in range(2): A("ds_write_b128 v%d, %s offset:%d" % (47+c, vr(112+4*c, 4), RED))
        A("ds_read_b128 v[240:243], v21 offset:%d" % RED, "sh0")
        A("ds_read_b128 v[244:247], v21 offset:%d" % (RED+1024), "sh1")
        A("v_readfirstlane_b32 s44, v9\nv_readfirstlane_b32 s46, v49\ns_mov_b32 s96, 0\ns_getreg_b32 s3, hwreg(HW_REG_XCC_ID, 0, 4)")
        A("s_mul_i32 s44, s44, %d\ns_add_u32 s44, s44, %d\ns_add_u32 s45, s44, s3\ns_add_u32 s45, s45, 1" % (LCG_A, LCG_C))
        A("v_mov_b32 v9, s45\nv_mov_b32 v20, v44\nv_mov_b32 v26, 0\nv_mov_b32 v27, s44")
        A("v_mov_b32 v10, v234\nv_mov_b64 v[14:15], v[248:249]\nv_mov_b64 v[16:17], v[250:251]")
        for i in range(1, 4): A("v_add_u32 v%d, %d, v234" % (10+i, 1024*i))
        ust = ["global_store_dwordx4 v8, v[240:243], s[54:55]", "global_store_dwordx4 v8, v[244:247], s[56:57]"]
        A.wait(lg="sh0"); A(ust[0], "ust")
        A.wait(lg="sh1"); A(ust[1], "ust")
        s.stamp(3)
        A("ds_write_b32 v26, v27 offset:%d" % M_TAG)
        A.wait(vm="h")
        s.stamp(9)
        for c in range(2):
            d = [34+c] + [36+4*c+k for k in range(4)]
            A("ds_write_b128 v6, %s offset:%d" % (vr(36+4*c, 4), HL+c*8320+4160+32))
            for k in range(4): A("v_alignbit_b32 v%d, v%d, v%d, 16" % (50+4*c+k, d[k+1], d[k]))
            A("ds_write_b128 v6, %s offset:%d" % (vr(50+4*c, 4), HL+c*8320+32))
        A("s_cmp_eq_u32 s6, 0\ns_cbranch_scc1 L_a_h0\nL_a_h0back:")
        def h0():
            A("L_a_h0:\ns_mov_b32 s62, 0xffff0000\ns_lshl_b32 s3, s46, 16\ns_and_b32 s7, s46, s62\ns_mov_b64 exec, 1")
            for c in range(2):
                A("v_lshlrev_b32 v60, 16, v%d\nv_add_f32 v60, %s, v60\nv_cvt_pk_bf16_f32 v60, v60, v60" % (34+c, "s7" if c else "s3"))
                A("v_bfi_b32 v%d, s62, v%d, v60\nv_and_b32 v%d, s62, v60" % (62+2*c, 34+c, 61+2*c))
                A("ds_write_b32 v6, v%d offset:%d" % (61+2*c, HL+c*8320+28))
                A("ds_write_b32 v6, v%d offset:%d" % (62+2*c, HL+c*8320+4160+28))
            A("s_mov_b64 exec, -1\ns_branch L_a_h0back")
        s.side(h0)
        A("s_mov_b64 exec, 1\ns_waitcnt vmcnt(0)"); s.stamp(4)
        A("global_store_dword v7, v9, s[58:59]\ns_mov_b64 exec, -1")
        A("s_mov_b32 s3, 0")
        if cfg["far"]: A("s_branch L_a_far")
        A("L_a_pu:\nglobal_load_dwordx2 v[22:23], v20, s[58:59] sc1\ns_waitcnt vmcnt(0)")
        A("v_cmp_ne_u32 vcc, s45, v22\nv_cmp_ne_u32 s[40:41], s45, v23\ns_or_b64 vcc, vcc, s[40:41]\ns_cbranch_scc0 L_a_pu_ok")
        A("s_add_u32 s3, s3, 1\ns_cmp_lt_u32 s3, %d\ns_cbranch_scc1 L_a_pu\ns_branch L_a_far\nL_a_pu_ok:" % NEAR_TRIES)
        def far():
            A("L_a_far:\nv_add_u32 v8, %d, v8" % FAR)
            for l in ust: A(l + " sc1")
            s.addbase(14, 58, "%d" % FARC)
            A("s_waitcnt vmcnt(0)\ns_mov_b64 exec, 1\nglobal_store_dword v7, v27, s[14:15] sc1\ns_mov_b64 exec, -1")
            A("L_a_pf:\nglobal_load_dwordx2 v[24:25], v20, s[14:15] sc1\ns_waitcnt vmcnt(0)\nglobal_load_dwordx2 v[22:23], v20, s[58:59] sc1\ns_waitcnt vmcnt(0)")
            A("v_cmp_ne_u32 vcc, s45, v22\nv_cmp_ne_u32 s[40:41], s45, v23\ns_or_b64 vcc, vcc, s[40:41]\ns_cbranch_scc0 L_a_pu_ok")
            A("v_cmp_ne_u32 vcc, s44, v24\nv_cmp_ne_u32 s[40:41], s44, v25\ns_or_b64 vcc, vcc, s[40:41]\ns_cbranch_scc0 L_a_isfar")
            A("s_sleep 8\ns_add_u32 s3, s3, 1\ns_cmp_lt_u32 s3, %d\ns_cbranch_scc1 L_a_pf" % SPIN)
            A("L_a_isfar:\ns_mov_b32 s96, 1\nv_mov_b32 v9, s44\nv_mov_b32 v28, 1\nds_write_b32 v26, v28 offset:%d" % (M_TAG+4))
            s.addbase(52, 52, "%d" % FAR)
            A("s_branch L_a_pu_ok")
        s.side(far)
        s.stamp(5)
        A("global_load_lds_dwordx4 v21, s[52:53] sc1\nglobal_load_lds_dwordx4 v21, s[52:53] offset:1024 sc1")
        A("s_waitcnt lgkmcnt(0)\ns_barrier")
        HB = lambda q: 32+32*q
        UB = lambda q: 160+32*(q & 1)
        ACC = 224
        def hread(q, a, half):
            bb, hf = q >> 1, q & 1
            o = 128*(a & 1)+32*bb+4*hf+2*half
            A("ds_read2_b32 %s, v%d offset0:%d offset1:%d" % (vr(HB(q)+4*a+2*half, 2), 10+(a >> 1), o, o+1), ("f", q, a))
        def uread(q, z):
            A("ds_read_b128 %s, v%d offset:%d" % (vr(UB(q)+4*z, 4), 14+q, UL+1024*z), ("f", q, z))
        npre = int(cfg["hpre"])
        for q in range(npre):
            for a in range(8): hread(q, a, 0); hread(q, a, 1)
        A("v_mov_b32 v7, s60\nv_mov_b32 v5, s6\nv_mov_b32 v4, 1")
        A("s_waitcnt vmcnt(0)\ns_barrier")
        s.stamp(6)
        todo = [(q, a, k) for q in range(4) for a in range(8) for k in range(3) if k == 0 or q >= npre]
        def feed(n, q):
            for _ in range(n):
                if todo and todo[0][0] <= q+1:
                    qq, a, k = todo.pop(0)
                    if k == 0: uread(qq, a)
                    else: hread(qq, a, k-1)
        feed(8, 0)
        for q in range(4):
            pend = []; n = 0
            for i in range(8):
                while todo and todo[0][:2] <= (q, i): feed(1, q)
                A.wait(lg=[("f", q, i)] if q == 0 else [("f", q, z) for z in range(8)])
                for a in range(i+1):
                    acc = vr(ACC+4*i, 4)
                    A("v_mfma_f32_16x16x32_bf16 %s, %s, %s, %s" % (acc, vr(UB(q)+4*(i-a), 4), vr(HB(q)+4*a, 4), "0" if (q == 0 and a == 0) else acc))
                    n += 1
                    if n >= (8 if q == 0 else 2): feed(1, q)
                    if pend and n >= pend[0][1]:
                        t = pend.pop(0)[0]
                        A("ds_write_b128 v2, %s offset:%d" % (vr(ACC+4*t, 4), RED+1088*t))
                if q == 3: pend.append((i, n+8))
            for t, _ in pend: A("ds_write_b128 v2, %s offset:%d" % (vr(ACC+4*t, 4), RED+1088*t))
        assert not todo
        s.stamp(13)
        s.meet("L_a_rw", M_A, 5, 4, 26, 28)
        for io in range(2):
            for ws in range(4):
                A("ds_read_b128 %s, v3 offset:%d" % (vr(32+16*io+4*ws, 4), RED+ws*8704+io*32), ("r", io))
        s.stamp(7)
        yst = ["global_store_dwordx4 v21, %s, s[52:53] offset:%d" % (vr(64+4*io, 4), 1024*io) for io in range(2)]
        def ysum(io):
            b = 32+16*io
            A.wait(lg=("r", io))
            for c in range(2):
                for p in range(4): A("v_add_f32 v%d, v%d, v%d" % (b+8*c+p, b+8*c+p, b+8*c+4+p))
            for r in range(4): A("v_cvt_pk_bf16_f32 v%d, v%d, v%d" % (64+4*io+r, b+r, b+8+r))
        A("s_cmp_eq_u32 s96, 1\ns_cbranch_scc1 L_a_yfar")
        def yfar():
            A("L_a_yfar:")
            for io in range(2):
                ysum(io); A(yst[io] + " sc1")
            A("s_waitcnt vmcnt(0)\ns_mov_b64 exec, 1\nglobal_store_dword v7, v9, s[14:15] offset:512 sc1\ns_branch L_a_done")
        s.side(yfar)
        for io in range(2):
            ysum(io); A(yst[io])
        A("s_mov_b64 exec, 1\ns_waitcnt vmcnt(0)")
        s.stamp(8)
        A("global_store_dword v7, v9, s[58:59] offset:512")
        A("L_a_done:")
        s.stamps_out(1, 16)
        A("s_endpgm")

    def roleB_head(s):
        A = s.A; cfg = s.cfg
        A("s_lshr_b32 s7, s5, 4\ns_and_b32 s3, s5, 15\ns_lshl_b32 s40, s4, 4\ns_add_u32 s40, s40, s3")
        A("v_and_b32 v2, 3, v0\nv_bfe_u32 v3, v0, 2, 1\nv_lshl_add_u32 v2, v2, 1, v3\nv_and_b32 v3, 8, v0\nv_add_u32 v2, v2, v3")
        A("s_sub_u32 s63, 256, s40\ns_cmp_eq_u32 s40, 0\ns_cselect_b32 s63, 128, s63\ns_sub_u32 s3, s63, s40\nv_lshrrev_b32 v3, 5, v1\nv_mul_u32_u24 v240, s3, v3\nv_add_u32 v240, s40, v240")
        A("v_and_b32 v242, 16, v0\nv_lshl_add_u32 v241, v242, 6, v240\ns_lshl_b32 s41, s6, 8\nv_lshl_add_u32 v3, v2, 4, s41\nv_lshl_add_u32 v2, v241, 10, v3")
        A("s_lshl_b32 s48, s7, 19\ns_xor_b32 s49, s48, 0x40000\ns_xor_b32 s50, s48, 0x80000\ns_xor_b32 s51, s48, 0xc0000")
        A("v_mov_b32 v244, s6\nv_mov_b32 v245, 1\nv_mov_b32 v246, 0")
        A("s_waitcnt lgkmcnt(0)")
        s.stamp(1)
        A("s_mov_b64 s[8:9], s[16:17]")
        for j in range(4): A("buffer_load_dwordx4 %s, v2, s[8:11], s%d offen %s" % (vr(s.XR(j), 4), 48+j, cfg["xnt"]), ("x", j))
        A("global_load_dwordx4 v[184:187], v3, s[32:33]", "gw")
        A("s_barrier")
        s.vmB = list(A.vm)
    def XR(s, j): return (224+4*j) if j < 2 else (64+4*j)
    def roleB(s):
        A = s.A; cfg = s.cfg; XR = s.XR; SLAB = int(cfg["slab"])
        A.reset_counters(); A.vm = list(s.vmB)
        KQ, NF, QO, MP, L7, VS = 232, 233, 234, 236, 237, 238
        A("v_lshlrev_b32 v243, 4, v1\nv_bfe_u32 v161, v0, 5, 1\nv_cvt_f32_u32 v161, v161\nv_and_b32 v167, 1, v0\ns_mov_b32 s62, 0x80008000")
        def put(f0, n):
            for f in range(f0, f0+n): A("ds_write_b128 v243, %s offset:%d" % (vr(4+4*f, 4), CL+1024*f))
        def trig(c, sn, jump):
            for j in range(8):
                A("v_cos_f32 v%d, v164\nv_sin_f32 v%d, v164" % (c+j, sn+j))
                if jump and j == 3: A("v_fmamk_f32 v164, v163, 0x40a00000, v164")
                elif j < 7: A("v_add_f32 v164, v164, v163")
        def pack(c, sn):
            for j in range(4):
                A("v_cvt_pk_bf16_f32 v%d, v%d, v%d\nv_cvt_pk_bf16_f32 v%d, v%d, v%d" % (c+j, 128+2*j, 129+2*j, sn+j, 136+2*j, 137+2*j))
        A("s_cmp_ge_u32 s6, 2\ns_cbranch_scc1 L_b_c23")
        A("v_and_b32 v160, 24, v0\nv_and_b32 v162, 3, v0\nv_lshl_add_u32 v160, v162, 1, v160\nv_bfe_u32 v162, v0, 2, 1\nv_add_u32 v160, v160, v162\nv_cvt_f32_u32 v160, v160")
        A("s_cmp_eq_u32 s6, 1\ns_cbranch_scc1 L_b_c1")
        A("v_mul_lo_u32 v165, v162, s62\nv_mul_f32 v163, 0x3d000000, v160\nv_mul_f32 v164, 0x41000000, v161\nv_mul_f32 v164, v164, v163")
        trig(128, 136, False); pack(8, 16)
        for j in range(4):
            A("v_xor_b32 v%d, v165, v%d\nv_xor_b32 v%d, v165, v%d\nv_xor_b32 v%d, s62, v%d" % (12+j, 8+j, 20+j, 16+j, 24+j, 16+j))
            A("v_xor_b32 v%d, s62, v%d" % (28+j, 20+j))
        put(1, 6)
        A("s_branch L_b_cd\nL_b_c1:")
        A("v_mul_f32 v163, 0x3b000000, v160\nv_mul_f32 v166, 4.0, v161\nv_mul_f32 v164, v166, v163")
        trig(32, 40, True)
        A("s_nop 0")
        put(7, 4)
        A("s_branch L_b_cd\nL_b_c23:\nv_cvt_f32_u32 v162, v167\nv_mul_f32 v162, 0.25, v162\ns_cmp_eq_u32 s6, 3\ns_cbranch_scc1 L_b_c3")
        A("s_cmp_eq_u32 s40, 0\ns_cselect_b32 s3, 0, 1.0\nv_mul_f32 v162, s3, v162\nv_mul_lo_u32 v165, v167, s62\nv_mul_f32 v166, 4.0, v161")
        A("v_bfe_u32 v160, v0, 1, 4\nv_cvt_f32_u32 v160, v160\nv_mul_f32 v163, 0x3d800000, v160\nv_fma_f32 v164, v166, v163, v162")
        trig(128, 136, True); pack(48, 52)
        A("s_cbranch_scc1 L_b_s0")
        for j in range(8): A("v_xor_b32 v%d, v165, v%d" % (56+j, 48+j))
        A("L_b_s0back:")
        s.tail.append("L_b_s0:\nv_cmp_eq_u32 vcc, 0, v167\ns_nop 1\n" + "\n".join("v_cndmask_b32 v%d, v%d, v167, vcc\nv_cndmask_b32 v%d, 0, v%d, vcc" % (56+j, 48+j, 48+j, 48+j) for j in range(8)) + "\ns_branch L_b_s0back")
        put(11, 4)
        A("s_branch L_b_cd\nL_b_c3:")
        A("v_bfe_u32 v160, v0, 1, 2\ns_lshl_b32 s3, s7, 2\nv_add_u32 v160, s3, v160\nv_cvt_f32_u32 v160, v160\nv_cvt_f32_u32 v161, v241")
        A("v_mul_f32 v163, 0x3a000000, v160\nv_fma_f32 v165, v163, v161, v162\nv_mul_f32 v166, 0x35000000, v160")
        for j in range(4):
            A("v_cvt_f32_u32 v164, s%d\nv_fma_f32 v164, v164, v166, v165\nv_cos_f32 v%d, v164" % (48+j, 168+j))
        for j in range(2): A("v_cvt_pk_bf16_f32 v%d, v%d, v%d" % (4+j, 168+2*j, 169+2*j))
        A("s_mov_b32 exec_lo, 0xff00ff00\ns_mov_b32 exec_hi, 0x00ff00ff\nv_mov_b64 v[4:5], 0\ns_mov_b64 exec, -1")
        put(0, 1)
        A("L_b_cd:")
        A("ds_write_b8 v244, v245 offset:%d" % M_C)
        A("v_lshrrev_b32 v%d, 4, v1\nv_and_b32 v%d, 15, v0\nv_and_b32 v%d, 7, v0" % (KQ, NF, L7))
        A("v_mul_u32_u24 v2, 2064, v%d\nv_and_b32 v3, 8, v0\nv_lshl_add_u32 v2, v3, 7, v2\nv_lshl_add_u32 v2, v242, 3, v2\nv_bfe_u32 v3, v0, 5, 1\nv_lshl_add_u32 v2, v3, 3, v2" % L7)
        A("v_add_u32 v2, s41, v2")
        A("v_lshlrev_b32 v3, 8, v3\nv_lshl_add_u32 v3, v242, 6, v3\nv_lshl_add_u32 v3, v%d, 4, v3\ns_mul_i32 s3, s6, 4128\nv_add_u32 v3, s3, v3" % NF)
        A("s_mov_b32 s46, 0x05040100\ns_mov_b32 s47, 0x07060302")
        s.meet("L_b_cw", M_C, 244, 245, 246, 247, arrive=False)
        for f in range(15): A("ds_read_b128 %s, v243 offset:%d" % (vr(4+4*f, 4), CL+1024*f), "c")
        s.stamp(12)
        GW, GX = 176, 192
        A.wait(vm="gw")
        for p in range(4): A("v_lshlrev_b32 v%d, 16, v%d\nv_and_b32 v%d, %s, v%d" % (GW+2*p, 184+p, GW+1+2*p, MASK, 184+p))
        for i in range(8): A("v_lshlrev_b32 v%d, 16, v%d\nv_and_b32 v%d, %s, v%d" % (GX+2*i, 224+i, GX+1+2*i, MASK, 224+i))
        for i in range(8): A("v_pk_mul_f32 %s, %s, %s" % (vr(GX+2*i, 2), vr(GX+2*i, 2), vr(GW+2*(i & 3), 2)))
        for i in range(16): A("v_cvt_pk_bf16_f32 v%d, 0, v%d" % (GX+i, GX+i))
        for i in range(4): A("v_pk_add_f32 %s, %s, %s" % (vr(GX+4*i, 2), vr(GX+4*i, 2), vr(GX+2+4*i, 2)))
        for i in range(2): A("v_pk_add_f32 %s, %s, %s" % (vr(GX+8*i, 2), vr(GX+8*i, 2), vr(GX+4+8*i, 2)))
        for i in range(2): A("v_add_f32 v%d, v%d, v%d" % (GW+i, GX+8*i, GX+1+8*i))
        perm = lambda jj, c: A("v_perm_b32 v%d, v%d, v%d, s%d" % (96+2*c+jj, XR(2*jj+1)+(c >> 1), XR(2*jj)+(c >> 1), 46+(c & 1)))
        for n, sh in enumerate((8, 4, 2, 1)):
            perm(0, 2*n); perm(0, 2*n+1)
            for r in range(2): A("v_add_f32_dpp v%d, v%d, v%d row_ror:%d %s" % (GW+r, GW+r, GW+r, sh, DPP))
        A("s_lshl_b32 s3, s6, 2\nv_lshl_add_u32 v178, v%d, 5, s3\nv_lshlrev_b32 v191, 4, v%d" % (KQ, L7))
        A("ds_write_b32 v178, v176 offset:%d\nds_write_b32 v178, v177 offset:%d" % (GL, GL+16))
        if int(cfg["prioB"]): A("s_setprio %d" % int(cfg["prioB"]))
        mfA = lambda c: A("v_mfma_f32_16x16x16_bf16 %s, %s, v[4:5], 0" % (vr(128+4*c, 4), vr(96+2*c, 2)))
        def outA(c):
            A("v_cvt_pk_bf16_f32 v%d, v%d, v%d\nv_cvt_pk_bf16_f32 v%d, v%d, v%d" % (160+2*c, 128+4*c, 129+4*c, 161+2*c, 130+4*c, 131+4*c))
            A("ds_write_b64 v2, %s offset:%d" % (vr(160+2*c, 2), X1+16*c))
        A.wait(lg="c"); s.stamp(2)
        for op in "p0 p1 p2 m0 p3 p4 m1 p5 p6 m2 p7 m3 m4 o0 m5 o1 m6 o2 m7 o3 o4 o5 o6 o7".split():
            {"p": lambda c: perm(1, c), "m": mfA, "o": outA}[op[0]](int(op[1]))
        s.meet("L_b_xw", M_X, 244, 245, 246, 247)
        for ri in range(2):
            for ks in range(2):
                A("ds_read_b128 %s, v3 offset:%d" % (vr(64+8*ri+4*ks, 4), X1+ri*2064+ks*512), ("a", ri, ks))
        A("ds_read_b128 v[188:191], v191 offset:%d" % GL, "gp")
        s.stamp(3)
        A("v_and_b32 v160, 28, v0\nv_lshlrev_b32 v238, 6, v160\nv_and_b32 v161, 3, v0\nv_lshl_add_u32 v238, v161, 4, v238")
        A("v_and_b32 v161, 32, v0\nv_lshl_add_u32 v238, v161, 1, v238\ns_and_b32 s3, s40, 4\ns_lshl_b32 s3, s3, 4\nv_xor_b32 v238, s3, v238")
        A("v_add_u32 v219, v160, v161\ns_lshl_b32 s3, s6, 2\ns_add_u32 s3, s3, %d\nv_lshl_add_u32 v219, v219, 3, s3" % KL)
        A("s_lshl_b32 s3, s7, 2\ns_add_u32 s3, s3, s6\ns_lshl_b32 s3, s3, 7\ns_add_u32 s43, s3, s40\ns_mul_i32 s3, s43, %d\ns_add_u32 s3, s3, %d" % (SLAB, W_V))
        s.addbase(28, 38, "s3")
        RE, IM = 96, 112
        M32 = "v_mfma_f32_32x32x16_bf16 %s, %s, %s, %s"
        for n in range(4):
            ri, ks = n >> 1, n & 1
            A.wait(lg=("a", ri, ks))
            A(M32 % (vr(RE, 16), vr(64+8*ri+4*ks, 4), vr((8 if ri == 0 else 16)+4*ks, 4), vr(RE, 16) if n else "0"))
        muls = []
        for o in range(16):
            muls.append("v_mul_f32 v%d, v%d, v%d" % (128+o, RE+o, 32+(o & 7)))
            muls.append("v_mul_f32_e64 v%d, -v%d, v%d" % (144+o, RE+o, 40+(o & 7)))
        for n in range(4):
            ri, ks = n >> 1, n & 1
            A(M32 % (vr(IM, 16), vr(64+8*ri+4*ks, 4), vr((24 if ri == 0 else 8)+4*ks, 4), vr(IM, 16) if n else "0"))
            if n == 0:
                A.wait(lg="gp")
                A("v_add_f32 v188, v188, v190\nv_add_f32 v189, v189, v191\nv_add_f32 v188, v188, v189")
                A("v_cvt_pk_bf16_f32 v188, 0, v188\nv_mul_f32 v188, 0xbfb8aa3b, v188\nv_exp_f32 v188, v188\nv_add_f32 v188, 1.0, v188\nv_rcp_f32 v188, v188")
                A("v_cvt_pk_bf16_f32 v188, 0, v188\nv_sub_f32 v190, 1.0, v188\nv_cvt_pk_bf16_f32 v188, v190, v188")
            for _ in range((0, 6, 6, 20)[n]): A(muls.pop(0))
        for o in range(0, 16, 2):
            A("v_pk_fma_f32 %s, %s, %s, %s" % (vr(128+o, 2), vr(IM+o, 2), vr(40+(o & 7), 2), vr(128+o, 2)))
            A("v_pk_fma_f32 %s, %s, %s, %s" % (vr(144+o, 2), vr(IM+o, 2), vr(32+(o & 7), 2), vr(144+o, 2)))
        def cv(n):
            row, ri = n >> 1, n & 1
            for p in range(4):
                o = 128+16*ri+8*row+2*p
                A("v_cvt_pk_bf16_f32 v%d, v%d, v%d" % (160+4*n+p, o, o+1))
        cv(0); cv(1)
        for n in range(4):
            A(M32 % (vr(64, 16), vr(160+4*n, 4), vr(48+4*n, 4), vr(64, 16) if n else "0"))
            if n < 2: cv(n+2)
        A("s_cmp_eq_u32 s6, 0\ns_cbranch_scc1 L_b_hk")
        A("s_sub_u32 s3, s63, s40\nv_bfe_u32 v235, v0, 2, 1\nv_mul_u32_u24 v235, s3, v235\nv_add_u32 v235, s40, v235\nv_and_b32 v191, 15, v235\nv_and_b32 v235, 0xf0, v235\nv_lshlrev_b32 v235, 2, v235\nv_lshl_add_u32 v235, v191, 11, v235")
        A("v_and_b32 v191, 10, v0\nv_lshl_add_u32 v235, v191, 2, v235\nv_and_b32 v191, 1, v0\nv_lshl_add_u32 v235, v191, 4, v235\ns_lshl_b32 s3, s7, 10\ns_add_u32 s3, s3, %d\nv_add_u32 v235, s3, v235\nL_b_hd:" % W_G)
        s.tail.append("L_b_hk:\ns_lshl_b32 s3, s7, 1\ns_and_b32 s41, s40, 1\ns_add_u32 s3, s3, s41\ns_lshl_b32 s3, s3, 6\ns_lshr_b32 s41, s40, 1\ns_add_u32 s3, s3, s41\ns_lshl_b32 s3, s3, 6\nv_and_b32 v191, 56, v0\nv_lshl_add_u32 v235, v%d, 3, s3\nv_lshl_add_u32 v235, v191, 11, v235\ns_nop 3\ns_branch L_b_hd" % L7)
        for p in range(8): A("v_cvt_pk_bf16_f32 v%d, v%d, v%d" % (80+p, 64+2*p, 65+2*p))
        for b in range(2):
            A("s_mov_b32 vcc_lo, 0x%x\ns_mov_b32 vcc_hi, 0x%x" % ((0x33333333 << 2*b,)*2))
            for p in range(4): A("v_cndmask_b32_dpp v%d, v%d, v%d, vcc quad_perm:[2,3,0,1] %s" % (208+4*b+p, 84-4*b+p, 80+4*b+p, DPP))
        for p in range(8): A("v_dot2_u32_u16 v%d, v%d, v%d, %s" % (216+(p >> 2), 208+p, 208+p, "v%d" % (216+(p >> 2)) if p & 3 else "0"))
        for qp in ("[1,0,3,2]", "[2,3,0,1]"):
            for b in range(2): A("v_add_u32_dpp v%d, v%d, v%d quad_perm:%s %s" % (216+b, 216+b, 216+b, qp, DPP))
        A("ds_write2_b32 v219, v216, v217 offset0:0 offset1:4\nv_lshlrev_b32 v219, 2, v1")
        if int(cfg["prioB"]): A("s_setprio 0")
        s.stamp(4)
        qso = ["0", "s56", "s42", "s57"]
        def setup0():
            A("s_and_b32 s41, s5, 15\ns_lshl_b32 s3, s41, 1\ns_lshr_b32 s43, s6, 1\ns_add_u32 s3, s3, s43\ns_lshl_b32 s3, s3, 6\ns_and_b32 s51, s6, 1\ns_add_u32 s3, s3, s51\ns_lshl_b32 s3, s3, 4\ns_add_u32 s3, s3, %d" % W_G)
            A("v_and_b32 v128, 3, v0\nv_lshl_add_u32 v128, v%d, 2, v128\nv_lshl_add_u32 v128, v128, 6, s3\nv_and_b32 v129, 4, v0\nv_lshl_add_u32 v%d, v129, 1, v128" % (KQ, MP))
            A("s_bfe_u32 s50, s5, 0x10002\ns_lshl_b32 s3, s4, 1\ns_add_u32 s3, s3, s50\ns_lshl_b32 s3, s3, 2\ns_add_u32 s3, s3, s6\ns_lshl_b32 s3, s3, 6\ns_add_u32 s3, s3, s7\ns_lshl_b32 s3, s3, 2\ns_and_b32 s50, s5, 3\ns_add_u32 s3, s3, s50\ns_lshl_b32 s3, s3, 3")
            A("v_lshl_add_u32 v129, v%d, 3, v%d\ns_mov_b32 exec_lo, 0x00ff00ff\ns_mov_b32 exec_hi, 0x00ff00ff\nv_lshl_add_u32 v%d, v129, 6, s3\ns_mov_b64 exec, -1" % (KQ, L7, MP))
            s.addbase(60, 38, "%d" % W_K)
            A("s_and_b32 s3, s5, 7\ns_lshl_b32 s3, s3, 1\ns_add_u32 s3, s3, s51\ns_lshl_b32 s3, s3, 6\ns_add_u32 s3, s3, s43\ns_mul_i32 s3, s3, %d\ns_lshl_b32 s43, s4, 1\ns_add_u32 s43, s43, s7\ns_lshl_b32 s50, s43, 7\ns_add_u32 s3, s3, s50\ns_add_u32 s3, s3, %d" % (SLAB, W_V)); s.addbase(30, 38, "s3")
            A("s_lshl_b32 s50, s6, 12\ns_add_u32 s50, s50, %d\nv_lshrrev_b32 v44, 3, v1\nv_mul_u32_u24 v44, %d, v44\nv_lshl_add_u32 v44, v%d, 4, v44\nv_add_u32 v43, s50, v243" % (VL, 2*SLAB, L7))
            A("s_lshl_b32 s3, s4, 12\ns_add_u32 s3, s3, %d" % W_C); s.addbase(58, 38, "s3")
            A("s_mov_b64 s[26:27], s[58:59]\nv_lshlrev_b32 v250, 7, v%d" % L7)
            A("s_lshl_b32 s3, s41, 10\ns_lshl_b32 s41, s6, 18\ns_add_u32 s3, s3, s41\ns_lshl_b32 s43, s43, 6\ns_add_u32 s3, s3, s43")
            A("v_lshl_add_u32 v234, v%d, 16, s3\nv_lshl_add_u32 v234, v%d, 2, v234\nv_add_u32 v239, 0x100000, v234" % (KQ, NF))
            A("s_mov_b32 s56, 0x4000\ns_mov_b32 s57, 0xc000\ns_mov_b32 s42, 0x8000")
        CFR = lambda p, k, jj, b: 4+16*(k >> 1)+8*p+4*(k & 1)+2*jj+b
        def cf(lo, hi):
            for i in range(lo, hi):
                A("v_cos_f32 v134, v132\nv_sin_f32 v135, v132")
                if i < 15: A("v_fmamk_f32 v132, v131, 0x41500000, v132" if i & 3 == 3 else "v_add_f32 v132, v132, v131")
                A("v_cvt_pk_bf16_f32 v%d, v134, v135" % CFR(i & 1, i >> 3, (i >> 2) & 1, (i >> 1) & 1))
        nb = int(cfg["nb"])
        def setup1():
            A("s_lshl_b32 s3, s6, 5\ns_bfe_u32 s41, s5, 0x10003\ns_add_u32 s3, s3, s41\nv_lshl_add_u32 v128, v%d, 1, s3\nv_cvt_f32_u32 v128, v128\nv_mul_f32 v131, 0x3b800000, v128" % NF)
            A("v_cvt_f32_u32 v129, v%d\nv_mul_f32 v129, 4.0, v129\nv_mul_f32 v132, v129, v131" % KQ)
            cf(0, nb)
        def setup1b():
            cf(nb, 16)
            A("s_bfe_u32 s41, s5, 0x10003\ns_lshl_b32 s3, s41, 4\ns_lshl_b32 s43, s41, 15\nv_bfe_i32 v133, v0, 0, 1\nv_and_b32 v133, 0x80008000, v133\nv_xor_b32 v133, s43, v133")
            for i in range(16): A("v_alignbit_b32 v%d, v%d, v%d, s3\nv_xor_b32 v%d, v133, v%d" % (20+i, 4+i, 4+i, 20+i, 20+i))
            A("s_lshl_b32 s41, s41, 31\ns_or_b32 s41, s41, 0x3f803f80\ns_mov_b64 exec, 0xffff\nv_mov_b32 v4, s41\ns_mov_b64 exec, -1")
        def setup2():
            A("s_mov_b64 s[12:13], s[34:35]\ns_mov_b32 s14, 0x200000\ns_mov_b32 s15, 0x20000")
            A("v_and_b32 v45, 58, v0\nv_lshlrev_b32 v40, 4, v45\nv_and_b32 v45, 20, v0\nv_lshl_add_u32 v40, v45, 2, v40\nv_and_b32 v45, 1, v0\nv_lshl_add_u32 v40, v45, 3, v40\nv_add_u32 v40, %d, v40\nv_xor_b32 v41, 64, v40" % VL)
            A("v_and_b32 v45, 60, v0\nv_lshlrev_b32 v45, 11, v45\nv_and_b32 v46, 2, v%d\nv_xor_b32 v46, v46, v0\nv_and_b32 v46, 3, v46\nv_lshl_add_u32 v45, v46, 4, v45" % KQ)
            A("s_lshl_b32 s3, s4, 1\ns_add_u32 s3, s3, s7\ns_lshl_b32 s3, s3, 8\ns_and_b32 s41, s5, 15\ns_add_u32 s3, s3, s41\ns_lshl_b32 s3, s3, 3\ns_add_u32 s3, s3, s6\ns_lshl_b32 s3, s3, 6\ns_add_u32 s3, s3, %d" % (W_R-768))
            s.addbase(54, 38, "s3"); s.addbase(52, 54, "768")
            A("v_bfe_u32 v46, v0, 2, 2\nv_and_b32 v46, 2, v46\nv_xor_b32 v46, v46, v%d\nv_lshlrev_b32 v46, 4, v46\nv_lshl_add_u32 v46, v%d, 6, v46\ns_lshl_b32 s41, s6, 11\nv_add_u32 v46, s41, v46" % (KQ, NF))
            A("s_bfe_u32 s3, s5, 0x20002\ns_lshl_b32 s3, s3, 1\ns_add_u32 s3, s3, s7\ns_lshl_b32 s3, s3, 6\nv_lshl_add_u32 v48, v%d, 2, s3" % NF)
        QF = 192
        def qload():
            for i in range(8): A("buffer_load_dword v%d, v%d, s[8:11], %s offen %s" % (176+i, 239 if i >> 2 else 234, qso[i & 3], cfg["qnt"]), "q")
        def post():
            A("s_or_b32 s3, s5, s6\ns_cbranch_scc0 L_b_post\nL_b_postd:")
        steps = dict(a=setup0, b=setup1, e=setup1b, c=setup2, q=qload, k=lambda: (A.wait(vm="vst"), s.stamp(14)), W=lambda: A.wait(vm="q"),
                     S=lambda: A("s_sleep %d" % int(cfg["ns"])), p=post, P=lambda: A("s_setprio 3"), O=lambda: A("s_setprio 0"))
        seq0, seq1, seq2 = cfg["seq"].split(".")
        for ch in seq0: steps[ch]()
        A("s_getreg_b32 s45, hwreg(HW_REG_XCC_ID, 0, 4)\ns_waitcnt lgkmcnt(0)")
        if int(cfg["prioD"]): A("s_setprio %d" % int(cfg["prioD"]))
        s.stamp(13)
        A("s_barrier")
        A("ds_read_b64 v[146:147], v246 offset:%d\nds_read_b32 v216, v219 offset:%d\nds_read_b32 v217, v219 offset:%d" % (M_TAG, KL, KL+256))
        for io in range(2): A("global_store_dwordx4 v%d, %s, s[28:29] offset:%d sc1" % (VS, vr(208+4*io, 4), 128*io), "vst")
        A("s_cmp_ge_u32 s6, 2\ns_waitcnt lgkmcnt(0)\nv_mov_b32 v189, v146\nv_readfirstlane_b32 s44, v146\nv_cmp_ne_u32 vcc, 0, v147\ns_cbranch_scc1 L_b_ng")
        A("s_mov_b64 exec, 0xffff\ns_cmp_eq_u32 s6, 1\ns_cbranch_scc1 L_b_g1\ns_mov_b64 exec, -1\nv_add_u32 v188, v216, v217\nL_b_g1:")
        A.raw("global_store_dwordx2 v235, v[188:189], s[60:61] sc1")
        A("L_b_ng:")
        A("s_mov_b64 exec, -1\ns_add_u32 s45, s45, s44\ns_add_u32 s45, s45, 1\ns_mov_b32 s97, 0\ns_cbranch_vccnz L_b_far\nL_b_fard:")
        def t():
            A("L_b_far:\ns_mov_b32 s45, s44\ns_mov_b32 s97, %d" % FAR)
            s.addbase(58, 58, "%d" % FARC)
            A("s_branch L_b_fard")
            A("L_b_post:\ns_lshl_b32 s3, s4, 7\ns_add_u32 s3, s3, %d\nv_lshl_add_u32 v148, v1, 12, s3" % (W_C+2048))
            A("s_mov_b64 exec, 0xff\nglobal_store_dword v148, v189, s[38:39] sc1\ns_mov_b64 exec, -1\ns_branch L_b_postd")
        s.side(t)
        if "p" not in cfg["seq"]: post()
        s.stamp(5)
        A("s_barrier")
        for ch in seq1: steps[ch]()
        s.stamp(11)
        A("s_mov_b32 s3, 0\nL_b_pv:\nglobal_load_dword v145, v250, s[26:27] offset:2048 sc1\ns_waitcnt vmcnt(0)")
        A("v_cmp_ne_u32 vcc, s44, v145\ns_cbranch_vccz L_b_pv_ok\ns_mov_b64 exec, vcc\ns_sleep %d" % int(cfg["vsleep"]))
        A("s_add_u32 s3, s3, 1\ns_cmp_lt_u32 s3, %d\ns_cbranch_scc1 L_b_pv\nL_b_pv_ok:\ns_mov_b64 exec, -1" % SPIN)
        s.stamp(6)
        A("s_or_b32 s43, s2, s6\ns_cbranch_scc0 L_b_ep\nL_b_epd:")
        s.tail.append("L_b_ep:\ns_mov_b64 exec, 1\nglobal_store_dword v246, v189, s[38:39] sc1\ns_mov_b64 exec, -1\ns_branch L_b_epd")
        A("L_b_vf:\ns_mov_b32 m0, s50\nv_mov_b32 v42, v44")
        if not cfg.get("glast"): A("global_load_dwordx2 v[144:145], v%d, s[60:61] sc1" % MP, "g")
        for i in range(4):
            if i: A("s_add_u32 m0, m0, 1024\nv_add_u32 v42, %d, v42" % (16*SLAB))
            A("global_load_lds_dwordx4 v42, s[30:31] sc1", ("vd", i))
        if cfg.get("glast"): A("global_load_dwordx2 v[144:145], v%d, s[60:61] sc1" % MP, "g")
        for ch in seq2: steps[ch]()
        for i in range(8): A("v_lshlrev_b32 v%d, 16, v%d\nv_and_b32 v%d, %s, v%d" % (QF+2*i, 176+i, QF+2*i+1, MASK, 176+i))
        A("v_mov_b32 v146, 0")
        A.wait(vm="g")
        if cfg.get("dbg"): s.stamp(2)
        A("v_cmp_ne_u32 s[48:49], s44, v145\ns_mov_b32 exec_lo, 0x00ff00ff\ns_mov_b32 exec_hi, 0x00ff00ff\nv_sub_u32 v146, 0, v144\ns_mov_b64 exec, -1")
        A("v_lshlrev_b32 v145, 16, v144\nv_and_b32 v144, %s, v144" % MASK)
        for i in range(16): A("v_mul_f32_dpp v%d, v144, v%d row_newbcast:%d %s" % (QF+i, QF+i, 8+(i >> 1), DPP))
        def dots(i):
            A.wait(lg=("rb", i))
            if cfg.get("nodot"): return
            for p in range(4): A("v_dot2_u32_u16 v146, v%d, v%d, v146" % (64+4*i+p, 64+4*i+p))
        for i in range(4):
            A.wait(vm=("vd", i))
            A("ds_read_b128 %s, v43 offset:%d" % (vr(64+4*i, 4), 1024*i), ("rb", i))
        if cfg.get("dbg"): s.stamp(3)
        for i in range(4): dots(i)
        for sh in (8, 4, 2, 1): A("v_add_u32_dpp v146, v146, v146 row_ror:%d %s" % (sh, DPP))
        A("v_readlane_b32 s40, v146, 0\nv_readlane_b32 s41, v146, 16\nv_readlane_b32 s43, v146, 32\nv_readlane_b32 s51, v146, 48")
        A("s_add_u32 s40, s40, s41\ns_add_u32 s43, s43, s51\ns_add_u32 s40, s40, s43\n" + ("" if cfg.get("nodot") else "s_or_b32 s48, s48, s40\n") + "s_or_b32 s48, s48, s49\ns_cbranch_scc1 L_b_vr\nL_b_vok:")
        s.tail.append("L_b_vr:\ns_add_u32 s3, s3, 64\ns_cmp_lt_u32 s3, %d\ns_cbranch_scc0 L_b_vok\ns_sleep 2\ns_branch L_b_vf" % SPIN)
        s.stamp(7)
        if cfg.get("dbg"): A("s_waitcnt lgkmcnt(0)\ns_add_u32 s88, s64, s3\ns_mov_b32 s89, s65")
        A("ds_write_b8 v244, v245 offset:%d" % M_V)
        A("s_lshl_b32 s43, s6, 11\ns_add_u32 m0, s43, %d\nv_add_u32 v45, s97, v45" % YL)
        if int(cfg["prioD"]): A("s_setprio 0")
        A("L_b_vw:\nds_read_b64 v[54:55], v246 offset:%d\ns_waitcnt lgkmcnt(0)\nv_and_b32 v54, v54, v55\nv_cmp_ne_u32 vcc, 0x01010101, v54\ns_cbranch_vccnz L_b_vs" % M_A)
        s.tail.append("L_b_vs:\ns_sleep 1\ns_branch L_b_vw")
        ydma = ["global_load_lds_dwordx4 v45, s[52:53] sc1", "global_load_lds_dwordx4 v45, s[54:55] offset:1024 sc1"]
        VF = lambda n: 64+4*n
        def trd(n):
            for jj in range(2):
                A("ds_read_b64_tr_b16 %s, v%d offset:%d" % (vr(VF(n)+2*jj, 2), 40+(n >> 3), 2048*(n & 3)+1024*jj+8192*((n >> 2) & 1)), ("t", n))
        def comb(c):
            o = []
            for r in range(4):
                e, d = 128+8*c+r, 132+8*c+r
                o += ["v_add_f32 v%d, v%d, v%d" % (160+2*r+c, e, d), "v_sub_f32 v%d, v%d, v%d" % (168+2*r+c, e, d)]
            for i in range(8): o.append("v_mul_f32_dpp v%d, v145, v%d row_newbcast:%d %s" % (160+2*i+c, 160+2*i+c, 8+i, DPP))
            return o
        ahead = 7; ypre = int(cfg["ypre"])
        for n in range(ahead): trd(n)
        c0 = comb(0)
        for n in range(16):
            if n >= 9 or n % 2 == 0: A.wait(lg=("t", n if n >= 8 else n+1))
            acc = vr(128+4*(n >> 2), 4)
            A("v_mfma_f32_16x16x32_bf16 %s, %s, %s, %s" % (acc, vr(CFR((n >> 2) & 1, n & 3, 0, 0), 4), vr(VF(n), 4), acc if n & 3 else "0"))
            if n+ahead < 16: trd(n+ahead)
            if n >= 11:
                for _ in range(2): A(c0.pop(0))
            if ypre and n == 0: A("global_load_dword v47, v48, s[58:59] offset:512 sc1\ns_mov_b32 s97, 0")
            if ypre and n == ypre:
                A("s_waitcnt vmcnt(0)\nv_cmp_ne_u32 vcc, s45, v47\ns_cbranch_vccnz L_b_nopre")
                for l in ydma: A.raw(l)
                A("s_mov_b32 s97, 1\nL_b_nopre:")
        for l in c0 + comb(1): A(l)
        s.stamp(8)
        if ypre: A("s_cmp_eq_u32 s97, 1\ns_cbranch_scc1 L_b_yin")
        A("s_mov_b32 s3, 0\nL_b_py:\nglobal_load_dword v47, v48, s[58:59] offset:512 sc1\ns_waitcnt vmcnt(0)\nv_cmp_ne_u32 vcc, s45, v47\ns_cbranch_vccz L_b_py_ok")
        A("s_add_u32 s3, s3, 1\ns_cmp_lt_u32 s3, %d\ns_cbranch_scc1 L_b_py\nL_b_py_ok:" % SPIN)
        s.stamp(9)
        for pp in range(2): A(ydma[pp], ("yd", pp))
        A("L_b_yin:")
        for pp in range(2):
            A.wait(vm=("yd", pp))
            A("ds_read_b128 %s, v46 offset:%d" % (vr(64+4*pp, 4), YL+1024*pp), ("y", pp))
        for pp in range(2):
            A.wait(lg=("y", pp))
            if pp: s.stamp(10)
            for r in range(4):
                o = 8*pp+2*r
                A("v_lshlrev_b32 v%d, 16, v%d\nv_and_b32 v%d, %s, v%d" % (72+o, 64+4*pp+r, 73+o, MASK, 64+4*pp+r))
                A("v_pk_fma_f32 %s, %s, %s, %s" % (vr(160+o, 2), vr(QF+o, 2), vr(72+o, 2), vr(160+o, 2)))
                A("v_cvt_pk_bf16_f32 v%d, v%d, v%d" % (96+4*pp+r, 160+o, 161+o))
                A("buffer_store_dword v%d, v%d, s[12:15], %s offen %s" % (96+4*pp+r, 239 if pp else 234, qso[r], cfg["ont"]))
        s.stamps_out(0, 16)
        A("L_end:\ns_endpgm")

    def build(s):
        A = s.A
        A.raw("; @launch grid=(256,1,1) block=(512,1,1) lds=%d" % LDS)
        A.raw('.amdgcn_target "amdgcn-amd-amdhsa--gfx950"\n.text\n.globl %s\n.p2align 8\n.type %s,@function\n%s:' % (KN, KN, KN))
        s.prologue()
        s.roleB_head(); A("s_branch L_roleB"); s.roleA(); A("L_roleB:"); s.roleB()
        for t in s.tail: A(t)
        A.raw(".p2align 8\n.fill 4096, 4, 0xbf810000")
        A.raw('.section .rodata,"a"\n.p2align 6\n.amdhsa_kernel %s\n.amdhsa_next_free_vgpr 256\n.amdhsa_next_free_sgpr 102\n.amdhsa_accum_offset 256\n.amdhsa_group_segment_fixed_size 0\n.amdhsa_kernarg_size 120\n.amdhsa_user_sgpr_count 2\n.amdhsa_user_sgpr_kernarg_segment_ptr 1\n.amdhsa_system_sgpr_workgroup_id_x 1\n.end_amdhsa_kernel' % KN)
        return A.finish()

if __name__ == "__main__":
    out = sys.argv[1]
    cfg = {}
    for a in sys.argv[2:]:
        k, v = a.split("=")
        cfg[k] = {"True": True, "False": False}.get(v, v)
    g = G(**cfg)
    open(out, "w").write(g.build())
    print(out, "nops inserted", g.A.nops, file=sys.stderr)
```

```python
import sys
from dsl import Asm
KN = "gated_mix__ssm_conv_h3__spectral_fnet__prompt_kernel"
W_E   = 0
W_C   = 4096
FARC  = 0x10000
W_R   = 0x800000
W_K   = 0x40000
W_G   = 0x20000
W_V   = 0x400000
W_R2  = 0xa00000
STAMP_OFF = 200<<20
LCG_A, LCG_C = 1664525, 1013904223
UL = 0; HL = 9216; RED = HL + 16640; X1 = RED + 4*8704; VL = X1; GL = RED + 24576; KL = GL + 256; YL = HL; CL = RED + 8192; LDS = X1 + 16640
M_W, M_A, M_V, M_C, M_TAG, M_X = UL, UL+4, UL+8, UL+12, UL+16, UL+24
SPIN = 40000
NEAR_TRIES = 64
MASK = "0xffff0000"
DPP = "row_mask:0xf bank_mask:0xf"

def vr(a, n): return "v[%d:%d]" % (a, a+n-1)

class G:
    def __init__(s, **cfg):
        s.cfg = dict(stamps=False, nt=" nt", xnt="nt", qnt="nt", prent="nt", ont="", vsleep=2, lord="vwhipa", hpre=1, nb=14, ypre=3, rot=1,
                     slab=2048, seqE="r", seq="ac.qObePLg.", prioA=1, prioB=0, prioD=3, far=False, ns=8, inb="A", gqat='0', y0=0, ahead=7, vreg=True, white=True, cq=2, cn=10, wn=10, se='v', pfl='', d0nt='', hm=1, al=5)
        s.cfg.update(cfg)
        s.A = Asm(); s.tail = []
    def stamp(s, i):
        if s.cfg.get("probe") and i not in (0, int(s.cfg["probe"].split(".")[1])): return
        if s.cfg["stamps"]: s.A("%s s[%d:%d]" % ("s_memtime" if s.cfg.get("clk") else "s_memrealtime", 64+2*i, 65+2*i))
    def stamps_out(s, role, n):
        if not s.cfg["stamps"]: return
        A = s.A
        A("s_waitcnt vmcnt(0) lgkmcnt(0)")
        s.stamp(n-1)
        A("s_waitcnt lgkmcnt(0)")
        A("s_cmp_lg_u32 s6, %d\ns_cbranch_scc1 L_end" % int(s.cfg.get("sw", 0)))
        if s.cfg.get("probe"):
            pr, pi = [int(x) for x in s.cfg["probe"].split(".")]
            if pr == role:
                inv = "v_not_b32" if s.cfg.get("ref", "first") == "first" else "v_mov_b32"
                A("s_mov_b64 exec, 1\nv_mov_b32 v1, 0\nv_mov_b32 v2, s%d\n%s v3, s64\nglobal_atomic_umax v1, v2, s[36:37] sc1\nglobal_atomic_umax v1, v3, s[36:37] offset:128 sc1\ns_waitcnt vmcnt(0)" % (64+2*pi, inv))
                A("L_probe0:\ns_memrealtime s[40:41]\ns_waitcnt lgkmcnt(0)\ns_sub_u32 s40, s40, s64\ns_cmp_lt_u32 s40, 3000\ns_cbranch_scc1 L_probe0")
                A("global_load_dword v2, v1, s[36:37] sc1\nglobal_load_dword v3, v1, s[36:37] offset:128 sc1\ns_waitcnt vmcnt(0)\n%s v3, v3\nv_readfirstlane_b32 s42, v2\nv_readfirstlane_b32 s43, v3\ns_nop 3" % inv)
                A("s_sub_u32 s3, s42, s43\ns_min_u32 s3, s3, 1500\ns_mul_i32 s3, s3, %d\ns_add_u32 s3, s3, 5000" % int(s.cfg.get("skew", 5)))
                A("L_probe:\ns_memrealtime s[40:41]\ns_waitcnt lgkmcnt(0)\ns_sub_u32 s40, s40, s64\ns_cmp_lt_u32 s40, s3\ns_cbranch_scc1 L_probe")
            return
        A("s_add_u32 s38, s38, %d\ns_addc_u32 s39, s39, 0" % (STAMP_OFF + role*256*128))
        A("s_lshl_b32 s3, s2, 7\nv_mov_b32 v1, s3\ns_mov_b64 exec, 1")
        for j in range(n):
            A("v_mov_b32 v2, s%d\nv_mov_b32 v3, s%d\nglobal_store_dwordx2 v1, v[2:3], s[38:39] offset:%d\ns_nop 1" % (64+2*j, 65+2*j, 8*j))
    def side(s, fn):
        A = s.A; sv = (list(A.vm), list(A.lg)); keep = A.L; A.L = []
        fn()
        s.tail.append("\n".join(i.text for i in A.L)); A.L = keep; A.vm, A.lg = sv
    def jit(s, ch, n=100, reps=1):
        if ch in s.cfg.get("jit", ""):
            s.A("s_add_u32 s99, s5, s6\ns_and_b32 s99, s99, 7\ns_cmp_lg_u32 s99, 3\ns_cbranch_scc1 L_jit_%s\n" % ch + "s_sleep %d\n" % n * reps + "L_jit_%s:" % ch)
    def addbase(s, d, base, soff):
        s.A("s_add_u32 s%d, s%d, %s\ns_addc_u32 s%d, s%d, 0" % (d, base, soff, d+1, base+1))
    def meet(s, name, off, vw, vone, vzero, vtmp, arrive=True):
        if arrive: s.A("ds_write_b8 v%d, v%d offset:%d" % (vw, vone, off))
        s.A("%s:\nds_read_b32 v%d, v%d offset:%d\ns_waitcnt lgkmcnt(0)\nv_cmp_ne_u32 vcc, 0x01010101, v%d\ns_cbranch_vccnz %s" % (name, vtmp, vzero, off, vtmp, name))

    def prologue(s):
        A = s.A
        s.stamp(0)
        if s.cfg.get("hsleep"): A("s_sleep %d" % int(s.cfg["hsleep"]))
        A("s_load_dwordx16 s[16:31], s[0:1], 0\ns_load_dwordx8 s[32:39], s[0:1], 88")
        A("s_cmp_ge_u32 s2, 256\ns_cbranch_scc1 L_end")
        A("s_getpc_b64 s[40:41]")
        A("s_add_u32 s4, s2, %d\ns_and_b32 s4, s4, 7\ns_lshr_b32 s5, s2, 3" % int(s.cfg["rot"]))
        A("v_lshrrev_b32 v2, 6, v0\ns_lshl_b32 s3, s5, 9\nv_lshl_add_u32 v1, v2, 6, s3\nv_readfirstlane_b32 s7, v2")
        A("global_load_dword v255, v1, s[40:41]", "pf")
        A("v_and_b32 v1, 63, v0\nv_and_b32 v0, 255, v0\ns_and_b32 s6, s7, 3")
        A("v_lshlrev_b32 v46, 2, v0\nv_mov_b32 v45, 0\nds_write_b32 v46, v45 offset:%d" % UL)
        A("s_mov_b32 s10, 0x200000\ns_mov_b32 s11, 0x20000")
        A("s_cmp_ge_u32 s7, 4\ns_cbranch_scc1 L_roleA")

    def roleA(s):
        A = s.A; cfg = s.cfg; nt = cfg["nt"]
        A.reset_counters(); A.vm = ["pf"]
        KR, VR = 10, 22
        A("L_roleA:")
        A("s_lshl_b32 s40, s5, 16\ns_lshl_b32 s3, s4, 7\ns_add_u32 s40, s40, s3")
        A("v_lshrrev_b32 v3, 5, v0\nv_and_b32 v4, 31, v0\nv_lshl_add_u32 v3, v3, 13, s40\nv_lshl_add_u32 v2, v4, 2, v3\nv_add_u32 v3, -3072, v2")
        A("s_lshl_b32 s3, s4, 9\nv_lshl_add_u32 v5, v4, 4, s3")
        A("s_lshl_b32 s41, s4, 5\ns_add_u32 s41, s41, s5")
        A("s_lshl_b32 s42, s41, 13\ns_add_u32 s43, s42, 4096\ns_lshl_b32 s41, s41, 2\ns_movk_i32 s7, 4096\nv_mov_b32 v49, s41")
        A("s_mov_b32 s50, 0x200000\ns_mov_b32 s51, 0x20000")
        A("s_waitcnt lgkmcnt(0)")
        s.stamp(1)
        A("s_mov_b64 s[8:9], s[18:19]")
        if cfg["se"] == "f": A("s_load_dword s44, s[38:39], 0\ns_load_dword s46, s[26:27], s41")
        for ch in cfg.get("tlb", ""):
            if ch == "V": A("v_mov_b32 v230, %d\nglobal_load_dword v230, v230, s[38:39] nt" % (W_V+0x1fff00+0), "k")
            else: A("global_load_dword v231, v45, s[%d:%d] nt" % (dict(v=(20,21), h=(24,25), o=(34,35), s=(22,23), d=(26,27), w=(38,39))[ch]), "k")
        for i in range(0 if cfg.get("x_nohalo") else 3): A("buffer_load_dword v%d, v3, s[8:11], 0 offen offset:%d%s" % (KR+i, 1024*i, nt), "k")
        for i in range(8): A("buffer_load_dword v%d, v2, s[8:11], %s offen offset:%d%s" % (KR+3+i, "s7" if i >= 4 else "0", 1024*(i & 3), nt), "k")
        if not cfg.get("x_nosk"): A("global_load_dwordx4 v[30:33], v5, s[22:23]", "k")
        if cfg["se"] == "v":
            A("global_load_dword v9, v45, s[38:39] sc1", "k")
            A("global_load_dword v49, v49, s[26:27]", "k")
        elif cfg["se"] == "p":
            A("global_load_dword v9, v45, s[38:39]", "k")
            A("global_load_dword v49, v49, s[26:27]", "k")
        elif cfg["se"] == "s": A("s_load_dword s44, s[38:39], 0\ns_load_dword s46, s[26:27], s41")
        A("s_barrier")
        A("s_mov_b64 s[48:49], s[24:25]"); s.addbase(20, 20, "s7")
        A("s_and_b32 s28, s5, 15\ns_lshr_b32 s29, s5, 4\ns_lshl_b32 s30, s28, 3\ns_add_u32 s30, s30, s4\ns_lshl_b32 s30, s30, 7\ns_lshl_b32 s3, s29, 20\ns_add_u32 s3, s3, s30")
        s.addbase(12, 34, "s3")
        A("s_lshl_b32 s3, s4, 12\ns_add_u32 s3, s3, %d" % W_C); s.addbase(58, 38, "s3")
        A("s_lshl_b32 s3, s5, 7\nv_and_b32 v253, 64, v0\nv_add_u32 v253, s3, v253\nv_lshlrev_b32 v6, 4, v0\nv_and_b32 v252, 0xfc, v0\nv_lshlrev_b32 v252, 12, v252\nv_and_b32 v254, 3, v0\nv_lshl_add_u32 v252, v254, 5, v252")
        def addr():
            A("s_mul_i32 s3, s6, 4160\nv_min_u32 v48, 6, v1\nv_lshl_add_u32 v47, v48, 2, s3\nds_write_b32 v47, v45 offset:%d" % HL)
            A("s_lshl_b32 s47, s6, 11\ns_lshl_b32 s60, s5, 2\ns_add_u32 s60, s60, s6\ns_lshl_b32 s31, s60, 7\ns_add_u32 s31, s31, s4\ns_lshl_b32 s31, s31, 7")
            s.addbase(54, 34, "s31")
            A("s_lshl_b32 s3, s29, 6\ns_add_u32 s30, s30, s3")
            s.addbase(52, 34, "s30"); s.addbase(56, 52, "0x3fc00")
            A("s_lshl_b32 s33, s28, 2\ns_add_u32 s33, s33, s6\ns_lshl_b32 s33, s33, 5\ns_add_u32 s33, s33, s4\ns_lshl_b32 s33, s33, 7\ns_add_u32 s33, s33, s3")
            s.addbase(16, 34, "s33")
            A("v_and_b32 v233, 48, v6\nv_and_b32 v5, 60, v1\ns_lshl_b32 s3, s6, 19\nv_lshl_add_u32 v232, v5, 12, s3\nv_add_u32 v232, v232, v233")
            A("v_and_b32 v47, 28, v1\nv_lshl_add_u32 v233, v47, 16, v233\nv_and_b32 v47, 32, v1\nv_lshl_add_u32 v233, v47, 5, v233")
            A("s_lshl_b32 s3, s29, 2\ns_add_u32 s3, s3, s6\ns_lshl_b32 s3, s3, 6\nv_and_b32 v237, 15, v0\nv_lshl_add_u32 v237, v237, 2, s3")
            A("v_lshlrev_b32 v44, 3, v1\nv_lshrrev_b32 v47, 1, v1\nv_and_b32 v47, 16, v47\nv_and_b32 v48, 48, v44\nv_xor_b32 v47, v47, v48\nv_lshl_add_u32 v47, v4, 6, v47")
            A("v_add_u32 v47, s47, v47\nv_xor_b32 v48, 32, v47\nv_lshl_add_u32 v21, v1, 4, s47")
            A("v_add_u32 v8, v1, v1\nv_xor_b32 v8, v8, v6\ns_lshl_b32 s3, s5, 4\nv_xor_b32 v8, s3, v8\nv_and_b32 v8, 48, v8\nv_lshl_add_u32 v8, v5, 8, v8")
            A("s_lshl_b32 s60, s60, 2\nv_mov_b32 v7, s60\ns_add_u32 m0, s47, %d" % (UL+1024))
            A("v_and_b32 v238, 15, v0\nv_lshrrev_b32 v235, 4, v1\nv_sub_u32 v238, v238, v235")
            A("s_and_b32 s41, s6, 1\ns_lshl_b32 s41, s41, 3\ns_sub_u32 s41, 16, s41\nv_add_u32 v238, s41, v238\ns_or_b32 s3, s6, 1\ns_lshl_b32 s3, s3, 4")
            for bb in range(2):
                if bb: A("v_add_u32 v238, -4, v238")
                A("v_lshlrev_b32 v239, 2, v238\nv_xor_b32 v239, s3, v239\nv_and_b32 v239, 48, v239\nv_lshl_add_u32 v%d, v238, 6, v239" % (248+2*bb))
                A("v_xor_b32 v%d, 16, v%d" % (249+2*bb, 248+2*bb))
            A("s_mul_i32 s3, s6, 8704\nv_add_u32 v236, v235, v1\nv_lshl_add_u32 v236, v236, 4, s3")
            A("s_lshl_b32 s3, s6, 6\nv_mul_u32_u24 v3, 272, v4\nv_lshrrev_b32 v5, 1, v1\nv_and_b32 v5, 16, v5\nv_add3_u32 v3, v3, v5, s3")
            A("s_lshl_b32 s60, s5, 1\ns_add_u32 s60, s60, s3\ns_lshl_b32 s60, s60, 1")
            A("s_lshr_b32 s61, s6, 1\ns_mul_i32 s61, s61, 7808\ns_lshl_b32 s41, s6, 8\ns_add_u32 s61, s61, s41\ns_add_u32 s61, s61, %d" % HL)
            A("v_and_b32 v234, 1, v0\nv_mul_u32_u24 v234, 4158, v234\nv_lshl_add_u32 v234, v1, 1, v234\nv_add_u32 v234, s61, v234")
        for ch in cfg["lord"]:
            if ch == "a": addr()
            if ch in "vw":
                for i in (range(4) if ch == "v" else range(4, 8)): A("global_load_dword v%d, v2, s[20:21] offset:%d%s" % (VR+i, 1024*i-4096, nt), ("v", i))
            if ch in cfg.get("x_skip", ""): continue
            if ch == "h":
                A("buffer_load_dwordx4 v[36:39], v6, s[48:51], s42 offen offset:%d" % int(cfg.get("x_hoff", 4)) + nt, "h")
                if not cfg.get("x_nod0"): A("buffer_load_dword v34, v6, s[48:51], s42 offen" + cfg.get("d0nt", nt), "h")
            if ch == "i":
                A("buffer_load_dwordx4 v[40:43], v6, s[48:51], s43 offen offset:%d" % int(cfg.get("x_hoff", 4)) + nt, "h")
                if not cfg.get("x_nod0"): A("buffer_load_dword v35, v6, s[48:51], s43 offen" + cfg.get("d0nt", nt), "h")
            if ch == "p":
                A("global_load_dword v253, v253, s[58:59] " + cfg.get("cfl", "sc1"), "pre")
                A("global_load_dword v254, v252, s[12:13] " + cfg.get("pfl", "sc1") + " " + cfg["prent"], "pre")
        if int(cfg["prioA"]): A("s_setprio %d" % int(cfg["prioA"]))
        s.stamp(11)
        KP, W, S, VP = 50, 72, 80, 96
        A.wait(vm="k")
        if cfg["se"] in "sf": A("s_waitcnt lgkmcnt(0)")
        s.stamp(2)
        for t in range(4):
            for c in range(2):
                src = 30 + 2*c + (t >> 1)
                A(("v_and_b32 v%d, " + MASK + ", v%d" if t & 1 else "v_lshlrev_b32 v%d, 16, v%d") % (W+2*t+c, src))
        for i in range(11):
            A("v_lshlrev_b32 v%d, 16, v%d\nv_and_b32 v%d, %s, v%d" % (KP+2*i, KR+i, KP+2*i+1, MASK, KR+i))
        for t in (3, 2, 1, 0):
            for r in range(8):
                k = vr(KP+2*(r+3-t), 2); w = vr(W+2*t, 2); d = vr(S+2*r, 2)
                A("v_pk_mul_f32 %s, %s, %s" % (d, k, w) if t == 3 else "v_pk_fma_f32 %s, %s, %s, %s" % (d, k, w, d))
        s.stamp(12)
        for r in range(8):
            if r in (0, 4): A.wait(vm=("v", r+3))
            if r == 4: s.stamp(10)
            A("v_lshlrev_b32 v%d, 16, v%d\nv_and_b32 v%d, %s, v%d" % (VP+2*r, VR+r, VP+2*r+1, MASK, VR+r))
            A("v_pk_mul_f32 %s, %s, %s" % (vr(S+2*r, 2), vr(S+2*r, 2), vr(VP+2*r, 2)))
            if r & 1:
                j = (7-r)//2
                for c in range(2): A("v_cvt_pk_bf16_f32 v%d, v%d, v%d" % (112+4*c+j, S+2*r+c, S+2*(r-1)+c))
        for c in range(2): A("ds_write_b128 v%d, %s offset:%d" % (47+c, vr(112+4*c, 4), RED))
        A("ds_read_b128 v[240:243], v21 offset:%d" % RED, "sh0")
        A("ds_read_b128 v[244:247], v21 offset:%d" % (RED+1024), "sh1")
        if cfg["se"] in "vp": A("v_readfirstlane_b32 s44, v9\nv_readfirstlane_b32 s46, v49")
        A("s_mov_b32 s96, 0\ns_getreg_b32 s3, hwreg(HW_REG_XCC_ID, 0, 4)")
        A("s_mul_i32 s44, s44, %d\ns_add_u32 s44, s44, %d\ns_add_u32 s45, s44, s3\ns_add_u32 s45, s45, 1" % (LCG_A, LCG_C))
        A("v_mov_b32 v9, s45\nv_mov_b32 v20, v44\nv_mov_b32 v26, 0\nv_mov_b32 v27, s44")
        A("v_mov_b32 v10, v234\nv_mov_b32 v2, v236\nv_mov_b64 v[18:19], v[232:233]\nv_mov_b32 v30, v237\nv_mov_b64 v[14:15], v[248:249]\nv_mov_b64 v[16:17], v[250:251]")
        for i in range(1, 4): A("v_add_u32 v%d, %d, v234" % (10+i, 1024*i))
        ust = ["global_store_dwordx4 v8, v[240:243], s[54:55]", "global_store_dwordx4 v8, v[244:247], s[54:55] offset:64"]
        s.jit("U", 127, 4); s.jit("u")
        A.wait(lg="sh0"); A(ust[0], "ust")
        A.wait(lg="sh1"); A(ust[1], "ust")
        s.stamp(3)
        A("ds_write_b32 v26, v27 offset:%d" % M_TAG)
        A.wait(vm="h")
        s.stamp(9)
        for c in range(2):
            d = [34+c] + [36+4*c+k for k in range(4)]
            A("ds_write_b128 v6, %s offset:%d" % (vr(36+4*c, 4), HL+c*8320+4160+32))
            for k in range(4): A("v_alignbit_b32 v%d, v%d, v%d, 16" % (50+4*c+k, d[k+1], d[k]))
            A("ds_write_b128 v6, %s offset:%d" % (vr(50+4*c, 4), HL+c*8320+32))
        A("s_mov_b64 exec, 1\ns_cmp_lg_u32 s6, 0\ns_cbranch_scc1 L_a_h0\ns_mov_b32 s62, 0xffff0000\ns_lshl_b32 s3, s46, 16\ns_and_b32 s7, s46, s62")
        A("v_lshlrev_b32 v60, 16, v34\nv_lshlrev_b32 v61, 16, v35\nv_add_f32 v60, s3, v60\nv_add_f32 v61, s7, v61\nv_cvt_pk_bf16_f32 v60, 0, v60\nv_cvt_pk_bf16_f32 v61, 0, v61")
        A("s_mov_b32 s3, 0x07060302\nv_perm_b32 v62, v34, v60, s3\nv_perm_b32 v63, v35, v61, s3")
        for c in range(2):
            A("ds_write_b32 v6, v%d offset:%d\nds_write_b32 v6, v%d offset:%d" % (60+c, HL+c*8320+28, 62+c, HL+c*8320+4160+28))
        A("L_a_h0:")
        HB = lambda q: 32+32*q
        UB = lambda q: 160+32*(q & 1)
        ACC = 224
        def hread(q, a, half):
            bb, hf = q >> 1, q & 1
            o = 128*(a & 1)+32*bb+4*hf+2*half
            A("ds_read2_b32 %s, v%d offset0:%d offset1:%d" % (vr(HB(q)+4*a+2*half, 2), 10+(a >> 1), o, o+1), ("f", q, a))
        def uread(q, z):
            A("ds_read_b128 %s, v%d offset:%d" % (vr(UB(q)+4*z, 4), 14+q, UL+1024*z), ("f", q, z))
        npre = int(cfg["hpre"])
        hm = int(cfg["hm"])
        A("v_mov_b32 v5, s6\nv_mov_b32 v4, 1")
        if hm: A("ds_write_b8 v5, v4 offset:%d" % M_W)
        A("s_waitcnt vmcnt(0)"); s.stamp(4)
        A("global_store_dword v7, v9, s[58:59]\ns_mov_b64 exec, -1")
        if cfg.get("uhack"): A("v_and_b32 v20, 0x78, v20\ns_lshl_b32 s3, s6, 7\nv_add_u32 v20, s3, v20")
        A("s_mov_b32 s3, 0")
        if hm:
            A("global_load_dwordx2 v[22:23], v20, s[58:59] sc1")
            s.meet("L_a_hw", M_W, 5, 4, 26, 28, arrive=False)
            for q in range(hm):
                for a in range(8): hread(q, a, 0); hread(q, a, 1)
            A("s_branch L_a_pu1")
        A("L_a_pu:\nglobal_load_dwordx2 v[22:23], v20, s[58:59] sc1\nL_a_pu1:\ns_waitcnt vmcnt(0)")
        if cfg["far"]: A("s_branch L_a_far")
        A("v_cmp_ne_u32 vcc, s45, v22\nv_cmp_ne_u32 s[40:41], s45, v23\ns_or_b64 vcc, vcc, s[40:41]\ns_cbranch_scc0 L_a_pu_ok")
        if cfg.get("usleep"): A("s_sleep %d" % int(cfg["usleep"]))
        if cfg.get("umask"): A("s_mov_b64 exec, vcc")
        A("s_add_u32 s3, s3, 1\ns_cmp_lt_u32 s3, %d\ns_cbranch_scc1 L_a_pu\ns_branch L_a_far\nL_a_pu_ok:" % NEAR_TRIES)
        def far():
            A("L_a_far:\ns_mov_b64 exec, -1\ns_add_u32 s31, s31, %d" % W_R)
            s.addbase(54, 38, "s31")
            for l in ust: A(l + " sc1")
            A("buffer_wbl2 sc1")
            s.addbase(14, 58, "%d" % FARC)
            A("s_waitcnt vmcnt(0)\ns_mov_b64 exec, 1\nglobal_store_dword v7, v27, s[14:15] sc1\ns_mov_b64 exec, -1")
            A("L_a_pf:\nglobal_load_dwordx2 v[24:25], v20, s[14:15] sc1\ns_waitcnt vmcnt(0)\nglobal_load_dwordx2 v[22:23], v20, s[58:59] sc1\ns_waitcnt vmcnt(0)")
            A("v_cmp_ne_u32 vcc, s45, v22\nv_cmp_ne_u32 s[40:41], s45, v23\ns_or_b64 vcc, vcc, s[40:41]\ns_cbranch_scc0 L_a_pu_ok")
            A("v_cmp_ne_u32 vcc, s44, v24\nv_cmp_ne_u32 s[40:41], s44, v25\ns_or_b64 vcc, vcc, s[40:41]\ns_cbranch_scc0 L_a_isfar")
            A("s_sleep 8\ns_add_u32 s3, s3, 1\ns_cmp_lt_u32 s3, %d\ns_cbranch_scc1 L_a_pf" % SPIN)
            A("L_a_isfar:\ns_mov_b32 s96, 1\nv_mov_b32 v9, s44\nv_mov_b32 v28, 1\nds_write_b32 v26, v28 offset:%d\ns_waitcnt lgkmcnt(0)" % (M_TAG+4))
            A("s_add_u32 s30, s30, %d\ns_add_u32 s33, s33, %d" % (W_R, W_R2))
            s.addbase(52, 38, "s30"); s.addbase(56, 52, "0x3fc00"); s.addbase(16, 38, "s33")
            A("s_branch L_a_pu_ok")
        s.side(far)
        if cfg.get("umask"): A("s_mov_b64 exec, -1")
        s.stamp(5)
        A("global_load_lds_dwordx4 v18, s[52:53] sc1\nglobal_load_lds_dwordx4 v18, s[56:57] offset:1024 sc1")
        A("s_barrier" if hm else "s_waitcnt lgkmcnt(0)\ns_barrier")
        for q in range(hm, npre):
            for a in range(8): hread(q, a, 0); hread(q, a, 1)
        A("v_mov_b32 v29, s60\nv_mov_b32 v5, s6\nv_mov_b32 v4, 1")
        awipe = cfg["inb"] == "A"
        if awipe: A("v_mov_b64 v[22:23], -1\nv_mov_b64 v[24:25], -1")
        A("s_waitcnt vmcnt(0)")
        A("global_store_dwordx4 v18, v[22:25], s[52:53]\nglobal_store_dwordx4 v18, v[22:25], s[56:57] offset:1024")
        A("s_barrier")
        s.jit("w")
        s.stamp(6)
        todo = [(q, a, k) for q in range(4) for a in range(8) for k in range(3) if k == 0 or q >= npre]
        def feed(n, q):
            for _ in range(n):
                if todo and todo[0][0] <= q+1:
                    qq, a, k = todo.pop(0)
                    if k == 0: uread(qq, a)
                    else: hread(qq, a, k-1)
        feed(8, 0)
        for q in range(4):
            pend = []; n = 0
            for i in range(8):
                while todo and todo[0][:2] <= (q, i): feed(1, q)
                A.wait(lg=[("f", q, i)] if q == 0 else [("f", q, z) for z in range(8)])
                for a in range(i+1):
                    if cfg.get("skipc") and q in (1, 2) and a > 0 and (i+a) % int(cfg["skipc"]) == 0:
                        feed(1, q); continue
                    acc = vr(ACC+4*i, 4)
                    A("v_mfma_f32_16x16x32_bf16 %s, %s, %s, %s" % (acc, vr(UB(q)+4*(i-a), 4), vr(HB(q)+4*a, 4), "0" if (q == 0 and a == 0) else acc))
                    n += 1
                    if n >= (8 if q == 0 else 2): feed(1, q)
                    if awipe and q == int(cfg['cq']) and n == int(cfg['cn']): A("s_waitcnt vmcnt(0)\ns_mov_b64 exec, 1\nglobal_store_dword v7, v9, s[58:59] offset:1024\ns_mov_b64 exec, -1")
                    if q == 3 and n == int(cfg['wn']): A("global_load_dword v31, v30, s[58:59] offset:1024 sc1")
                    if pend and n >= pend[0][1]:
                        t = pend.pop(0)[0]
                        A("ds_write_b128 v2, %s offset:%d" % (vr(ACC+4*t, 4), RED+1088*t))
                if q == 3: pend.append((i, n+8))
            for t, _ in pend: A("ds_write_b128 v2, %s offset:%d" % (vr(ACC+4*t, 4), RED+1088*t))
        assert not todo
        s.stamp(13)
        if cfg["inb"] is True:
            A("ds_write_b8 v5, v4 offset:%d" % M_A)
            A("L_a_rw:\nds_read_b64 v[28:29], v26 offset:%d\ns_waitcnt lgkmcnt(0)\nv_and_b32 v28, v28, v29\nv_cmp_ne_u32 vcc, 0x01010101, v28\ns_cbranch_vccnz L_a_rw" % M_W)
        else: s.meet("L_a_rw", M_A, 5, 4, 26, 28)
        for io in range(2):
            for ws in range(4):
                A("ds_read_b128 %s, v3 offset:%d" % (vr(32+16*io+4*ws, 4), RED+ws*8704+io*32), ("r", io))
        s.stamp(7)
        yst = ["global_store_dwordx4 v19, %s, s[16:17] offset:%d" % (vr(64+4*io, 4), 2048*io) for io in range(2)]
        def ysum(io):
            b = 32+16*io
            A.wait(lg=("r", io))
            for c in range(2):
                for p in range(4): A("v_add_f32 v%d, v%d, v%d" % (b+8*c+p, b+8*c+p, b+8*c+4+p))
            for r in range(4): A("v_cvt_pk_bf16_f32 v%d, v%d, v%d" % (64+4*io+r, b+r, b+8+r))
        A("s_cmp_eq_u32 s96, 1\ns_cbranch_scc1 L_a_yfar")
        def yfar():
            A("L_a_yfar:")
            for io in range(2):
                ysum(io); A(yst[io] + " sc1")
            A("s_waitcnt vmcnt(0)\ns_mov_b64 exec, 1\nglobal_store_dword v29, v9, s[14:15] offset:512 sc1\ns_branch L_a_done")
        s.side(yfar)
        ysum(0)
        A("s_waitcnt vmcnt(0)\nv_cmp_ne_u32 vcc, v9, v31\ns_cbranch_vccnz L_a_ww\nL_a_wok:")
        s.tail.append("L_a_ww:\ns_mov_b32 s3, 0\nL_a_wp:\nglobal_load_dword v31, v30, s[58:59] offset:1024 sc1\ns_waitcnt vmcnt(0)\nv_cmp_ne_u32 vcc, v9, v31\ns_cbranch_vccz L_a_wok\ns_add_u32 s3, s3, 1\ns_cmp_lt_u32 s3, %d\ns_cbranch_scc1 L_a_wp\ns_branch L_a_wok" % SPIN)
        s.jit("y"); A(yst[0]); ysum(1); s.jit("Y", 127, 6); A(yst[1])
        A("s_mov_b64 exec, 1\ns_waitcnt vmcnt(0)")
        s.stamp(8)
        A("global_store_dword v29, v9, s[58:59] offset:512")
        A("L_a_done:")
        s.stamps_out(1, 16)
        A("s_endpgm")

    def roleB_head(s):
        A = s.A; cfg = s.cfg
        A("s_lshr_b32 s7, s5, 4\ns_and_b32 s3, s5, 15\ns_lshl_b32 s40, s4, 4\ns_add_u32 s40, s40, s3")
        A("v_and_b32 v2, 3, v0\nv_bfe_u32 v3, v0, 2, 1\nv_lshl_add_u32 v2, v2, 1, v3\nv_and_b32 v3, 8, v0\nv_add_u32 v2, v2, v3")
        A("s_sub_u32 s63, 256, s40\ns_cmp_eq_u32 s40, 0\ns_cselect_b32 s63, 128, s63\ns_sub_u32 s3, s63, s40\nv_lshrrev_b32 v3, 5, v1\nv_mul_u32_u24 v240, s3, v3\nv_add_u32 v240, s40, v240")
        A("v_and_b32 v242, 16, v0\nv_lshl_add_u32 v241, v242, 6, v240\ns_lshl_b32 s41, s6, 8\nv_lshl_add_u32 v3, v2, 4, s41\nv_lshl_add_u32 v2, v241, 10, v3")
        A("s_lshl_b32 s48, s7, 19\ns_xor_b32 s49, s48, 0x40000\ns_xor_b32 s50, s48, 0x80000\ns_xor_b32 s51, s48, 0xc0000")
        A("v_mov_b32 v244, s6\nv_mov_b32 v245, 1\nv_mov_b32 v246, 0")
        A("s_waitcnt lgkmcnt(0)")
        s.stamp(1)
        A("s_mov_b64 s[8:9], s[16:17]")
        for j in range(2 if cfg.get("x_halfx") else 4): A("buffer_load_dwordx4 %s, v2, s[8:11], s%d offen %s" % (vr(s.XR(j), 4), 48+j, cfg["xnt"] if j < 2 else cfg.get("x2nt", cfg["xnt"])), ("x", j))
        A("global_load_dwordx4 v[220:223], v3, s[32:33]" if not cfg.get("x_nogw") else "buffer_load_dwordx4 v[220:223], v2, s[8:11], s51 offen", "gw")
        A("s_barrier")
        s.vmB = list(A.vm)
    def XR(s, j): return (224+4*j) if j < 2 else (64+4*j)
    def roleB(s):
        A = s.A; cfg = s.cfg; XR = s.XR; SLAB = int(cfg["slab"])
        A.reset_counters(); A.vm = list(s.vmB)
        KQ, NF, QO, MP, L7, VS = 232, 233, 234, 236, 237, 238
        A("v_lshlrev_b32 v243, 4, v1\nv_bfe_u32 v161, v0, 5, 1\nv_cvt_f32_u32 v161, v161\nv_and_b32 v167, 1, v0\ns_mov_b32 s62, 0x80008000")
        def put(f0, n):
            for f in range(f0, f0+n): A("ds_write_b128 v243, %s offset:%d" % (vr(4+4*f, 4), CL+1024*f))
        def trig(c, sn, jump):
            for j in range(8):
                A("v_cos_f32 v%d, v164\nv_sin_f32 v%d, v164" % (c+j, sn+j))
                if jump and j == 3: A("v_fmamk_f32 v164, v163, 0x40a00000, v164")
                elif j < 7: A("v_add_f32 v164, v164, v163")
        def pack(c, sn):
            for j in range(4):
                A("v_cvt_pk_bf16_f32 v%d, v%d, v%d\nv_cvt_pk_bf16_f32 v%d, v%d, v%d" % (c+j, 128+2*j, 129+2*j, sn+j, 136+2*j, 137+2*j))
        A("s_cmp_ge_u32 s6, 2\ns_cbranch_scc1 L_b_c23")
        A("v_and_b32 v160, 24, v0\nv_and_b32 v162, 3, v0\nv_lshl_add_u32 v160, v162, 1, v160\nv_bfe_u32 v162, v0, 2, 1\nv_add_u32 v160, v160, v162\nv_cvt_f32_u32 v160, v160")
        A("s_cmp_eq_u32 s6, 1\ns_cbranch_scc1 L_b_c1")
        A("v_mul_lo_u32 v165, v162, s62\nv_mul_f32 v163, 0x3d000000, v160\nv_mul_f32 v164, 0x41000000, v161\nv_mul_f32 v164, v164, v163")
        trig(128, 136, False); pack(8, 16)
        for j in range(4):
            A("v_xor_b32 v%d, v165, v%d\nv_xor_b32 v%d, v165, v%d\nv_xor_b32 v%d, s62, v%d" % (12+j, 8+j, 20+j, 16+j, 24+j, 16+j))
            A("v_xor_b32 v%d, s62, v%d" % (28+j, 20+j))
        put(1, 6)
        A("s_branch L_b_cd\nL_b_c1:")
        A("v_mul_f32 v163, 0x3b000000, v160\nv_mul_f32 v166, 4.0, v161\nv_mul_f32 v164, v166, v163")
        trig(32, 40, True)
        A("s_nop 0")
        put(7, 4)
        A("s_branch L_b_cd\nL_b_c23:\nv_cvt_f32_u32 v162, v167\nv_mul_f32 v162, 0.25, v162\ns_cmp_eq_u32 s6, 3\ns_cbranch_scc1 L_b_c3")
        A("s_cmp_eq_u32 s40, 0\ns_cselect_b32 s3, 0, 1.0\nv_mul_f32 v162, s3, v162\nv_mul_lo_u32 v165, v167, s62\nv_mul_f32 v166, 4.0, v161")
        A("v_bfe_u32 v160, v0, 1, 4\nv_cvt_f32_u32 v160, v160\nv_mul_f32 v163, 0x3d800000, v160\nv_fma_f32 v164, v166, v163, v162")
        trig(128, 136, True); pack(48, 52)
        A("s_cbranch_scc1 L_b_s0")
        for j in range(8): A("v_xor_b32 v%d, v165, v%d" % (56+j, 48+j))
        A("L_b_s0back:")
        s.tail.append("L_b_s0:\nv_cmp_eq_u32 vcc, 0, v167\ns_nop 1\n" + "\n".join("v_cndmask_b32 v%d, v%d, v167, vcc\nv_cndmask_b32 v%d, 0, v%d, vcc" % (56+j, 48+j, 48+j, 48+j) for j in range(8)) + "\ns_branch L_b_s0back")
        put(11, 4)
        A("s_branch L_b_cd\nL_b_c3:")
        A("v_bfe_u32 v160, v0, 1, 2\ns_lshl_b32 s3, s7, 2\nv_add_u32 v160, s3, v160\nv_cvt_f32_u32 v160, v160\nv_cvt_f32_u32 v161, v241")
        A("v_mul_f32 v163, 0x3a000000, v160\nv_fma_f32 v165, v163, v161, v162\nv_mul_f32 v166, 0x35000000, v160")
        for j in range(4):
            A("v_cvt_f32_u32 v164, s%d\nv_fma_f32 v164, v164, v166, v165\nv_cos_f32 v%d, v164" % (48+j, 168+j))
        for j in range(2): A("v_cvt_pk_bf16_f32 v%d, v%d, v%d" % (4+j, 168+2*j, 169+2*j))
        A("s_mov_b32 exec_lo, 0xff00ff00\ns_mov_b32 exec_hi, 0x00ff00ff\nv_mov_b64 v[4:5], 0\ns_mov_b64 exec, -1")
        put(0, 1)
        A("L_b_cd:")
        A("ds_write_b8 v244, v245 offset:%d" % M_C)
        A("v_lshrrev_b32 v%d, 4, v1\nv_and_b32 v%d, 15, v0\nv_and_b32 v%d, 7, v0" % (KQ, NF, L7))
        A("v_mul_u32_u24 v2, 2064, v%d\nv_and_b32 v3, 8, v0\nv_lshl_add_u32 v2, v3, 7, v2\nv_lshl_add_u32 v2, v242, 3, v2\nv_bfe_u32 v3, v0, 5, 1\nv_lshl_add_u32 v2, v3, 3, v2" % L7)
        A("v_add_u32 v2, s41, v2")
        A("v_lshlrev_b32 v3, 8, v3\nv_lshl_add_u32 v3, v242, 6, v3\nv_lshl_add_u32 v3, v%d, 4, v3\ns_mul_i32 s3, s6, 4128\nv_add_u32 v3, s3, v3" % NF)
        A("s_mov_b32 s46, 0x05040100\ns_mov_b32 s47, 0x07060302")
        qso = ["0", "s56", "s42", "s57"]
        def setup0():
            A("s_and_b32 s41, s5, 15\ns_lshl_b32 s3, s41, 1\ns_lshr_b32 s43, s6, 1\ns_add_u32 s3, s3, s43\ns_lshl_b32 s3, s3, 6\ns_and_b32 s51, s6, 1\ns_add_u32 s3, s3, s51\ns_lshl_b32 s3, s3, 4\ns_add_u32 s3, s3, %d" % W_G)
            A("v_and_b32 v128, 3, v0\nv_lshl_add_u32 v128, v%d, 2, v128\nv_lshl_add_u32 v128, v128, 6, s3\nv_and_b32 v129, 4, v0\nv_lshl_add_u32 v%d, v129, 1, v128" % (KQ, MP))
            A("s_bfe_u32 s50, s5, 0x10002\ns_lshl_b32 s3, s4, 1\ns_add_u32 s3, s3, s50\ns_lshl_b32 s3, s3, 2\ns_add_u32 s3, s3, s6\ns_lshl_b32 s3, s3, 6\ns_add_u32 s3, s3, s7\ns_lshl_b32 s3, s3, 2\ns_and_b32 s50, s5, 3\ns_add_u32 s3, s3, s50\ns_lshl_b32 s3, s3, 3")
            A("v_lshl_add_u32 v129, v%d, 3, v%d\ns_mov_b32 exec_lo, 0x00ff00ff\ns_mov_b32 exec_hi, 0x00ff00ff\nv_lshl_add_u32 v%d, v129, 6, s3\ns_mov_b64 exec, -1" % (KQ, L7, MP))
            s.addbase(60, 38, "%d" % W_K)
            A("s_and_b32 s3, s5, 7\ns_lshl_b32 s3, s3, 1\ns_add_u32 s3, s3, s51\ns_lshl_b32 s3, s3, 6\ns_add_u32 s3, s3, s43\ns_mul_i32 s3, s3, %d\ns_lshl_b32 s43, s4, 1\ns_add_u32 s43, s43, s7\ns_lshl_b32 s50, s43, 7\ns_add_u32 s3, s3, s50\ns_add_u32 s3, s3, %d" % (SLAB, W_V)); s.addbase(30, 38, "s3")
            A("s_lshl_b32 s50, s6, 12\ns_add_u32 s50, s50, %d\nv_lshrrev_b32 v91, 3, v1\nv_mul_u32_u24 v91, %d, v91\nv_lshl_add_u32 v91, v%d, 4, v91\nv_add_u32 v90, s50, v243" % (VL, 2*SLAB, L7))
            A("s_lshl_b32 s3, s4, 12\ns_add_u32 s3, s3, %d" % W_C); s.addbase(58, 38, "s3")
            A("s_mov_b64 s[26:27], s[58:59]\nv_lshlrev_b32 v250, 7, v%d\ns_lshl_b32 s3, s4, 7\ns_add_u32 s3, s3, %d\nv_lshl_add_u32 v248, v%d, 12, s3" % (L7, W_C+2048, L7))
            A("s_lshl_b32 s3, s41, 10\ns_lshl_b32 s41, s6, 18\ns_add_u32 s3, s3, s41\ns_lshl_b32 s43, s43, 6\ns_add_u32 s3, s3, s43")
            A("v_lshl_add_u32 v234, v%d, 16, s3\nv_lshl_add_u32 v234, v%d, 2, v234\nv_add_u32 v239, 0x100000, v234" % (KQ, NF))
            A("s_mov_b32 s56, 0x4000\ns_mov_b32 s57, 0xc000\ns_mov_b32 s42, 0x8000")
        CFR = lambda p, k, jj, b: 176+16*(k >> 1)+8*p+4*(k & 1)+2*jj+b
        def cf(lo, hi):
            for i in range(lo, hi):
                A("v_cos_f32 v134, v132\nv_sin_f32 v135, v132")
                if i < 15: A("v_fmamk_f32 v132, v131, 0x41500000, v132" if i & 3 == 3 else "v_add_f32 v132, v132, v131")
                A("v_cvt_pk_bf16_f32 v%d, v134, v135" % CFR(i & 1, i >> 3, (i >> 2) & 1, (i >> 1) & 1))
        nb = int(cfg["nb"])
        def setup1():
            A("s_lshl_b32 s3, s6, 5\ns_bfe_u32 s41, s5, 0x10003\ns_add_u32 s3, s3, s41\nv_lshl_add_u32 v128, v%d, 1, s3\nv_cvt_f32_u32 v128, v128\nv_mul_f32 v131, 0x3b800000, v128" % NF)
            A("v_cvt_f32_u32 v129, v%d\nv_mul_f32 v129, 4.0, v129\nv_mul_f32 v132, v129, v131" % KQ)
            cf(0, nb)
        def setup1b():
            cf(nb, 16)
            A("s_bfe_u32 s41, s5, 0x10003\ns_lshl_b32 s3, s41, 4\ns_lshl_b32 s43, s41, 15\nv_bfe_i32 v133, v0, 0, 1\nv_and_b32 v133, 0x80008000, v133\nv_xor_b32 v133, s43, v133")
            for i in range(16): A("v_alignbit_b32 v%d, v%d, v%d, s3\nv_xor_b32 v%d, v133, v%d" % (192+i, 176+i, 176+i, 192+i, 192+i))
            A("s_lshl_b32 s41, s41, 31\ns_or_b32 s41, s41, 0x3f803f80\ns_mov_b64 exec, 0xffff\nv_mov_b32 v176, s41\ns_mov_b64 exec, -1")
        def setup2():
            A("s_mov_b64 s[12:13], s[34:35]\ns_mov_b32 s14, 0x200000\ns_mov_b32 s15, 0x20000")
            A("v_and_b32 v92, 58, v0\nv_lshlrev_b32 v88, 4, v92\nv_and_b32 v92, 20, v0\nv_lshl_add_u32 v88, v92, 2, v88\nv_and_b32 v92, 1, v0\nv_lshl_add_u32 v88, v92, 3, v88\nv_add_u32 v88, %d, v88\nv_xor_b32 v89, 64, v88" % VL)
            A("v_and_b32 v92, 0xfc, v0\nv_lshlrev_b32 v92, 12, v92\nv_and_b32 v93, 2, v%d\nv_xor_b32 v93, v93, v0\nv_and_b32 v93, 3, v93\nv_lshl_add_u32 v92, v93, 4, v92" % KQ)
            A("s_and_b32 s24, s5, 15\ns_lshl_b32 s24, s24, 3\ns_add_u32 s24, s24, s4\ns_lshl_b32 s24, s24, 1\ns_add_u32 s24, s24, s7\ns_lshl_b32 s24, s24, 6")
            s.addbase(52, 34, "s24"); s.addbase(54, 52, "0xffc00")
            A("v_bfe_u32 v93, v0, 2, 2\nv_and_b32 v93, 2, v93\nv_xor_b32 v93, v93, v%d\nv_lshlrev_b32 v93, 4, v93\nv_lshl_add_u32 v93, v%d, 6, v93\ns_lshl_b32 s41, s6, 11\nv_add_u32 v93, s41, v93" % (KQ, NF))
            A("s_bfe_u32 s3, s5, 0x20002\ns_lshl_b32 s3, s3, 1\ns_add_u32 s3, s3, s7\ns_lshl_b32 s3, s3, 6\nv_lshl_add_u32 v94, v%d, 2, s3" % NF)
        QF = 16
        def qload():
            for i in range(0 if cfg.get("noq") else 8): A("buffer_load_dword v%d, v%d, s[8:11], %s offen %s" % (4+i, 239 if i >> 2 else 234, qso[i & 3], cfg["qnt"]), "q")
        def post():
            A("s_xor_b32 s3, s6, 2\ns_or_b32 s3, s5, s3\ns_cbranch_scc1 L_b_postd\ns_mov_b64 exec, 0xff")
            A.raw("global_store_dword v248, v253, s[38:39] sc1")
            A("s_mov_b64 exec, -1\nL_b_postd:")
        steps = dict(a=setup0, b=setup1, e=setup1b, c=setup2, q=qload, k=lambda: (A.wait(vm="vst"), s.stamp(14)), W=lambda: A.wait(vm="q"),
                     S=lambda: A("s_sleep %d" % int(cfg["ns"])), p=post, P=lambda: A("s_setprio 3"), O=lambda: A("s_setprio 0"))
        def cread():
            s.meet("L_b_cw", M_C, 244, 245, 246, 247, arrive=False)
            for f in range(15): A("ds_read_b128 %s, v243 offset:%d" % (vr(4+4*f, 4), CL+1024*f), "c")
        steps["r"] = cread
        for ch in cfg["seqE"]: steps[ch]()
        s.stamp(12)
        GW, GX = 144, 128
        A.wait(vm="gw")
        for p in range(4): A("v_lshlrev_b32 v%d, 16, v%d\nv_and_b32 v%d, %s, v%d" % (GW+2*p, 220+p, GW+1+2*p, MASK, 220+p))
        for i in range(8): A("v_lshlrev_b32 v%d, 16, v%d\nv_and_b32 v%d, %s, v%d" % (GX+2*i, 224+i, GX+1+2*i, MASK, 224+i))
        for i in range(8): A("v_pk_mul_f32 %s, %s, %s" % (vr(GX+2*i, 2), vr(GX+2*i, 2), vr(GW+2*(i & 3), 2)))
        for i in range(16): A("v_cvt_pk_bf16_f32 v%d, 0, v%d" % (GX+i, GX+i))
        for i in range(4): A("v_pk_add_f32 %s, %s, %s" % (vr(GX+4*i, 2), vr(GX+4*i, 2), vr(GX+2+4*i, 2)))
        for i in range(2): A("v_pk_add_f32 %s, %s, %s" % (vr(GX+8*i, 2), vr(GX+8*i, 2), vr(GX+4+8*i, 2)))
        for i in range(2): A("v_add_f32 v%d, v%d, v%d" % (GW+i, GX+8*i, GX+1+8*i))
        perm = lambda jj, c: A("v_perm_b32 v%d, v%d, v%d, s%d" % (96+2*c+jj, XR(2*jj+1)+(c >> 1), XR(2*jj)+(c >> 1), 46+(c & 1)))
        for n, sh in enumerate((8, 4, 2, 1)):
            perm(0, 2*n); perm(0, 2*n+1)
            for r in range(2): A("v_add_f32_dpp v%d, v%d, v%d row_ror:%d %s" % (GW+r, GW+r, GW+r, sh, DPP))
        A("s_lshl_b32 s3, s6, 2\nv_lshl_add_u32 v146, v%d, 5, s3\nv_lshlrev_b32 v255, 4, v%d" % (KQ, L7))
        A("ds_write_b32 v146, v144 offset:%d\nds_write_b32 v146, v145 offset:%d" % (GL, GL+16))
        if int(cfg["prioB"]): A("s_setprio %d" % int(cfg["prioB"]))
        mfA = lambda c: A("v_mfma_f32_16x16x16_bf16 %s, %s, v[4:5], 0" % (vr(128+4*c, 4), vr(96+2*c, 2)))
        def outA(c):
            A("v_cvt_pk_bf16_f32 v%d, v%d, v%d\nv_cvt_pk_bf16_f32 v%d, v%d, v%d" % (160+2*c, 128+4*c, 129+4*c, 161+2*c, 130+4*c, 131+4*c))
            A("ds_write_b64 v2, %s offset:%d" % (vr(160+2*c, 2), X1+16*c))
        A.wait(lg="c"); s.stamp(2)
        for op in "p0 p1 p2 m0 p3 p4 m1 p5 p6 m2 p7 m3 m4 o0 m5 o1 m6 o2 m7 o3 o4 o5 o6 o7".split():
            {"p": lambda c: perm(1, c), "m": mfA, "o": outA}[op[0]](int(op[1]))
        s.meet("L_b_xw", M_X, 244, 245, 246, 247)
        for ri in range(2):
            for ks in range(2):
                A("ds_read_b128 %s, v3 offset:%d" % (vr(64+8*ri+4*ks, 4), X1+ri*2064+ks*512), ("a", ri, ks))
        A("ds_read_b128 v[252:255], v255 offset:%d" % GL, "gp")
        s.stamp(3)
        A("v_and_b32 v160, 28, v0\nv_lshlrev_b32 v238, 6, v160\nv_and_b32 v161, 3, v0\nv_lshl_add_u32 v238, v161, 4, v238")
        A("v_and_b32 v161, 32, v0\nv_lshl_add_u32 v238, v161, 1, v238\ns_and_b32 s3, s40, 4\ns_lshl_b32 s3, s3, 4\nv_xor_b32 v238, s3, v238")
        A("v_add_u32 v219, v160, v161\ns_lshl_b32 s3, s6, 2\ns_add_u32 s3, s3, %d\nv_lshl_add_u32 v219, v219, 3, s3" % KL)
        A("s_lshl_b32 s3, s7, 2\ns_add_u32 s3, s3, s6\ns_lshl_b32 s3, s3, 7\ns_add_u32 s43, s3, s40\ns_mul_i32 s3, s43, %d\ns_add_u32 s3, s3, %d" % (SLAB, W_V))
        s.addbase(28, 38, "s3")
        RE, IM = 96, 112
        M32 = "v_mfma_f32_32x32x16_bf16 %s, %s, %s, %s"
        for n in range(4):
            ri, ks = n >> 1, n & 1
            A.wait(lg=("a", ri, ks))
            A(M32 % (vr(RE, 16), vr(64+8*ri+4*ks, 4), vr((8 if ri == 0 else 16)+4*ks, 4), vr(RE, 16) if n else "0"))
        muls = []
        for o in range(16):
            muls.append("v_mul_f32 v%d, v%d, v%d" % (128+o, RE+o, 32+(o & 7)))
            muls.append("v_mul_f32_e64 v%d, -v%d, v%d" % (144+o, RE+o, 40+(o & 7)))
        for n in range(4):
            ri, ks = n >> 1, n & 1
            A(M32 % (vr(IM, 16), vr(64+8*ri+4*ks, 4), vr((24 if ri == 0 else 8)+4*ks, 4), vr(IM, 16) if n else "0"))
            if n == 0:
                A.wait(lg="gp")
                A("v_add_f32 v252, v252, v254\nv_add_f32 v253, v253, v255\nv_add_f32 v252, v252, v253")
                A("v_cvt_pk_bf16_f32 v252, 0, v252\nv_mul_f32 v252, 0xbfb8aa3b, v252\nv_exp_f32 v252, v252\nv_add_f32 v252, 1.0, v252\nv_rcp_f32 v252, v252")
                A("v_cvt_pk_bf16_f32 v252, 0, v252\nv_sub_f32 v254, 1.0, v252\nv_cvt_pk_bf16_f32 v252, v254, v252")
            for _ in range((0, 6, 6, 20)[n]): A(muls.pop(0))
        for o in range(0, 16, 2):
            A("v_pk_fma_f32 %s, %s, %s, %s" % (vr(128+o, 2), vr(IM+o, 2), vr(40+(o & 7), 2), vr(128+o, 2)))
            A("v_pk_fma_f32 %s, %s, %s, %s" % (vr(144+o, 2), vr(IM+o, 2), vr(32+(o & 7), 2), vr(144+o, 2)))
        def cv(n):
            row, ri = n >> 1, n & 1
            for p in range(4):
                o = 128+16*ri+8*row+2*p
                A("v_cvt_pk_bf16_f32 v%d, v%d, v%d" % (160+4*n+p, o, o+1))
        cv(0); cv(1)
        for n in range(4):
            A(M32 % (vr(64, 16), vr(160+4*n, 4), vr(48+4*n, 4), vr(64, 16) if n else "0"))
            if n < 2: cv(n+2)
        A("s_lshl_b32 s3, s7, 1\ns_and_b32 s41, s40, 1\ns_add_u32 s3, s3, s41\ns_lshl_b32 s3, s3, 6\ns_lshr_b32 s41, s40, 1\ns_add_u32 s3, s3, s41\ns_lshl_b32 s3, s3, 6\nv_and_b32 v255, 56, v0\nv_lshl_add_u32 v235, v%d, 3, s3\nv_lshl_add_u32 v235, v255, 11, v235" % L7)
        A("s_cmp_lg_u32 s6, 1\ns_cbranch_scc1 L_b_hd")
        A("s_sub_u32 s3, s63, s40\nv_bfe_u32 v235, v0, 2, 1\nv_mul_u32_u24 v235, s3, v235\nv_add_u32 v235, s40, v235\nv_and_b32 v255, 15, v235\nv_and_b32 v235, 0xf0, v235\nv_lshlrev_b32 v235, 2, v235\nv_lshl_add_u32 v235, v255, 11, v235")
        A("v_and_b32 v255, 10, v0\nv_lshl_add_u32 v235, v255, 2, v235\nv_and_b32 v255, 1, v0\nv_lshl_add_u32 v235, v255, 4, v235\ns_lshl_b32 s3, s7, 10\ns_add_u32 s3, s3, %d\nv_add_u32 v235, s3, v235\nL_b_hd:" % W_G)
        for p in range(8): A("v_cvt_pk_bf16_f32 v%d, v%d, v%d" % (80+p, 64+2*p, 65+2*p))
        for b in range(2):
            A("s_mov_b32 vcc_lo, 0x%x\ns_mov_b32 vcc_hi, 0x%x" % ((0x33333333 << 2*b,)*2))
            for p in range(4): A("v_cndmask_b32_dpp v%d, v%d, v%d, vcc quad_perm:[2,3,0,1] %s" % (208+4*b+p, 84-4*b+p, 80+4*b+p, DPP))
        for p in range(8): A("v_dot2_u32_u16 v%d, v%d, v%d, %s" % (216+(p >> 2), 208+p, 208+p, "v%d" % (216+(p >> 2)) if p & 3 else "0"))
        for qp in ("[1,0,3,2]", "[2,3,0,1]"):
            for b in range(2): A("v_add_u32_dpp v%d, v%d, v%d quad_perm:%s %s" % (216+b, 216+b, 216+b, qp, DPP))
        A("ds_write2_b32 v219, v216, v217 offset0:0 offset1:4\nv_lshlrev_b32 v219, 2, v1")
        if int(cfg["prioB"]): A("s_setprio 0")
        s.stamp(4)
        seq0, seq1, seq2 = cfg["seq"].split(".")
        allseq = cfg["seqE"] + seq0 + seq1 + seq2
        assert all(allseq.count(ch) == 1 for ch in "abecq" + ("xy" if cfg["inb"] is True else "")), allseq
        assert "a" in cfg["seqE"] + seq0 and "c" in cfg["seqE"] + seq0 and not set("xyz") & set(cfg["seqE"]) and "y" not in seq0 and "q" not in cfg["seqE"] + seq0
        assert allseq.index("b") < allseq.index("e") and (("b" in cfg["seqE"]) == ("e" in cfg["seqE"])) and (cfg["inb"] is not True or allseq.index("x") < allseq.index("y"))
        for ch in seq0: steps[ch]()
        for i in range(3): A("v_mov_b64 v[%d:%d], v[%d:%d]" % (40+2*i, 41+2*i, 88+2*i, 89+2*i))
        A("v_mov_b32 v46, v94")
        A("s_getreg_b32 s45, hwreg(HW_REG_XCC_ID, 0, 4)\ns_waitcnt lgkmcnt(0)")
        if cfg["white"]:
            assert cfg["vreg"] and int(cfg["hm"])
            A("s_branch L_b_tw\nL_b_ts:\ns_sleep 1\nL_b_tw:\nds_read_b32 v146, v246 offset:%d\nds_read_b32 v253, v246 offset:%d\ns_waitcnt lgkmcnt(0)\nv_cmp_eq_u32 vcc, 0, v146\ns_cbranch_vccnz L_b_ts" % (M_W, M_TAG))
            for p in range(8): A("v_xor_b32 v%d, v253, v%d" % (208+p, 208+p))
        if int(cfg["prioD"]): A("s_setprio %d" % int(cfg["prioD"]))
        s.stamp(13)
        A("s_barrier")
        A("ds_read_b64 v[146:147], v246 offset:%d\nds_read_b32 v216, v219 offset:%d\nds_read_b32 v217, v219 offset:%d" % (M_TAG, KL, KL+256))
        s.jit("V")
        late = "D" in cfg.get("jit", "")
        for io in range(0 if cfg.get("x_novst") else (1 if late else 2)): A("global_store_dwordx4 v%d, %s, s[28:29] offset:%d sc1" % (VS, vr(208+4*io, 4), 128*io), "vst")
        s.jit("K")
        A("s_cmp_ge_u32 s6, 2\ns_waitcnt lgkmcnt(0)\nv_mov_b32 v253, v146\nv_readfirstlane_b32 s44, v146\nv_cmp_ne_u32 vcc, 0, v147\ns_cbranch_scc1 L_b_ng")
        A("s_mov_b64 exec, 0xffff\ns_cmp_eq_u32 s6, 1\ns_cbranch_scc1 L_b_g1\ns_mov_b64 exec, -1\nv_add_u32 v252, v216, v217\nL_b_g1:")
        A.raw("global_store_dwordx2 v235, v[252:253], s[60:61] sc1")
        A("L_b_ng:")
        A("s_mov_b64 exec, -1\ns_add_u32 s45, s45, s44\ns_add_u32 s45, s45, 1\ns_cbranch_vccnz L_b_far\nL_b_fard:")
        def t():
            A("L_b_far:\ns_mov_b32 s45, s44\ns_add_u32 s24, s24, %d" % W_R2)
            s.addbase(52, 38, "s24"); s.addbase(54, 52, "0xffc00")
            s.addbase(58, 58, "%d" % FARC)
            A("s_branch L_b_fard")
        s.side(t)
        if "p" not in cfg["seq"]: post()
        s.stamp(5)
        A("s_barrier")
        if late:
            s.jit("D"); A("global_store_dwordx4 v%d, v[212:215], s[28:29] offset:128 sc1" % VS, "vst")
        pl = "global_load_dword v147, v250, s[26:27] offset:2048 sc1"
        steps["L"] = lambda: (s.stamp(11), A(pl))
        gl = "global_load_dwordx2 v[144:145], v%d, s[60:61] sc1" % MP
        steps["g"] = lambda: A(gl)
        if "g" not in seq1: A("v_not_b32 v145, v253")
        for i in range(1, 4): A("v_add_u32 v%d, %d, v43" % (48+i, 16*SLAB*i))
        for ch in (seq1 if "L" in seq1 else seq1 + "L"): steps[ch]()
        A("s_mov_b32 s3, 0\nL_b_pv:\ns_waitcnt vmcnt(0)")
        A("v_cmp_ne_u32 vcc, s44, v147\ns_cbranch_vccz L_b_pv_ok\ns_mov_b64 exec, vcc\ns_sleep %d" % int(cfg["vsleep"]))
        A(pl)
        A("s_add_u32 s3, s3, 1\ns_cmp_lt_u32 s3, %d\ns_cbranch_scc1 L_b_pv\ns_waitcnt vmcnt(0)\nL_b_pv_ok:\ns_mov_b64 exec, -1" % SPIN)
        s.stamp(6)
        if cfg["inb"] is True and "z" not in cfg["seq"]: wiped()
        A("s_or_b32 s43, s2, s6\ns_cbranch_scc1 L_b_epd\ns_mov_b64 exec, 1")
        A.raw("global_store_dword v246, v253, s[38:39] sc1")
        A("s_mov_b64 exec, -1\nL_b_epd:")
        if cfg.get("x_nov"): A("s_branch L_b_vok")
        A("s_mov_b32 s98, 0\nL_b_vf:\nv_cmp_ne_u32 vcc, s44, v145\ns_cbranch_vccz L_b_gok\ns_mov_b64 exec, vcc")
        A(gl, "g")
        A("s_mov_b64 exec, -1\nL_b_gok:")
        vreg = cfg["vreg"]
        if not vreg: A("s_mov_b32 m0, s50")
        for i in range(4):
            a = 48+i if i else 43
            if vreg: A("global_load_dwordx4 %s, v%d, s[30:31] sc1" % (vr(64+4*i, 4), a), ("vd", i))
            else:
                if i: A("s_add_u32 m0, m0, 1024")
                A("global_load_lds_dwordx4 v%d, s[30:31] sc1" % a, ("vd", i))
        if seq2:
            steps["M"] = lambda: s.meet("L_b_mw", M_W, 244, 245, 246, 247)
            A("s_cmp_lg_u32 s98, 0\ns_cbranch_scc1 L_b_s2")
            for ch in seq2: steps[ch]()
            A("L_b_s2d:")
            s.tail.append("L_b_s2:\ns_waitcnt vmcnt(0)\ns_branch L_b_s2d")
        def qunp():
            for i in range(8): A("v_lshlrev_b32 v%d, 16, v%d\nv_and_b32 v%d, %s, v%d" % (QF+2*i, 4+i, QF+2*i+1, MASK, 4+i))
        def gq():
            A("v_lshlrev_b32 v149, 16, v144\nv_and_b32 v148, %s, v144" % MASK)
            if "q" in seq2: A.wait(vm="q"); qunp()
            for i in range(16): A("v_mul_f32_dpp v%d, v148, v%d row_newbcast:%d %s" % (QF+i, QF+i, 8+(i >> 1), DPP))
        def gq2():
            qunp()
            for i in range(16): A("v_mul_f32_dpp v%d, v148, v%d row_newbcast:%d %s" % (QF+i, QF+i, 8+(i >> 1), DPP))
        if "q" not in seq2: qunp()
        A("v_mov_b32 v146, 0")
        A.wait(vm="g")
        if cfg.get("dbg"): s.stamp(2)
        A("v_cmp_ne_u32 s[48:49], s44, v145\ns_mov_b32 exec_lo, 0x00ff00ff\ns_mov_b32 exec_hi, 0x00ff00ff\nv_sub_u32 v146, 0, v144\ns_mov_b64 exec, -1")
        if cfg["gqat"] == "0": gq()
        if cfg["gqat"] == "3": A("v_lshlrev_b32 v149, 16, v144\nv_and_b32 v148, %s, v144" % MASK)
        def dots(i):
            A.wait(lg=("rb", i))
            if cfg.get("nodot"): return
            for p in range(4): A("v_dot2_u32_u16 v146, v%d, v%d, v146" % (64+4*i+p, 64+4*i+p))
        for i in range(4):
            A.wait(vm=("vd", i))
            if i == 3 and cfg.get("dbg"): s.stamp(3)
            if vreg:
                if cfg["white"]:
                    for p in range(4): A("v_xor_b32 v%d, v253, v%d" % (64+4*i+p, 64+4*i+p))
                A("ds_write_b128 v42, %s offset:%d" % (vr(64+4*i, 4), 1024*i)); dots(i)
            else: A("ds_read_b128 %s, v42 offset:%d" % (vr(64+4*i, 4), 1024*i), ("rb", i))
        if not vreg:
            for i in range(4): dots(i)
        for sh in (8, 4, 2, 1): A("v_add_u32_dpp v146, v146, v146 row_ror:%d %s" % (sh, DPP))
        A("v_readlane_b32 s40, v146, 0\nv_readlane_b32 s41, v146, 16\nv_readlane_b32 s43, v146, 32\nv_readlane_b32 s51, v146, 48")
        A("s_add_u32 s40, s40, s41\ns_add_u32 s43, s43, s51\ns_add_u32 s40, s40, s43\n" + ("" if cfg.get("nodot") else "s_or_b32 s48, s48, s40\n") + "s_or_b32 s48, s48, s49\ns_cbranch_scc1 L_b_vr\nL_b_vok:")
        s.tail.append("L_b_vr:\ns_add_u32 s98, s98, 1\ns_cmp_lt_u32 s98, %d\ns_cbranch_scc0 L_b_vok\ns_sleep 2\ns_branch L_b_vf" % (SPIN//16))
        s.stamp(7)
        if cfg.get("dbg"): A("s_waitcnt lgkmcnt(0)\ns_add_u32 s88, s64, s98\ns_mov_b32 s89, s65")
        A("ds_write_b8 v244, v245 offset:%d" % M_V)
        A("s_lshl_b32 s43, s6, 11\ns_add_u32 m0, s43, %d" % YL)
        if int(cfg["prioD"]): A("s_setprio 0")
        if cfg["gqat"] == "1": gq()
        A("s_branch L_b_vw\nL_b_vs:\ns_sleep 1\nL_b_vw:\nds_read2_b32 v[54:55], v246 offset0:%d offset1:%d\ns_waitcnt lgkmcnt(0)\nv_and_b32 v54, v54, v55\nv_cmp_ne_u32 vcc, 0x01010101, v54\ns_cbranch_vccnz L_b_vs" % ((M_V if cfg.get("x_noy") else M_A)//4, M_V//4))
        ydma = ["global_load_lds_dwordx4 v44, s[52:53] sc1", "global_load_lds_dwordx4 v44, s[54:55] offset:1024 sc1"]
        VF = lambda n: 64+4*n
        def trd(n):
            for jj in range(2):
                A("ds_read_b64_tr_b16 %s, v%d offset:%d" % (vr(VF(n)+2*jj, 2), 40+(n >> 3), 2048*(n & 3)+1024*jj+8192*((n >> 2) & 1)), ("t", n))
        def comb(c):
            o = []
            for r in range(4):
                e, d = 128+8*c+r, 132+8*c+r
                o += ["v_add_f32 v%d, v%d, v%d" % (160+2*r+c, e, d), "v_sub_f32 v%d, v%d, v%d" % (168+2*r+c, e, d)]
            for i in range(8): o.append("v_mul_f32_dpp v%d, v149, v%d row_newbcast:%d %s" % (160+2*i+c, 160+2*i+c, 8+i, DPP))
            return o
        ahead = int(cfg["ahead"]); ypre = int(cfg["ypre"])
        d2 = cfg.get("dbg") == "2"
        if d2: s.stamp(1)
        for n in range(ahead): trd(n)
        if cfg["gqat"] == "2": gq()
        c0 = comb(0)
        for n in range(16):
            if n >= 9 or n % 2 == 0: A.wait(lg=("t", n if n >= 8 else n+1))
            acc = vr(128+4*(n >> 2), 4)
            A("v_mfma_f32_16x16x32_bf16 %s, %s, %s, %s" % (acc, vr(CFR((n >> 2) & 1, n & 3, 0, 0), 4), vr(VF(n), 4), acc if n & 3 else "0"))
            if d2 and n in (0, 8, 15): s.stamp({0: 4, 8: 5, 15: 11}[n])
            if n+ahead < 16: trd(n+ahead)
            if n >= 11:
                for _ in range(2): A(c0.pop(0))
            if n == ypre:
                for l in ydma: A(l)
        yrd = lambda pp: A("ds_read_b128 %s, v45 offset:%d" % (vr(56+4*pp, 4), YL+1024*pp), ("y", pp))
        def yflags():
            A("L_b_yf:\ns_mov_b32 s3, 0\nL_b_py:\nglobal_load_dword v47, v46, s[58:59] offset:512 sc1\ns_waitcnt vmcnt(0)\nv_cmp_ne_u32 vcc, s45, v47\ns_cbranch_vccz L_b_py_ok")
            A("s_add_u32 s3, s3, 1\ns_cmp_lt_u32 s3, %d\ns_cbranch_scc1 L_b_py\nL_b_py_ok:\ns_waitcnt lgkmcnt(0)" % SPIN)
            for l in ydma: A(l)
            A("s_waitcnt vmcnt(0)"); yrd(0); yrd(1)
            A("s_waitcnt lgkmcnt(0)\ns_branch L_b_yok")
        s.side(yflags)
        for l in c0: A(l)
        if cfg["gqat"] == "3": gq2()
        A("s_mov_b32 s97, 0\ns_waitcnt vmcnt(0)"); yrd(0); yrd(1)
        if d2: s.stamp(13)
        for l in comb(1): A(l)
        s.stamp(8)
        A("s_cmp_eq_u32 s44, s45\ns_cbranch_scc1 L_b_yf\nL_b_yc:\ns_waitcnt lgkmcnt(0)")
        A("v_max3_u32 v47, v56, v57, v58\nv_max3_u32 v48, v59, v60, v61\nv_max3_u32 v47, v47, v62, v63\nv_max_u32 v47, v47, v48\nv_cmp_eq_u32 vcc, -1, v47\n" + ("s_branch L_b_yok" if cfg.get("x_noy") else "s_cbranch_vccz L_b_yok"))
        for l in ydma: A(l)
        A("s_add_u32 s97, s97, 1\ns_cmp_ge_u32 s97, %d\ns_cbranch_scc1 L_b_yf\ns_waitcnt vmcnt(0)" % NEAR_TRIES); yrd(0); yrd(1)
        A("s_branch L_b_yc\nL_b_yok:")
        A.reset_counters()
        if cfg.get("tsleep"): A("s_sleep %d" % int(cfg["tsleep"]))
        if d2: s.stamp(9)
        elif cfg.get("dbg"): A("s_add_u32 s82, s64, s97\ns_mov_b32 s83, s65")
        for pp in range(2):
            A.wait(lg=("y", pp))
            if pp: s.stamp(10)
            for r in range(4):
                o = 8*pp+2*r
                A("v_lshlrev_b32 v%d, 16, v%d\nv_and_b32 v%d, %s, v%d" % (72+o, 56+4*pp+r, 73+o, MASK, 56+4*pp+r))
                A("v_pk_fma_f32 %s, %s, %s, %s" % (vr(160+o, 2), vr(QF+o, 2), vr(72+o, 2), vr(160+o, 2)))
                A("v_cvt_pk_bf16_f32 v%d, v%d, v%d" % (96+4*pp+r, 160+o, 161+o))
                A("buffer_store_dword v%d, v%d, s[12:15], %s offen %s" % (96+4*pp+r, 239 if pp else 234, qso[r], cfg["ont"]))
        if d2: s.stamp(14)
        s.stamps_out(0, 16)
        A("L_end:\ns_endpgm")

    def build(s):
        A = s.A
        A.raw("; @launch grid=(256,1,1) block=(512,1,1) lds=%d" % LDS)
        A.raw('.amdgcn_target "amdgcn-amd-amdhsa--gfx950"\n.text\n.globl %s\n.p2align 8\n.type %s,@function\n%s:' % (KN, KN, KN))
        s.prologue()
        s.roleB_head(); A("s_branch L_roleB"); s.roleA(); A("L_roleB:"); s.roleB()
        for t in s.tail: A(t)
        A.raw(".p2align 8\n.fill 1536, 4, 0xbf810000")
        A.raw('.section .rodata,"a"\n.p2align 6\n.amdhsa_kernel %s\n.amdhsa_next_free_vgpr 256\n.amdhsa_next_free_sgpr 102\n.amdhsa_accum_offset 256\n.amdhsa_group_segment_fixed_size 0\n.amdhsa_kernarg_size 120\n.amdhsa_user_sgpr_count 2\n.amdhsa_user_sgpr_kernarg_segment_ptr 1\n.amdhsa_system_sgpr_workgroup_id_x 1\n.end_amdhsa_kernel' % KN)
        return A.finish()

if __name__ == "__main__":
    out = sys.argv[1]
    cfg = {}
    for a in sys.argv[2:]:
        k, v = a.split("=")
        cfg[k] = {"True": True, "False": False}.get(v, v)
    g = G(**cfg)
    txt = g.build()
    if int(g.cfg.get("al", 0)):
        from align import align
        txt, nf, npad = align(txt, int(g.cfg["al"])); print("aligned runs", nf, "pads", npad, file=sys.stderr)
    open(out, "w").write(txt)
    print(out, "nops inserted", g.A.nops, file=sys.stderr)
    import subprocess, os
    r = subprocess.run([sys.executable, "cdna_unwritten_srd_check.py", out], capture_output=True, text=True)
    if r.returncode != 0:
        print(r.stdout, r.stderr); os.remove(out); sys.exit(1)
```

```python
import sys
from dsl import Asm
KN = "gated_mix__ssm_conv_h3__spectral_fnet__prompt_kernel"
W_E   = 0
W_C   = 4096
FARC  = 0x10000
W_R   = 0x100000
W_K   = 0x40000
W_G   = 0x20000
W_V   = 0x400000
FAR   = 0x700000
STAMP_OFF = 200<<20
LCG_A, LCG_C = 1664525, 1013904223
UL = 0; HL = 9216; RED = HL + 16640; X1 = RED + 4*8704; VL = X1; GL = RED + 24576; KL = GL + 256; YL = HL; CL = RED + 8192; LDS = X1 + 16640
M_W, M_A, M_V, M_C, M_TAG, M_X = UL, UL+4, UL+8, UL+12, UL+16, UL+24
SPIN = 40000
NEAR_TRIES = 24
MASK = "0xffff0000"
DPP = "row_mask:0xf bank_mask:0xf"

def vr(a, n): return "v[%d:%d]" % (a, a+n-1)

class G:
    def __init__(s, **cfg):
        s.cfg = dict(stamps=False, nt=" nt", xnt="nt", qnt="nt", prent="nt", ont="", vsleep=2, lord="vwhipa", hpre=1, nb=14, ypre=6, rot=1,
                     slab=2048, seqE="r", seq="ac.qObePLg.", prioA=1, prioB=0, prioD=3, far=False, ns=8, inb="A", gqat='0', y0=0, ahead=7, vreg=False, cq=2, cn=30)
        s.cfg.update(cfg)
        s.A = Asm(); s.tail = []
    def stamp(s, i):
        if s.cfg.get("probe") and i not in (0, int(s.cfg["probe"].split(".")[1])): return
        if s.cfg["stamps"]: s.A("%s s[%d:%d]" % ("s_memtime" if s.cfg.get("clk") else "s_memrealtime", 64+2*i, 65+2*i))
    def stamps_out(s, role, n):
        if not s.cfg["stamps"]: return
        A = s.A
        A("s_waitcnt vmcnt(0) lgkmcnt(0)")
        s.stamp(n-1)
        A("s_waitcnt lgkmcnt(0)")
        A("s_cmp_lg_u32 s6, %d\ns_cbranch_scc1 L_end" % int(s.cfg.get("sw", 0)))
        if s.cfg.get("probe"):
            pr, pi = [int(x) for x in s.cfg["probe"].split(".")]
            if pr == role:
                inv = "v_not_b32" if s.cfg.get("ref", "first") == "first" else "v_mov_b32"
                A("s_mov_b64 exec, 1\nv_mov_b32 v1, 0\nv_mov_b32 v2, s%d\n%s v3, s64\nglobal_atomic_umax v1, v2, s[36:37] sc1\nglobal_atomic_umax v1, v3, s[36:37] offset:128 sc1\ns_waitcnt vmcnt(0)" % (64+2*pi, inv))
                A("L_probe0:\ns_memrealtime s[40:41]\ns_waitcnt lgkmcnt(0)\ns_sub_u32 s40, s40, s64\ns_cmp_lt_u32 s40, 3000\ns_cbranch_scc1 L_probe0")
                A("global_load_dword v2, v1, s[36:37] sc1\nglobal_load_dword v3, v1, s[36:37] offset:128 sc1\ns_waitcnt vmcnt(0)\n%s v3, v3\nv_readfirstlane_b32 s42, v2\nv_readfirstlane_b32 s43, v3\ns_nop 3" % inv)
                A("s_sub_u32 s3, s42, s43\ns_min_u32 s3, s3, 1500\ns_mul_i32 s3, s3, %d\ns_add_u32 s3, s3, 5000" % int(s.cfg.get("skew", 5)))
                A("L_probe:\ns_memrealtime s[40:41]\ns_waitcnt lgkmcnt(0)\ns_sub_u32 s40, s40, s64\ns_cmp_lt_u32 s40, s3\ns_cbranch_scc1 L_probe")
            return
        A("s_add_u32 s38, s38, %d\ns_addc_u32 s39, s39, 0" % (STAMP_OFF + role*256*128))
        A("s_lshl_b32 s3, s2, 7\nv_mov_b32 v1, s3\ns_mov_b64 exec, 1")
        for j in range(n):
            A("v_mov_b32 v2, s%d\nv_mov_b32 v3, s%d\nglobal_store_dwordx2 v1, v[2:3], s[38:39] offset:%d\ns_nop 1" % (64+2*j, 65+2*j, 8*j))
    def side(s, fn):
        A = s.A; sv = (list(A.vm), list(A.lg)); keep = A.L; A.L = []
        fn()
        s.tail.append("\n".join(i.text for i in A.L)); A.L = keep; A.vm, A.lg = sv
    def addbase(s, d, base, soff):
        s.A("s_add_u32 s%d, s%d, %s\ns_addc_u32 s%d, s%d, 0" % (d, base, soff, d+1, base+1))
    def meet(s, name, off, vw, vone, vzero, vtmp, arrive=True):
        if arrive: s.A("ds_write_b8 v%d, v%d offset:%d" % (vw, vone, off))
        s.A("%s:\nds_read_b32 v%d, v%d offset:%d\ns_waitcnt lgkmcnt(0)\nv_cmp_ne_u32 vcc, 0x01010101, v%d\ns_cbranch_vccnz %s" % (name, vtmp, vzero, off, vtmp, name))

    def prologue(s):
        A = s.A
        s.stamp(0)
        if s.cfg.get("hsleep"): A("s_sleep %d" % int(s.cfg["hsleep"]))
        A("s_load_dwordx16 s[16:31], s[0:1], 0\ns_load_dwordx8 s[32:39], s[0:1], 88")
        A("s_cmp_ge_u32 s2, 256\ns_cbranch_scc1 L_end")
        A("s_getpc_b64 s[40:41]")
        A("s_add_u32 s4, s2, %d\ns_and_b32 s4, s4, 7\ns_lshr_b32 s5, s2, 3" % int(s.cfg["rot"]))
        A("v_lshrrev_b32 v2, 6, v0\ns_lshl_b32 s3, s5, 9\nv_lshl_add_u32 v1, v2, 6, s3\nv_readfirstlane_b32 s7, v2")
        A("global_load_dword v255, v1, s[40:41]", "pf")
        A("v_and_b32 v1, 63, v0\nv_and_b32 v0, 255, v0\ns_and_b32 s6, s7, 3")
        A("v_lshlrev_b32 v46, 2, v0\nv_mov_b32 v45, 0\nds_write_b32 v46, v45 offset:%d" % UL)
        A("s_mov_b32 s10, 0x200000\ns_mov_b32 s11, 0x20000")
        A("s_cmp_ge_u32 s7, 4\ns_cbranch_scc1 L_roleA")

    def roleA(s):
        A = s.A; cfg = s.cfg; nt = cfg["nt"]
        A.reset_counters(); A.vm = ["pf"]
        KR, VR = 10, 22
        A("L_roleA:")
        A("s_lshl_b32 s40, s5, 16\ns_lshl_b32 s3, s4, 7\ns_add_u32 s40, s40, s3")
        A("v_lshrrev_b32 v3, 5, v0\nv_and_b32 v4, 31, v0\nv_lshl_add_u32 v3, v3, 13, s40\nv_lshl_add_u32 v2, v4, 2, v3\nv_add_u32 v3, -3072, v2")
        A("s_lshl_b32 s3, s4, 9\nv_lshl_add_u32 v5, v4, 4, s3")
        A("s_lshl_b32 s41, s4, 5\ns_add_u32 s41, s41, s5")
        A("s_lshl_b32 s42, s41, 13\ns_add_u32 s43, s42, 4096\ns_lshl_b32 s41, s41, 2\ns_movk_i32 s7, 4096\nv_mov_b32 v49, s41")
        A("s_mov_b32 s50, 0x200000\ns_mov_b32 s51, 0x20000")
        A("s_waitcnt lgkmcnt(0)")
        s.stamp(1)
        A("s_mov_b64 s[8:9], s[18:19]")
        for i in range(3): A("buffer_load_dword v%d, v3, s[8:11], 0 offen offset:%d%s" % (KR+i, 1024*i, nt), "k")
        for i in range(8): A("buffer_load_dword v%d, v2, s[8:11], %s offen offset:%d%s" % (KR+3+i, "s7" if i >= 4 else "0", 1024*(i & 3), nt), "k")
        A("global_load_dwordx4 v[30:33], v5, s[22:23]", "k")
        A("global_load_dword v9, v45, s[38:39] sc1", "k")
        A("global_load_dword v49, v49, s[26:27]", "k")
        A("s_barrier")
        A("s_mov_b64 s[48:49], s[24:25]"); s.addbase(20, 20, "s7")
        A("s_add_u32 s3, s42, %d" % W_R); s.addbase(52, 38, "s3")
        A("s_mov_b64 s[12:13], s[52:53]")
        A("s_lshl_b32 s3, s4, 12\ns_add_u32 s3, s3, %d" % W_C); s.addbase(58, 38, "s3")
        A("s_lshl_b32 s3, s5, 7\nv_and_b32 v253, 64, v0\nv_add_u32 v253, s3, v253\nv_lshlrev_b32 v6, 4, v0\nv_add_u32 v252, v6, v6")
        def addr():
            A("s_mul_i32 s3, s6, 4160\nv_min_u32 v48, 6, v1\nv_lshl_add_u32 v47, v48, 2, s3\nds_write_b32 v47, v45 offset:%d" % HL)
            A("s_lshl_b32 s47, s6, 11\ns_lshl_b32 s60, s5, 2\ns_add_u32 s60, s60, s6\ns_lshl_b32 s3, s60, 6\ns_lshl_b32 s61, s4, 18\ns_add_u32 s3, s3, s61\ns_add_u32 s3, s3, %d" % W_R)
            s.addbase(54, 38, "s3"); s.addbase(56, 54, "0x20000")
            A("v_lshlrev_b32 v44, 3, v1\nv_lshrrev_b32 v47, 1, v1\nv_and_b32 v47, 16, v47\nv_and_b32 v48, 48, v44\nv_xor_b32 v47, v47, v48\nv_lshl_add_u32 v47, v4, 6, v47")
            A("v_add_u32 v47, s47, v47\nv_xor_b32 v48, 32, v47\nv_lshl_add_u32 v21, v1, 4, s47")
            A("v_add_u32 v8, v1, v1\nv_xor_b32 v8, v8, v6\ns_lshl_b32 s3, s5, 4\nv_xor_b32 v8, s3, v8\nv_and_b32 v8, 48, v8\nv_and_b32 v5, 60, v1\nv_lshl_add_u32 v8, v5, 11, v8")
            A("s_lshl_b32 s60, s60, 2\nv_mov_b32 v7, s60\ns_add_u32 m0, s47, %d" % (UL+1024))
            A("v_and_b32 v238, 15, v0\nv_lshrrev_b32 v235, 4, v1\nv_sub_u32 v238, v238, v235")
            A("s_and_b32 s41, s6, 1\ns_lshl_b32 s41, s41, 3\ns_sub_u32 s41, 16, s41\nv_add_u32 v238, s41, v238\ns_or_b32 s3, s6, 1\ns_lshl_b32 s3, s3, 4")
            for bb in range(2):
                if bb: A("v_add_u32 v238, -4, v238")
                A("v_lshlrev_b32 v239, 2, v238\nv_xor_b32 v239, s3, v239\nv_and_b32 v239, 48, v239\nv_lshl_add_u32 v%d, v238, 6, v239" % (248+2*bb))
                A("v_xor_b32 v%d, 16, v%d" % (249+2*bb, 248+2*bb))
            A("s_mul_i32 s3, s6, 8704\nv_add_u32 v236, v235, v1\nv_lshl_add_u32 v236, v236, 4, s3")
            A("s_lshl_b32 s3, s6, 6\nv_mul_u32_u24 v3, 272, v4\nv_lshrrev_b32 v5, 1, v1\nv_and_b32 v5, 16, v5\nv_add3_u32 v3, v3, v5, s3")
            A("s_lshl_b32 s60, s5, 1\ns_add_u32 s60, s60, s3\ns_lshl_b32 s60, s60, 1")
            A("s_lshr_b32 s61, s6, 1\ns_mul_i32 s61, s61, 7808\ns_lshl_b32 s41, s6, 8\ns_add_u32 s61, s61, s41\ns_add_u32 s61, s61, %d" % HL)
            A("v_and_b32 v234, 1, v0\nv_mul_u32_u24 v234, 4158, v234\nv_lshl_add_u32 v234, v1, 1, v234\nv_add_u32 v234, s61, v234")
        for ch in cfg["lord"]:
            if ch == "a": addr()
            if ch in "vw":
                for i in (range(4) if ch == "v" else range(4, 8)): A("global_load_dword v%d, v2, s[20:21] offset:%d%s" % (VR+i, 1024*i-4096, nt), ("v", i))
            if ch == "h":
                A("buffer_load_dwordx4 v[36:39], v6, s[48:51], s42 offen offset:4" + nt, "h")
                A("buffer_load_dword v34, v6, s[48:51], s42 offen" + nt, "h")
            if ch == "i":
                A("buffer_load_dwordx4 v[40:43], v6, s[48:51], s43 offen offset:4" + nt, "h")
                A("buffer_load_dword v35, v6, s[48:51], s43 offen" + nt, "h")
            if ch == "p":
                A("global_load_dword v253, v253, s[58:59] sc1", "pre")
                A("global_load_dword v254, v252, s[52:53] sc1 " + cfg["prent"], "pre")
        if int(cfg["prioA"]): A("s_setprio %d" % int(cfg["prioA"]))
        s.stamp(11)
        KP, W, S, VP = 50, 72, 80, 96
        A.wait(vm="k")
        s.stamp(2)
        for t in range(4):
            for c in range(2):
                src = 30 + 2*c + (t >> 1)
                A(("v_and_b32 v%d, " + MASK + ", v%d" if t & 1 else "v_lshlrev_b32 v%d, 16, v%d") % (W+2*t+c, src))
        for i in range(11):
            A("v_lshlrev_b32 v%d, 16, v%d\nv_and_b32 v%d, %s, v%d" % (KP+2*i, KR+i, KP+2*i+1, MASK, KR+i))
        for t in (3, 2, 1, 0):
            for r in range(8):
                k = vr(KP+2*(r+3-t), 2); w = vr(W+2*t, 2); d = vr(S+2*r, 2)
                A("v_pk_mul_f32 %s, %s, %s" % (d, k, w) if t == 3 else "v_pk_fma_f32 %s, %s, %s, %s" % (d, k, w, d))
        s.stamp(12)
        for r in range(8):
            if r in (0, 4): A.wait(vm=("v", r+3))
            if r == 4: s.stamp(10)
            A("v_lshlrev_b32 v%d, 16, v%d\nv_and_b32 v%d, %s, v%d" % (VP+2*r, VR+r, VP+2*r+1, MASK, VR+r))
            A("v_pk_mul_f32 %s, %s, %s" % (vr(S+2*r, 2), vr(S+2*r, 2), vr(VP+2*r, 2)))
            if r & 1:
                j = (7-r)//2
                for c in range(2): A("v_cvt_pk_bf16_f32 v%d, v%d, v%d" % (112+4*c+j, S+2*r+c, S+2*(r-1)+c))
        for c in range(2): A("ds_write_b128 v%d, %s offset:%d" % (47+c, vr(112+4*c, 4), RED))
        A("ds_read_b128 v[240:243], v21 offset:%d" % RED, "sh0")
        A("ds_read_b128 v[244:247], v21 offset:%d" % (RED+1024), "sh1")
        A("v_readfirstlane_b32 s44, v9\nv_readfirstlane_b32 s46, v49\ns_mov_b32 s96, 0\ns_getreg_b32 s3, hwreg(HW_REG_XCC_ID, 0, 4)")
        A("s_mul_i32 s44, s44, %d\ns_add_u32 s44, s44, %d\ns_add_u32 s45, s44, s3\ns_add_u32 s45, s45, 1" % (LCG_A, LCG_C))
        A("v_mov_b32 v9, s45\nv_mov_b32 v20, v44\nv_mov_b32 v26, 0\nv_mov_b32 v27, s44")
        A("v_mov_b32 v10, v234\nv_mov_b32 v2, v236\nv_mov_b64 v[14:15], v[248:249]\nv_mov_b64 v[16:17], v[250:251]")
        for i in range(1, 4): A("v_add_u32 v%d, %d, v234" % (10+i, 1024*i))
        ust = ["global_store_dwordx4 v8, v[240:243], s[54:55]", "global_store_dwordx4 v8, v[244:247], s[56:57]"]
        A.wait(lg="sh0"); A(ust[0], "ust")
        A.wait(lg="sh1"); A(ust[1], "ust")
        s.stamp(3)
        A("ds_write_b32 v26, v27 offset:%d" % M_TAG)
        A.wait(vm="h")
        s.stamp(9)
        for c in range(2):
            d = [34+c] + [36+4*c+k for k in range(4)]
            A("ds_write_b128 v6, %s offset:%d" % (vr(36+4*c, 4), HL+c*8320+4160+32))
            for k in range(4): A("v_alignbit_b32 v%d, v%d, v%d, 16" % (50+4*c+k, d[k+1], d[k]))
            A("ds_write_b128 v6, %s offset:%d" % (vr(50+4*c, 4), HL+c*8320+32))
        A("s_mov_b64 exec, 1\ns_cmp_lg_u32 s6, 0\ns_cbranch_scc1 L_a_h0\ns_mov_b32 s62, 0xffff0000\ns_lshl_b32 s3, s46, 16\ns_and_b32 s7, s46, s62")
        A("v_lshlrev_b32 v60, 16, v34\nv_lshlrev_b32 v61, 16, v35\nv_add_f32 v60, s3, v60\nv_add_f32 v61, s7, v61\nv_cvt_pk_bf16_f32 v60, 0, v60\nv_cvt_pk_bf16_f32 v61, 0, v61")
        A("s_mov_b32 s3, 0x07060302\nv_perm_b32 v62, v34, v60, s3\nv_perm_b32 v63, v35, v61, s3")
        for c in range(2):
            A("ds_write_b32 v6, v%d offset:%d\nds_write_b32 v6, v%d offset:%d" % (60+c, HL+c*8320+28, 62+c, HL+c*8320+4160+28))
        A("L_a_h0:")
        A("s_waitcnt vmcnt(0)"); s.stamp(4)
        A("global_store_dword v7, v9, s[58:59]\ns_mov_b64 exec, -1")
        if cfg.get("uhack"): A("v_and_b32 v20, 0x78, v20\ns_lshl_b32 s3, s6, 7\nv_add_u32 v20, s3, v20")
        A("s_mov_b32 s3, 0")
        if cfg["far"]: A("s_branch L_a_far")
        A("L_a_pu:\nglobal_load_dwordx2 v[22:23], v20, s[58:59] sc1\ns_waitcnt vmcnt(0)")
        A("v_cmp_ne_u32 vcc, s45, v22\nv_cmp_ne_u32 s[40:41], s45, v23\ns_or_b64 vcc, vcc, s[40:41]\ns_cbranch_scc0 L_a_pu_ok")
        if cfg.get("usleep"): A("s_sleep %d" % int(cfg["usleep"]))
        if cfg.get("umask"): A("s_mov_b64 exec, vcc")
        A("s_add_u32 s3, s3, 1\ns_cmp_lt_u32 s3, %d\ns_cbranch_scc1 L_a_pu\ns_branch L_a_far\nL_a_pu_ok:" % NEAR_TRIES)
        def far():
            A("L_a_far:\ns_mov_b64 exec, -1\nv_add_u32 v8, %d, v8" % FAR)
            for l in ust: A(l + " sc1")
            s.addbase(14, 58, "%d" % FARC)
            A("s_waitcnt vmcnt(0)\ns_mov_b64 exec, 1\nglobal_store_dword v7, v27, s[14:15] sc1\ns_mov_b64 exec, -1")
            A("L_a_pf:\nglobal_load_dwordx2 v[24:25], v20, s[14:15] sc1\ns_waitcnt vmcnt(0)\nglobal_load_dwordx2 v[22:23], v20, s[58:59] sc1\ns_waitcnt vmcnt(0)")
            A("v_cmp_ne_u32 vcc, s45, v22\nv_cmp_ne_u32 s[40:41], s45, v23\ns_or_b64 vcc, vcc, s[40:41]\ns_cbranch_scc0 L_a_pu_ok")
            A("v_cmp_ne_u32 vcc, s44, v24\nv_cmp_ne_u32 s[40:41], s44, v25\ns_or_b64 vcc, vcc, s[40:41]\ns_cbranch_scc0 L_a_isfar")
            A("s_sleep 8\ns_add_u32 s3, s3, 1\ns_cmp_lt_u32 s3, %d\ns_cbranch_scc1 L_a_pf" % SPIN)
            A("L_a_isfar:\ns_mov_b32 s96, 1\nv_mov_b32 v9, s44\nv_mov_b32 v28, 1\nds_write_b32 v26, v28 offset:%d" % (M_TAG+4))
            s.addbase(52, 52, "%d" % FAR)
            A("s_branch L_a_pu_ok")
        s.side(far)
        if cfg.get("umask"): A("s_mov_b64 exec, -1")
        s.stamp(5)
        A("global_load_lds_dwordx4 v21, s[52:53] sc1\nglobal_load_lds_dwordx4 v21, s[52:53] offset:1024 sc1")
        A("s_waitcnt lgkmcnt(0)\ns_barrier")
        HB = lambda q: 32+32*q
        UB = lambda q: 160+32*(q & 1)
        ACC = 224
        def hread(q, a, half):
            bb, hf = q >> 1, q & 1
            o = 128*(a & 1)+32*bb+4*hf+2*half
            A("ds_read2_b32 %s, v%d offset0:%d offset1:%d" % (vr(HB(q)+4*a+2*half, 2), 10+(a >> 1), o, o+1), ("f", q, a))
        def uread(q, z):
            A("ds_read_b128 %s, v%d offset:%d" % (vr(UB(q)+4*z, 4), 14+q, UL+1024*z), ("f", q, z))
        npre = int(cfg["hpre"])
        for q in range(npre):
            for a in range(8): hread(q, a, 0); hread(q, a, 1)
        A("v_mov_b32 v7, s60\nv_mov_b32 v5, s6\nv_mov_b32 v4, 1")
        awipe = cfg["inb"] == "A"
        if awipe: A("v_mov_b64 v[22:23], -1\nv_mov_b64 v[24:25], -1")
        A("s_waitcnt vmcnt(0)")
        if awipe and not cfg.get("wlate"):
            for k in range(2): A("global_store_dwordx4 v21, v[22:25], s[12:13] offset:%d" % (1024*k))
        A("s_barrier")
        s.stamp(6)
        todo = [(q, a, k) for q in range(4) for a in range(8) for k in range(3) if k == 0 or q >= npre]
        def feed(n, q):
            for _ in range(n):
                if todo and todo[0][0] <= q+1:
                    qq, a, k = todo.pop(0)
                    if k == 0: uread(qq, a)
                    else: hread(qq, a, k-1)
        feed(8, 0)
        if awipe and cfg.get("wlate"):
            for k in range(2): A("global_store_dwordx4 v21, v[22:25], s[12:13] offset:%d" % (1024*k))
        for q in range(4):
            pend = []; n = 0
            for i in range(8):
                while todo and todo[0][:2] <= (q, i): feed(1, q)
                A.wait(lg=[("f", q, i)] if q == 0 else [("f", q, z) for z in range(8)])
                for a in range(i+1):
                    if cfg.get("skipc") and q in (1, 2) and a > 0 and (i+a) % int(cfg["skipc"]) == 0:
                        feed(1, q); continue
                    acc = vr(ACC+4*i, 4)
                    A("v_mfma_f32_16x16x32_bf16 %s, %s, %s, %s" % (acc, vr(UB(q)+4*(i-a), 4), vr(HB(q)+4*a, 4), "0" if (q == 0 and a == 0) else acc))
                    n += 1
                    if n >= (8 if q == 0 else 2): feed(1, q)
                    if awipe and q == int(cfg['cq']) and n == int(cfg['cn']): A("s_waitcnt vmcnt(0)\ns_mov_b64 exec, 1\nglobal_store_dword v7, v9, s[58:59] offset:1024\ns_mov_b64 exec, -1")
                    if pend and n >= pend[0][1]:
                        t = pend.pop(0)[0]
                        A("ds_write_b128 v2, %s offset:%d" % (vr(ACC+4*t, 4), RED+1088*t))
                if q == 3: pend.append((i, n+8))
            for t, _ in pend: A("ds_write_b128 v2, %s offset:%d" % (vr(ACC+4*t, 4), RED+1088*t))
        assert not todo
        s.stamp(13)
        if cfg["inb"] is True:
            A("ds_write_b8 v5, v4 offset:%d" % M_A)
            A("L_a_rw:\nds_read_b64 v[28:29], v26 offset:%d\ns_waitcnt lgkmcnt(0)\nv_and_b32 v28, v28, v29\nv_cmp_ne_u32 vcc, 0x01010101, v28\ns_cbranch_vccnz L_a_rw" % M_W)
        else: s.meet("L_a_rw", M_A, 5, 4, 26, 28)
        for io in range(2):
            for ws in range(4):
                A("ds_read_b128 %s, v3 offset:%d" % (vr(32+16*io+4*ws, 4), RED+ws*8704+io*32), ("r", io))
        s.stamp(7)
        yst = ["global_store_dwordx4 v21, %s, s[52:53] offset:%d" % (vr(64+4*io, 4), 1024*io) for io in range(2)]
        def ysum(io):
            b = 32+16*io
            A.wait(lg=("r", io))
            for c in range(2):
                for p in range(4): A("v_add_f32 v%d, v%d, v%d" % (b+8*c+p, b+8*c+p, b+8*c+4+p))
            for r in range(4): A("v_cvt_pk_bf16_f32 v%d, v%d, v%d" % (64+4*io+r, b+r, b+8+r))
        A("s_cmp_eq_u32 s96, 1\ns_cbranch_scc1 L_a_yfar")
        def yfar():
            A("L_a_yfar:")
            for io in range(2):
                ysum(io); A(yst[io] + " sc1")
            A("s_waitcnt vmcnt(0)\ns_mov_b64 exec, 1\nglobal_store_dword v7, v9, s[14:15] offset:512 sc1\ns_branch L_a_done")
        s.side(yfar)
        for io in range(2):
            ysum(io); A(yst[io])
        A("s_mov_b64 exec, 1\ns_waitcnt vmcnt(0)")
        s.stamp(8)
        A("global_store_dword v7, v9, s[58:59] offset:512")
        A("L_a_done:")
        s.stamps_out(1, 16)
        A("s_endpgm")

    def roleB_head(s):
        A = s.A; cfg = s.cfg
        A("s_lshr_b32 s7, s5, 4\ns_and_b32 s3, s5, 15\ns_lshl_b32 s40, s4, 4\ns_add_u32 s40, s40, s3")
        A("v_and_b32 v2, 3, v0\nv_bfe_u32 v3, v0, 2, 1\nv_lshl_add_u32 v2, v2, 1, v3\nv_and_b32 v3, 8, v0\nv_add_u32 v2, v2, v3")
        A("s_sub_u32 s63, 256, s40\ns_cmp_eq_u32 s40, 0\ns_cselect_b32 s63, 128, s63\ns_sub_u32 s3, s63, s40\nv_lshrrev_b32 v3, 5, v1\nv_mul_u32_u24 v240, s3, v3\nv_add_u32 v240, s40, v240")
        A("v_and_b32 v242, 16, v0\nv_lshl_add_u32 v241, v242, 6, v240\ns_lshl_b32 s41, s6, 8\nv_lshl_add_u32 v3, v2, 4, s41\nv_lshl_add_u32 v2, v241, 10, v3")
        A("s_lshl_b32 s48, s7, 19\ns_xor_b32 s49, s48, 0x40000\ns_xor_b32 s50, s48, 0x80000\ns_xor_b32 s51, s48, 0xc0000")
        A("v_mov_b32 v244, s6\nv_mov_b32 v245, 1\nv_mov_b32 v246, 0")
        A("s_waitcnt lgkmcnt(0)")
        s.stamp(1)
        A("s_mov_b64 s[8:9], s[16:17]")
        for j in range(4): A("buffer_load_dwordx4 %s, v2, s[8:11], s%d offen %s" % (vr(s.XR(j), 4), 48+j, cfg["xnt"]), ("x", j))
        A("global_load_dwordx4 v[220:223], v3, s[32:33]", "gw")
        A("s_barrier")
        s.vmB = list(A.vm)
    def XR(s, j): return (224+4*j) if j < 2 else (64+4*j)
    def roleB(s):
        A = s.A; cfg = s.cfg; XR = s.XR; SLAB = int(cfg["slab"])
        A.reset_counters(); A.vm = list(s.vmB)
        KQ, NF, QO, MP, L7, VS = 232, 233, 234, 236, 237, 238
        A("v_lshlrev_b32 v243, 4, v1\nv_bfe_u32 v161, v0, 5, 1\nv_cvt_f32_u32 v161, v161\nv_and_b32 v167, 1, v0\ns_mov_b32 s62, 0x80008000")
        def put(f0, n):
            for f in range(f0, f0+n): A("ds_write_b128 v243, %s offset:%d" % (vr(4+4*f, 4), CL+1024*f))
        def trig(c, sn, jump):
            for j in range(8):
                A("v_cos_f32 v%d, v164\nv_sin_f32 v%d, v164" % (c+j, sn+j))
                if jump and j == 3: A("v_fmamk_f32 v164, v163, 0x40a00000, v164")
                elif j < 7: A("v_add_f32 v164, v164, v163")
        def pack(c, sn):
            for j in range(4):
                A("v_cvt_pk_bf16_f32 v%d, v%d, v%d\nv_cvt_pk_bf16_f32 v%d, v%d, v%d" % (c+j, 128+2*j, 129+2*j, sn+j, 136+2*j, 137+2*j))
        A("s_cmp_ge_u32 s6, 2\ns_cbranch_scc1 L_b_c23")
        A("v_and_b32 v160, 24, v0\nv_and_b32 v162, 3, v0\nv_lshl_add_u32 v160, v162, 1, v160\nv_bfe_u32 v162, v0, 2, 1\nv_add_u32 v160, v160, v162\nv_cvt_f32_u32 v160, v160")
        A("s_cmp_eq_u32 s6, 1\ns_cbranch_scc1 L_b_c1")
        A("v_mul_lo_u32 v165, v162, s62\nv_mul_f32 v163, 0x3d000000, v160\nv_mul_f32 v164, 0x41000000, v161\nv_mul_f32 v164, v164, v163")
        trig(128, 136, False); pack(8, 16)
        for j in range(4):
            A("v_xor_b32 v%d, v165, v%d\nv_xor_b32 v%d, v165, v%d\nv_xor_b32 v%d, s62, v%d" % (12+j, 8+j, 20+j, 16+j, 24+j, 16+j))
            A("v_xor_b32 v%d, s62, v%d" % (28+j, 20+j))
        put(1, 6)
        A("s_branch L_b_cd\nL_b_c1:")
        A("v_mul_f32 v163, 0x3b000000, v160\nv_mul_f32 v166, 4.0, v161\nv_mul_f32 v164, v166, v163")
        trig(32, 40, True)
        A("s_nop 0")
        put(7, 4)
        A("s_branch L_b_cd\nL_b_c23:\nv_cvt_f32_u32 v162, v167\nv_mul_f32 v162, 0.25, v162\ns_cmp_eq_u32 s6, 3\ns_cbranch_scc1 L_b_c3")
        A("s_cmp_eq_u32 s40, 0\ns_cselect_b32 s3, 0, 1.0\nv_mul_f32 v162, s3, v162\nv_mul_lo_u32 v165, v167, s62\nv_mul_f32 v166, 4.0, v161")
        A("v_bfe_u32 v160, v0, 1, 4\nv_cvt_f32_u32 v160, v160\nv_mul_f32 v163, 0x3d800000, v160\nv_fma_f32 v164, v166, v163, v162")
        trig(128, 136, True); pack(48, 52)
        A("s_cbranch_scc1 L_b_s0")
        for j in range(8): A("v_xor_b32 v%d, v165, v%d" % (56+j, 48+j))
        A("L_b_s0back:")
        s.tail.append("L_b_s0:\nv_cmp_eq_u32 vcc, 0, v167\ns_nop 1\n" + "\n".join("v_cndmask_b32 v%d, v%d, v167, vcc\nv_cndmask_b32 v%d, 0, v%d, vcc" % (56+j, 48+j, 48+j, 48+j) for j in range(8)) + "\ns_branch L_b_s0back")
        put(11, 4)
        A("s_branch L_b_cd\nL_b_c3:")
        A("v_bfe_u32 v160, v0, 1, 2\ns_lshl_b32 s3, s7, 2\nv_add_u32 v160, s3, v160\nv_cvt_f32_u32 v160, v160\nv_cvt_f32_u32 v161, v241")
        A("v_mul_f32 v163, 0x3a000000, v160\nv_fma_f32 v165, v163, v161, v162\nv_mul_f32 v166, 0x35000000, v160")
        for j in range(4):
            A("v_cvt_f32_u32 v164, s%d\nv_fma_f32 v164, v164, v166, v165\nv_cos_f32 v%d, v164" % (48+j, 168+j))
        for j in range(2): A("v_cvt_pk_bf16_f32 v%d, v%d, v%d" % (4+j, 168+2*j, 169+2*j))
        A("s_mov_b32 exec_lo, 0xff00ff00\ns_mov_b32 exec_hi, 0x00ff00ff\nv_mov_b64 v[4:5], 0\ns_mov_b64 exec, -1")
        put(0, 1)
        A("L_b_cd:")
        A("ds_write_b8 v244, v245 offset:%d" % M_C)
        A("v_lshrrev_b32 v%d, 4, v1\nv_and_b32 v%d, 15, v0\nv_and_b32 v%d, 7, v0" % (KQ, NF, L7))
        A("v_mul_u32_u24 v2, 2064, v%d\nv_and_b32 v3, 8, v0\nv_lshl_add_u32 v2, v3, 7, v2\nv_lshl_add_u32 v2, v242, 3, v2\nv_bfe_u32 v3, v0, 5, 1\nv_lshl_add_u32 v2, v3, 3, v2" % L7)
        A("v_add_u32 v2, s41, v2")
        A("v_lshlrev_b32 v3, 8, v3\nv_lshl_add_u32 v3, v242, 6, v3\nv_lshl_add_u32 v3, v%d, 4, v3\ns_mul_i32 s3, s6, 4128\nv_add_u32 v3, s3, v3" % NF)
        A("s_mov_b32 s46, 0x05040100\ns_mov_b32 s47, 0x07060302")
        qso = ["0", "s56", "s42", "s57"]
        def setup0():
            A("s_and_b32 s41, s5, 15\ns_lshl_b32 s3, s41, 1\ns_lshr_b32 s43, s6, 1\ns_add_u32 s3, s3, s43\ns_lshl_b32 s3, s3, 6\ns_and_b32 s51, s6, 1\ns_add_u32 s3, s3, s51\ns_lshl_b32 s3, s3, 4\ns_add_u32 s3, s3, %d" % W_G)
            A("v_and_b32 v128, 3, v0\nv_lshl_add_u32 v128, v%d, 2, v128\nv_lshl_add_u32 v128, v128, 6, s3\nv_and_b32 v129, 4, v0\nv_lshl_add_u32 v%d, v129, 1, v128" % (KQ, MP))
            A("s_bfe_u32 s50, s5, 0x10002\ns_lshl_b32 s3, s4, 1\ns_add_u32 s3, s3, s50\ns_lshl_b32 s3, s3, 2\ns_add_u32 s3, s3, s6\ns_lshl_b32 s3, s3, 6\ns_add_u32 s3, s3, s7\ns_lshl_b32 s3, s3, 2\ns_and_b32 s50, s5, 3\ns_add_u32 s3, s3, s50\ns_lshl_b32 s3, s3, 3")
            A("v_lshl_add_u32 v129, v%d, 3, v%d\ns_mov_b32 exec_lo, 0x00ff00ff\ns_mov_b32 exec_hi, 0x00ff00ff\nv_lshl_add_u32 v%d, v129, 6, s3\ns_mov_b64 exec, -1" % (KQ, L7, MP))
            s.addbase(60, 38, "%d" % W_K)
            A("s_and_b32 s3, s5, 7\ns_lshl_b32 s3, s3, 1\ns_add_u32 s3, s3, s51\ns_lshl_b32 s3, s3, 6\ns_add_u32 s3, s3, s43\ns_mul_i32 s3, s3, %d\ns_lshl_b32 s43, s4, 1\ns_add_u32 s43, s43, s7\ns_lshl_b32 s50, s43, 7\ns_add_u32 s3, s3, s50\ns_add_u32 s3, s3, %d" % (SLAB, W_V)); s.addbase(30, 38, "s3")
            A("s_lshl_b32 s50, s6, 12\ns_add_u32 s50, s50, %d\nv_lshrrev_b32 v91, 3, v1\nv_mul_u32_u24 v91, %d, v91\nv_lshl_add_u32 v91, v%d, 4, v91\nv_add_u32 v90, s50, v243" % (VL, 2*SLAB, L7))
            A("s_lshl_b32 s3, s4, 12\ns_add_u32 s3, s3, %d" % W_C); s.addbase(58, 38, "s3")
            A("s_mov_b64 s[26:27], s[58:59]\nv_lshlrev_b32 v250, 7, v%d\ns_lshl_b32 s3, s4, 7\ns_add_u32 s3, s3, %d\nv_lshl_add_u32 v248, v%d, 12, s3" % (L7, W_C+2048, L7))
            A("s_lshl_b32 s3, s41, 10\ns_lshl_b32 s41, s6, 18\ns_add_u32 s3, s3, s41\ns_lshl_b32 s43, s43, 6\ns_add_u32 s3, s3, s43")
            A("v_lshl_add_u32 v234, v%d, 16, s3\nv_lshl_add_u32 v234, v%d, 2, v234\nv_add_u32 v239, 0x100000, v234" % (KQ, NF))
            A("s_mov_b32 s56, 0x4000\ns_mov_b32 s57, 0xc000\ns_mov_b32 s42, 0x8000")
        CFR = lambda p, k, jj, b: 176+16*(k >> 1)+8*p+4*(k & 1)+2*jj+b
        def cf(lo, hi):
            for i in range(lo, hi):
                A("v_cos_f32 v134, v132\nv_sin_f32 v135, v132")
                if i < 15: A("v_fmamk_f32 v132, v131, 0x41500000, v132" if i & 3 == 3 else "v_add_f32 v132, v132, v131")
                A("v_cvt_pk_bf16_f32 v%d, v134, v135" % CFR(i & 1, i >> 3, (i >> 2) & 1, (i >> 1) & 1))
        nb = int(cfg["nb"])
        def setup1():
            A("s_lshl_b32 s3, s6, 5\ns_bfe_u32 s41, s5, 0x10003\ns_add_u32 s3, s3, s41\nv_lshl_add_u32 v128, v%d, 1, s3\nv_cvt_f32_u32 v128, v128\nv_mul_f32 v131, 0x3b800000, v128" % NF)
            A("v_cvt_f32_u32 v129, v%d\nv_mul_f32 v129, 4.0, v129\nv_mul_f32 v132, v129, v131" % KQ)
            cf(0, nb)
        def setup1b():
            cf(nb, 16)
            A("s_bfe_u32 s41, s5, 0x10003\ns_lshl_b32 s3, s41, 4\ns_lshl_b32 s43, s41, 15\nv_bfe_i32 v133, v0, 0, 1\nv_and_b32 v133, 0x80008000, v133\nv_xor_b32 v133, s43, v133")
            for i in range(16): A("v_alignbit_b32 v%d, v%d, v%d, s3\nv_xor_b32 v%d, v133, v%d" % (192+i, 176+i, 176+i, 192+i, 192+i))
            A("s_lshl_b32 s41, s41, 31\ns_or_b32 s41, s41, 0x3f803f80\ns_mov_b64 exec, 0xffff\nv_mov_b32 v176, s41\ns_mov_b64 exec, -1")
        def setup2():
            A("s_mov_b64 s[12:13], s[34:35]\ns_mov_b32 s14, 0x200000\ns_mov_b32 s15, 0x20000")
            A("v_and_b32 v92, 58, v0\nv_lshlrev_b32 v88, 4, v92\nv_and_b32 v92, 20, v0\nv_lshl_add_u32 v88, v92, 2, v88\nv_and_b32 v92, 1, v0\nv_lshl_add_u32 v88, v92, 3, v88\nv_add_u32 v88, %d, v88\nv_xor_b32 v89, 64, v88" % VL)
            A("v_and_b32 v92, 60, v0\nv_lshlrev_b32 v92, 11, v92\nv_and_b32 v93, 2, v%d\nv_xor_b32 v93, v93, v0\nv_and_b32 v93, 3, v93\nv_lshl_add_u32 v92, v93, 4, v92" % KQ)
            A("s_lshl_b32 s3, s4, 1\ns_add_u32 s3, s3, s7\ns_lshl_b32 s3, s3, 8\ns_and_b32 s41, s5, 15\ns_add_u32 s3, s3, s41\ns_lshl_b32 s3, s3, 3\ns_add_u32 s3, s3, s6\ns_lshl_b32 s3, s3, 6\ns_add_u32 s3, s3, %d" % (W_R-768))
            s.addbase(54, 38, "s3"); s.addbase(52, 54, "768")
            A("v_bfe_u32 v93, v0, 2, 2\nv_and_b32 v93, 2, v93\nv_xor_b32 v93, v93, v%d\nv_lshlrev_b32 v93, 4, v93\nv_lshl_add_u32 v93, v%d, 6, v93\ns_lshl_b32 s41, s6, 11\nv_add_u32 v93, s41, v93" % (KQ, NF))
            A("s_bfe_u32 s3, s5, 0x20002\ns_lshl_b32 s3, s3, 1\ns_add_u32 s3, s3, s7\ns_lshl_b32 s3, s3, 6\nv_lshl_add_u32 v94, v%d, 2, s3" % NF)
        QF = 16
        def qload():
            for i in range(0 if cfg.get("noq") else 8): A("buffer_load_dword v%d, v%d, s[8:11], %s offen %s" % (4+i, 239 if i >> 2 else 234, qso[i & 3], cfg["qnt"]), "q")
        def wipe():
            A("s_lshl_b32 s3, s4, 5\ns_add_u32 s3, s3, s5\ns_lshl_b32 s3, s3, 2\ns_add_u32 s3, s3, s6\ns_lshl_b32 s3, s3, 11\ns_add_u32 s3, s3, %d\nv_add_u32 v50, s3, v243" % W_R)
            A("v_mov_b64 v[52:53], -1\nv_mov_b64 v[54:55], -1\ns_lshl_b32 s3, s6, 5\ns_add_u32 s3, s3, s5\ns_lshl_b32 s3, s3, 2\nv_mov_b32 v51, s3")
        def wipe1():
            for k in range(2): A("global_store_dwordx4 v50, v[52:55], s[38:39] offset:%d" % (1024*k), "wp")
        def wiped():
            A.wait(vm="wp")
            A("v_mov_b32 v56, s45\ns_mov_b64 exec, 1\nglobal_store_dword v51, v56, s[26:27] offset:1024\ns_mov_b64 exec, -1\nds_write_b8 v244, v245 offset:%d" % M_W)
        def post():
            A("s_xor_b32 s3, s6, 2\ns_or_b32 s3, s5, s3\ns_cbranch_scc1 L_b_postd\ns_mov_b64 exec, 0xff")
            A.raw("global_store_dword v248, v253, s[38:39] sc1")
            A("s_mov_b64 exec, -1\nL_b_postd:")
        steps = dict(a=setup0, b=setup1, e=setup1b, c=setup2, q=qload, k=lambda: (A.wait(vm="vst"), s.stamp(14)), W=lambda: A.wait(vm="q"),
                     S=lambda: A("s_sleep %d" % int(cfg["ns"])), p=post, x=wipe, y=wipe1, z=wiped, P=lambda: A("s_setprio 3"), O=lambda: A("s_setprio 0"))
        def cread():
            s.meet("L_b_cw", M_C, 244, 245, 246, 247, arrive=False)
            for f in range(15): A("ds_read_b128 %s, v243 offset:%d" % (vr(4+4*f, 4), CL+1024*f), "c")
        steps["r"] = cread
        for ch in cfg["seqE"]: steps[ch]()
        s.stamp(12)
        GW, GX = 144, 128
        A.wait(vm="gw")
        for p in range(4): A("v_lshlrev_b32 v%d, 16, v%d\nv_and_b32 v%d, %s, v%d" % (GW+2*p, 220+p, GW+1+2*p, MASK, 220+p))
        for i in range(8): A("v_lshlrev_b32 v%d, 16, v%d\nv_and_b32 v%d, %s, v%d" % (GX+2*i, 224+i, GX+1+2*i, MASK, 224+i))
        for i in range(8): A("v_pk_mul_f32 %s, %s, %s" % (vr(GX+2*i, 2), vr(GX+2*i, 2), vr(GW+2*(i & 3), 2)))
        for i in range(16): A("v_cvt_pk_bf16_f32 v%d, 0, v%d" % (GX+i, GX+i))
        for i in range(4): A("v_pk_add_f32 %s, %s, %s" % (vr(GX+4*i, 2), vr(GX+4*i, 2), vr(GX+2+4*i, 2)))
        for i in range(2): A("v_pk_add_f32 %s, %s, %s" % (vr(GX+8*i, 2), vr(GX+8*i, 2), vr(GX+4+8*i, 2)))
        for i in range(2): A("v_add_f32 v%d, v%d, v%d" % (GW+i, GX+8*i, GX+1+8*i))
        perm = lambda jj, c: A("v_perm_b32 v%d, v%d, v%d, s%d" % (96+2*c+jj, XR(2*jj+1)+(c >> 1), XR(2*jj)+(c >> 1), 46+(c & 1)))
        for n, sh in enumerate((8, 4, 2, 1)):
            perm(0, 2*n); perm(0, 2*n+1)
            for r in range(2): A("v_add_f32_dpp v%d, v%d, v%d row_ror:%d %s" % (GW+r, GW+r, GW+r, sh, DPP))
        A("s_lshl_b32 s3, s6, 2\nv_lshl_add_u32 v146, v%d, 5, s3\nv_lshlrev_b32 v255, 4, v%d" % (KQ, L7))
        A("ds_write_b32 v146, v144 offset:%d\nds_write_b32 v146, v145 offset:%d" % (GL, GL+16))
        if int(cfg["prioB"]): A("s_setprio %d" % int(cfg["prioB"]))
        mfA = lambda c: A("v_mfma_f32_16x16x16_bf16 %s, %s, v[4:5], 0" % (vr(128+4*c, 4), vr(96+2*c, 2)))
        def outA(c):
            A("v_cvt_pk_bf16_f32 v%d, v%d, v%d\nv_cvt_pk_bf16_f32 v%d, v%d, v%d" % (160+2*c, 128+4*c, 129+4*c, 161+2*c, 130+4*c, 131+4*c))
            A("ds_write_b64 v2, %s offset:%d" % (vr(160+2*c, 2), X1+16*c))
        A.wait(lg="c"); s.stamp(2)
        for op in "p0 p1 p2 m0 p3 p4 m1 p5 p6 m2 p7 m3 m4 o0 m5 o1 m6 o2 m7 o3 o4 o5 o6 o7".split():
            {"p": lambda c: perm(1, c), "m": mfA, "o": outA}[op[0]](int(op[1]))
        s.meet("L_b_xw", M_X, 244, 245, 246, 247)
        for ri in range(2):
            for ks in range(2):
                A("ds_read_b128 %s, v3 offset:%d" % (vr(64+8*ri+4*ks, 4), X1+ri*2064+ks*512), ("a", ri, ks))
        A("ds_read_b128 v[252:255], v255 offset:%d" % GL, "gp")
        s.stamp(3)
        A("v_and_b32 v160, 28, v0\nv_lshlrev_b32 v238, 6, v160\nv_and_b32 v161, 3, v0\nv_lshl_add_u32 v238, v161, 4, v238")
        A("v_and_b32 v161, 32, v0\nv_lshl_add_u32 v238, v161, 1, v238\ns_and_b32 s3, s40, 4\ns_lshl_b32 s3, s3, 4\nv_xor_b32 v238, s3, v238")
        A("v_add_u32 v219, v160, v161\ns_lshl_b32 s3, s6, 2\ns_add_u32 s3, s3, %d\nv_lshl_add_u32 v219, v219, 3, s3" % KL)
        A("s_lshl_b32 s3, s7, 2\ns_add_u32 s3, s3, s6\ns_lshl_b32 s3, s3, 7\ns_add_u32 s43, s3, s40\ns_mul_i32 s3, s43, %d\ns_add_u32 s3, s3, %d" % (SLAB, W_V))
        s.addbase(28, 38, "s3")
        RE, IM = 96, 112
        M32 = "v_mfma_f32_32x32x16_bf16 %s, %s, %s, %s"
        for n in range(4):
            ri, ks = n >> 1, n & 1
            A.wait(lg=("a", ri, ks))
            A(M32 % (vr(RE, 16), vr(64+8*ri+4*ks, 4), vr((8 if ri == 0 else 16)+4*ks, 4), vr(RE, 16) if n else "0"))
        muls = []
        for o in range(16):
            muls.append("v_mul_f32 v%d, v%d, v%d" % (128+o, RE+o, 32+(o & 7)))
            muls.append("v_mul_f32_e64 v%d, -v%d, v%d" % (144+o, RE+o, 40+(o & 7)))
        for n in range(4):
            ri, ks = n >> 1, n & 1
            A(M32 % (vr(IM, 16), vr(64+8*ri+4*ks, 4), vr((24 if ri == 0 else 8)+4*ks, 4), vr(IM, 16) if n else "0"))
            if n == 0:
                A.wait(lg="gp")
                A("v_add_f32 v252, v252, v254\nv_add_f32 v253, v253, v255\nv_add_f32 v252, v252, v253")
                A("v_cvt_pk_bf16_f32 v252, 0, v252\nv_mul_f32 v252, 0xbfb8aa3b, v252\nv_exp_f32 v252, v252\nv_add_f32 v252, 1.0, v252\nv_rcp_f32 v252, v252")
                A("v_cvt_pk_bf16_f32 v252, 0, v252\nv_sub_f32 v254, 1.0, v252\nv_cvt_pk_bf16_f32 v252, v254, v252")
            for _ in range((0, 6, 6, 20)[n]): A(muls.pop(0))
        for o in range(0, 16, 2):
            A("v_pk_fma_f32 %s, %s, %s, %s" % (vr(128+o, 2), vr(IM+o, 2), vr(40+(o & 7), 2), vr(128+o, 2)))
            A("v_pk_fma_f32 %s, %s, %s, %s" % (vr(144+o, 2), vr(IM+o, 2), vr(32+(o & 7), 2), vr(144+o, 2)))
        def cv(n):
            row, ri = n >> 1, n & 1
            for p in range(4):
                o = 128+16*ri+8*row+2*p
                A("v_cvt_pk_bf16_f32 v%d, v%d, v%d" % (160+4*n+p, o, o+1))
        cv(0); cv(1)
        for n in range(4):
            A(M32 % (vr(64, 16), vr(160+4*n, 4), vr(48+4*n, 4), vr(64, 16) if n else "0"))
            if n < 2: cv(n+2)
        A("s_lshl_b32 s3, s7, 1\ns_and_b32 s41, s40, 1\ns_add_u32 s3, s3, s41\ns_lshl_b32 s3, s3, 6\ns_lshr_b32 s41, s40, 1\ns_add_u32 s3, s3, s41\ns_lshl_b32 s3, s3, 6\nv_and_b32 v255, 56, v0\nv_lshl_add_u32 v235, v%d, 3, s3\nv_lshl_add_u32 v235, v255, 11, v235" % L7)
        A("s_cmp_lg_u32 s6, 1\ns_cbranch_scc1 L_b_hd")
        A("s_sub_u32 s3, s63, s40\nv_bfe_u32 v235, v0, 2, 1\nv_mul_u32_u24 v235, s3, v235\nv_add_u32 v235, s40, v235\nv_and_b32 v255, 15, v235\nv_and_b32 v235, 0xf0, v235\nv_lshlrev_b32 v235, 2, v235\nv_lshl_add_u32 v235, v255, 11, v235")
        A("v_and_b32 v255, 10, v0\nv_lshl_add_u32 v235, v255, 2, v235\nv_and_b32 v255, 1, v0\nv_lshl_add_u32 v235, v255, 4, v235\ns_lshl_b32 s3, s7, 10\ns_add_u32 s3, s3, %d\nv_add_u32 v235, s3, v235\nL_b_hd:" % W_G)
        for p in range(8): A("v_cvt_pk_bf16_f32 v%d, v%d, v%d" % (80+p, 64+2*p, 65+2*p))
        for b in range(2):
            A("s_mov_b32 vcc_lo, 0x%x\ns_mov_b32 vcc_hi, 0x%x" % ((0x33333333 << 2*b,)*2))
            for p in range(4): A("v_cndmask_b32_dpp v%d, v%d, v%d, vcc quad_perm:[2,3,0,1] %s" % (208+4*b+p, 84-4*b+p, 80+4*b+p, DPP))
        for p in range(8): A("v_dot2_u32_u16 v%d, v%d, v%d, %s" % (216+(p >> 2), 208+p, 208+p, "v%d" % (216+(p >> 2)) if p & 3 else "0"))
        for qp in ("[1,0,3,2]", "[2,3,0,1]"):
            for b in range(2): A("v_add_u32_dpp v%d, v%d, v%d quad_perm:%s %s" % (216+b, 216+b, 216+b, qp, DPP))
        A("ds_write2_b32 v219, v216, v217 offset0:0 offset1:4\nv_lshlrev_b32 v219, 2, v1")
        if int(cfg["prioB"]): A("s_setprio 0")
        s.stamp(4)
        seq0, seq1, seq2 = cfg["seq"].split(".")
        allseq = cfg["seqE"] + seq0 + seq1 + seq2
        assert all(allseq.count(ch) == 1 for ch in "abecq" + ("xy" if cfg["inb"] is True else "")), allseq
        assert "a" in cfg["seqE"] + seq0 and "c" in cfg["seqE"] + seq0 and not set("xyz") & set(cfg["seqE"]) and "y" not in seq0 and "q" not in cfg["seqE"] + seq0
        assert allseq.index("b") < allseq.index("e") and (("b" in cfg["seqE"]) == ("e" in cfg["seqE"])) and (cfg["inb"] is not True or allseq.index("x") < allseq.index("y"))
        for ch in seq0: steps[ch]()
        for i in range(3): A("v_mov_b64 v[%d:%d], v[%d:%d]" % (40+2*i, 41+2*i, 88+2*i, 89+2*i))
        A("v_mov_b32 v46, v94")
        A("s_getreg_b32 s45, hwreg(HW_REG_XCC_ID, 0, 4)\ns_waitcnt lgkmcnt(0)")
        if int(cfg["prioD"]): A("s_setprio %d" % int(cfg["prioD"]))
        s.stamp(13)
        A("s_barrier")
        A("ds_read_b64 v[146:147], v246 offset:%d\nds_read_b32 v216, v219 offset:%d\nds_read_b32 v217, v219 offset:%d" % (M_TAG, KL, KL+256))
        for io in range(2): A("global_store_dwordx4 v%d, %s, s[28:29] offset:%d sc1" % (VS, vr(208+4*io, 4), 128*io), "vst")
        A("s_cmp_ge_u32 s6, 2\ns_waitcnt lgkmcnt(0)\nv_mov_b32 v253, v146\nv_readfirstlane_b32 s44, v146\nv_cmp_ne_u32 vcc, 0, v147\ns_cbranch_scc1 L_b_ng")
        A("s_mov_b64 exec, 0xffff\ns_cmp_eq_u32 s6, 1\ns_cbranch_scc1 L_b_g1\ns_mov_b64 exec, -1\nv_add_u32 v252, v216, v217\nL_b_g1:")
        A.raw("global_store_dwordx2 v235, v[252:253], s[60:61] sc1")
        A("L_b_ng:")
        A("s_mov_b64 exec, -1\ns_add_u32 s45, s45, s44\ns_add_u32 s45, s45, 1\ns_mov_b32 s97, 0\ns_cbranch_vccnz L_b_far\nL_b_fard:")
        def t():
            A("L_b_far:\ns_mov_b32 s45, s44\ns_mov_b32 s97, %d" % FAR)
            s.addbase(58, 58, "%d" % FARC)
            A("s_branch L_b_fard")
        s.side(t)
        if "p" not in cfg["seq"]: post()
        s.stamp(5)
        A("s_barrier")
        pl = "global_load_dword v147, v250, s[26:27] offset:2048 sc1"
        steps["L"] = lambda: (s.stamp(11), A(pl))
        gl = "global_load_dwordx2 v[144:145], v%d, s[60:61] sc1" % MP
        steps["g"] = lambda: A(gl)
        if "g" not in seq1: A("v_not_b32 v145, v253")
        for i in range(1, 4): A("v_add_u32 v%d, %d, v43" % (48+i, 16*SLAB*i))
        for ch in (seq1 if "L" in seq1 else seq1 + "L"): steps[ch]()
        A("s_mov_b32 s3, 0\nL_b_pv:\ns_waitcnt vmcnt(0)")
        A("v_cmp_ne_u32 vcc, s44, v147\ns_cbranch_vccz L_b_pv_ok\ns_mov_b64 exec, vcc\ns_sleep %d" % int(cfg["vsleep"]))
        A(pl)
        A("s_add_u32 s3, s3, 1\ns_cmp_lt_u32 s3, %d\ns_cbranch_scc1 L_b_pv\ns_waitcnt vmcnt(0)\nL_b_pv_ok:\ns_mov_b64 exec, -1" % SPIN)
        s.stamp(6)
        if cfg["inb"] is True and "z" not in cfg["seq"]: wiped()
        A("s_or_b32 s43, s2, s6\ns_cbranch_scc1 L_b_epd\ns_mov_b64 exec, 1")
        A.raw("global_store_dword v246, v253, s[38:39] sc1")
        A("s_mov_b64 exec, -1\nL_b_epd:")
        A("s_mov_b32 s98, 0\nL_b_vf:\nv_cmp_ne_u32 vcc, s44, v145\ns_cbranch_vccz L_b_gok\ns_mov_b64 exec, vcc")
        A(gl, "g")
        A("s_mov_b64 exec, -1\nL_b_gok:")
        vreg = cfg["vreg"]
        if not vreg: A("s_mov_b32 m0, s50")
        for i in range(4):
            a = 48+i if i else 43
            if vreg: A("global_load_dwordx4 %s, v%d, s[30:31] sc1" % (vr(64+4*i, 4), a), ("vd", i))
            else:
                if i: A("s_add_u32 m0, m0, 1024")
                A("global_load_lds_dwordx4 v%d, s[30:31] sc1" % a, ("vd", i))
        if vreg: A("global_load_dword v47, v46, s[58:59] offset:1024 sc1", "cf")
        if seq2:
            steps["M"] = lambda: s.meet("L_b_mw", M_W, 244, 245, 246, 247)
            A("s_cmp_lg_u32 s98, 0\ns_cbranch_scc1 L_b_s2")
            for ch in seq2: steps[ch]()
            A("L_b_s2d:")
            s.tail.append("L_b_s2:\ns_waitcnt vmcnt(0)\ns_branch L_b_s2d")
        def qunp():
            for i in range(8): A("v_lshlrev_b32 v%d, 16, v%d\nv_and_b32 v%d, %s, v%d" % (QF+2*i, 4+i, QF+2*i+1, MASK, 4+i))
        def gq():
            A("v_lshlrev_b32 v149, 16, v144\nv_and_b32 v148, %s, v144" % MASK)
            if "q" in seq2: A.wait(vm="q"); qunp()
            for i in range(16): A("v_mul_f32_dpp v%d, v148, v%d row_newbcast:%d %s" % (QF+i, QF+i, 8+(i >> 1), DPP))
        def gq2():
            qunp()
            for i in range(16): A("v_mul_f32_dpp v%d, v148, v%d row_newbcast:%d %s" % (QF+i, QF+i, 8+(i >> 1), DPP))
        if "q" not in seq2: qunp()
        A("v_mov_b32 v146, 0")
        A.wait(vm="g")
        if cfg.get("dbg"): s.stamp(2)
        A("v_cmp_ne_u32 s[48:49], s44, v145\ns_mov_b32 exec_lo, 0x00ff00ff\ns_mov_b32 exec_hi, 0x00ff00ff\nv_sub_u32 v146, 0, v144\ns_mov_b64 exec, -1")
        if cfg["gqat"] == "0": gq()
        if cfg["gqat"] == "3": A("v_lshlrev_b32 v149, 16, v144\nv_and_b32 v148, %s, v144" % MASK)
        def dots(i):
            A.wait(lg=("rb", i))
            if cfg.get("nodot"): return
            for p in range(4): A("v_dot2_u32_u16 v146, v%d, v%d, v146" % (64+4*i+p, 64+4*i+p))
        for i in range(4):
            A.wait(vm=("vd", i))
            if i == 3 and cfg.get("dbg"): s.stamp(3)
            if vreg:
                A("ds_write_b128 v42, %s offset:%d" % (vr(64+4*i, 4), 1024*i)); dots(i)
            else: A("ds_read_b128 %s, v42 offset:%d" % (vr(64+4*i, 4), 1024*i), ("rb", i))
        if not vreg:
            A("global_load_dword v47, v46, s[58:59] offset:1024 sc1", "cf")
            for i in range(4): dots(i)
        for sh in (8, 4, 2, 1): A("v_add_u32_dpp v146, v146, v146 row_ror:%d %s" % (sh, DPP))
        A("v_readlane_b32 s40, v146, 0\nv_readlane_b32 s41, v146, 16\nv_readlane_b32 s43, v146, 32\nv_readlane_b32 s51, v146, 48")
        A("s_add_u32 s40, s40, s41\ns_add_u32 s43, s43, s51\ns_add_u32 s40, s40, s43\n" + ("" if cfg.get("nodot") else "s_or_b32 s48, s48, s40\n") + "s_or_b32 s48, s48, s49\ns_cbranch_scc1 L_b_vr\nL_b_vok:")
        s.tail.append("L_b_vr:\ns_add_u32 s98, s98, 1\ns_cmp_lt_u32 s98, %d\ns_cbranch_scc0 L_b_vok\ns_sleep 2\ns_branch L_b_vf" % (SPIN//16))
        s.stamp(7)
        if cfg.get("dbg"): A("s_waitcnt lgkmcnt(0)\ns_add_u32 s88, s64, s98\ns_mov_b32 s89, s65")
        A("ds_write_b8 v244, v245 offset:%d" % M_V)
        A("s_lshl_b32 s43, s6, 11\ns_add_u32 m0, s43, %d\nv_add_u32 v44, s97, v44" % YL)
        if int(cfg["prioD"]): A("s_setprio 0")
        if cfg["gqat"] == "1": gq()
        A("s_branch L_b_vw\nL_b_vs:\ns_sleep 1\nL_b_vw:\nds_read2_b32 v[54:55], v246 offset0:%d offset1:%d\ns_waitcnt lgkmcnt(0)\nv_and_b32 v54, v54, v55\nv_cmp_ne_u32 vcc, 0x01010101, v54\ns_cbranch_vccnz L_b_vs" % (M_A//4, M_V//4))
        ydma = ["global_load_lds_dwordx4 v44, s[52:53] sc1", "global_load_lds_dwordx4 v44, s[54:55] offset:1024 sc1"]
        VF = lambda n: 64+4*n
        def trd(n):
            for jj in range(2):
                A("ds_read_b64_tr_b16 %s, v%d offset:%d" % (vr(VF(n)+2*jj, 2), 40+(n >> 3), 2048*(n & 3)+1024*jj+8192*((n >> 2) & 1)), ("t", n))
        def comb(c):
            o = []
            for r in range(4):
                e, d = 128+8*c+r, 132+8*c+r
                o += ["v_add_f32 v%d, v%d, v%d" % (160+2*r+c, e, d), "v_sub_f32 v%d, v%d, v%d" % (168+2*r+c, e, d)]
            for i in range(8): o.append("v_mul_f32_dpp v%d, v149, v%d row_newbcast:%d %s" % (160+2*i+c, 160+2*i+c, 8+i, DPP))
            return o
        ahead = int(cfg["ahead"]); ypre = int(cfg["ypre"])
        d2 = cfg.get("dbg") == "2"
        if d2: s.stamp(1)
        for n in range(ahead): trd(n)
        if cfg["gqat"] == "2": gq()
        c0 = comb(0)
        for n in range(16):
            if n >= 9 or n % 2 == 0: A.wait(lg=("t", n if n >= 8 else n+1))
            acc = vr(128+4*(n >> 2), 4)
            A("v_mfma_f32_16x16x32_bf16 %s, %s, %s, %s" % (acc, vr(CFR((n >> 2) & 1, n & 3, 0, 0), 4), vr(VF(n), 4), acc if n & 3 else "0"))
            if d2 and n in (0, 8, 15): s.stamp({0: 4, 8: 5, 15: 11}[n])
            if n+ahead < 16: trd(n+ahead)
            if n >= 11:
                for _ in range(2): A(c0.pop(0))
            if n == ypre:
                A("s_waitcnt vmcnt(0)")
                for l in ydma: A(l)
        yrd = lambda pp: A("ds_read_b128 %s, v45 offset:%d" % (vr(56+4*pp, 4), YL+1024*pp), ("y", pp))
        def yflags():
            A("L_b_yf:\ns_mov_b32 s3, 0\nL_b_py:\nglobal_load_dword v47, v46, s[58:59] offset:512 sc1\ns_waitcnt vmcnt(0)\nv_cmp_ne_u32 vcc, s45, v47\ns_cbranch_vccz L_b_py_ok")
            A("s_add_u32 s3, s3, 1\ns_cmp_lt_u32 s3, %d\ns_cbranch_scc1 L_b_py\nL_b_py_ok:\ns_waitcnt lgkmcnt(0)" % SPIN)
            for l in ydma: A(l)
            A("s_waitcnt vmcnt(0)"); yrd(0); yrd(1)
            A("s_waitcnt lgkmcnt(0)\ns_branch L_b_yok")
        s.side(yflags)
        for l in c0: A(l)
        if cfg["gqat"] == "3": gq2()
        A("v_cmp_ne_u32 s[48:49], s45, v47\ns_mov_b32 s97, 0\ns_waitcnt vmcnt(0)"); yrd(0); yrd(1)
        if d2: s.stamp(13)
        for l in comb(1): A(l)
        s.stamp(8)
        A("s_cmp_lg_u64 s[48:49], 0\ns_cbranch_scc1 L_b_yf\nL_b_yc:\ns_waitcnt lgkmcnt(0)")
        A("v_max3_u32 v47, v56, v57, v58\nv_max3_u32 v48, v59, v60, v61\nv_max3_u32 v47, v47, v62, v63\nv_max_u32 v47, v47, v48\nv_cmp_eq_u32 vcc, -1, v47\ns_cbranch_vccz L_b_yok")
        for l in ydma: A(l)
        A("s_add_u32 s97, s97, 1\ns_cmp_ge_u32 s97, %d\ns_cbranch_scc1 L_b_yf\ns_waitcnt vmcnt(0)" % NEAR_TRIES); yrd(0); yrd(1)
        A("s_branch L_b_yc\nL_b_yok:")
        A.reset_counters()
        if cfg.get("tsleep"): A("s_sleep %d" % int(cfg["tsleep"]))
        if d2: s.stamp(9)
        elif cfg.get("dbg"): A("s_add_u32 s82, s64, s97\ns_mov_b32 s83, s65")
        for pp in range(2):
            A.wait(lg=("y", pp))
            if pp: s.stamp(10)
            for r in range(4):
                o = 8*pp+2*r
                A("v_lshlrev_b32 v%d, 16, v%d\nv_and_b32 v%d, %s, v%d" % (72+o, 56+4*pp+r, 73+o, MASK, 56+4*pp+r))
                A("v_pk_fma_f32 %s, %s, %s, %s" % (vr(160+o, 2), vr(QF+o, 2), vr(72+o, 2), vr(160+o, 2)))
                A("v_cvt_pk_bf16_f32 v%d, v%d, v%d" % (96+4*pp+r, 160+o, 161+o))
                A("buffer_store_dword v%d, v%d, s[12:15], %s offen %s" % (96+4*pp+r, 239 if pp else 234, qso[r], cfg["ont"]))
        if d2: s.stamp(14)
        s.stamps_out(0, 16)
        A("L_end:\ns_endpgm")

    def build(s):
        A = s.A
        A.raw("; @launch grid=(256,1,1) block=(512,1,1) lds=%d" % LDS)
        A.raw('.amdgcn_target "amdgcn-amd-amdhsa--gfx950"\n.text\n.globl %s\n.p2align 8\n.type %s,@function\n%s:' % (KN, KN, KN))
        s.prologue()
        s.roleB_head(); A("s_branch L_roleB"); s.roleA(); A("L_roleB:"); s.roleB()
        for t in s.tail: A(t)
        A.raw(".p2align 8\n.fill 4096, 4, 0xbf810000")
        A.raw('.section .rodata,"a"\n.p2align 6\n.amdhsa_kernel %s\n.amdhsa_next_free_vgpr 256\n.amdhsa_next_free_sgpr 102\n.amdhsa_accum_offset 256\n.amdhsa_group_segment_fixed_size 0\n.amdhsa_kernarg_size 120\n.amdhsa_user_sgpr_count 2\n.amdhsa_user_sgpr_kernarg_segment_ptr 1\n.amdhsa_system_sgpr_workgroup_id_x 1\n.end_amdhsa_kernel' % KN)
        return A.finish()

if __name__ == "__main__":
    out = sys.argv[1]
    cfg = {}
    for a in sys.argv[2:]:
        k, v = a.split("=")
        cfg[k] = {"True": True, "False": False}.get(v, v)
    g = G(**cfg)
    open(out, "w").write(g.build())
    print(out, "nops inserted", g.A.nops, file=sys.stderr)
    import subprocess, os
    r = subprocess.run([sys.executable, "cdna_unwritten_srd_check.py", out], capture_output=True, text=True)
    if r.returncode != 0:
        print(r.stdout, r.stderr); os.remove(out); sys.exit(1)
```

```python
import re
TRANS = ("v_exp_f32","v_log_f32","v_rcp_f32","v_rsq_f32","v_sqrt_f32","v_sin_f32","v_cos_f32")
def regs_of(tok):
    tok = tok.strip()
    tok = tok.lstrip("-").replace("|","")
    m = re.fullmatch(r"abs\((.*)\)", tok)
    if m: tok = m.group(1)
    m = re.fullmatch(r"([vsa])(\d+)", tok)
    if m: return {(m.group(1), int(m.group(2)))}
    m = re.fullmatch(r"([vsa])\[(\d+):(\d+)\]", tok)
    if m: return {(m.group(1), i) for i in range(int(m.group(2)), int(m.group(3))+1)}
    if tok in ("vcc","vcc_lo","vcc_hi"): return {("s","vcc")}
    if tok == "m0": return {("s","m0")}
    if tok == "exec": return {("s","exec")}
    return set()
class I:
    def __init__(self, text):
        self.text = text
        t = text.split(";")[0].strip()
        self.label = t.endswith(":")
        self.directive = t.startswith(".") or t == ""
        self.op = ""; self.defs=set(); self.uses=set(); self.kind="other"; self.srcC=set(); self.srcAB=set(); self.data=set()
        if self.label or self.directive: return
        parts = t.split(None,1); self.op = op = parts[0]
        rest = parts[1] if len(parts)>1 else ""
        ops = [o.strip() for o in re.split(r",(?![^\[]*\])", rest)] if rest else []
        if ops:
            ops[-1] = ops[-1].split()[0] if ops[-1] else ops[-1]
        R = [regs_of(o) for o in ops]
        U = lambda l: set().union(*l) if l else set()
        self.dpp = ("_dpp" in op) or (" row_" in t) or ("quad_perm" in t) or ("wave_sh" in t)
        if op.startswith("v_mfma"):
            self.kind="mfma"; self.defs=R[0]; self.srcAB=R[1]|R[2]; self.srcC=R[3]; self.uses=self.srcAB|self.srcC
            self.passes = 8 if "32x32" in op else 4
        elif op.startswith("v_"):
            self.kind="valu"
            if op.startswith("v_permlane") and "swap" in op:
                self.defs=R[0]|R[1]; self.uses=R[0]|R[1]
            elif "_co_" in op:
                self.defs=R[0]|R[1]; self.uses=U(R[2:])
            else:
                self.defs=R[0]; self.uses=U(R[1:])
                if op.startswith(("v_fmac","v_dot2c","v_pk_fmac","v_writelane")) or self.dpp: self.uses|=R[0]
            if op.startswith("v_dot") and len(R)>2: self.srcAB=R[1]|R[2]
            self.trans = op.replace("_e32","").replace("_e64","") in TRANS
        elif op.startswith("ds_"):
            self.kind="ds"
            if op.startswith(("ds_read","ds_bpermute","ds_permute","ds_swizzle")) or "_rtn" in op:
                self.defs=R[0]; self.uses=U(R[1:])
            else: self.uses=U(R)
        elif op.startswith(("buffer_","global_")):
            self.kind="vmem"
            self.lds = (" lds" in t) or ("load_lds" in op)
            if op in ("buffer_wbl2","buffer_inv"): pass
            elif self.lds: self.uses=U(R)|{("s","m0")}
            elif "load" in op: self.defs=R[0]; self.uses=U(R[1:])
            else:
                self.uses=U(R)
                d = R[0] if op.startswith("buffer_") else R[1]
                if "x3" in op or "x4" in op: self.data=d
        elif op.startswith("s_"):
            self.kind="salu"
            if op.startswith(("s_cmp","s_cbranch","s_branch","s_waitcnt","s_nop","s_barrier","s_endpgm","s_sleep","s_setprio","s_bitcmp")):
                self.uses=U(R)
            else:
                self.defs=R[0] if R else set(); self.uses=U(R[1:])
                if "saveexec" in op: self.defs|={("s","exec")}
    def states(self):
        if self.label or self.directive: return 0
        if self.op=="s_nop": return int(self.text.split()[1],0)+1
        return 1
def isv(S): return {r for r in S if r[0] in "va"}
def iss(S): return {r for r in S if r[0]=="s"}
def need(p, c):
    n=0
    if p.kind=="valu":
        pv=isv(p.defs); ps=iss(p.defs)
        if c.kind=="mfma" and pv & c.uses: n=max(n,2)
        if c.kind=="valu":
            if c.dpp and pv & c.uses: n=max(n,2)
            if c.op.startswith("v_permlane") and pv & c.uses: n=max(n,2)
            if c.op.startswith(("v_readlane","v_readfirstlane")) and pv & c.uses: n=max(n,1)
            if p.trans and pv & c.uses: n=max(n,1)
            if ps & c.uses: n=max(n,4 if c.op.startswith(("v_readlane","v_writelane")) else 2)
            if ("sdwa" in p.op) and pv & (c.uses|c.defs): n=max(n,1)
            if p.op.startswith("v_dot") and pv & (c.uses|c.defs) and not (c.op==p.op and not (pv & c.srcAB)): n=max(n,3)
        if p.op.startswith("v_dot") and c.kind in("ds","vmem","mfma") and pv & c.uses: n=max(n,3)
        if c.kind=="vmem" and ps & c.uses: n=max(n,5)
        if c.kind=="salu" and ps & c.uses and not c.op.startswith("s_cbranch"): n=max(n,1)
    if p.kind=="mfma":
        big = p.passes==8
        if c.kind=="mfma":
            if p.defs & c.srcAB: n=max(n,12 if big else 8)
            if p.defs & c.srcC and not (p.defs==c.srcC and p.passes==c.passes): n=max(n,10 if big else 6)
            if p.defs & c.defs and not (p.defs==c.srcC): n=max(n,10 if big else 6)
        elif c.kind in("valu","ds","vmem"):
            if p.defs & (c.uses|c.defs): n=max(n,12 if big else 8)
            if c.kind=="valu" and p.srcC & c.defs: n=max(n,7 if big else 3)
    if p.kind=="vmem" and p.data and (p.data & c.defs): n=max(n,2)
    if p.kind=="salu" and ("s","m0") in p.defs and c.kind=="vmem" and c.lds: n=max(n,1)
    return n
class Asm:
    def __init__(self):
        self.L=[]; self.vm=[]; self.lg=[]
    def raw(self, s):
        for l in s.split("\n"):
            self.L.append(I(l.strip()))
    def __call__(self, s, tag=None):
        for l in s.split("\n"):
            l=l.strip()
            if not l: continue
            i=I(l); self.L.append(i)
            if i.kind=="vmem": self.vm.append(tag)
            if i.kind=="ds": self.lg.append(tag)
            if i.op=="s_waitcnt":
                m=re.search(r"vmcnt\((\d+)\)",l)
                if m: n=int(m.group(1)); self.vm=self.vm[len(self.vm)-n:] if n and n<len(self.vm) else ([] if n==0 else self.vm)
                m=re.search(r"lgkmcnt\((\d+)\)",l)
                if m: n=int(m.group(1)); self.lg=self.lg[len(self.lg)-n:] if n and n<len(self.lg) else ([] if n==0 else self.lg)
    def _cnt(self, q, tags):
        idx=[k for k,t in enumerate(q) if t in tags]
        if not idx: return None
        return len(q)-1-max(idx)
    def wait(self, vm=(), lg=()):
        if isinstance(vm,(str,tuple)) and not isinstance(vm,list): vm=[vm] if vm!=() else []
        if isinstance(lg,(str,tuple)) and not isinstance(lg,list): lg=[lg] if lg!=() else []
        a=self._cnt(self.vm,vm); b=self._cnt(self.lg,lg); s=[]
        if a is not None: s.append("vmcnt(%d)"%min(a,63))
        if b is not None: s.append("lgkmcnt(%d)"%min(b,15))
        if s: self("s_waitcnt "+" ".join(s))
    def reset_counters(self): self.vm=[]; self.lg=[]
    def peep(self):
        L=self.L; res=[]; i=0; n=0
        while i<len(L):
            m=re.fullmatch(r"s_lshl_b32 (s\d+), (s\d+), ([1-4])",L[i].text.strip())
            if m and i+2<len(L):
                m2=re.fullmatch(r"s_add_u32 (s\d+), (s\d+), (\S+)",L[i+1].text.strip())
                nx=L[i+2].op
                if m2 and m2.group(1)==m.group(1)==m2.group(2) and m2.group(3)!=m.group(1) and not nx.startswith(("s_addc","s_cbranch","s_cselect")):
                    res.append(I("s_lshl%s_add_u32 %s, %s, %s"%(m.group(3),m.group(1),m.group(2),m2.group(3)))); i+=2; n+=1; continue
            res.append(L[i]); i+=1
        self.L=res; self.npeep=n
    def finish(self):
        self.peep()
        out=[]; nn=0
        for c in self.L:
            if not (c.label or c.directive):
                dist=0; req=0
                for p in reversed(out):
                    if dist>=20: break
                    if p.op in("s_endpgm","s_branch"): break
                    if not (p.label or p.directive):
                        r=need(p,c)-dist
                        if r>req: req=r
                    dist+=p.states()
                if req>0:
                    out.append(I("s_nop %d"%(req-1))); nn+=1
            out.append(c)
        self.nops=nn
        return "\n".join(("" if (i.label or i.directive) else "    ")+i.text for i in out)+"\n"
```

```python
import sys
from dsl import Asm
KN = "gated_mix__ssm_conv_h3__spectral_fnet__prompt_kernel"
W_E   = 0
W_C   = 4096
FARC  = 0x10000
W_R   = 0x800000
W_K   = 0x40000
W_G   = 0x20000
W_V   = 0x400000
W_R2  = 0xa00000
STAMP_OFF = 200<<20
LCG_A, LCG_C = 1664525, 1013904223
UL = 0; HL = 9216; RED = HL + 16640; X1 = RED + 4*8704; VL = X1; GL = RED + 24576; KL = GL + 256; YL = HL; CL = RED + 8192; LDS = X1 + 16640
M_W, M_A, M_V, M_C, M_TAG, M_X, M_K = UL, UL+4, UL+8, UL+12, UL+16, UL+24, UL+28
SPIN = 40000
NEAR_TRIES = 64
MASK = "0xffff0000"
DPP = "row_mask:0xf bank_mask:0xf"

HEADER = """
; One launch, 256 workgroups of 8 waves.  Workgroups with equal id & 7 form a group that owns 64 channels.
;   two channels -> handed back to the owners of the output tiles.
; Waves 0-3 ("B"): 8-point row stage on two mirrored row sets + 32 x 16 hidden DFT, folded -> handed to all groups
; L2 when every member shows the same XCC id and are republished written-through otherwise; between groups they are
"""

def vr(a, n): return "v[%d:%d]" % (a, a+n-1)

class G:
    def __init__(s, **cfg):
        s.cfg = dict(stamps=False, nt=" nt", xnt="nt", qnt="nt", prent="nt", ont="", vsleep=2, lord="hvwipa", hpre=1, nb=14, ypre=3, rot=1,
                     slab=2048, seqE="r", seq="ac.qObePLg.", prioA=1, prioB=0, prioD=3, far=False, ns=8, inb="A", gqat='0', y0=0, ahead=7, vreg=True, white=True, csh=True, wat=0, d0=False, halo=True, ph=False, qe='2', cq=2, cn=10, wn=10, se='v', pfl='', d0nt='', hm=1, al=5)
        s.cfg.update(cfg)
        s.A = Asm(); s.tail = []
    def stamp(s, i):
        if s.cfg.get("probe") and i not in (0, int(s.cfg["probe"].split(".")[1])): return
        if s.cfg["stamps"]: s.A("%s s[%d:%d]" % ("s_memtime" if s.cfg.get("clk") else "s_memrealtime", 64+2*i, 65+2*i))
    def stamps_out(s, role, n):
        if not s.cfg["stamps"]: return
        A = s.A
        A("s_waitcnt vmcnt(0) lgkmcnt(0)")
        s.stamp(n-1)
        A("s_waitcnt lgkmcnt(0)")
        A("s_cmp_lg_u32 s6, %d\ns_cbranch_scc1 L_end" % int(s.cfg.get("sw", 0)))
        if s.cfg.get("probe"):
            pr, pi = [int(x) for x in s.cfg["probe"].split(".")]
            if pr == role:
                inv = "v_not_b32" if s.cfg.get("ref", "first") == "first" else "v_mov_b32"
                A("s_mov_b64 exec, 1\nv_mov_b32 v1, 0\nv_mov_b32 v2, s%d\n%s v3, s64\nglobal_atomic_umax v1, v2, s[36:37] sc1\nglobal_atomic_umax v1, v3, s[36:37] offset:128 sc1\ns_waitcnt vmcnt(0)" % (64+2*pi, inv))
                A("L_probe0:\ns_memrealtime s[40:41]\ns_waitcnt lgkmcnt(0)\ns_sub_u32 s40, s40, s64\ns_cmp_lt_u32 s40, 3000\ns_cbranch_scc1 L_probe0")
                A("global_load_dword v2, v1, s[36:37] sc1\nglobal_load_dword v3, v1, s[36:37] offset:128 sc1\ns_waitcnt vmcnt(0)\n%s v3, v3\nv_readfirstlane_b32 s42, v2\nv_readfirstlane_b32 s43, v3\ns_nop 3" % inv)
                A("s_sub_u32 s3, s42, s43\ns_min_u32 s3, s3, 1500\ns_mul_i32 s3, s3, %d\ns_add_u32 s3, s3, 5000" % int(s.cfg.get("skew", 5)))
                A("L_probe:\ns_memrealtime s[40:41]\ns_waitcnt lgkmcnt(0)\ns_sub_u32 s40, s40, s64\ns_cmp_lt_u32 s40, s3\ns_cbranch_scc1 L_probe")
            return
        A("s_add_u32 s38, s38, %d\ns_addc_u32 s39, s39, 0" % (STAMP_OFF + role*256*128))
        A("s_lshl_b32 s3, s2, 7\nv_mov_b32 v1, s3\ns_mov_b64 exec, 1")
        for j in range(n):
            A("v_mov_b32 v2, s%d\nv_mov_b32 v3, s%d\nglobal_store_dwordx2 v1, v[2:3], s[38:39] offset:%d\ns_nop 1" % (64+2*j, 65+2*j, 8*j))
    def side(s, fn):
        A = s.A; sv = (list(A.vm), list(A.lg)); keep = A.L; A.L = []
        fn()
        s.tail.append("\n".join(i.text for i in A.L)); A.L = keep; A.vm, A.lg = sv
    def jit(s, ch, n=100, reps=1):
        if ch in s.cfg.get("jit", ""):
            s.A("s_add_u32 s99, s5, s6\ns_and_b32 s99, s99, 7\ns_cmp_lg_u32 s99, 3\ns_cbranch_scc1 L_jit_%s\n" % ch + "s_sleep %d\n" % n * reps + "L_jit_%s:" % ch)
    def addbase(s, d, base, soff):
        s.A("s_add_u32 s%d, s%d, %s\ns_addc_u32 s%d, s%d, 0" % (d, base, soff, d+1, base+1))
    def meet(s, name, off, vw, vone, vzero, vtmp, arrive=True):
        if arrive: s.A("ds_write_b8 v%d, v%d offset:%d" % (vw, vone, off))
        s.A("%s:\nds_read_b32 v%d, v%d offset:%d\ns_waitcnt lgkmcnt(0)\nv_cmp_ne_u32 vcc, 0x01010101, v%d\ns_cbranch_vccnz %s" % (name, vtmp, vzero, off, vtmp, name))

    def prologue(s):
        A = s.A
        s.stamp(0)
        if s.cfg.get("hsleep"): A("s_sleep %d" % int(s.cfg["hsleep"]))
        A("s_load_dwordx16 s[16:31], s[0:1], 0\ns_load_dwordx8 s[32:39], s[0:1], 88")
        A("s_cmp_ge_u32 s2, 256\ns_cbranch_scc1 L_end")
        if s.cfg.get("swap"):
            A("s_or_b32 s3, s2, 1\ns_cmp_eq_u32 s3, %d\ns_cselect_b32 s3, 1, 0\ns_xor_b32 s2, s2, s3" % int(s.cfg["swap"]))
        A("s_getpc_b64 s[40:41]")
        A("s_add_u32 s4, s2, %d\ns_and_b32 s4, s4, 7\ns_lshr_b32 s5, s2, 3" % int(s.cfg["rot"]))
        A("v_lshrrev_b32 v2, 6, v0\ns_lshl_b32 s3, s5, 9\nv_lshl_add_u32 v1, v2, 6, s3\nv_readfirstlane_b32 s7, v2")
        if s.cfg.get("x_nopf"): A("v_mov_b32 v1, 0")
        A("global_load_dword v255, v1, s[40:41]", "pf")
        A("v_and_b32 v1, 63, v0\nv_and_b32 v0, 255, v0\ns_and_b32 s6, s7, 3")
        A("v_lshlrev_b32 v46, 2, v0\nv_mov_b32 v45, 0\nds_write_b32 v46, v45 offset:%d" % UL)
        A("s_mov_b32 s10, 0x200000\ns_mov_b32 s11, 0x20000")
        A("s_cmp_ge_u32 s7, 4\ns_cbranch_scc1 L_roleA")

    def roleA(s):
        A = s.A; cfg = s.cfg; nt = cfg["nt"]
        A.reset_counters(); A.vm = ["pf"]
        KR, VR = 10, 22
        A("L_roleA:")
        A("s_lshl_b32 s40, s5, 16\ns_lshl_b32 s3, s4, 7\ns_add_u32 s40, s40, s3")
        A("v_lshrrev_b32 v3, 5, v0\nv_and_b32 v4, 31, v0\nv_lshl_add_u32 v3, v3, 13, s40\nv_lshl_add_u32 v2, v4, 2, v3\nv_add_u32 v3, -3072, v2")
        A("s_lshl_b32 s3, s4, 9\nv_lshl_add_u32 v5, v4, 4, s3")
        A("s_lshl_b32 s41, s4, 5\ns_add_u32 s41, s41, s5")
        A("s_lshl_b32 s42, s41, 13\ns_add_u32 s43, s42, 4096\ns_lshl_b32 s41, s41, 2\ns_movk_i32 s7, 4096\nv_mov_b32 v49, s41")
        A("s_mov_b32 s50, 0x200000\ns_mov_b32 s51, 0x20000")
        A("s_waitcnt lgkmcnt(0)")
        s.stamp(1)
        A("s_mov_b64 s[8:9], s[18:19]")
        if cfg["se"] == "f": A("s_load_dword s44, s[38:39], 0\ns_load_dword s46, s[26:27], s41")
        for ch in cfg.get("tlb", ""):
            if ch == "V": A("v_mov_b32 v230, %d\nglobal_load_dword v230, v230, s[38:39] nt" % (W_V+0x1fff00+0), "k")
            else: A("global_load_dword v231, v45, s[%d:%d] nt" % (dict(v=(20,21), h=(24,25), o=(34,35), s=(22,23), d=(26,27), w=(38,39))[ch]), "k")
        def haloload():
            if cfg["halo"]: A("s_mov_b32 exec_hi, 0")
            for i in range(0 if cfg.get("x_nohalo") else 3): A("buffer_load_dword v%d, v3, s[8:11], 0 offen offset:%d%s" % (KR+i, 1024*i, cfg.get("hnt", nt)), "k")
            if cfg["halo"]: A("s_mov_b32 exec_hi, -1")
        if not cfg.get("hlast"): haloload()
        for i in range(8): A("buffer_load_dword v%d, v2, s[8:11], %s offen offset:%d%s" % (KR+3+i, "s7" if i >= 4 else "0", 1024*(i & 3), nt), "k")
        if cfg.get("hlast"): haloload()
        if not cfg.get("x_nosk"): A("global_load_dwordx4 v[30:33], v5, s[22:23]", "k")
        if cfg["se"] == "v":
            A("global_load_dword v9, v45, s[38:39] sc1", "k")
            A("global_load_dword v49, v49, s[26:27]", "k")
        elif cfg["se"] == "p":
            A("global_load_dword v9, v45, s[38:39]", "k")
            A("global_load_dword v49, v49, s[26:27]", "k")
        elif cfg["se"] == "s": A("s_load_dword s44, s[38:39], 0\ns_load_dword s46, s[26:27], s41")
        A("s_barrier")
        A("s_mov_b64 s[48:49], s[24:25]"); s.addbase(20, 20, "s7")
        A("s_and_b32 s28, s5, 15\ns_lshr_b32 s29, s5, 4\ns_lshl_b32 s30, s28, 3\ns_add_u32 s30, s30, s4\ns_lshl_b32 s30, s30, 7\ns_lshl_b32 s3, s29, 20\ns_add_u32 s3, s3, s30")
        RB = 34
        if cfg.get("g3"):
            RB = 36
            s.addbase(36, 38, "%d" % (0xc00000 + 128))
            if cfg["g3"] == "1": A("s_cmp_eq_u32 s4, 3\ns_cselect_b64 s[36:37], s[36:37], s[34:35]")
        s.addbase(12, RB, "s3")
        A("s_lshl_b32 s3, s4, 12\ns_add_u32 s3, s3, %d" % W_C); s.addbase(58, 38, "s3")
        A("s_lshl_b32 s3, s5, 7\nv_and_b32 v253, 64, v0\nv_add_u32 v253, s3, v253\nv_lshlrev_b32 v6, 4, v0\nv_and_b32 v252, 0xfc, v0\nv_lshlrev_b32 v252, 12, v252\nv_and_b32 v254, 3, v0\nv_lshl_add_u32 v252, v254, 5, v252")
        def addr():
            A("s_mul_i32 s3, s6, 4160\nv_min_u32 v48, 6, v1\nv_lshl_add_u32 v47, v48, 2, s3\nds_write_b32 v47, v45 offset:%d" % HL)
            A("s_lshl_b32 s47, s6, 11\ns_lshl_b32 s60, s5, 2\ns_add_u32 s60, s60, s6\ns_lshl_b32 s31, s60, 7\ns_add_u32 s31, s31, s4\ns_lshl_b32 s31, s31, 7")
            s.addbase(54, RB, "s31")
            A("s_lshl_b32 s3, s29, 6\ns_add_u32 s30, s30, s3")
            s.addbase(52, RB, "s30"); s.addbase(56, 52, "0x3fc00")
            A("s_lshl_b32 s33, s28, 2\ns_add_u32 s33, s33, s6\ns_lshl_b32 s33, s33, 5\ns_add_u32 s33, s33, s4\ns_lshl_b32 s33, s33, 7\ns_add_u32 s33, s33, s3")
            s.addbase(16, RB, "s33")
            A("v_and_b32 v233, 48, v6\nv_and_b32 v5, 60, v1\ns_lshl_b32 s3, s6, 19\nv_lshl_add_u32 v232, v5, 12, s3\nv_add_u32 v232, v232, v233")
            A("v_and_b32 v47, 28, v1\nv_lshl_add_u32 v233, v47, 16, v233\nv_and_b32 v47, 32, v1\nv_lshl_add_u32 v233, v47, 5, v233")
            A("s_lshl_b32 s3, s29, 2\ns_add_u32 s3, s3, s6\ns_lshl_b32 s3, s3, 6\nv_and_b32 v237, 15, v0\nv_lshl_add_u32 v237, v237, 2, s3")
            A("v_lshlrev_b32 v44, 3, v1\nv_lshrrev_b32 v47, 1, v1\nv_and_b32 v47, 16, v47\nv_and_b32 v48, 48, v44\nv_xor_b32 v47, v47, v48\nv_lshl_add_u32 v47, v4, 6, v47")
            A("v_add_u32 v47, s47, v47\nv_xor_b32 v48, 32, v47\nv_lshl_add_u32 v21, v1, 4, s47")
            A("v_add_u32 v8, v1, v1\nv_xor_b32 v8, v8, v6\ns_lshl_b32 s3, s5, 4\nv_xor_b32 v8, s3, v8\nv_and_b32 v8, 48, v8\nv_lshl_add_u32 v8, v5, 8, v8")
            A("s_lshl_b32 s60, s60, 2\nv_mov_b32 v7, s60\ns_add_u32 m0, s47, %d" % (UL+1024))
            A("v_and_b32 v238, 15, v0\nv_lshrrev_b32 v235, 4, v1\nv_sub_u32 v238, v238, v235")
            A("s_and_b32 s41, s6, 1\ns_lshl_b32 s41, s41, 3\ns_sub_u32 s41, 16, s41\nv_add_u32 v238, s41, v238\ns_or_b32 s3, s6, 1\ns_lshl_b32 s3, s3, 4")
            for bb in range(2):
                if bb: A("v_add_u32 v238, -4, v238")
                A("v_lshlrev_b32 v239, 2, v238\nv_xor_b32 v239, s3, v239\nv_and_b32 v239, 48, v239\nv_lshl_add_u32 v%d, v238, 6, v239" % (248+2*bb))
                A("v_xor_b32 v%d, 16, v%d" % (249+2*bb, 248+2*bb))
            A("s_mul_i32 s3, s6, 8704\nv_add_u32 v236, v235, v1\nv_lshl_add_u32 v236, v236, 4, s3")
            A("s_lshl_b32 s3, s6, 6\nv_mul_u32_u24 v3, 272, v4\nv_lshrrev_b32 v5, 1, v1\nv_and_b32 v5, 16, v5\nv_add3_u32 v3, v3, v5, s3")
            A("s_lshl_b32 s60, s5, 1\ns_add_u32 s60, s60, s3\ns_lshl_b32 s60, s60, 1")
            A("s_lshr_b32 s61, s6, 1\ns_mul_i32 s61, s61, 7808\ns_lshl_b32 s41, s6, 8\ns_add_u32 s61, s61, s41\ns_add_u32 s61, s61, %d" % HL)
            A("v_and_b32 v234, 1, v0\nv_mul_u32_u24 v234, 4158, v234\nv_lshl_add_u32 v234, v1, 1, v234\nv_add_u32 v234, s61, v234")
        for ch in cfg["lord"]:
            if ch == "a": addr()
            if ch in "vw":
                for i in (range(4) if ch == "v" else range(4, 8)): A("global_load_dword v%d, v2, s[20:21] offset:%d%s" % (VR+i, 1024*i-4096, nt), ("v", i))
            if ch in cfg.get("x_skip", ""): continue
            if ch == "h":
                A("buffer_load_dwordx4 v[36:39], v6, s[48:51], s42 offen offset:%d" % int(cfg.get("x_hoff", 4)) + nt, "h")
                if cfg["d0"]: A("s_mov_b64 exec, 1")
                A("buffer_load_dword v34, v6, s[48:51], s42 offen" + " " + cfg["d0nt"], "h")
                if cfg["d0"]: A("s_mov_b64 exec, -1")
            if ch == "i":
                A("buffer_load_dwordx4 v[40:43], v6, s[48:51], s43 offen offset:%d" % int(cfg.get("x_hoff", 4)) + nt, "h")
                if cfg["d0"]: A("s_mov_b64 exec, 1")
                A("buffer_load_dword v35, v6, s[48:51], s43 offen" + " " + cfg["d0nt"], "h")
                if cfg["d0"]: A("s_mov_b64 exec, -1")
            if ch == "p":
                A("global_load_dword v253, v253, s[58:59] " + cfg.get("cfl", "sc1"), "pre")
                if cfg["ph"]: A("s_mov_b32 exec_lo, 0x55555555\ns_mov_b32 exec_hi, 0x55555555")
                A("global_load_dword v254, v252, s[12:13] " + cfg.get("pfl", "sc1") + " " + cfg["prent"], "pre")
                if cfg["ph"]: A("s_mov_b64 exec, -1")
        if int(cfg["prioA"]): A("s_setprio %d" % int(cfg["prioA"]))
        s.stamp(11)
        KP, W, S, VP = 50, 72, 80, 96
        A.wait(vm="k")
        if cfg["se"] in "sf": A("s_waitcnt lgkmcnt(0)")
        s.stamp(2)
        if cfg["halo"]:
            for i in range(3): A("v_mov_b32 v%d, v%d" % (96+i, KR+8+i))
            for i in range(3): A("v_permlane32_swap_b32 v%d, v%d" % (KR+i, 96+i))
        for t in range(4):
            for c in range(2):
                src = 30 + 2*c + (t >> 1)
                A(("v_and_b32 v%d, " + MASK + ", v%d" if t & 1 else "v_lshlrev_b32 v%d, 16, v%d") % (W+2*t+c, src))
        for i in range(11):
            A("v_lshlrev_b32 v%d, 16, v%d\nv_and_b32 v%d, %s, v%d" % (KP+2*i, KR+i, KP+2*i+1, MASK, KR+i))
        for t in (3, 2, 1, 0):
            for r in range(8):
                k = vr(KP+2*(r+3-t), 2); w = vr(W+2*t, 2); d = vr(S+2*r, 2)
                A("v_pk_mul_f32 %s, %s, %s" % (d, k, w) if t == 3 else "v_pk_fma_f32 %s, %s, %s, %s" % (d, k, w, d))
        s.stamp(12)
        for r in range(8):
            if r in (0, 4): A.wait(vm=("v", r+3))
            if r == 4: s.stamp(10)
            A("v_lshlrev_b32 v%d, 16, v%d\nv_and_b32 v%d, %s, v%d" % (VP+2*r, VR+r, VP+2*r+1, MASK, VR+r))
            A("v_pk_mul_f32 %s, %s, %s" % (vr(S+2*r, 2), vr(S+2*r, 2), vr(VP+2*r, 2)))
            if r & 1:
                j = (7-r)//2
                for c in range(2): A("v_cvt_pk_bf16_f32 v%d, v%d, v%d" % (112+4*c+j, S+2*r+c, S+2*(r-1)+c))
        for c in range(2): A("ds_write_b128 v%d, %s offset:%d" % (47+c, vr(112+4*c, 4), RED))
        A("ds_read_b128 v[240:243], v21 offset:%d" % RED, "sh0")
        A("ds_read_b128 v[244:247], v21 offset:%d" % (RED+1024), "sh1")
        if cfg["se"] in "vp": A("v_readfirstlane_b32 s44, v9\nv_readfirstlane_b32 s46, v49")
        A("s_mov_b32 s96, 0\ns_getreg_b32 s3, hwreg(HW_REG_XCC_ID, 0, 4)")
        A("s_mul_i32 s44, s44, %d\ns_add_u32 s44, s44, %d\ns_add_u32 s45, s44, s3\ns_add_u32 s45, s45, 1" % (LCG_A, LCG_C))
        A("v_mov_b32 v9, s45\nv_mov_b32 v20, v44\nv_mov_b32 v26, 0\nv_mov_b32 v27, s44")
        A("v_mov_b32 v10, v234\nv_mov_b32 v2, v236\nv_mov_b64 v[18:19], v[232:233]\nv_mov_b32 v30, v237\nv_mov_b64 v[14:15], v[248:249]\nv_mov_b64 v[16:17], v[250:251]")
        for i in range(1, 4): A("v_add_u32 v%d, %d, v234" % (10+i, 1024*i))
        ust = ["global_store_dwordx4 v8, v[240:243], s[54:55]", "global_store_dwordx4 v8, v[244:247], s[54:55] offset:64"]
        s.jit("U", 127, 4); s.jit("u")
        A.wait(lg="sh0"); A(ust[0], "ust")
        A.wait(lg="sh1"); A(ust[1], "ust")
        s.stamp(3)
        A("ds_write_b32 v26, v27 offset:%d" % M_TAG)
        A.wait(vm="h")
        s.stamp(9)
        for c in range(2):
            d = [34+c] + [36+4*c+k for k in range(4)]
            if cfg["d0"]: A("v_mov_b32_dpp v%d, v%d wave_shr:1 %s" % (34+c, 39+4*c, DPP))
            A("ds_write_b128 v6, %s offset:%d" % (vr(36+4*c, 4), HL+c*8320+4160+32))
            for k in range(4): A("v_alignbit_b32 v%d, v%d, v%d, 16" % (50+4*c+k, d[k+1], d[k]))
            A("ds_write_b128 v6, %s offset:%d" % (vr(50+4*c, 4), HL+c*8320+32))
        A("s_mov_b64 exec, 1\ns_cmp_lg_u32 s6, 0\ns_cbranch_scc1 L_a_h0\ns_mov_b32 s62, 0xffff0000\ns_lshl_b32 s3, s46, 16\ns_and_b32 s7, s46, s62")
        A("v_lshlrev_b32 v60, 16, v34\nv_lshlrev_b32 v61, 16, v35\nv_add_f32 v60, s3, v60\nv_add_f32 v61, s7, v61\nv_cvt_pk_bf16_f32 v60, 0, v60\nv_cvt_pk_bf16_f32 v61, 0, v61")
        A("s_mov_b32 s3, 0x07060302\nv_perm_b32 v62, v34, v60, s3\nv_perm_b32 v63, v35, v61, s3")
        for c in range(2):
            A("ds_write_b32 v6, v%d offset:%d\nds_write_b32 v6, v%d offset:%d" % (60+c, HL+c*8320+28, 62+c, HL+c*8320+4160+28))
        A("L_a_h0:")
        HB = lambda q: 32+32*(0 if cfg.get('x_noh') else q)
        UB = lambda q: 160+32*(q & 1)
        ACC = 224
        def hread(q, a, half):
            bb, hf = q >> 1, q & 1
            o = 128*(a & 1)+32*bb+4*hf+2*half
            A("ds_read2_b32 %s, v%d offset0:%d offset1:%d" % (vr(HB(q)+4*a+2*half, 2), 10+(a >> 1), o, o+1), ("f", q, a))
        def uread(q, z):
            A("ds_read_b128 %s, v%d offset:%d" % (vr(UB(q)+4*z, 4), 14+q, UL+1024*z), ("f", q, z))
        npre = int(cfg["hpre"])
        hm = int(cfg["hm"])
        A("v_mov_b32 v5, s6\nv_mov_b32 v4, 1")
        if hm: A("ds_write_b8 v5, v4 offset:%d" % M_W)
        A("s_waitcnt vmcnt(0)"); s.stamp(4)
        A("global_store_dword v7, v9, s[58:59]\ns_mov_b64 exec, -1")
        if cfg.get("uhack"): A("v_and_b32 v20, 0x78, v20\ns_lshl_b32 s3, s6, 7\nv_add_u32 v20, s3, v20")
        A("s_mov_b32 s3, 0")
        if hm:
            A("global_load_dwordx2 v[22:23], v20, s[58:59] sc1")
            s.meet("L_a_hw", M_W, 5, 4, 26, 28, arrive=False)
            for q in range(hm):
                for a in range(8): hread(q, a, 0); hread(q, a, 1)
            A("s_branch L_a_pu1")
        A("L_a_pu:\nglobal_load_dwordx2 v[22:23], v20, s[58:59] sc1\nL_a_pu1:\ns_waitcnt vmcnt(0)")
        if cfg["far"]: A("s_branch L_a_far")
        A("v_cmp_ne_u32 vcc, s45, v22\nv_cmp_ne_u32 s[40:41], s45, v23\ns_or_b64 vcc, vcc, s[40:41]\ns_cbranch_scc0 L_a_pu_ok")
        if cfg.get("usleep"): A("s_sleep %d" % int(cfg["usleep"]))
        if cfg.get("umask"): A("s_mov_b64 exec, vcc")
        A("s_add_u32 s3, s3, 1\ns_cmp_lt_u32 s3, %d\ns_cbranch_scc1 L_a_pu\ns_branch L_a_far\nL_a_pu_ok:" % NEAR_TRIES)
        def far():
            A("L_a_far:\ns_mov_b64 exec, -1\ns_add_u32 s31, s31, %d" % W_R)
            s.addbase(54, 38, "s31")
            for l in ust: A(l + " sc1")
            A("buffer_wbl2 sc1")
            s.addbase(14, 58, "%d" % FARC)
            A("s_waitcnt vmcnt(0)\ns_mov_b64 exec, 1\nglobal_store_dword v7, v27, s[14:15] sc1\ns_mov_b64 exec, -1")
            A("L_a_pf:\nglobal_load_dwordx2 v[24:25], v20, s[14:15] sc1\ns_waitcnt vmcnt(0)\nglobal_load_dwordx2 v[22:23], v20, s[58:59] sc1\ns_waitcnt vmcnt(0)")
            A("v_cmp_ne_u32 vcc, s45, v22\nv_cmp_ne_u32 s[40:41], s45, v23\ns_or_b64 vcc, vcc, s[40:41]\ns_cbranch_scc0 L_a_pu_ok")
            A("v_cmp_ne_u32 vcc, s44, v24\nv_cmp_ne_u32 s[40:41], s44, v25\ns_or_b64 vcc, vcc, s[40:41]\ns_cbranch_scc0 L_a_isfar")
            A("s_sleep 8\ns_add_u32 s3, s3, 1\ns_cmp_lt_u32 s3, %d\ns_cbranch_scc1 L_a_pf" % SPIN)
            A("L_a_isfar:\ns_mov_b32 s96, 1\nv_mov_b32 v9, s44\nv_mov_b32 v28, 1\nds_write_b32 v26, v28 offset:%d\ns_waitcnt lgkmcnt(0)" % (M_TAG+4))
            A("s_add_u32 s30, s30, %d\ns_add_u32 s33, s33, %d" % (W_R, W_R2))
            s.addbase(52, 38, "s30"); s.addbase(56, 52, "0x3fc00"); s.addbase(16, 38, "s33")
            A("s_branch L_a_pu_ok")
        s.side(far)
        if cfg.get("umask"): A("s_mov_b64 exec, -1")
        s.stamp(5)
        A("global_load_lds_dwordx4 v18, s[52:53] sc1\nglobal_load_lds_dwordx4 v18, s[56:57] offset:1024 sc1")
        A("s_barrier" if hm else "s_waitcnt lgkmcnt(0)\ns_barrier")
        for q in range(hm, npre):
            for a in range(8): hread(q, a, 0); hread(q, a, 1)
        A("v_mov_b32 v29, s60\nv_mov_b32 v5, s6\nv_mov_b32 v4, 1")
        awipe = cfg["inb"] == "A"
        if awipe: A("v_mov_b64 v[22:23], -1\nv_mov_b64 v[24:25], -1")
        A("s_waitcnt vmcnt(0)")
        wipes = ["global_store_dwordx4 v18, v[22:25], s[52:53]", "global_store_dwordx4 v18, v[22:25], s[56:57] offset:1024"]
        wat = int(cfg["wat"])
        if not wat:
            for l in wipes: A(l)
        A("s_barrier")
        s.jit("w")
        s.stamp(6)
        todo = [(q, a, k) for q in range(4) for a in range(8) for k in range(3) if k == 0 or (q >= npre and not cfg.get('x_noh'))]
        def feed(n, q):
            for _ in range(n):
                if todo and todo[0][0] <= q+1:
                    qq, a, k = todo.pop(0)
                    if k == 0: uread(qq, a)
                    else: hread(qq, a, k-1)
        feed(8, 0)
        for q in range(4):
            pend = []; n = 0
            for i in range(8):
                while todo and todo[0][:2] <= (q, i): feed(1, q)
                A.wait(lg=[("f", q, i)] if q == 0 else [("f", q, z) for z in range(8)])
                for a in range(i+1):
                    if cfg.get("skipc") and q in (1, 2) and a > 0 and (i+a) % int(cfg["skipc"]) == 0:
                        feed(1, q); continue
                    acc = vr(ACC+4*i, 4)
                    A("v_mfma_f32_16x16x32_bf16 %s, %s, %s, %s" % (acc, vr(UB(q)+4*(i-a), 4), vr(HB(q)+4*a, 4), "0" if (q == 0 and a == 0) else acc))
                    n += 1
                    if n >= (8 if q == 0 else 2): feed(1, q)
                    if wat and q == 0 and n in (wat, wat+2): A(wipes.pop(0))
                    if awipe and q == int(cfg['cq']) and n == int(cfg['cn']): A("s_waitcnt vmcnt(0)\ns_mov_b64 exec, 1\nglobal_store_dword v7, v9, s[58:59] offset:1024\ns_mov_b64 exec, -1")
                    if q == 3 and n == int(cfg['wn']): A("global_load_dword v31, v30, s[58:59] offset:1024 sc1")
                    if pend and n >= pend[0][1]:
                        t = pend.pop(0)[0]
                        A("ds_write_b128 v2, %s offset:%d" % (vr(ACC+4*t, 4), RED+1088*t))
                if q == 3: pend.append((i, n+8))
            for t, _ in pend: A("ds_write_b128 v2, %s offset:%d" % (vr(ACC+4*t, 4), RED+1088*t))
        assert not todo
        s.stamp(13)
        if cfg["inb"] is True:
            A("ds_write_b8 v5, v4 offset:%d" % M_A)
            A("L_a_rw:\nds_read_b64 v[28:29], v26 offset:%d\ns_waitcnt lgkmcnt(0)\nv_and_b32 v28, v28, v29\nv_cmp_ne_u32 vcc, 0x01010101, v28\ns_cbranch_vccnz L_a_rw" % M_W)
        else: s.meet("L_a_rw", M_A, 5, 4, 26, 28)
        for io in range(2):
            for ws in range(4):
                A("ds_read_b128 %s, v3 offset:%d" % (vr(32+16*io+4*ws, 4), RED+ws*8704+io*32), ("r", io))
        s.stamp(7)
        yst = ["global_store_dwordx4 v19, %s, s[16:17] offset:%d" % (vr(64+4*io, 4), 2048*io) for io in range(2)]
        def ysum(io):
            b = 32+16*io
            A.wait(lg=("r", io))
            for c in range(2):
                for p in range(4): A("v_add_f32 v%d, v%d, v%d" % (b+8*c+p, b+8*c+p, b+8*c+4+p))
            for r in range(4): A("v_cvt_pk_bf16_f32 v%d, v%d, v%d" % (64+4*io+r, b+r, b+8+r))
        A("s_cmp_eq_u32 s96, 1\ns_cbranch_scc1 L_a_yfar")
        def yfar():
            A("L_a_yfar:")
            for io in range(2):
                ysum(io); A(yst[io] + " sc1")
            A("s_waitcnt vmcnt(0)\ns_mov_b64 exec, 1\nglobal_store_dword v29, v9, s[14:15] offset:512 sc1\ns_branch L_a_done")
        s.side(yfar)
        ysum(0)
        A("s_waitcnt vmcnt(0)\nv_cmp_ne_u32 vcc, v9, v31\ns_cbranch_vccnz L_a_ww\nL_a_wok:")
        s.tail.append("L_a_ww:\ns_mov_b32 s3, 0\nL_a_wp:\nglobal_load_dword v31, v30, s[58:59] offset:1024 sc1\ns_waitcnt vmcnt(0)\nv_cmp_ne_u32 vcc, v9, v31\ns_cbranch_vccz L_a_wok\ns_add_u32 s3, s3, 1\ns_cmp_lt_u32 s3, %d\ns_cbranch_scc1 L_a_wp\ns_branch L_a_wok" % SPIN)
        s.jit("y"); A(yst[0]); ysum(1); s.jit("Y", 127, 6); A(yst[1])
        A("s_mov_b64 exec, 1\ns_waitcnt vmcnt(0)")
        s.stamp(8)
        A("global_store_dword v29, v9, s[58:59] offset:512")
        A("L_a_done:")
        s.stamps_out(1, 16)
        A("s_endpgm")

    def roleB_head(s):
        A = s.A; cfg = s.cfg
        A("s_lshr_b32 s7, s5, 4\ns_and_b32 s3, s5, 15\ns_lshl_b32 s40, s4, 4\ns_add_u32 s40, s40, s3")
        A("v_and_b32 v2, 3, v0\nv_bfe_u32 v3, v0, 2, 1\nv_lshl_add_u32 v2, v2, 1, v3\nv_and_b32 v3, 8, v0\nv_add_u32 v2, v2, v3")
        A("s_sub_u32 s63, 256, s40\ns_cmp_eq_u32 s40, 0\ns_cselect_b32 s63, 128, s63\ns_sub_u32 s3, s63, s40\nv_lshrrev_b32 v3, 5, v1\nv_mul_u32_u24 v240, s3, v3\nv_add_u32 v240, s40, v240")
        A("v_and_b32 v242, 16, v0\nv_lshl_add_u32 v241, v242, 6, v240\ns_lshl_b32 s41, s6, 8\nv_lshl_add_u32 v3, v2, 4, s41\nv_lshl_add_u32 v2, v241, 10, v3")
        A("s_lshl_b32 s48, s7, 19\ns_xor_b32 s49, s48, 0x40000\ns_xor_b32 s50, s48, 0x80000\ns_xor_b32 s51, s48, 0xc0000")
        A("v_mov_b32 v244, s6\nv_mov_b32 v245, 1\nv_mov_b32 v246, 0")
        A("s_waitcnt lgkmcnt(0)")
        s.stamp(1)
        A("s_mov_b64 s[8:9], s[16:17]")
        for j in range(2 if cfg.get("x_halfx") else 4): A("buffer_load_dwordx4 %s, v2, s[8:11], s%d offen %s" % (vr(s.XR(j), 4), 48+j, cfg["xnt"] if j < 2 else cfg.get("x2nt", cfg["xnt"])), ("x", j))
        A("global_load_dwordx4 v[220:223], v3, s[32:33]" if not cfg.get("x_nogw") else "buffer_load_dwordx4 v[220:223], v2, s[8:11], s51 offen", "gw")
        A("s_barrier")
        s.vmB = list(A.vm)
    def XR(s, j): return (224+4*j) if j < 2 else (64+4*j)
    def roleB(s):
        A = s.A; cfg = s.cfg; XR = s.XR; SLAB = int(cfg["slab"])
        A.reset_counters(); A.vm = list(s.vmB)
        KQ, NF, QO, MP, L7, VS = 232, 233, 234, 236, 237, 238
        A("v_lshlrev_b32 v243, 4, v1\nv_bfe_u32 v161, v0, 5, 1\nv_cvt_f32_u32 v161, v161\nv_and_b32 v167, 1, v0\ns_mov_b32 s62, 0x80008000")
        def put(f0, n):
            for f in range(f0, f0+n): A("ds_write_b128 v243, %s offset:%d" % (vr(4+4*f, 4), CL+1024*f))
        def trig(c, sn, jump):
            for j in range(8):
                A("v_cos_f32 v%d, v164\nv_sin_f32 v%d, v164" % (c+j, sn+j))
                if jump and j == 3: A("v_fmamk_f32 v164, v163, 0x40a00000, v164")
                elif j < 7: A("v_add_f32 v164, v164, v163")
        def pack(c, sn):
            for j in range(4):
                A("v_cvt_pk_bf16_f32 v%d, v%d, v%d\nv_cvt_pk_bf16_f32 v%d, v%d, v%d" % (c+j, 128+2*j, 129+2*j, sn+j, 136+2*j, 137+2*j))
        A("s_cmp_ge_u32 s6, 2\ns_cbranch_scc1 L_b_c23")
        A("v_and_b32 v160, 24, v0\nv_and_b32 v162, 3, v0\nv_lshl_add_u32 v160, v162, 1, v160\nv_bfe_u32 v162, v0, 2, 1\nv_add_u32 v160, v160, v162\nv_cvt_f32_u32 v160, v160")
        A("s_cmp_eq_u32 s6, 1\ns_cbranch_scc1 L_b_c1")
        A("v_mul_lo_u32 v165, v162, s62\nv_mul_f32 v163, 0x3d000000, v160\nv_mul_f32 v164, 0x41000000, v161\nv_mul_f32 v164, v164, v163")
        trig(128, 136, False); pack(8, 16)
        for j in range(4):
            A("v_xor_b32 v%d, v165, v%d\nv_xor_b32 v%d, v165, v%d\nv_xor_b32 v%d, s62, v%d" % (12+j, 8+j, 20+j, 16+j, 24+j, 16+j))
            A("v_xor_b32 v%d, s62, v%d" % (28+j, 20+j))
        put(1, 6)
        A("s_branch L_b_cd\nL_b_c1:")
        A("v_mul_f32 v163, 0x3b000000, v160\nv_mul_f32 v166, 4.0, v161\nv_mul_f32 v164, v166, v163")
        trig(32, 40, True)
        A("s_nop 0")
        put(7, 4)
        A("s_branch L_b_cd\nL_b_c23:\nv_cvt_f32_u32 v162, v167\nv_mul_f32 v162, 0.25, v162\ns_cmp_eq_u32 s6, 3\ns_cbranch_scc1 L_b_c3")
        A("s_cmp_eq_u32 s40, 0\ns_cselect_b32 s3, 0, 1.0\nv_mul_f32 v162, s3, v162\nv_mul_lo_u32 v165, v167, s62\nv_mul_f32 v166, 4.0, v161")
        A("v_bfe_u32 v160, v0, 1, 4\nv_cvt_f32_u32 v160, v160\nv_mul_f32 v163, 0x3d800000, v160\nv_fma_f32 v164, v166, v163, v162")
        trig(128, 136, True); pack(48, 52)
        A("s_cbranch_scc1 L_b_s0")
        for j in range(8): A("v_xor_b32 v%d, v165, v%d" % (56+j, 48+j))
        A("L_b_s0back:")
        s.tail.append("L_b_s0:\nv_cmp_eq_u32 vcc, 0, v167\ns_nop 1\n" + "\n".join("v_cndmask_b32 v%d, v%d, v167, vcc\nv_cndmask_b32 v%d, 0, v%d, vcc" % (56+j, 48+j, 48+j, 48+j) for j in range(8)) + "\ns_branch L_b_s0back")
        put(11, 4)
        A("s_branch L_b_cd\nL_b_c3:")
        A("v_bfe_u32 v160, v0, 1, 2\ns_lshl_b32 s3, s7, 2\nv_add_u32 v160, s3, v160\nv_cvt_f32_u32 v160, v160\nv_cvt_f32_u32 v161, v241")
        A("v_mul_f32 v163, 0x3a000000, v160\nv_fma_f32 v165, v163, v161, v162\nv_mul_f32 v166, 0x35000000, v160")
        for j in range(4):
            A("v_cvt_f32_u32 v164, s%d\nv_fma_f32 v164, v164, v166, v165\nv_cos_f32 v%d, v164" % (48+j, 168+j))
        for j in range(2): A("v_cvt_pk_bf16_f32 v%d, v%d, v%d" % (4+j, 168+2*j, 169+2*j))
        A("s_mov_b32 exec_lo, 0xff00ff00\ns_mov_b32 exec_hi, 0x00ff00ff\nv_mov_b64 v[4:5], 0\ns_mov_b64 exec, -1")
        put(0, 1)
        A("L_b_cd:")
        A("ds_write_b8 v244, v245 offset:%d" % M_C)
        A("v_lshrrev_b32 v%d, 4, v1\nv_and_b32 v%d, 15, v0\nv_and_b32 v%d, 7, v0" % (KQ, NF, L7))
        A("v_mul_u32_u24 v2, 2064, v%d\nv_and_b32 v3, 8, v0\nv_lshl_add_u32 v2, v3, 7, v2\nv_lshl_add_u32 v2, v242, 3, v2\nv_bfe_u32 v3, v0, 5, 1\nv_lshl_add_u32 v2, v3, 3, v2" % L7)
        A("v_add_u32 v2, s41, v2")
        A("v_lshlrev_b32 v3, 8, v3\nv_lshl_add_u32 v3, v242, 6, v3\nv_lshl_add_u32 v3, v%d, 4, v3\ns_mul_i32 s3, s6, 4128\nv_add_u32 v3, s3, v3" % NF)
        A("s_mov_b32 s46, 0x05040100\ns_mov_b32 s47, 0x07060302")
        qso = ["0", "s56", "s42", "s57"]
        def setup0():
            A("s_and_b32 s41, s5, 15\ns_lshr_b32 s43, s6, 1\ns_lshl_b32 s3, s41, 1\ns_add_u32 s3, s3, s43\ns_lshl_b32 s3, s3, 6\ns_and_b32 s51, s6, 1\ns_add_u32 s3, s3, s51\ns_lshl_b32 s3, s3, 4\ns_add_u32 s3, s3, %d" % W_G)
            A("v_and_b32 v128, 3, v0\nv_lshl_add_u32 v128, v%d, 2, v128\nv_lshl_add_u32 v128, v128, 6, s3\nv_and_b32 v129, 4, v0\nv_lshl_add_u32 v%d, v129, 1, v128" % (KQ, MP))
            A("s_bfe_u32 s50, s5, 0x10002\ns_lshl_b32 s3, s4, 1\ns_add_u32 s3, s3, s50\ns_lshl_b32 s3, s3, 2\ns_add_u32 s3, s3, s6\ns_lshl_b32 s3, s3, 6\ns_add_u32 s3, s3, s7\ns_and_b32 s50, s5, 3\ns_lshl_b32 s3, s3, 2\ns_add_u32 s3, s3, s50\ns_lshl_b32 s3, s3, 3")
            A("v_lshl_add_u32 v129, v%d, 3, v%d\ns_mov_b32 exec_lo, 0x00ff00ff\ns_mov_b32 exec_hi, 0x00ff00ff\nv_lshl_add_u32 v%d, v129, 6, s3\ns_mov_b64 exec, -1" % (KQ, L7, MP))
            s.addbase(60, 38, "%d" % W_K)
            A("s_and_b32 s3, s5, 7\ns_lshl_b32 s3, s3, 1\ns_add_u32 s3, s3, s51\ns_lshl_b32 s3, s3, 6\ns_add_u32 s3, s3, s43\ns_mul_i32 s3, s3, %d\ns_lshl_b32 s43, s4, 1\ns_add_u32 s43, s43, s7\ns_lshl_b32 s50, s43, 7\ns_add_u32 s3, s3, s50\ns_add_u32 s3, s3, %d" % (SLAB, W_V)); s.addbase(30, 38, "s3")
            A("s_lshl_b32 s50, s6, 12\ns_add_u32 s50, s50, %d\nv_lshrrev_b32 v91, 3, v1\nv_mul_u32_u24 v91, %d, v91\nv_lshl_add_u32 v91, v%d, 4, v91\nv_add_u32 v90, s50, v243" % (VL, 2*SLAB, L7))
            A("s_lshl_b32 s3, s4, 12\ns_add_u32 s3, s3, %d" % W_C); s.addbase(58, 38, "s3")
            A("s_mov_b64 s[26:27], s[58:59]\nv_lshlrev_b32 v250, 7, v%d\ns_lshl_b32 s3, s4, 7\ns_add_u32 s3, s3, %d\nv_lshl_add_u32 v248, v%d, 12, s3" % (L7, W_C+2048, L7))
            A("s_lshl_b32 s3, s41, 10\ns_lshl_b32 s41, s6, 18\ns_add_u32 s3, s3, s41\ns_lshl_b32 s43, s43, 6\ns_add_u32 s3, s3, s43")
            A("v_lshl_add_u32 v234, v%d, 16, s3\nv_lshl_add_u32 v234, v%d, 2, v234\nv_add_u32 v239, 0x100000, v234" % (KQ, NF))
            A("s_mov_b32 s56, 0x4000\ns_mov_b32 s57, 0xc000\ns_mov_b32 s42, 0x8000")
        CFR = lambda p, k, jj, b: 176+16*(k >> 1)+8*p+4*(k & 1)+2*jj+b
        def cf(lo, hi):
            for i in range(lo, hi):
                A("v_cos_f32 v134, v132\nv_sin_f32 v135, v132")
                if i < 15: A("v_fmamk_f32 v132, v131, 0x41500000, v132" if i & 3 == 3 else "v_add_f32 v132, v132, v131")
                A("v_cvt_pk_bf16_f32 v%d, v134, v135" % CFR(i & 1, i >> 3, (i >> 2) & 1, (i >> 1) & 1))
        nb = int(cfg["nb"])
        def setup1():
            A("s_lshl_b32 s3, s6, 5\ns_bfe_u32 s41, s5, 0x10003\ns_add_u32 s3, s3, s41\nv_lshl_add_u32 v128, v%d, 1, s3\nv_cvt_f32_u32 v128, v128\nv_mul_f32 v131, 0x3b800000, v128" % NF)
            A("v_cvt_f32_u32 v129, v%d\nv_mul_f32 v129, 4.0, v129\nv_mul_f32 v132, v129, v131" % KQ)
            cf(0, nb)
        def setup1b():
            cf(nb, 16)
            A("s_bfe_u32 s41, s5, 0x10003\ns_lshl_b32 s3, s41, 4\ns_lshl_b32 s43, s41, 15\nv_bfe_i32 v133, v0, 0, 1\nv_and_b32 v133, 0x80008000, v133\nv_xor_b32 v133, s43, v133")
            for i in range(16): A("v_alignbit_b32 v%d, v%d, v%d, s3\nv_xor_b32 v%d, v133, v%d" % (192+i, 176+i, 176+i, 192+i, 192+i))
            A("s_lshl_b32 s41, s41, 31\ns_or_b32 s41, s41, 0x3f803f80\ns_mov_b64 exec, 0xffff\nv_mov_b32 v176, s41\ns_mov_b64 exec, -1")
        def setup2():
            A("s_mov_b64 s[12:13], s[34:35]\ns_mov_b32 s14, 0x200000\ns_mov_b32 s15, 0x20000")
            A("v_and_b32 v92, 58, v0\nv_lshlrev_b32 v88, 4, v92\nv_and_b32 v92, 20, v0\nv_lshl_add_u32 v88, v92, 2, v88\nv_and_b32 v92, 1, v0\nv_lshl_add_u32 v88, v92, 3, v88\nv_add_u32 v88, %d, v88\nv_xor_b32 v89, 64, v88" % VL)
            A("v_and_b32 v92, 0xfc, v0\nv_lshlrev_b32 v92, 12, v92\nv_and_b32 v93, 2, v%d\nv_xor_b32 v93, v93, v0\nv_and_b32 v93, 3, v93\nv_lshl_add_u32 v92, v93, 4, v92" % KQ)
            A("s_and_b32 s24, s5, 15\ns_lshl_b32 s24, s24, 3\ns_add_u32 s24, s24, s4\ns_lshl_b32 s24, s24, 1\ns_add_u32 s24, s24, s7\ns_lshl_b32 s24, s24, 6")
            RB = 34
            if cfg.get("g3"):
                RB = 52
                s.addbase(52, 38, "%d" % (0xc00000 + 128))
                if cfg["g3"] == "1": A("s_cmp_eq_u32 s4, 3\ns_cselect_b64 s[52:53], s[52:53], s[34:35]")
            s.addbase(52, RB, "s24"); s.addbase(54, 52, "0xffc00")
            A("v_bfe_u32 v93, v0, 2, 2\nv_and_b32 v93, 2, v93\nv_xor_b32 v93, v93, v%d\nv_lshlrev_b32 v93, 4, v93\nv_lshl_add_u32 v93, v%d, 6, v93\ns_lshl_b32 s41, s6, 11\nv_add_u32 v93, s41, v93" % (KQ, NF))
            A("s_bfe_u32 s3, s5, 0x20002\ns_lshl_b32 s3, s3, 1\ns_add_u32 s3, s3, s7\ns_lshl_b32 s3, s3, 6\nv_lshl_add_u32 v94, v%d, 2, s3" % NF)
        QF = 16
        def qload():
            for i in range(0 if cfg.get("noq") else 8): A("buffer_load_dword v%d, v%d, s[8:11], %s offen %s" % (4+i, 239 if i >> 2 else 234, qso[i & 3], cfg["qnt"]), "q")
        def post():
            A("s_xor_b32 s3, s6, 2\ns_or_b32 s3, s5, s3\ns_cbranch_scc1 L_b_postd\ns_mov_b64 exec, 0xff")
            A.raw("global_store_dword v248, v253, s[38:39] sc1")
            A("s_mov_b64 exec, -1\nL_b_postd:")
        steps = dict(a=setup0, b=setup1, e=setup1b, c=setup2, q=qload, k=lambda: (A.wait(vm="vst"), s.stamp(14)), W=lambda: A.wait(vm="q"),
                     S=lambda: A("s_sleep %d" % int(cfg["ns"])), p=post, P=lambda: A("s_setprio 3"), O=lambda: A("s_setprio 0"))
        def cread():
            s.meet("L_b_cw", M_C, 244, 245, 246, 247, arrive=False)
            for f in range(15): A("ds_read_b128 %s, v243 offset:%d" % (vr(4+4*f, 4), CL+1024*f), "c")
        steps["r"] = cread
        for ch in cfg["seqE"]: steps[ch]()
        s.stamp(12)
        GW, GX = 144, 128
        A.wait(vm="gw")
        for p in range(4): A("v_lshlrev_b32 v%d, 16, v%d\nv_and_b32 v%d, %s, v%d" % (GW+2*p, 220+p, GW+1+2*p, MASK, 220+p))
        for i in range(8): A("v_lshlrev_b32 v%d, 16, v%d\nv_and_b32 v%d, %s, v%d" % (GX+2*i, 224+i, GX+1+2*i, MASK, 224+i))
        for i in range(8): A("v_pk_mul_f32 %s, %s, %s" % (vr(GX+2*i, 2), vr(GX+2*i, 2), vr(GW+2*(i & 3), 2)))
        for i in range(16): A("v_cvt_pk_bf16_f32 v%d, 0, v%d" % (GX+i, GX+i))
        for i in range(4): A("v_pk_add_f32 %s, %s, %s" % (vr(GX+4*i, 2), vr(GX+4*i, 2), vr(GX+2+4*i, 2)))
        for i in range(2): A("v_pk_add_f32 %s, %s, %s" % (vr(GX+8*i, 2), vr(GX+8*i, 2), vr(GX+4+8*i, 2)))
        for i in range(2): A("v_add_f32 v%d, v%d, v%d" % (GW+i, GX+8*i, GX+1+8*i))
        perm = lambda jj, c: A("v_perm_b32 v%d, v%d, v%d, s%d" % (96+2*c+jj, XR(2*jj+1)+(c >> 1), XR(2*jj)+(c >> 1), 46+(c & 1)))
        for n, sh in enumerate((8, 4, 2, 1)):
            perm(0, 2*n); perm(0, 2*n+1)
            for r in range(2): A("v_add_f32_dpp v%d, v%d, v%d row_ror:%d %s" % (GW+r, GW+r, GW+r, sh, DPP))
        A("s_lshl_b32 s3, s6, 2\nv_lshl_add_u32 v146, v%d, 5, s3\nv_lshlrev_b32 v255, 4, v%d" % (KQ, L7))
        A("ds_write_b32 v146, v144 offset:%d\nds_write_b32 v146, v145 offset:%d" % (GL, GL+16))
        if int(cfg["prioB"]): A("s_setprio %d" % int(cfg["prioB"]))
        mfA = lambda c: A("v_mfma_f32_16x16x16_bf16 %s, %s, v[4:5], 0" % (vr(128+4*c, 4), vr(96+2*c, 2)))
        def outA(c):
            A("v_cvt_pk_bf16_f32 v%d, v%d, v%d\nv_cvt_pk_bf16_f32 v%d, v%d, v%d" % (160+2*c, 128+4*c, 129+4*c, 161+2*c, 130+4*c, 131+4*c))
            A("ds_write_b64 v2, %s offset:%d" % (vr(160+2*c, 2), X1+16*c))
        A.wait(lg="c"); s.stamp(2)
        for op in "p0 p1 p2 m0 p3 p4 m1 p5 p6 m2 p7 m3 m4 o0 m5 o1 m6 o2 m7 o3 o4 o5 o6 o7".split():
            {"p": lambda c: perm(1, c), "m": mfA, "o": outA}[op[0]](int(op[1]))
        s.meet("L_b_xw", M_X, 244, 245, 246, 247)
        for ri in range(2):
            for ks in range(2):
                A("ds_read_b128 %s, v3 offset:%d" % (vr(64+8*ri+4*ks, 4), X1+ri*2064+ks*512), ("a", ri, ks))
        A("ds_read_b128 v[252:255], v255 offset:%d" % GL, "gp")
        s.stamp(3)
        A("v_and_b32 v160, 28, v0\nv_lshlrev_b32 v238, 6, v160\nv_and_b32 v161, 3, v0\nv_lshl_add_u32 v238, v161, 4, v238")
        A("v_and_b32 v161, 32, v0\nv_lshl_add_u32 v238, v161, 1, v238\ns_and_b32 s3, s40, 4\ns_lshl_b32 s3, s3, 4\nv_xor_b32 v238, s3, v238")
        A("v_add_u32 v219, v160, v161\ns_lshl_b32 s3, s6, 2\ns_add_u32 s3, s3, %d\nv_lshl_add_u32 v219, v219, 3, s3" % KL)
        A("s_lshl_b32 s3, s7, 2\ns_add_u32 s3, s3, s6\ns_lshl_b32 s3, s3, 7\ns_add_u32 s43, s3, s40\ns_mul_i32 s3, s43, %d\ns_add_u32 s3, s3, %d" % (SLAB, W_V))
        s.addbase(28, 38, "s3")
        RE, IM = 96, 112
        M32 = "v_mfma_f32_32x32x16_bf16 %s, %s, %s, %s"
        shadow = []
        if cfg["csh"]:
            keep = A.L; A.L = []; setup2(); A.peep(); body = A.L; A.L = keep
            cut = [len(body)*k//4 for k in range(5)]
            for k in range(1, 4):
                while body[cut[k]].op.startswith(("s_addc", "s_cselect")): cut[k] += 1
            shadow = [body[cut[k]:cut[k+1]] for k in range(4)]
        for n in range(4):
            ri, ks = n >> 1, n & 1
            A.wait(lg=("a", ri, ks))
            A(M32 % (vr(RE, 16), vr(64+8*ri+4*ks, 4), vr((8 if ri == 0 else 16)+4*ks, 4), vr(RE, 16) if n else "0"))
            if shadow: A.L += shadow[n]
        muls = []
        for o in range(16):
            muls.append("v_mul_f32 v%d, v%d, v%d" % (128+o, RE+o, 32+(o & 7)))
            muls.append("v_mul_f32_e64 v%d, -v%d, v%d" % (144+o, RE+o, 40+(o & 7)))
        for n in range(4):
            ri, ks = n >> 1, n & 1
            A(M32 % (vr(IM, 16), vr(64+8*ri+4*ks, 4), vr((24 if ri == 0 else 8)+4*ks, 4), vr(IM, 16) if n else "0"))
            if n == 0:
                A.wait(lg="gp")
                A("v_add_f32 v252, v252, v254\nv_add_f32 v253, v253, v255\nv_add_f32 v252, v252, v253")
                A("v_cvt_pk_bf16_f32 v252, 0, v252\nv_mul_f32 v252, 0xbfb8aa3b, v252\nv_exp_f32 v252, v252\nv_add_f32 v252, 1.0, v252\nv_rcp_f32 v252, v252")
                A("v_cvt_pk_bf16_f32 v252, 0, v252\nv_sub_f32 v254, 1.0, v252\nv_cvt_pk_bf16_f32 v252, v254, v252")
            for _ in range((0, 6, 6, 20)[n]): A(muls.pop(0))
        for o in range(0, 16, 2):
            A("v_pk_fma_f32 %s, %s, %s, %s" % (vr(128+o, 2), vr(IM+o, 2), vr(40+(o & 7), 2), vr(128+o, 2)))
            A("v_pk_fma_f32 %s, %s, %s, %s" % (vr(144+o, 2), vr(IM+o, 2), vr(32+(o & 7), 2), vr(144+o, 2)))
        def cv(n):
            row, ri = n >> 1, n & 1
            for p in range(4):
                o = 128+16*ri+8*row+2*p
                A("v_cvt_pk_bf16_f32 v%d, v%d, v%d" % (160+4*n+p, o, o+1))
        cv(0); cv(1)
        for n in range(4):
            A(M32 % (vr(64, 16), vr(160+4*n, 4), vr(48+4*n, 4), vr(64, 16) if n else "0"))
            if n < 2: cv(n+2)
        A("s_and_b32 s41, s40, 1\ns_lshl_b32 s3, s7, 1\ns_add_u32 s3, s3, s41\ns_lshl_b32 s3, s3, 6\ns_lshr_b32 s41, s40, 1\ns_add_u32 s3, s3, s41\ns_lshl_b32 s3, s3, 6\nv_and_b32 v255, 56, v0\nv_lshl_add_u32 v235, v%d, 3, s3\nv_lshl_add_u32 v235, v255, 11, v235" % L7)
        A("s_nop 1\ns_cmp_lg_u32 s6, 1\ns_cbranch_scc1 L_b_hd")
        A("s_sub_u32 s3, s63, s40\nv_bfe_u32 v235, v0, 2, 1\nv_mul_u32_u24 v235, s3, v235\nv_add_u32 v235, s40, v235\nv_and_b32 v255, 15, v235\nv_and_b32 v235, 0xf0, v235\nv_lshlrev_b32 v235, 2, v235\nv_lshl_add_u32 v235, v255, 11, v235")
        A("v_and_b32 v255, 10, v0\nv_lshl_add_u32 v235, v255, 2, v235\nv_and_b32 v255, 1, v0\nv_lshl_add_u32 v235, v255, 4, v235\ns_lshl_b32 s3, s7, 10\ns_add_u32 s3, s3, %d\nv_add_u32 v235, s3, v235\nL_b_hd:" % W_G)
        for p in range(8): A("v_cvt_pk_bf16_f32 v%d, v%d, v%d" % (80+p, 64+2*p, 65+2*p))
        for b in range(2):
            A("s_mov_b32 vcc_lo, 0x%x\ns_mov_b32 vcc_hi, 0x%x" % ((0x33333333 << 2*b,)*2))
            for p in range(4): A("v_cndmask_b32_dpp v%d, v%d, v%d, vcc quad_perm:[2,3,0,1] %s" % (208+4*b+p, 84-4*b+p, 80+4*b+p, DPP))
        for p in range(8): A("v_dot2_u32_u16 v%d, v%d, v%d, %s" % (216+(p >> 2), 208+p, 208+p, "v%d" % (216+(p >> 2)) if p & 3 else "0"))
        for qp in ("[1,0,3,2]", "[2,3,0,1]"):
            for b in range(2): A("v_add_u32_dpp v%d, v%d, v%d quad_perm:%s %s" % (216+b, 216+b, 216+b, qp, DPP))
        A("ds_write2_b32 v219, v216, v217 offset0:0 offset1:4\nv_lshlrev_b32 v219, 2, v1")
        qe = cfg["qe"]
        if qe: A("ds_write_b8 v244, v245 offset:%d" % M_K)
        if int(cfg["prioB"]): A("s_setprio 0")
        s.stamp(4)
        seq0, seq1, seq2 = cfg["seq"].split(".")
        if cfg["csh"]: steps["c"] = lambda: None
        allseq = cfg["seqE"] + seq0 + seq1 + seq2
        assert all(allseq.count(ch) == 1 for ch in "abecq" + ("xy" if cfg["inb"] is True else "")), allseq
        assert "a" in cfg["seqE"] + seq0 and "c" in cfg["seqE"] + seq0 and not set("xyz") & set(cfg["seqE"]) and "y" not in seq0 and "q" not in cfg["seqE"] + seq0
        assert allseq.index("b") < allseq.index("e") and (("b" in cfg["seqE"]) == ("e" in cfg["seqE"])) and (cfg["inb"] is not True or allseq.index("x") < allseq.index("y"))
        for ch in seq0: steps[ch]()
        for i in range(3): A("v_mov_b64 v[%d:%d], v[%d:%d]" % (40+2*i, 41+2*i, 88+2*i, 89+2*i))
        A("v_mov_b32 v46, v94")
        A("s_getreg_b32 s45, hwreg(HW_REG_XCC_ID, 0, 4)\ns_waitcnt lgkmcnt(0)")
        if cfg["white"]:
            assert cfg["vreg"] and int(cfg["hm"])
            A("s_branch L_b_tw\nL_b_ts:\ns_sleep 1\nL_b_tw:\nds_read_b32 v146, v246 offset:%d\nds_read_b32 v253, v246 offset:%d\ns_waitcnt lgkmcnt(0)\nv_cmp_eq_u32 vcc, 0, v146\ns_cbranch_vccnz L_b_ts" % (M_W, M_TAG))
            for p in range(8): A("v_xor_b32 v%d, v253, v%d" % (208+p, 208+p))
            A("v_readfirstlane_b32 s44, v253\ns_add_u32 s45, s45, 1\ns_add_u32 s45, s45, s44")
        if qe:
            A("s_cmp_eq_u32 s6, 1\ns_cselect_b32 s48, 0xffff, 0\ns_mov_b32 s49, 0\ns_cmp_lg_u32 s6, 0\ns_cbranch_scc1 L_b_kd")
            s.meet("L_b_kw", M_K, 244, 245, 246, 247, arrive=False)
            A("ds_read_b32 v216, v219 offset:%d\nds_read_b32 v217, v219 offset:%d\ns_mov_b64 s[48:49], -1\ns_waitcnt lgkmcnt(0)\nv_add_u32 v252, v216, v217\nL_b_kd:" % (KL, KL+256))
        if int(cfg["prioD"]): A("s_setprio %d" % int(cfg["prioD"]))
        s.stamp(13)
        A("s_barrier")
        s.jit("V")
        late = "D" in cfg.get("jit", "")
        for io in range(0 if cfg.get("x_novst") else (1 if late else 2)): A("global_store_dwordx4 v%d, %s, s[28:29] offset:%d sc1" % (VS, vr(208+4*io, 4), 128*io), "vst")
        s.jit("K")
        assert cfg["white"]
        if qe:
            A("s_cmp_ge_u32 s6, 2\ns_cbranch_scc1 L_b_ng\ns_mov_b64 exec, s[48:49]")
            A.raw("global_store_dwordx2 v235, v[252:253], s[60:61] sc1")
            A("s_mov_b64 exec, -1\nL_b_ng:")
            post()
            A("ds_read_b32 v147, v246 offset:%d\ns_waitcnt lgkmcnt(0)" % (M_TAG+4))
            if qe == "1": qload(); steps["q"] = lambda: None
            A("v_cmp_ne_u32 vcc, 0, v147\ns_cbranch_vccnz L_b_far\nL_b_fard:")
        else:
            A("ds_read_b32 v147, v246 offset:%d\nds_read_b32 v216, v219 offset:%d\nds_read_b32 v217, v219 offset:%d" % (M_TAG+4, KL, KL+256))
            if "p" not in cfg["seq"]: post()
            A("s_cmp_ge_u32 s6, 2\ns_waitcnt lgkmcnt(0)\nv_cmp_ne_u32 vcc, 0, v147\ns_cbranch_scc1 L_b_ng")
            A("s_mov_b64 exec, 0xffff\ns_cmp_eq_u32 s6, 1\ns_cbranch_scc1 L_b_g1\ns_mov_b64 exec, -1\nv_add_u32 v252, v216, v217\nL_b_g1:")
            A.raw("global_store_dwordx2 v235, v[252:253], s[60:61] sc1")
            A("L_b_ng:")
            A("s_mov_b64 exec, -1\ns_cbranch_vccnz L_b_far\nL_b_fard:")
        def t():
            A("L_b_far:\ns_mov_b32 s45, s44\ns_add_u32 s24, s24, %d" % W_R2)
            s.addbase(52, 38, "s24"); s.addbase(54, 52, "0xffc00")
            s.addbase(58, 58, "%d" % FARC)
            A("s_branch L_b_fard")
        s.side(t)
        s.stamp(5)
        A("s_barrier")
        if late:
            s.jit("D"); A("global_store_dwordx4 v%d, v[212:215], s[28:29] offset:128 sc1" % VS, "vst")
        pl = "global_load_dword v147, v250, s[26:27] offset:2048 sc1"
        steps["L"] = lambda: (s.stamp(11), A(pl))
        gl = "global_load_dwordx2 v[144:145], v%d, s[60:61] sc1" % MP
        steps["g"] = lambda: A(gl)
        if "g" not in seq1: A("v_not_b32 v145, v253")
        for i in range(1, 4): A("v_add_u32 v%d, %d, v43" % (48+i, 16*SLAB*i))
        for ch in (seq1 if "L" in seq1 else seq1 + "L"): steps[ch]()
        A("s_mov_b32 s3, 0\nL_b_pv:\ns_waitcnt vmcnt(0)")
        A("v_cmp_ne_u32 vcc, s44, v147\ns_cbranch_vccz L_b_pv_ok\ns_mov_b64 exec, vcc\ns_sleep %d" % int(cfg["vsleep"]))
        A(pl)
        A("s_add_u32 s3, s3, 1\ns_cmp_lt_u32 s3, %d\ns_cbranch_scc1 L_b_pv\ns_waitcnt vmcnt(0)\nL_b_pv_ok:\ns_mov_b64 exec, -1" % SPIN)
        s.stamp(6)
        if cfg["inb"] is True and "z" not in cfg["seq"]: wiped()
        A("s_or_b32 s43, s2, s6\ns_cbranch_scc1 L_b_epd\ns_mov_b64 exec, 1")
        A.raw("global_store_dword v246, v253, s[38:39] sc1")
        A("s_mov_b64 exec, -1\nL_b_epd:")
        if cfg.get("x_nov"): A("s_branch L_b_vok")
        A("s_mov_b32 s98, 0\nL_b_vf:\nv_cmp_ne_u32 vcc, s44, v145\ns_cbranch_vccz L_b_gok\ns_mov_b64 exec, vcc")
        A(gl, "g")
        A("s_mov_b64 exec, -1\nL_b_gok:")
        vreg = cfg["vreg"]
        if not vreg: A("s_mov_b32 m0, s50")
        for i in range(4):
            a = 48+i if i else 43
            if vreg: A("global_load_dwordx4 %s, v%d, s[30:31] sc1" % (vr(64+4*i, 4), a), ("vd", i))
            else:
                if i: A("s_add_u32 m0, m0, 1024")
                A("global_load_lds_dwordx4 v%d, s[30:31] sc1" % a, ("vd", i))
        if seq2:
            steps["M"] = lambda: s.meet("L_b_mw", M_W, 244, 245, 246, 247)
            A("s_cmp_lg_u32 s98, 0\ns_cbranch_scc1 L_b_s2")
            for ch in seq2: steps[ch]()
            A("L_b_s2d:")
            s.tail.append("L_b_s2:\ns_waitcnt vmcnt(0)\ns_branch L_b_s2d")
        def qunp():
            for i in range(8): A("v_lshlrev_b32 v%d, 16, v%d\nv_and_b32 v%d, %s, v%d" % (QF+2*i, 4+i, QF+2*i+1, MASK, 4+i))
        def gq():
            A("v_lshlrev_b32 v149, 16, v144\nv_and_b32 v148, %s, v144" % MASK)
            if "q" in seq2: A.wait(vm="q"); qunp()
            for i in range(16): A("v_mul_f32_dpp v%d, v148, v%d row_newbcast:%d %s" % (QF+i, QF+i, 8+(i >> 1), DPP))
        def gq2():
            qunp()
            for i in range(16): A("v_mul_f32_dpp v%d, v148, v%d row_newbcast:%d %s" % (QF+i, QF+i, 8+(i >> 1), DPP))
        if "q" not in seq2: qunp()
        A("v_mov_b32 v146, 0")
        A.wait(vm="g")
        if cfg.get("dbg"): s.stamp(2)
        A("v_cmp_ne_u32 s[48:49], s44, v145\ns_mov_b32 exec_lo, 0x00ff00ff\ns_mov_b32 exec_hi, 0x00ff00ff\nv_sub_u32 v146, 0, v144\ns_mov_b64 exec, -1")
        if cfg["gqat"] == "0": gq()
        if cfg["gqat"] == "3": A("v_lshlrev_b32 v149, 16, v144\nv_and_b32 v148, %s, v144" % MASK)
        def dots(i):
            A.wait(lg=("rb", i))
            if cfg.get("nodot"): return
            for p in range(4): A("v_dot2_u32_u16 v146, v%d, v%d, v146" % (64+4*i+p, 64+4*i+p))
        for i in range(4):
            A.wait(vm=("vd", i))
            if i == 3 and cfg.get("dbg"): s.stamp(3)
            if vreg:
                if cfg["white"]:
                    for p in range(4): A("v_xor_b32 v%d, v253, v%d" % (64+4*i+p, 64+4*i+p))
                A("ds_write_b128 v42, %s offset:%d" % (vr(64+4*i, 4), 1024*i)); dots(i)
            else: A("ds_read_b128 %s, v42 offset:%d" % (vr(64+4*i, 4), 1024*i), ("rb", i))
        if not vreg:
            for i in range(4): dots(i)
        for sh in (8, 4, 2, 1): A("v_add_u32_dpp v146, v146, v146 row_ror:%d %s" % (sh, DPP))
        A("v_readlane_b32 s40, v146, 0\nv_readlane_b32 s41, v146, 16\nv_readlane_b32 s43, v146, 32\nv_readlane_b32 s51, v146, 48")
        A("s_add_u32 s40, s40, s41\ns_add_u32 s43, s43, s51\ns_add_u32 s40, s40, s43\n" + ("" if cfg.get("nodot") else "s_or_b32 s48, s48, s40\n") + "s_or_b32 s48, s48, s49\ns_cbranch_scc1 L_b_vr\nL_b_vok:")
        s.tail.append("L_b_vr:\ns_add_u32 s98, s98, 1\ns_cmp_lt_u32 s98, %d\ns_cbranch_scc0 L_b_vok\ns_sleep 2\ns_branch L_b_vf" % (SPIN//16))
        s.stamp(7)
        if cfg.get("dbg"): A("s_waitcnt lgkmcnt(0)\ns_add_u32 s88, s64, s98\ns_mov_b32 s89, s65")
        A("ds_write_b8 v244, v245 offset:%d" % M_V)
        A("s_lshl_b32 s43, s6, 11\ns_add_u32 m0, s43, %d" % YL)
        if int(cfg["prioD"]): A("s_setprio 0")
        if cfg["gqat"] == "1": gq()
        A("s_branch L_b_vw\nL_b_vs:\ns_sleep 1\nL_b_vw:\nds_read2_b32 v[54:55], v246 offset0:%d offset1:%d\ns_waitcnt lgkmcnt(0)\nv_and_b32 v54, v54, v55\nv_cmp_ne_u32 vcc, 0x01010101, v54\ns_cbranch_vccnz L_b_vs" % ((M_V if cfg.get("x_noy") else M_A)//4, M_V//4))
        ydma = ["global_load_lds_dwordx4 v44, s[52:53] sc1", "global_load_lds_dwordx4 v44, s[54:55] offset:1024 sc1"]
        VF = lambda n: 64+4*n
        def trd(n):
            for jj in range(2):
                A("ds_read_b64_tr_b16 %s, v%d offset:%d" % (vr(VF(n)+2*jj, 2), 40+(n >> 3), 2048*(n & 3)+1024*jj+8192*((n >> 2) & 1)), ("t", n))
        def comb(c):
            o = []
            for r in range(4):
                e, d = 128+8*c+r, 132+8*c+r
                o += ["v_add_f32 v%d, v%d, v%d" % (160+2*r+c, e, d), "v_sub_f32 v%d, v%d, v%d" % (168+2*r+c, e, d)]
            for i in range(8): o.append("v_mul_f32_dpp v%d, v149, v%d row_newbcast:%d %s" % (160+2*i+c, 160+2*i+c, 8+i, DPP))
            return o
        ahead = int(cfg["ahead"]); ypre = int(cfg["ypre"])
        d2 = cfg.get("dbg") == "2"
        if d2: s.stamp(1)
        for n in range(ahead): trd(n)
        if cfg["gqat"] == "2": gq()
        c0 = comb(0)
        for n in range(16):
            if n >= 9 or n % 2 == 0: A.wait(lg=("t", n if n >= 8 else n+1))
            acc = vr(128+4*(n >> 2), 4)
            A("v_mfma_f32_16x16x32_bf16 %s, %s, %s, %s" % (acc, vr(CFR((n >> 2) & 1, n & 3, 0, 0), 4), vr(VF(n), 4), acc if n & 3 else "0"))
            if d2 and n in (0, 8, 15): s.stamp({0: 4, 8: 5, 15: 11}[n])
            if n+ahead < 16: trd(n+ahead)
            if n >= 11:
                for _ in range(2): A(c0.pop(0))
            if n == ypre:
                for l in ydma: A(l)
        yrd = lambda pp: A("ds_read_b128 %s, v45 offset:%d" % (vr(56+4*pp, 4), YL+1024*pp), ("y", pp))
        def yflags():
            A("L_b_yf:\ns_mov_b32 s3, 0\nL_b_py:\nglobal_load_dword v47, v46, s[58:59] offset:512 sc1\ns_waitcnt vmcnt(0)\nv_cmp_ne_u32 vcc, s45, v47\ns_cbranch_vccz L_b_py_ok")
            A("s_add_u32 s3, s3, 1\ns_cmp_lt_u32 s3, %d\ns_cbranch_scc1 L_b_py\nL_b_py_ok:\ns_waitcnt lgkmcnt(0)" % SPIN)
            for l in ydma: A(l)
            A("s_waitcnt vmcnt(0)"); yrd(0); yrd(1)
            A("s_waitcnt lgkmcnt(0)\ns_branch L_b_yok")
        s.side(yflags)
        for l in c0: A(l)
        if cfg["gqat"] == "3": gq2()
        A("s_mov_b32 s97, 0\ns_waitcnt vmcnt(0)"); yrd(0); yrd(1)
        if d2: s.stamp(13)
        for l in comb(1): A(l)
        s.stamp(8)
        A("s_cmp_eq_u32 s44, s45\ns_cbranch_scc1 L_b_yf\nL_b_yc:\ns_waitcnt lgkmcnt(0)")
        A("v_max3_u32 v47, v56, v57, v58\nv_max3_u32 v48, v59, v60, v61\nv_max3_u32 v47, v47, v62, v63\nv_max_u32 v47, v47, v48\nv_cmp_eq_u32 vcc, -1, v47\n" + ("s_branch L_b_yok" if cfg.get("x_noy") else "s_cbranch_vccz L_b_yok"))
        for l in ydma: A(l)
        A("s_add_u32 s97, s97, 1\ns_cmp_ge_u32 s97, %d\ns_cbranch_scc1 L_b_yf\ns_waitcnt vmcnt(0)" % NEAR_TRIES); yrd(0); yrd(1)
        A("s_branch L_b_yc\nL_b_yok:")
        A.reset_counters()
        if cfg.get("tsleep"): A("s_sleep %d" % int(cfg["tsleep"]))
        if d2: s.stamp(9)
        elif cfg.get("dbg"): A("s_add_u32 s82, s64, s97\ns_mov_b32 s83, s65")
        for pp in range(2):
            A.wait(lg=("y", pp))
            if pp: s.stamp(10)
            for r in range(4):
                o = 8*pp+2*r
                A("v_lshlrev_b32 v%d, 16, v%d\nv_and_b32 v%d, %s, v%d" % (72+o, 56+4*pp+r, 73+o, MASK, 56+4*pp+r))
                A("v_pk_fma_f32 %s, %s, %s, %s" % (vr(160+o, 2), vr(QF+o, 2), vr(72+o, 2), vr(160+o, 2)))
                A("v_cvt_pk_bf16_f32 v%d, v%d, v%d" % (96+4*pp+r, 160+o, 161+o))
                A("buffer_store_dword v%d, v%d, s[12:15], %s offen %s" % (96+4*pp+r, 239 if pp else 234, qso[r], cfg["ont"]))
        if d2: s.stamp(14)
        s.stamps_out(0, 16)
        A("L_end:\ns_endpgm")

    def build(s):
        A = s.A
        A.raw(HEADER.strip("\n"))
        A.raw("; @launch grid=(256,1,1) block=(512,1,1) lds=%d" % LDS)
        A.raw('.amdgcn_target "amdgcn-amd-amdhsa--gfx950"\n.text\n.globl %s\n.p2align 8\n.type %s,@function\n%s:' % (KN, KN, KN))
        s.prologue()
        s.roleB_head(); A("s_branch L_roleB"); s.roleA(); A("L_roleB:"); s.roleB()
        for t in s.tail: A(t)
        A.raw(".p2align 8\n.fill 1536, 4, 0xbf810000")
        A.raw('.section .rodata,"a"\n.p2align 6\n.amdhsa_kernel %s\n.amdhsa_next_free_vgpr 256\n.amdhsa_next_free_sgpr 102\n.amdhsa_accum_offset 256\n.amdhsa_group_segment_fixed_size 0\n.amdhsa_kernarg_size 120\n.amdhsa_user_sgpr_count 2\n.amdhsa_user_sgpr_kernarg_segment_ptr 1\n.amdhsa_system_sgpr_workgroup_id_x 1\n.end_amdhsa_kernel' % KN)
        return A.finish()

if __name__ == "__main__":
    out = sys.argv[1]
    cfg = {}
    for a in sys.argv[2:]:
        k, v = a.split("=")
        cfg[k] = {"True": True, "False": False}.get(v, v)
    g = G(**cfg)
    txt = g.build()
    if int(g.cfg.get("al", 0)):
        from align import align
        txt, nf, npad = align(txt, int(g.cfg["al"])); print("aligned runs", nf, "pads", npad, file=sys.stderr)
    open(out, "w").write(txt)
    print(out, "nops inserted", g.A.nops, file=sys.stderr)
    import subprocess, os
    r = subprocess.run([sys.executable, "cdna_unwritten_srd_check.py", out], capture_output=True, text=True)
    if r.returncode != 0:
        print(r.stdout, r.stderr); os.remove(out); sys.exit(1)
```

```python
import sys
from dsl import Asm
KN = "gated_mix__ssm_conv_h3__spectral_fnet__prompt_kernel"
W_E   = 0
W_C   = 4096
FARC  = 0x10000
W_R   = 0x800000
W_K   = 0x40000
W_G   = 0x20000
W_V   = 0x400000
W_R2  = 0xa00000
STAMP_OFF = 200<<20
LCG_A, LCG_C = 1664525, 1013904223
UL = 0; HL = 9216; RED = HL + 16640; X1 = RED + 4*8704; VL = X1; GL = RED + 24576; KL = GL + 256; YL = HL; CL = RED + 8192; LDS = X1 + 16640
M_W, M_A, M_V, M_C, M_TAG, M_X, M_K = UL, UL+4, UL+8, UL+12, UL+16, UL+24, UL+28
SPIN = 40000
NEAR_TRIES = 64
MASK = "0xffff0000"
DPP = "row_mask:0xf bank_mask:0xf"

HEADER = """
; One launch, 256 workgroups of 8 waves.  Workgroups with equal id & 7 form a group that owns 64 channels.
;   two channels -> handed back to the owners of the output tiles.
; Waves 0-3 ("B"): 8-point row stage on two mirrored row sets + 32 x 16 hidden DFT, folded -> handed to all groups
;   -> 256-point stage for a 128-row x 32-channel output tile, gate, final mix.  DFT factors are computed in the kernel.
; L2 when every member shows the same XCC id and are republished written-through otherwise; between groups they are
"""

def vr(a, n): return "v[%d:%d]" % (a, a+n-1)

class G:
    def __init__(s, **cfg):
        s.cfg = dict(stamps=False, nt=" nt", xnt="nt", qnt="nt", prent="nt", ont="", vsleep=2, lord="hvwipa", hpre=1, nb=14, ypre=3, rot=1,
                     slab=2048, seqE="r", seq="ac.qObePLg.", prioA=1, prioB=0, prioD=3, far=False, ns=8, inb="A", gqat='0', y0=0, ahead=7, vreg=True, white=True, csh=True, fin='0', t_gw=False, t_sk=False, t_h=False, t_c=False, dsh=False, hst='em', early=False, pw=False, wat=0, d0=False, halo=True, ph=False, qe='2', cq=2, cn=10, wn=24, se='v', pfl='', d0nt='', hm=1, al=5)
        s.cfg.update(cfg)
        s.A = Asm(); s.tail = []; s.role = "p"
    def stamp(s, i):
        if s.cfg.get("dly") == "%s%d" % (s.role, i): s.A("s_sleep 4")
        if s.cfg.get("probe") and i not in (0, int(s.cfg["probe"].split(".")[1])): return
        if s.cfg["stamps"]: s.A("%s s[%d:%d]" % ("s_memtime" if s.cfg.get("clk") else "s_memrealtime", 64+2*i, 65+2*i))
    def stamps_out(s, role, n):
        if not s.cfg["stamps"]: return
        A = s.A
        A("s_waitcnt vmcnt(0) lgkmcnt(0)")
        s.stamp(n-1)
        A("s_waitcnt lgkmcnt(0)")
        A("s_cmp_lg_u32 s6, %d\ns_cbranch_scc1 L_end" % int(s.cfg.get("sw", 0)))
        if s.cfg.get("probe"):
            pr, pi = [int(x) for x in s.cfg["probe"].split(".")]
            if pr == role:
                inv = "v_not_b32" if s.cfg.get("ref", "first") == "first" else "v_mov_b32"
                A("s_mov_b64 exec, 1\nv_mov_b32 v1, 0\nv_mov_b32 v2, s%d\n%s v3, s64\nglobal_atomic_umax v1, v2, s[36:37] sc1\nglobal_atomic_umax v1, v3, s[36:37] offset:128 sc1\ns_waitcnt vmcnt(0)" % (64+2*pi, inv))
                A("L_probe0:\ns_memrealtime s[40:41]\ns_waitcnt lgkmcnt(0)\ns_sub_u32 s40, s40, s64\ns_cmp_lt_u32 s40, 3000\ns_cbranch_scc1 L_probe0")
                A("global_load_dword v2, v1, s[36:37] sc1\nglobal_load_dword v3, v1, s[36:37] offset:128 sc1\ns_waitcnt vmcnt(0)\n%s v3, v3\nv_readfirstlane_b32 s42, v2\nv_readfirstlane_b32 s43, v3\ns_nop 3" % inv)
                A("s_sub_u32 s3, s42, s43\ns_min_u32 s3, s3, 1500\ns_mul_i32 s3, s3, %d\ns_add_u32 s3, s3, 5000" % int(s.cfg.get("skew", 5)))
                A("L_probe:\ns_memrealtime s[40:41]\ns_waitcnt lgkmcnt(0)\ns_sub_u32 s40, s40, s64\ns_cmp_lt_u32 s40, s3\ns_cbranch_scc1 L_probe")
            return
        A("s_add_u32 s38, s38, %d\ns_addc_u32 s39, s39, 0" % (STAMP_OFF + role*256*128))
        A("s_lshl_b32 s3, s2, 7\nv_mov_b32 v1, s3\ns_mov_b64 exec, 1")
        for j in range(n):
            A("v_mov_b32 v2, s%d\nv_mov_b32 v3, s%d\nglobal_store_dwordx2 v1, v[2:3], s[38:39] offset:%d\ns_nop 1" % (64+2*j, 65+2*j, 8*j))
    def side(s, fn):
        A = s.A; sv = (list(A.vm), list(A.lg)); keep = A.L; A.L = []
        fn()
        s.tail.append("\n".join(i.text for i in A.L)); A.L = keep; A.vm, A.lg = sv
    def jit(s, ch, n=100, reps=1):
        if ch in s.cfg.get("jit", ""):
            s.A("s_add_u32 s99, s5, s6\ns_and_b32 s99, s99, 7\ns_cmp_lg_u32 s99, 3\ns_cbranch_scc1 L_jit_%s\n" % ch + "s_sleep %d\n" % n * reps + "L_jit_%s:" % ch)
    def addbase(s, d, base, soff):
        s.A("s_add_u32 s%d, s%d, %s\ns_addc_u32 s%d, s%d, 0" % (d, base, soff, d+1, base+1))
    def meet(s, name, off, vw, vone, vzero, vtmp, arrive=True):
        if arrive: s.A("ds_write_b8 v%d, v%d offset:%d" % (vw, vone, off))
        s.A("%s:\nds_read_b32 v%d, v%d offset:%d\ns_waitcnt lgkmcnt(0)\nv_cmp_ne_u32 vcc, 0x01010101, v%d\ns_cbranch_vccnz %s" % (name, vtmp, vzero, off, vtmp, name))

    def prologue(s):
        A = s.A
        s.stamp(0)
        if s.cfg.get("hsleep"): A("s_sleep %d" % int(s.cfg["hsleep"]))
        A("s_load_dwordx16 s[16:31], s[0:1], 0\ns_load_dwordx8 s[32:39], s[0:1], 88")
        A("s_cmp_ge_u32 s2, 256\ns_cbranch_scc1 L_end")
        if s.cfg.get("swap"):
            A("s_or_b32 s3, s2, 1\ns_cmp_eq_u32 s3, %d\ns_cselect_b32 s3, 1, 0\ns_xor_b32 s2, s2, s3" % int(s.cfg["swap"]))
        A("s_getpc_b64 s[40:41]")
        A("s_add_u32 s4, s2, %d\ns_and_b32 s4, s4, 7\ns_lshr_b32 s5, s2, 3" % int(s.cfg["rot"]))
        A("v_lshrrev_b32 v2, 6, v0\ns_lshl_b32 s3, s5, 9\nv_lshl_add_u32 v1, v2, 6, s3\nv_readfirstlane_b32 s7, v2")
        if s.cfg.get("x_nopf"): A("v_mov_b32 v1, 0")
        A("global_load_dword v255, v1, s[40:41]", "pf")
        A("v_and_b32 v1, 63, v0\nv_and_b32 v0, 255, v0\ns_and_b32 s6, s7, 3")
        A("v_lshlrev_b32 v46, 2, v0\nv_mov_b32 v45, 0\nds_write_b32 v46, v45 offset:%d" % UL)
        A("s_mov_b32 s10, 0x200000\ns_mov_b32 s11, 0x20000")
        A("s_cmp_ge_u32 s7, 4\ns_cbranch_scc1 L_roleA")

    def roleA(s):
        A = s.A; cfg = s.cfg; nt = cfg["nt"]
        A.reset_counters(); A.vm = ["pf"]
        KR, VR = 10, 22
        A("L_roleA:"); s.role = "a"
        A("s_lshl_b32 s40, s5, 16\ns_lshl_b32 s3, s4, 7\ns_add_u32 s40, s40, s3")
        dsh = cfg["dsh"]
        if dsh:
            A("s_lshl_b32 s3, s6, 14\ns_add_u32 s40, s40, s3\nv_lshrrev_b32 v5, 1, v1\nv_bfi_b32 v5, 1, v1, v5\nv_and_b32 v3, 2, v0\nv_lshl_add_u32 v3, v3, 12, s40\nv_lshl_add_u32 v2, v5, 2, v3\nv_add_u32 v3, -3072, v2")
            A("s_lshl_b32 s3, s4, 9\nv_lshl_add_u32 v5, v5, 4, s3\nv_and_b32 v4, 31, v0")
        else:
            A("v_lshrrev_b32 v3, 5, v0\nv_and_b32 v4, 31, v0\nv_lshl_add_u32 v3, v3, 13, s40\nv_lshl_add_u32 v2, v4, 2, v3\nv_add_u32 v3, -3072, v2")
            A("s_lshl_b32 s3, s4, 9\nv_lshl_add_u32 v5, v4, 4, s3")
        A("s_lshl_b32 s41, s4, 5\ns_add_u32 s41, s41, s5")
        A("s_lshl_b32 s42, s41, 13\ns_add_u32 s43, s42, 4096\ns_lshl_b32 s41, s41, 2\ns_movk_i32 s7, 4096\nv_mov_b32 v49, s41")
        A("s_mov_b32 s50, 0x200000\ns_mov_b32 s51, 0x20000")
        early = cfg["early"]
        if early:
            assert not cfg.get("g3")
            A("s_and_b32 s56, s5, 15\ns_lshr_b32 s57, s5, 4\ns_lshl_b32 s58, s56, 3\ns_add_u32 s58, s58, s4\ns_lshl_b32 s58, s58, 7\ns_lshl_b32 s3, s57, 20\ns_add_u32 s3, s3, s58")
            A("v_lshlrev_b32 v6, 4, v0\nv_and_b32 v252, 0xfc, v0\nv_lshl_add_u32 v252, v252, 12, s3\nv_and_b32 v254, 3, v0\nv_lshl_add_u32 v252, v254, 5, v252\nv_add_u32 v231, 4096, v2")
            A("s_lshl_b32 s3, s41, 5\ns_add_u32 s3, s3, %d\nv_and_b32 v253, 64, v0\nv_add_u32 v253, s3, v253" % W_C)
        A("s_waitcnt lgkmcnt(0)")
        s.stamp(1)
        A("s_mov_b64 s[8:9], s[18:19]")
        if cfg["se"] == "f": A("s_load_dword s44, s[38:39], 0\ns_load_dword s46, s[26:27], s41")
        for ch in cfg.get("tlb", ""):
            if ch == "V": A("v_mov_b32 v230, %d\nglobal_load_dword v230, v230, s[38:39] nt" % (W_V+0x1fff00+0), "k")
            else: A("global_load_dword v231, v45, s[%d:%d] nt" % (dict(v=(20,21), h=(24,25), o=(34,35), s=(22,23), d=(26,27), w=(38,39))[ch]), "k")
        def haloload():
            if cfg["halo"]: A("s_mov_b32 exec_lo, 0x33333333\ns_mov_b32 exec_hi, 0x33333333" if dsh else "s_mov_b32 exec_hi, 0")
            for i in range(0 if cfg.get("x_nohalo") else 3): A("buffer_load_dword v%d, v3, s[8:11], 0 offen offset:%d%s" % (KR+i, 1024*i, cfg.get("hnt", nt)), "k")
            if cfg["t_sk"]: A("global_load_dwordx4 v[30:33], v5, s[22:23]", "k")
            if cfg["halo"]: A("s_mov_b64 exec, -1")
        if not cfg.get("hlast"): haloload()
        for i in range(8): A("buffer_load_dword v%d, v2, s[8:11], %s offen offset:%d%s" % (KR+3+i, "s7" if i >= 4 else "0", 1024*(i & 3), nt), "k")
        if cfg.get("hlast"): haloload()
        if not cfg["t_sk"]: A("global_load_dwordx4 v[30:33], v5, s[22:23]", "k")
        if cfg["se"] == "v":
            if cfg["t_c"]: A("s_mov_b64 exec, 1")
            A("global_load_dword v9, v45, s[38:39] sc1", "k")
            A("global_load_dword v49, v49, s[26:27]", "k")
            if cfg["t_c"]: A("s_mov_b64 exec, -1")
        elif cfg["se"] == "p":
            A("global_load_dword v9, v45, s[38:39]", "k")
            A("global_load_dword v49, v49, s[26:27]", "k")
        elif cfg["se"] == "s": A("s_load_dword s44, s[38:39], 0\ns_load_dword s46, s[26:27], s41")
        if "B" not in cfg["lord"]: A("s_barrier")
        RB = 34
        if early: A("s_mov_b64 s[48:49], s[24:25]")
        else:
            A("s_mov_b64 s[48:49], s[24:25]"); s.addbase(20, 20, "s7")
            A("s_and_b32 s28, s5, 15\ns_lshr_b32 s29, s5, 4\ns_lshl_b32 s30, s28, 3\ns_add_u32 s30, s30, s4\ns_lshl_b32 s30, s30, 7\ns_lshl_b32 s3, s29, 20\ns_add_u32 s3, s3, s30")
            RB = 34
            if cfg.get("g3"):
                RB = 36
                s.addbase(36, 38, "%d" % (0xc00000 + 128))
                if cfg["g3"] == "1": A("s_cmp_eq_u32 s4, 3\ns_cselect_b64 s[36:37], s[36:37], s[34:35]")
            s.addbase(12, RB, "s3")
            A("s_lshl_b32 s3, s4, 12\ns_add_u32 s3, s3, %d" % W_C); s.addbase(58, 38, "s3")
            A("s_lshl_b32 s3, s5, 7\nv_and_b32 v253, 64, v0\nv_add_u32 v253, s3, v253\nv_lshlrev_b32 v6, 4, v0\nv_and_b32 v252, 0xfc, v0\nv_lshlrev_b32 v252, 12, v252\nv_and_b32 v254, 3, v0\nv_lshl_add_u32 v252, v254, 5, v252")
        def addr():
            if early:
                A("s_mov_b64 s[28:29], s[56:57]\ns_mov_b32 s30, s58\ns_lshl_b32 s3, s4, 12\ns_add_u32 s3, s3, %d" % W_C); s.addbase(58, 38, "s3")
            A("s_mul_i32 s3, s6, 4160\nv_min_u32 v48, 6, v1\nv_lshl_add_u32 v47, v48, 2, s3\nds_write_b32 v47, v45 offset:%d" % HL)
            A("s_lshl_b32 s47, s6, 11\ns_lshl_b32 s60, s5, 2\ns_add_u32 s60, s60, s6\ns_lshl_b32 s31, s60, 7\ns_add_u32 s31, s31, s4\ns_lshl_b32 s31, s31, 7")
            s.addbase(54, RB, "s31")
            A("s_lshl_b32 s3, s29, 6\ns_add_u32 s30, s30, s3")
            s.addbase(52, RB, "s30"); s.addbase(56, 52, "0x3fc00")
            A("s_lshl_b32 s33, s28, 2\ns_add_u32 s33, s33, s6\ns_lshl_b32 s33, s33, 5\ns_add_u32 s33, s33, s4\ns_lshl_b32 s33, s33, 7\ns_add_u32 s33, s33, s3")
            s.addbase(16, RB, "s33")
            A("v_and_b32 v233, 48, v6\nv_and_b32 v5, 60, v1\ns_lshl_b32 s3, s6, 19\nv_lshl_add_u32 v232, v5, 12, s3\nv_add_u32 v232, v232, v233")
            A("v_and_b32 v47, 28, v1\nv_lshl_add_u32 v233, v47, 16, v233\nv_and_b32 v47, 32, v1\nv_lshl_add_u32 v233, v47, 5, v233")
            A("s_lshl_b32 s3, s29, 2\ns_add_u32 s3, s3, s6\ns_lshl_b32 s3, s3, 6\nv_and_b32 v237, 15, v0\nv_lshl_add_u32 v237, v237, 2, s3")
            if dsh:
                A("v_lshlrev_b32 v44, 3, v1\nv_lshlrev_b32 v8, 5, v1\nv_bfi_b32 v8, 32, v8, v44\ns_lshl_b32 s3, s5, 4\nv_xor_b32 v8, s3, v8\nv_and_b32 v8, 48, v8\nv_lshl_add_u32 v8, v47, 1, v8\nv_and_b32 v47, 28, v1\nv_lshl_add_u32 v8, v47, 9, v8")
            else:
                A("v_lshlrev_b32 v44, 3, v1\nv_lshrrev_b32 v47, 1, v1\nv_and_b32 v47, 16, v47\nv_and_b32 v48, 48, v44\nv_xor_b32 v47, v47, v48\nv_lshl_add_u32 v47, v4, 6, v47")
                A("v_add_u32 v47, s47, v47\nv_xor_b32 v48, 32, v47\nv_lshl_add_u32 v21, v1, 4, s47")
                A("v_add_u32 v8, v1, v1\nv_xor_b32 v8, v8, v6\ns_lshl_b32 s3, s5, 4\nv_xor_b32 v8, s3, v8\nv_and_b32 v8, 48, v8\nv_lshl_add_u32 v8, v5, 8, v8")
            A("s_lshl_b32 s60, s60, 2\nv_mov_b32 v7, s60\ns_add_u32 m0, s47, %d" % (UL+1024))
            A("v_and_b32 v238, 15, v0\nv_lshrrev_b32 v235, 4, v1\nv_sub_u32 v238, v238, v235")
            A("s_and_b32 s41, s6, 1\ns_lshl_b32 s41, s41, 3\ns_sub_u32 s41, 16, s41\nv_add_u32 v238, s41, v238\ns_or_b32 s3, s6, 1\ns_lshl_b32 s3, s3, 4")
            for bb in range(2):
                if bb: A("v_add_u32 v238, -4, v238")
                A("v_lshlrev_b32 v239, 2, v238\nv_xor_b32 v239, s3, v239\nv_and_b32 v239, 48, v239\nv_lshl_add_u32 v%d, v238, 6, v239" % (248+2*bb))
                A("v_xor_b32 v%d, 16, v%d" % (249+2*bb, 248+2*bb))
            A("s_mul_i32 s3, s6, 8704\nv_add_u32 v236, v235, v1\nv_lshl_add_u32 v236, v236, 4, s3")
            A("s_lshl_b32 s3, s6, 6\nv_mul_u32_u24 v3, 272, v4\nv_lshrrev_b32 v5, 1, v1\nv_and_b32 v5, 16, v5\nv_add3_u32 v3, v3, v5, s3")
            A("s_lshl_b32 s60, s5, 1\ns_add_u32 s60, s60, s3\ns_lshl_b32 s60, s60, 1")
            A("s_lshr_b32 s61, s6, 1\ns_mul_i32 s61, s61, 7808\ns_lshl_b32 s41, s6, 8\ns_add_u32 s61, s61, s41\ns_add_u32 s61, s61, %d" % HL)
            A("v_and_b32 v234, 1, v0\nv_mul_u32_u24 v234, 4158, v234\nv_lshl_add_u32 v234, v1, 1, v234\nv_add_u32 v234, s61, v234")
        for ch in cfg["lord"]:
            if ch == "a": addr()
            if ch == "B": A("s_barrier")
            if ch in "vw":
                for i in (range(4) if ch == "v" else range(4, 8)): A("global_load_dword v%d, v%d, s[20:21] offset:%d%s" % (VR+i, 231 if early else 2, 1024*i-4096, nt), ("v", i))
            if ch in cfg.get("x_skip", ""): continue
            if ch == "h":
                if cfg["t_h"]:
                    A("buffer_load_dwordx4 v[120:123], v6, s[48:51], s42 offen" + nt, ("h", 0))
                    A("s_mov_b32 exec_lo, 0\ns_brev_b32 exec_hi, 1\nbuffer_load_dword v39, v6, s[48:51], s42 offen offset:16" + nt + "\ns_mov_b64 exec, -1", ("h", 0))
                else:
                    A("buffer_load_dwordx4 v[36:39], v6, s[48:51], s42 offen offset:%d" % int(cfg.get("x_hoff", 4)) + nt, ("h", 0))
                    if cfg["d0"]: A("s_mov_b64 exec, 1")
                    A("buffer_load_dword v34, v6, s[48:51], s42 offen" + " " + cfg["d0nt"], ("h", 0))
                    if cfg["d0"]: A("s_mov_b64 exec, -1")
            if ch == "i":
                if cfg["t_h"]:
                    A("buffer_load_dwordx4 v[124:127], v6, s[48:51], s43 offen" + nt, ("h", 1))
                    A("s_mov_b32 exec_lo, 0\ns_brev_b32 exec_hi, 1\nbuffer_load_dword v43, v6, s[48:51], s43 offen offset:16" + nt + "\ns_mov_b64 exec, -1", ("h", 1))
                else:
                    A("buffer_load_dwordx4 v[40:43], v6, s[48:51], s43 offen offset:%d" % int(cfg.get("x_hoff", 4)) + nt, ("h", 1))
                    if cfg["d0"]: A("s_mov_b64 exec, 1")
                    A("buffer_load_dword v35, v6, s[48:51], s43 offen" + " " + cfg["d0nt"], ("h", 1))
                    if cfg["d0"]: A("s_mov_b64 exec, -1")
            if ch == "p":
                if cfg["t_c"]: A("s_mov_b64 exec, 1")
                A("global_load_dword v253, v253, s[%s] " % ("38:39" if early else "58:59") + cfg.get("cfl", "sc1"), "pre")
                if cfg["t_c"]: A("s_mov_b64 exec, -1")
                if cfg["ph"]: A("s_mov_b32 exec_lo, 0x55555555\ns_mov_b32 exec_hi, 0x55555555")
                A("global_load_dword v254, v252, s[%s] " % ("34:35" if early else "12:13") + cfg.get("pfl", "sc1") + " " + cfg["prent"], "pre")
                if cfg["ph"]: A("s_mov_b64 exec, -1")
        if int(cfg["prioA"]): A("s_setprio %d" % int(cfg["prioA"]))
        s.stamp(11)
        KP, W, S, VP = 50, 72, 80, 96
        A.wait(vm="k")
        if cfg["se"] in "sf": A("s_waitcnt lgkmcnt(0)")
        s.stamp(2)
        if cfg["halo"] and dsh:
            A("s_mov_b32 vcc_lo, 0x33333333\ns_mov_b32 vcc_hi, 0x33333333")
            for i in range(3): A("v_cndmask_b32_dpp v%d, v%d, v%d, vcc quad_perm:[0,1,0,1] %s" % (KR+i, KR+8+i, KR+i, DPP))
        elif cfg["halo"]:
            for i in range(3): A("v_mov_b32 v%d, v%d" % (96+i, KR+8+i))
            for i in range(3): A("v_permlane32_swap_b32 v%d, v%d" % (KR+i, 96+i))
        if cfg["t_sk"]:
            assert cfg["halo"] and not dsh
            A("v_mov_b64 v[100:101], v[30:31]\nv_mov_b64 v[102:103], v[32:33]")
            for i in range(4): A("v_permlane32_swap_b32 v%d, v%d" % (30+i, 100+i))
        for t in range(4):
            for c in range(2):
                src = 30 + 2*c + (t >> 1)
                A(("v_and_b32 v%d, " + MASK + ", v%d" if t & 1 else "v_lshlrev_b32 v%d, 16, v%d") % (W+2*t+c, src))
        for i in range(11):
            A("v_lshlrev_b32 v%d, 16, v%d\nv_and_b32 v%d, %s, v%d" % (KP+2*i, KR+i, KP+2*i+1, MASK, KR+i))
        for t in (3, 2, 1, 0):
            for r in range(8):
                k = vr(KP+2*(r+3-t), 2); w = vr(W+2*t, 2); d = vr(S+2*r, 2)
                A("v_pk_mul_f32 %s, %s, %s" % (d, k, w) if t == 3 else "v_pk_fma_f32 %s, %s, %s, %s" % (d, k, w, d))
        def misc():
            if cfg["se"] in "vp": A("v_readfirstlane_b32 s44, v9\nv_readfirstlane_b32 s46, v49")
            A("s_mov_b32 s96, 0\ns_getreg_b32 s3, hwreg(HW_REG_XCC_ID, 0, 4)")
            A("s_mul_i32 s44, s44, %d\ns_add_u32 s44, s44, %d\ns_add_u32 s45, s44, s3\ns_add_u32 s45, s45, 1" % (LCG_A, LCG_C))
            A("v_mov_b32 v9, s45\nv_mov_b32 v20, v44")
            A("v_mov_b32 v10, v234\nv_mov_b32 v2, v236\nv_mov_b64 v[18:19], v[232:233]\nv_mov_b32 v30, v237\nv_mov_b64 v[14:15], v[248:249]\nv_mov_b64 v[16:17], v[250:251]")
            for i in range(1, 4): A("v_add_u32 v%d, %d, v234" % (10+i, 1024*i))
        def hstage(at):
            for c in range(2):
                if cfg["hst"][c] != at: continue
                A.wait(vm=("h", c))
                d = [34+c] + [36+4*c+k for k in range(4)]
                if cfg["t_h"]:
                    A("v_mov_b32_dpp v%d, v%d wave_shl:1 %s\nv_mov_b32 v%d, v%d" % (39+4*c, 120+4*c, DPP, 34+c, 120+4*c))
                    for k in range(3): A("v_mov_b32 v%d, v%d" % (36+4*c+k, 121+4*c+k))
                if cfg["d0"]: A("v_mov_b32_dpp v%d, v%d wave_shr:1 %s" % (34+c, 39+4*c, DPP))
                A("ds_write_b128 v6, %s offset:%d" % (vr(36+4*c, 4), HL+c*8320+4160+32))
                for k in range(4): A("v_alignbit_b32 v%d, v%d, v%d, 16" % (52+4*c+k, d[k+1], d[k]))
                A("ds_write_b128 v6, %s offset:%d" % (vr(52+4*c, 4), HL+c*8320+32))
                A("s_cmp_lg_u32 s6, 0\ns_cbranch_scc1 L_a_h%d\ns_mov_b64 exec, 1" % c)
                A("s_and_b32 s3, s46, 0xffff0000" if c else "s_lshl_b32 s3, s46, 16")
                A("v_lshlrev_b32 v%d, 16, v%d\nv_add_f32 v%d, s3, v%d\nv_cvt_pk_bf16_f32 v%d, 0, v%d\ns_mov_b32 s3, 0x07060302\nv_perm_b32 v%d, v%d, v%d, s3" % (60+c, 34+c, 60+c, 60+c, 60+c, 60+c, 62+c, 34+c, 60+c))
                A.raw("ds_write_b32 v6, v%d offset:%d\nds_write_b32 v6, v%d offset:%d" % (60+c, HL+c*8320+28, 62+c, HL+c*8320+4160+28))
                A("s_mov_b64 exec, -1\nL_a_h%d:" % c)
        mearly = dsh or "e" in cfg["hst"]
        if mearly: misc()
        hstage("e")
        s.stamp(12)
        for r in range(8):
            if r in (0, 4): A.wait(vm=("v", r+3))
            if r == 4: s.stamp(10)
            A("v_lshlrev_b32 v%d, 16, v%d\nv_and_b32 v%d, %s, v%d" % (VP+2*r, VR+r, VP+2*r+1, MASK, VR+r))
            A("v_pk_mul_f32 %s, %s, %s" % (vr(S+2*r, 2), vr(S+2*r, 2), vr(VP+2*r, 2)))
            if r & 1:
                j = (7-r)//2
                for c in range(2): A("v_cvt_pk_bf16_f32 v%d, v%d, v%d" % (112+4*c+j, S+2*r+c, S+2*(r-1)+c))
        if not dsh:
            for c in range(2): A("ds_write_b128 v%d, %s offset:%d" % (47+c, vr(112+4*c, 4), RED))
            A("ds_read_b128 v[240:243], v21 offset:%d" % RED, "sh0")
            A("ds_read_b128 v[244:247], v21 offset:%d" % (RED+1024), "sh1")
        if not mearly: misc()
        ust = ["global_store_dwordx4 v8, v[240:243], s[54:55]", "global_store_dwordx4 v8, v[244:247], s[54:55] offset:%d" % (1024 if dsh else 64)]
        s.jit("U", 127, 4); s.jit("u")
        if dsh:
            for b in range(2):
                A("s_mov_b32 vcc_lo, 0x%x\ns_mov_b32 vcc_hi, 0x%x" % ((0x55555555 << b,)*2))
                for p in range(4): A("v_cndmask_b32_dpp v%d, v%d, v%d, vcc quad_perm:[1,0,3,2] %s" % (240+4*b+3-p, 116-4*b+3-p, 112+4*b+3-p, DPP))
                A(ust[b], "ust")
        else:
            A.wait(lg="sh0"); A(ust[0], "ust")
            A.wait(lg="sh1"); A(ust[1], "ust")
        s.stamp(3)
        A("v_mov_b32 v26, 0\nv_mov_b32 v27, s44")
        A("ds_write_b32 v26, v27 offset:%d" % M_TAG)
        hstage("m")
        s.stamp(9)
        HB = lambda q: 32+32*(0 if cfg.get('x_noh') else q)
        UB = lambda q: 160+32*(q & 1)
        ACC = 224
        def hread(q, a, half):
            bb, hf = q >> 1, q & 1
            o = 128*(a & 1)+32*bb+4*hf+2*half
            A("ds_read2_b32 %s, v%d offset0:%d offset1:%d" % (vr(HB(q)+4*a+2*half, 2), 10+(a >> 1), o, o+1), ("f", q, a))
        def uread(q, z):
            A("ds_read_b128 %s, v%d offset:%d" % (vr(UB(q)+4*z, 4), 14+q, UL+1024*z), ("f", q, z))
        npre = int(cfg["hpre"])
        hm = int(cfg["hm"])
        A("v_mov_b32 v5, s6\nv_mov_b32 v4, 1")
        hpost = "p" in cfg["hst"]
        if hm and not hpost: A("ds_write_b8 v5, v4 offset:%d" % M_W)
        A("s_mov_b64 exec, 1\ns_waitcnt vmcnt(0)"); s.stamp(4)
        A("global_store_dword v7, v9, s[58:59]\ns_mov_b64 exec, -1")
        if cfg.get("uhack"): A("v_and_b32 v20, 0x78, v20\ns_lshl_b32 s3, s6, 7\nv_add_u32 v20, s3, v20")
        A("s_mov_b32 s3, 0")
        if hm:
            A("global_load_dwordx2 v[22:23], v20, s[58:59] sc1")
            hstage("p"); A("s_mov_b32 s3, 0")
            s.meet("L_a_hw", M_W, 5, 4, 26, 28, arrive=hpost)
            for q in range(hm):
                for a in range(8): hread(q, a, 0); hread(q, a, 1)
            A("s_branch L_a_pu1")
        A("L_a_pu:\nglobal_load_dwordx2 v[22:23], v20, s[58:59] sc1\nL_a_pu1:\ns_waitcnt vmcnt(0)")
        if cfg["far"]: A("s_branch L_a_far")
        A("v_cmp_ne_u32 vcc, s45, v22\nv_cmp_ne_u32 s[40:41], s45, v23\ns_or_b64 vcc, vcc, s[40:41]\ns_cbranch_scc0 L_a_pu_ok")
        if cfg.get("usleep"): A("s_sleep %d" % int(cfg["usleep"]))
        if cfg.get("umask"): A("s_mov_b64 exec, vcc")
        A("s_add_u32 s3, s3, 1\ns_cmp_lt_u32 s3, %d\ns_cbranch_scc1 L_a_pu\ns_branch L_a_far\nL_a_pu_ok:" % NEAR_TRIES)
        def far():
            A("L_a_far:\ns_mov_b64 exec, -1\ns_add_u32 s31, s31, %d" % W_R)
            s.addbase(54, 38, "s31")
            for l in ust: A(l + " sc1")
            A("buffer_wbl2 sc1")
            s.addbase(14, 58, "%d" % FARC)
            A("s_waitcnt vmcnt(0)\ns_mov_b64 exec, 1\nglobal_store_dword v7, v27, s[14:15] sc1\ns_mov_b64 exec, -1")
            A("L_a_pf:\nglobal_load_dwordx2 v[24:25], v20, s[14:15] sc1\ns_waitcnt vmcnt(0)\nglobal_load_dwordx2 v[22:23], v20, s[58:59] sc1\ns_waitcnt vmcnt(0)")
            A("v_cmp_ne_u32 vcc, s45, v22\nv_cmp_ne_u32 s[40:41], s45, v23\ns_or_b64 vcc, vcc, s[40:41]\ns_cbranch_scc0 L_a_pu_ok")
            A("v_cmp_ne_u32 vcc, s44, v24\nv_cmp_ne_u32 s[40:41], s44, v25\ns_or_b64 vcc, vcc, s[40:41]\ns_cbranch_scc0 L_a_isfar")
            A("s_sleep 8\ns_add_u32 s3, s3, 1\ns_cmp_lt_u32 s3, %d\ns_cbranch_scc1 L_a_pf" % SPIN)
            A("L_a_isfar:\ns_mov_b32 s96, 1\nv_mov_b32 v9, s44\nv_mov_b32 v28, 1\nds_write_b32 v26, v28 offset:%d\ns_waitcnt lgkmcnt(0)" % (M_TAG+4))
            A("s_add_u32 s30, s30, %d\ns_add_u32 s33, s33, %d" % (W_R, W_R2))
            s.addbase(52, 38, "s30"); s.addbase(56, 52, "0x3fc00"); s.addbase(16, 38, "s33")
            A("s_branch L_a_pu_ok")
        s.side(far)
        if cfg.get("umask"): A("s_mov_b64 exec, -1")
        s.stamp(5)
        A("global_load_lds_dwordx4 v18, s[52:53] sc1\nglobal_load_lds_dwordx4 v18, s[56:57] offset:1024 sc1")
        A("s_barrier" if hm else "s_waitcnt lgkmcnt(0)\ns_barrier")
        for q in range(hm, npre):
            for a in range(8): hread(q, a, 0); hread(q, a, 1)
        A("v_mov_b32 v29, s60\nv_mov_b32 v5, s6\nv_mov_b32 v4, 1")
        awipe = cfg["inb"] == "A"
        if awipe: A("v_mov_b64 v[22:23], -1\nv_mov_b64 v[24:25], -1")
        A("s_waitcnt vmcnt(0)")
        wipes = ["global_store_dwordx4 v18, v[22:25], s[52:53]", "global_store_dwordx4 v18, v[22:25], s[56:57] offset:1024"]
        wat = int(cfg["wat"])
        if cfg["inb"] == "N": A("s_mov_b64 exec, 1\nglobal_store_dword v7, v9, s[58:59] offset:1024\ns_mov_b64 exec, -1")
        elif not wat:
            for l in wipes: A(l)
        A("s_barrier")
        s.jit("w")
        s.stamp(6)
        todo = [(q, a, k) for q in range(4) for a in range(8) for k in range(3) if k == 0 or (q >= npre and not cfg.get('x_noh'))]
        def feed(n, q):
            for _ in range(n):
                if todo and todo[0][0] <= q+1:
                    qq, a, k = todo.pop(0)
                    if k == 0: uread(qq, a)
                    else: hread(qq, a, k-1)
        feed(8, 0)
        for q in range(4):
            pend = []; n = 0
            for i in range(8):
                while todo and todo[0][:2] <= (q, i): feed(1, q)
                A.wait(lg=[("f", q, i)] if q == 0 else [("f", q, z) for z in range(8)])
                for a in range(i+1):
                    if cfg.get("skipc") and q in (1, 2) and a > 0 and (i+a) % int(cfg["skipc"]) == 0:
                        feed(1, q); continue
                    acc = vr(ACC+4*i, 4)
                    A("v_mfma_f32_16x16x32_bf16 %s, %s, %s, %s" % (acc, vr(UB(q)+4*(i-a), 4), vr(HB(q)+4*a, 4), "0" if (q == 0 and a == 0) else acc))
                    n += 1
                    if n >= (8 if q == 0 else 2): feed(1, q)
                    if wat and q == 0 and n in (wat, wat+2): A(wipes.pop(0))
                    if awipe and q == int(cfg['cq']) and n == int(cfg['cn']): A("s_waitcnt vmcnt(0)\ns_mov_b64 exec, 1\nglobal_store_dword v7, v9, s[58:59] offset:1024\ns_mov_b64 exec, -1")
                    if q == 3 and n == int(cfg['wn']): A("global_load_dword v31, v30, s[58:59] offset:1024 sc1")
                    if pend and n >= pend[0][1]:
                        t = pend.pop(0)[0]
                        A("ds_write_b128 v2, %s offset:%d" % (vr(ACC+4*t, 4), RED+1088*t))
                if q == 3: pend.append((i, n+8))
            for t, _ in pend: A("ds_write_b128 v2, %s offset:%d" % (vr(ACC+4*t, 4), RED+1088*t))
        assert not todo
        s.stamp(13)
        if cfg["inb"] is True:
            A("ds_write_b8 v5, v4 offset:%d" % M_A)
            A("L_a_rw:\nds_read_b64 v[28:29], v26 offset:%d\ns_waitcnt lgkmcnt(0)\nv_and_b32 v28, v28, v29\nv_cmp_ne_u32 vcc, 0x01010101, v28\ns_cbranch_vccnz L_a_rw" % M_W)
        else: s.meet("L_a_rw", M_A, 5, 4, 26, 28)
        for io in range(2):
            for ws in range(4):
                A("ds_read_b128 %s, v3 offset:%d" % (vr(32+16*io+4*ws, 4), RED+ws*8704+io*32), ("r", io))
        s.stamp(7)
        yst = ["global_store_dwordx4 v19, %s, s[16:17] offset:%d" % (vr(64+4*io, 4), 2048*io) for io in range(2)]
        def ysum(io):
            b = 32+16*io
            A.wait(lg=("r", io))
            for c in range(2):
                for p in range(4): A("v_add_f32 v%d, v%d, v%d" % (b+8*c+p, b+8*c+p, b+8*c+4+p))
            for r in range(4): A("v_cvt_pk_bf16_f32 v%d, v%d, v%d" % (64+4*io+r, b+r, b+8+r))
        A("s_cmp_eq_u32 s96, 1\ns_cbranch_scc1 L_a_yfar")
        def yfar():
            A("L_a_yfar:")
            for io in range(2):
                ysum(io); A(yst[io] + " sc1")
            A("s_waitcnt vmcnt(0)\ns_mov_b64 exec, 1\nglobal_store_dword v29, v9, s[14:15] offset:512 sc1\ns_branch L_a_done")
        s.side(yfar)
        ysum(0)
        A("s_waitcnt vmcnt(0)\nv_cmp_ne_u32 vcc, v9, v31\ns_cbranch_vccnz L_a_ww\nL_a_wok:")
        s.tail.append("L_a_ww:\ns_mov_b32 s3, 0\nL_a_wp:\nglobal_load_dword v31, v30, s[58:59] offset:1024 sc1\ns_waitcnt vmcnt(0)\nv_cmp_ne_u32 vcc, v9, v31\ns_cbranch_vccz L_a_wok\ns_add_u32 s3, s3, 1\ns_cmp_lt_u32 s3, %d\ns_cbranch_scc1 L_a_wp\ns_branch L_a_wok" % SPIN)
        s.jit("y"); A(yst[0]); ysum(1); s.jit("Y", 127, 6); A(yst[1])
        A("s_mov_b64 exec, 1\ns_waitcnt vmcnt(0)")
        s.stamp(8)
        A("global_store_dword v29, v9, s[58:59] offset:512")
        A("L_a_done:")
        s.stamps_out(1, 16)
        A("s_endpgm")

    def roleB_head(s):
        A = s.A; cfg = s.cfg
        A("s_lshr_b32 s7, s5, 4\ns_and_b32 s3, s5, 15\ns_lshl_b32 s40, s4, 4\ns_add_u32 s40, s40, s3")
        A("v_and_b32 v2, 3, v0\nv_bfe_u32 v3, v0, 2, 1\nv_lshl_add_u32 v2, v2, 1, v3\nv_and_b32 v3, 8, v0\nv_add_u32 v2, v2, v3")
        A("s_sub_u32 s63, 256, s40\ns_cmp_eq_u32 s40, 0\ns_cselect_b32 s63, 128, s63\ns_sub_u32 s3, s63, s40\nv_lshrrev_b32 v3, 5, v1\nv_mul_u32_u24 v240, s3, v3\nv_add_u32 v240, s40, v240")
        A("v_and_b32 v242, 16, v0\nv_lshl_add_u32 v241, v242, 6, v240\ns_lshl_b32 s41, s6, 8\nv_lshl_add_u32 v3, v2, 4, s41\nv_lshl_add_u32 v2, v241, 10, v3")
        A("s_lshl_b32 s48, s7, 19\ns_xor_b32 s49, s48, 0x40000\ns_xor_b32 s50, s48, 0x80000\ns_xor_b32 s51, s48, 0xc0000")
        A("v_mov_b32 v244, s6\nv_mov_b32 v245, 1\nv_mov_b32 v246, 0")
        A("s_waitcnt lgkmcnt(0)")
        s.stamp(1)
        A("s_mov_b64 s[8:9], s[16:17]")
        for j in range(2 if cfg.get("x_halfx") else 4): A("buffer_load_dwordx4 %s, v2, s[8:11], s%d offen %s" % (vr(s.XR(j), 4), 48+j, cfg["xnt"] if j < 2 else cfg.get("x2nt", cfg["xnt"])), ("x", j))
        if cfg["t_gw"]: A("global_load_dword v219, v46, s[32:33]\nv_and_b32 v218, 0xff, v3", "gw")
        else: A("global_load_dwordx4 v[220:223], v3, s[32:33]", "gw")
        A("s_barrier")
        s.vmB = list(A.vm)
    def XR(s, j): return (224+4*j) if j < 2 else (64+4*j)
    def roleB(s):
        A = s.A; cfg = s.cfg; XR = s.XR; SLAB = int(cfg["slab"])
        A.reset_counters(); A.vm = list(s.vmB)
        s.role = "b"
        KQ, NF, QO, MP, L7, VS = 232, 233, 234, 236, 237, 238
        A("v_lshlrev_b32 v243, 4, v1\nv_bfe_u32 v161, v0, 5, 1\nv_cvt_f32_u32 v161, v161\nv_and_b32 v167, 1, v0\ns_mov_b32 s62, 0x80008000")
        def put(f0, n):
            for f in range(f0, f0+n): A("ds_write_b128 v243, %s offset:%d" % (vr(4+4*f, 4), CL+1024*f))
        def trig(c, sn, jump):
            for j in range(8):
                A("v_cos_f32 v%d, v164\nv_sin_f32 v%d, v164" % (c+j, sn+j))
                if jump and j == 3: A("v_fmamk_f32 v164, v163, 0x40a00000, v164")
                elif j < 7: A("v_add_f32 v164, v164, v163")
        def pack(c, sn):
            for j in range(4):
                A("v_cvt_pk_bf16_f32 v%d, v%d, v%d\nv_cvt_pk_bf16_f32 v%d, v%d, v%d" % (c+j, 128+2*j, 129+2*j, sn+j, 136+2*j, 137+2*j))
        A("s_cmp_ge_u32 s6, 2\ns_cbranch_scc1 L_b_c23")
        A("v_and_b32 v160, 24, v0\nv_and_b32 v162, 3, v0\nv_lshl_add_u32 v160, v162, 1, v160\nv_bfe_u32 v162, v0, 2, 1\nv_add_u32 v160, v160, v162\nv_cvt_f32_u32 v160, v160")
        A("s_cmp_eq_u32 s6, 1\ns_cbranch_scc1 L_b_c1")
        A("v_mul_lo_u32 v165, v162, s62\nv_mul_f32 v163, 0x3d000000, v160\nv_mul_f32 v164, 0x41000000, v161\nv_mul_f32 v164, v164, v163")
        trig(128, 136, False); pack(8, 16)
        for j in range(4):
            A("v_xor_b32 v%d, v165, v%d\nv_xor_b32 v%d, v165, v%d\nv_xor_b32 v%d, s62, v%d" % (12+j, 8+j, 20+j, 16+j, 24+j, 16+j))
            A("v_xor_b32 v%d, s62, v%d" % (28+j, 20+j))
        put(1, 6)
        A("s_branch L_b_cd\nL_b_c1:")
        A("v_mul_f32 v163, 0x3b000000, v160\nv_mul_f32 v166, 4.0, v161\nv_mul_f32 v164, v166, v163")
        trig(32, 40, True)
        A("s_nop 0")
        put(7, 4)
        A("s_branch L_b_cd\nL_b_c23:\nv_cvt_f32_u32 v162, v167\nv_mul_f32 v162, 0.25, v162\ns_cmp_eq_u32 s6, 3\ns_cbranch_scc1 L_b_c3")
        A("s_cmp_eq_u32 s40, 0\ns_cselect_b32 s3, 0, 1.0\nv_mul_f32 v162, s3, v162\nv_mul_lo_u32 v165, v167, s62\nv_mul_f32 v166, 4.0, v161")
        A("v_bfe_u32 v160, v0, 1, 4\nv_cvt_f32_u32 v160, v160\nv_mul_f32 v163, 0x3d800000, v160\nv_fma_f32 v164, v166, v163, v162")
        trig(128, 136, True); pack(48, 52)
        A("s_cbranch_scc1 L_b_s0")
        for j in range(8): A("v_xor_b32 v%d, v165, v%d" % (56+j, 48+j))
        A("L_b_s0back:")
        s.tail.append("L_b_s0:\nv_cmp_eq_u32 vcc, 0, v167\ns_nop 1\n" + "\n".join("v_cndmask_b32 v%d, v%d, v167, vcc\nv_cndmask_b32 v%d, 0, v%d, vcc" % (56+j, 48+j, 48+j, 48+j) for j in range(8)) + "\ns_branch L_b_s0back")
        put(11, 4)
        A("s_branch L_b_cd\nL_b_c3:")
        A("v_bfe_u32 v160, v0, 1, 2\ns_lshl_b32 s3, s7, 2\nv_add_u32 v160, s3, v160\nv_cvt_f32_u32 v160, v160\nv_cvt_f32_u32 v161, v241")
        A("v_mul_f32 v163, 0x3a000000, v160\nv_fma_f32 v165, v163, v161, v162\nv_mul_f32 v166, 0x35000000, v160")
        for j in range(4):
            A("v_cvt_f32_u32 v164, s%d\nv_fma_f32 v164, v164, v166, v165\nv_cos_f32 v%d, v164" % (48+j, 168+j))
        for j in range(2): A("v_cvt_pk_bf16_f32 v%d, v%d, v%d" % (4+j, 168+2*j, 169+2*j))
        A("s_mov_b32 exec_lo, 0xff00ff00\ns_mov_b32 exec_hi, 0x00ff00ff\nv_mov_b64 v[4:5], 0\ns_mov_b64 exec, -1")
        put(0, 1)
        A("L_b_cd:")
        A("ds_write_b8 v244, v245 offset:%d" % M_C)
        A("v_lshrrev_b32 v%d, 4, v1\nv_and_b32 v%d, 15, v0\nv_and_b32 v%d, 7, v0" % (KQ, NF, L7))
        A("v_mul_u32_u24 v2, 2064, v%d\nv_and_b32 v3, 8, v0\nv_lshl_add_u32 v2, v3, 7, v2\nv_lshl_add_u32 v2, v242, 3, v2\nv_bfe_u32 v3, v0, 5, 1\nv_lshl_add_u32 v2, v3, 3, v2" % L7)
        A("v_add_u32 v2, s41, v2")
        A("v_lshlrev_b32 v3, 8, v3\nv_lshl_add_u32 v3, v242, 6, v3\nv_lshl_add_u32 v3, v%d, 4, v3\ns_mul_i32 s3, s6, 4128\nv_add_u32 v3, s3, v3" % NF)
        A("s_mov_b32 s46, 0x05040100\ns_mov_b32 s47, 0x07060302")
        qso = ["0", "s56", "s42", "s57"]
        def setup0():
            A("s_and_b32 s41, s5, 15\ns_lshr_b32 s43, s6, 1\ns_lshl_b32 s3, s41, 1\ns_add_u32 s3, s3, s43\ns_lshl_b32 s3, s3, 6\ns_and_b32 s51, s6, 1\ns_add_u32 s3, s3, s51\ns_lshl_b32 s3, s3, 4\ns_add_u32 s3, s3, %d" % W_G)
            A("v_and_b32 v128, 3, v0\nv_lshl_add_u32 v128, v%d, 2, v128\nv_lshl_add_u32 v128, v128, 6, s3\nv_and_b32 v129, 4, v0\nv_lshl_add_u32 v%d, v129, 1, v128" % (KQ, MP))
            A("s_bfe_u32 s50, s5, 0x10002\ns_lshl_b32 s3, s4, 1\ns_add_u32 s3, s3, s50\ns_lshl_b32 s3, s3, 2\ns_add_u32 s3, s3, s6\ns_lshl_b32 s3, s3, 6\ns_add_u32 s3, s3, s7\ns_and_b32 s50, s5, 3\ns_lshl_b32 s3, s3, 2\ns_add_u32 s3, s3, s50\ns_lshl_b32 s3, s3, 3")
            A("v_lshl_add_u32 v129, v%d, 3, v%d\ns_mov_b32 exec_lo, 0x00ff00ff\ns_mov_b32 exec_hi, 0x00ff00ff\nv_lshl_add_u32 v%d, v129, 6, s3\ns_mov_b64 exec, -1" % (KQ, L7, MP))
            s.addbase(60, 38, "%d" % W_K)
            A("s_and_b32 s3, s5, 7\ns_lshl_b32 s3, s3, 1\ns_add_u32 s3, s3, s51\ns_lshl_b32 s3, s3, 6\ns_add_u32 s3, s3, s43\ns_mul_i32 s3, s3, %d\ns_lshl_b32 s43, s4, 1\ns_add_u32 s43, s43, s7\ns_lshl_b32 s50, s43, 7\ns_add_u32 s3, s3, s50\ns_add_u32 s3, s3, %d" % (SLAB, W_V)); s.addbase(30, 38, "s3")
            A("s_lshl_b32 s50, s6, 12\ns_add_u32 s50, s50, %d\nv_lshrrev_b32 v91, 3, v1\nv_mul_u32_u24 v91, %d, v91\nv_lshl_add_u32 v91, v%d, 4, v91\nv_add_u32 v90, s50, v243" % (VL, 2*SLAB, L7))
            A("s_lshl_b32 s3, s4, 12\ns_add_u32 s3, s3, %d" % W_C); s.addbase(58, 38, "s3")
            A("s_mov_b64 s[26:27], s[58:59]\nv_lshlrev_b32 v250, 7, v%d\ns_lshl_b32 s3, s4, 7\ns_add_u32 s3, s3, %d\nv_lshl_add_u32 v248, v%d, 12, s3" % (L7, W_C+2048, L7))
            A("s_lshl_b32 s3, s41, 10\ns_lshl_b32 s41, s6, 18\ns_add_u32 s3, s3, s41\ns_lshl_b32 s43, s43, 6\ns_add_u32 s3, s3, s43")
            A("v_lshl_add_u32 v234, v%d, 16, s3\nv_lshl_add_u32 v234, v%d, 2, v234\nv_add_u32 v239, 0x100000, v234" % (KQ, NF))
            A("s_mov_b32 s56, 0x4000\ns_mov_b32 s57, 0xc000\ns_mov_b32 s42, 0x8000")
        CFR = lambda p, k, jj, b: 176+16*(k >> 1)+8*p+4*(k & 1)+2*jj+b
        def cf(lo, hi):
            for i in range(lo, hi):
                A("v_cos_f32 v134, v132\nv_sin_f32 v135, v132")
                if i < 15: A("v_fmamk_f32 v132, v131, 0x41500000, v132" if i & 3 == 3 else "v_add_f32 v132, v132, v131")
                A("v_cvt_pk_bf16_f32 v%d, v134, v135" % CFR(i & 1, i >> 3, (i >> 2) & 1, (i >> 1) & 1))
        nb = int(cfg["nb"])
        def setup1():
            A("s_lshl_b32 s3, s6, 5\ns_bfe_u32 s41, s5, 0x10003\ns_add_u32 s3, s3, s41\nv_lshl_add_u32 v128, v%d, 1, s3\nv_cvt_f32_u32 v128, v128\nv_mul_f32 v131, 0x3b800000, v128" % NF)
            A("v_cvt_f32_u32 v129, v%d\nv_mul_f32 v129, 4.0, v129\nv_mul_f32 v132, v129, v131" % KQ)
            cf(0, nb)
        def setup1b():
            cf(nb, 16)
            A("s_bfe_u32 s41, s5, 0x10003\ns_lshl_b32 s3, s41, 4\ns_lshl_b32 s43, s41, 15\nv_bfe_i32 v133, v0, 0, 1\nv_and_b32 v133, 0x80008000, v133\nv_xor_b32 v133, s43, v133")
            for i in range(16): A("v_alignbit_b32 v%d, v%d, v%d, s3\nv_xor_b32 v%d, v133, v%d" % (192+i, 176+i, 176+i, 192+i, 192+i))
            A("s_lshl_b32 s41, s41, 31\ns_or_b32 s41, s41, 0x3f803f80\ns_mov_b64 exec, 0xffff\nv_mov_b32 v176, s41\ns_mov_b64 exec, -1")
        def setup2():
            A("s_mov_b64 s[12:13], s[34:35]\ns_mov_b32 s14, 0x200000\ns_mov_b32 s15, 0x20000")
            A("v_and_b32 v92, 58, v0\nv_lshlrev_b32 v88, 4, v92\nv_and_b32 v92, 20, v0\nv_lshl_add_u32 v88, v92, 2, v88\nv_and_b32 v92, 1, v0\nv_lshl_add_u32 v88, v92, 3, v88\nv_add_u32 v88, %d, v88\nv_xor_b32 v89, 64, v88" % VL)
            A("v_and_b32 v92, 0xfc, v0\nv_lshlrev_b32 v92, 12, v92\nv_and_b32 v93, 2, v%d\nv_xor_b32 v93, v93, v0\nv_and_b32 v93, 3, v93\nv_lshl_add_u32 v92, v93, 4, v92" % KQ)
            A("s_and_b32 s24, s5, 15\ns_lshl_b32 s24, s24, 3\ns_add_u32 s24, s24, s4\ns_lshl_b32 s24, s24, 1\ns_add_u32 s24, s24, s7\ns_lshl_b32 s24, s24, 6")
            RB = 34
            if cfg.get("g3"):
                RB = 52
                s.addbase(52, 38, "%d" % (0xc00000 + 128))
                if cfg["g3"] == "1": A("s_cmp_eq_u32 s4, 3\ns_cselect_b64 s[52:53], s[52:53], s[34:35]")
            s.addbase(52, RB, "s24"); s.addbase(54, 52, "0xffc00")
            A("v_bfe_u32 v93, v0, 2, 2\nv_and_b32 v93, 2, v93\nv_xor_b32 v93, v93, v%d\nv_lshlrev_b32 v93, 4, v93\nv_lshl_add_u32 v93, v%d, 6, v93\ns_lshl_b32 s41, s6, 11\nv_add_u32 v93, s41, v93" % (KQ, NF))
            A("s_bfe_u32 s3, s5, 0x20002\ns_lshl_b32 s3, s3, 1\ns_add_u32 s3, s3, s7\ns_lshl_b32 s3, s3, 6\nv_lshl_add_u32 v94, v%d, 2, s3" % NF)
        QF = 16
        def qload():
            for i in range(0 if cfg.get("noq") else 8): A("buffer_load_dword v%d, v%d, s[8:11], %s offen %s" % (4+i, 239 if i >> 2 else 234, qso[i & 3], cfg["qnt"]), "q")
        def post():
            A("s_xor_b32 s3, s6, 2\ns_or_b32 s3, s5, s3\ns_cbranch_scc1 L_b_postd\ns_mov_b64 exec, 0xff")
            A.raw("global_store_dword v248, v253, s[38:39] sc1")
            A("s_mov_b64 exec, -1\nL_b_postd:")
        steps = dict(a=setup0, b=setup1, e=setup1b, c=setup2, q=qload, k=lambda: (A.wait(vm="vst"), s.stamp(14)), W=lambda: A.wait(vm="q"),
                     S=lambda: A("s_sleep %d" % int(cfg["ns"])), p=post, P=lambda: A("s_setprio 3"), O=lambda: A("s_setprio 0"))
        def cread():
            s.meet("L_b_cw", M_C, 244, 245, 246, 247, arrive=False)
            for f in range(15): A("ds_read_b128 %s, v243 offset:%d" % (vr(4+4*f, 4), CL+1024*f), "c")
        steps["r"] = cread
        for ch in cfg["seqE"]: steps[ch]()
        s.stamp(12)
        GW, GX = 144, 128
        A.wait(vm="gw")
        if cfg["t_gw"]:
            for p in range(4): A("ds_bpermute_b32 v%d, v218, v219 offset:%d" % (220+p, 4*p), "gb")
        if cfg.get("x_nog"): A("v_mov_b64 v[144:145], 0")
        else:
            for i in range(8): A("v_lshlrev_b32 v%d, 16, v%d\nv_and_b32 v%d, %s, v%d" % (GX+2*i, 224+i, GX+1+2*i, MASK, 224+i))
            A.wait(lg="gb")
            for p in range(4): A("v_lshlrev_b32 v%d, 16, v%d\nv_and_b32 v%d, %s, v%d" % (GW+2*p, 220+p, GW+1+2*p, MASK, 220+p))
            for i in range(8): A("v_pk_mul_f32 %s, %s, %s" % (vr(GX+2*i, 2), vr(GX+2*i, 2), vr(GW+2*(i & 3), 2)))
            for i in range(16): A("v_cvt_pk_bf16_f32 v%d, 0, v%d" % (GX+i, GX+i))
            for i in range(4): A("v_pk_add_f32 %s, %s, %s" % (vr(GX+4*i, 2), vr(GX+4*i, 2), vr(GX+2+4*i, 2)))
            for i in range(2): A("v_pk_add_f32 %s, %s, %s" % (vr(GX+8*i, 2), vr(GX+8*i, 2), vr(GX+4+8*i, 2)))
            for i in range(2): A("v_add_f32 v%d, v%d, v%d" % (GW+i, GX+8*i, GX+1+8*i))
        perm = lambda jj, c: A("v_perm_b32 v%d, v%d, v%d, s%d" % (96+2*c+jj, XR(2*jj+1)+(c >> 1), XR(2*jj)+(c >> 1), 46+(c & 1)))
        for n, sh in enumerate((8, 4, 2, 1)):
            perm(0, 2*n); perm(0, 2*n+1)
            for r in range(2): A("v_add_f32_dpp v%d, v%d, v%d row_ror:%d %s" % (GW+r, GW+r, GW+r, sh, DPP))
        A("s_lshl_b32 s3, s6, 2\nv_lshl_add_u32 v146, v%d, 5, s3\nv_lshlrev_b32 v255, 4, v%d" % (KQ, L7))
        A("ds_write_b32 v146, v144 offset:%d\nds_write_b32 v146, v145 offset:%d" % (GL, GL+16))
        if int(cfg["prioB"]): A("s_setprio %d" % int(cfg["prioB"]))
        mfA = lambda c: A("v_mfma_f32_16x16x16_bf16 %s, %s, v[4:5], 0" % (vr(128+4*c, 4), vr(96+2*c, 2)))
        def outA(c):
            A("v_cvt_pk_bf16_f32 v%d, v%d, v%d\nv_cvt_pk_bf16_f32 v%d, v%d, v%d" % (160+2*c, 128+4*c, 129+4*c, 161+2*c, 130+4*c, 131+4*c))
            A("ds_write_b64 v2, %s offset:%d" % (vr(160+2*c, 2), X1+16*c))
        A.wait(lg="c"); s.stamp(2)
        for op in "p0 p1 p2 m0 p3 p4 m1 p5 p6 m2 p7 m3 m4 o0 m5 o1 m6 o2 m7 o3 o4 o5 o6 o7".split():
            {"p": lambda c: perm(1, c), "m": mfA, "o": outA}[op[0]](int(op[1]))
        s.meet("L_b_xw", M_X, 244, 245, 246, 247)
        for ri in range(2):
            for ks in range(2):
                A("ds_read_b128 %s, v3 offset:%d" % (vr(64+8*ri+4*ks, 4), X1+ri*2064+ks*512), ("a", ri, ks))
        A("ds_read_b128 v[252:255], v255 offset:%d" % GL, "gp")
        s.stamp(3)
        A("v_and_b32 v160, 28, v0\nv_lshlrev_b32 v238, 6, v160\nv_and_b32 v161, 3, v0\nv_lshl_add_u32 v238, v161, 4, v238")
        A("v_and_b32 v161, 32, v0\nv_lshl_add_u32 v238, v161, 1, v238\ns_and_b32 s3, s40, 4\ns_lshl_b32 s3, s3, 4\nv_xor_b32 v238, s3, v238")
        A("v_add_u32 v219, v160, v161\ns_lshl_b32 s3, s6, 2\ns_add_u32 s3, s3, %d\nv_lshl_add_u32 v219, v219, 3, s3" % KL)
        A("s_lshl_b32 s3, s7, 2\ns_add_u32 s3, s3, s6\ns_lshl_b32 s3, s3, 7\ns_add_u32 s43, s3, s40\ns_mul_i32 s3, s43, %d\ns_add_u32 s3, s3, %d" % (SLAB, W_V))
        s.addbase(28, 38, "s3")
        RE, IM = 96, 112
        M32 = "v_mfma_f32_32x32x16_bf16 %s, %s, %s, %s"
        shadow = []
        if cfg["csh"]:
            keep = A.L; A.L = []; setup2(); A.peep(); body = A.L; A.L = keep
            cut = [len(body)*k//4 for k in range(5)]
            for k in range(1, 4):
                while body[cut[k]].op.startswith(("s_addc", "s_cselect")): cut[k] += 1
            shadow = [body[cut[k]:cut[k+1]] for k in range(4)]
        for n in range(4):
            ri, ks = n >> 1, n & 1
            A.wait(lg=("a", ri, ks))
            A(M32 % (vr(RE, 16), vr(64+8*ri+4*ks, 4), vr((8 if ri == 0 else 16)+4*ks, 4), vr(RE, 16) if n else "0"))
            if shadow: A.L += shadow[n]
        muls = []
        for o in range(16):
            muls.append("v_mul_f32 v%d, v%d, v%d" % (128+o, RE+o, 32+(o & 7)))
            muls.append("v_mul_f32_e64 v%d, -v%d, v%d" % (144+o, RE+o, 40+(o & 7)))
        for n in range(4):
            ri, ks = n >> 1, n & 1
            A(M32 % (vr(IM, 16), vr(64+8*ri+4*ks, 4), vr((24 if ri == 0 else 8)+4*ks, 4), vr(IM, 16) if n else "0"))
            if n == 0:
                A.wait(lg="gp")
                A("v_add_f32 v252, v252, v254\nv_add_f32 v253, v253, v255\nv_add_f32 v252, v252, v253")
                A("v_cvt_pk_bf16_f32 v252, 0, v252\nv_mul_f32 v252, 0xbfb8aa3b, v252\nv_exp_f32 v252, v252\nv_add_f32 v252, 1.0, v252\nv_rcp_f32 v252, v252")
                A("v_cvt_pk_bf16_f32 v252, 0, v252\nv_sub_f32 v254, 1.0, v252\nv_cvt_pk_bf16_f32 v252, v254, v252")
            for _ in range((0, 6, 6, 20)[n]): A(muls.pop(0))
        for o in range(0, 16, 2):
            A("v_pk_fma_f32 %s, %s, %s, %s" % (vr(128+o, 2), vr(IM+o, 2), vr(40+(o & 7), 2), vr(128+o, 2)))
            A("v_pk_fma_f32 %s, %s, %s, %s" % (vr(144+o, 2), vr(IM+o, 2), vr(32+(o & 7), 2), vr(144+o, 2)))
        def cv(n):
            row, ri = n >> 1, n & 1
            for p in range(4):
                o = 128+16*ri+8*row+2*p
                A("v_cvt_pk_bf16_f32 v%d, v%d, v%d" % (160+4*n+p, o, o+1))
        cv(0); cv(1)
        for n in range(4):
            A(M32 % (vr(64, 16), vr(160+4*n, 4), vr(48+4*n, 4), vr(64, 16) if n else "0"))
            if n < 2: cv(n+2)
        A("s_and_b32 s41, s40, 1\ns_lshl_b32 s3, s7, 1\ns_add_u32 s3, s3, s41\ns_lshl_b32 s3, s3, 6\ns_lshr_b32 s41, s40, 1\ns_add_u32 s3, s3, s41\ns_lshl_b32 s3, s3, 6\nv_and_b32 v255, 56, v0\nv_lshl_add_u32 v235, v%d, 3, s3\nv_lshl_add_u32 v235, v255, 11, v235" % L7)
        A("s_nop 1\ns_cmp_lg_u32 s6, 1\ns_cbranch_scc1 L_b_hd")
        A("s_sub_u32 s3, s63, s40\nv_bfe_u32 v235, v0, 2, 1\nv_mul_u32_u24 v235, s3, v235\nv_add_u32 v235, s40, v235\nv_and_b32 v255, 15, v235\nv_and_b32 v235, 0xf0, v235\nv_lshlrev_b32 v235, 2, v235\nv_lshl_add_u32 v235, v255, 11, v235")
        A("v_and_b32 v255, 10, v0\nv_lshl_add_u32 v235, v255, 2, v235\nv_and_b32 v255, 1, v0\nv_lshl_add_u32 v235, v255, 4, v235\ns_lshl_b32 s3, s7, 10\ns_add_u32 s3, s3, %d\nv_add_u32 v235, s3, v235\nL_b_hd:" % W_G)
        for p in range(8): A("v_cvt_pk_bf16_f32 v%d, v%d, v%d" % (80+p, 64+2*p, 65+2*p))
        for b in range(2):
            A("s_mov_b32 vcc_lo, 0x%x\ns_mov_b32 vcc_hi, 0x%x" % ((0x33333333 << 2*b,)*2))
            for p in range(4): A("v_cndmask_b32_dpp v%d, v%d, v%d, vcc quad_perm:[2,3,0,1] %s" % (208+4*b+p, 84-4*b+p, 80+4*b+p, DPP))
        for p in range(8): A("v_dot2_u32_u16 v%d, v%d, v%d, %s" % (216+(p >> 2), 208+p, 208+p, "v%d" % (216+(p >> 2)) if p & 3 else "0"))
        for qp in ("[1,0,3,2]", "[2,3,0,1]"):
            for b in range(2): A("v_add_u32_dpp v%d, v%d, v%d quad_perm:%s %s" % (216+b, 216+b, 216+b, qp, DPP))
        A("ds_write2_b32 v219, v216, v217 offset0:0 offset1:4\nv_lshlrev_b32 v219, 2, v1")
        qe = cfg["qe"]
        if qe: A("ds_write_b8 v244, v245 offset:%d" % M_K)
        if int(cfg["prioB"]): A("s_setprio 0")
        s.stamp(4)
        seq0, seq1, seq2 = cfg["seq"].split(".")
        if cfg["csh"]: steps["c"] = lambda: None
        allseq = cfg["seqE"] + seq0 + seq1 + seq2
        assert all(allseq.count(ch) == 1 for ch in "abecq" + ("xy" if cfg["inb"] is True else "")), allseq
        assert "a" in cfg["seqE"] + seq0 and "c" in cfg["seqE"] + seq0 and not set("xyz") & set(cfg["seqE"]) and "y" not in seq0 and "q" not in cfg["seqE"] + seq0
        assert allseq.index("b") < allseq.index("e") and (("b" in cfg["seqE"]) == ("e" in cfg["seqE"])) and (cfg["inb"] is not True or allseq.index("x") < allseq.index("y"))
        for ch in seq0: steps[ch]()
        for i in range(3): A("v_mov_b64 v[%d:%d], v[%d:%d]" % (40+2*i, 41+2*i, 88+2*i, 89+2*i))
        A("v_mov_b32 v46, v94")
        A("s_getreg_b32 s45, hwreg(HW_REG_XCC_ID, 0, 4)\ns_waitcnt lgkmcnt(0)")
        if cfg["white"]:
            assert cfg["vreg"] and int(cfg["hm"])
            A("s_branch L_b_tw\nL_b_ts:\ns_sleep 1\nL_b_tw:\nds_read_b32 v146, v246 offset:%d\nds_read_b32 v253, v246 offset:%d\ns_waitcnt lgkmcnt(0)\nv_cmp_eq_u32 vcc, 0, v146\ns_cbranch_vccnz L_b_ts" % (M_W, M_TAG))
            for p in range(8): A("v_xor_b32 v%d, v253, v%d" % (208+p, 208+p))
            A("v_readfirstlane_b32 s44, v253\ns_add_u32 s45, s45, 1\ns_add_u32 s45, s45, s44")
        if qe:
            A("s_cmp_eq_u32 s6, 1\ns_cselect_b32 s48, 0xffff, 0\ns_mov_b32 s49, 0\ns_cmp_lg_u32 s6, 0\ns_cbranch_scc1 L_b_kd")
            s.meet("L_b_kw", M_K, 244, 245, 246, 247, arrive=False)
            A("ds_read_b32 v216, v219 offset:%d\nds_read_b32 v217, v219 offset:%d\ns_mov_b64 s[48:49], -1\ns_waitcnt lgkmcnt(0)\nv_add_u32 v252, v216, v217\nL_b_kd:" % (KL, KL+256))
        if int(cfg["prioD"]): A("s_setprio %d" % int(cfg["prioD"]))
        if cfg.get("bsleep"): A("s_sleep %d" % int(cfg["bsleep"]))
        s.stamp(13)
        A("s_barrier")
        s.jit("V")
        late = "D" in cfg.get("jit", "")
        for io in range(0 if cfg.get("x_novst") else (1 if late else 2)): A("global_store_dwordx4 v%d, %s, s[28:29] offset:%d sc1" % (VS, vr(208+4*io, 4), 128*io), "vst")
        s.jit("K")
        assert cfg["white"]
        if qe:
            A("s_cmp_ge_u32 s6, 2\ns_cbranch_scc1 L_b_ng\ns_mov_b64 exec, s[48:49]")
            A.raw("global_store_dwordx2 v235, v[252:253], s[60:61] sc1")
            A("s_mov_b64 exec, -1\nL_b_ng:")
            post()
            A("ds_read_b32 v147, v246 offset:%d\ns_waitcnt lgkmcnt(0)" % (M_TAG+4))
            if qe == "1": qload(); steps["q"] = lambda: None
            A("v_cmp_ne_u32 vcc, 0, v147\ns_cbranch_vccnz L_b_far\nL_b_fard:")
        else:
            A("ds_read_b32 v147, v246 offset:%d\nds_read_b32 v216, v219 offset:%d\nds_read_b32 v217, v219 offset:%d" % (M_TAG+4, KL, KL+256))
            if "p" not in cfg["seq"]: post()
            A("s_cmp_ge_u32 s6, 2\ns_waitcnt lgkmcnt(0)\nv_cmp_ne_u32 vcc, 0, v147\ns_cbranch_scc1 L_b_ng")
            A("s_mov_b64 exec, 0xffff\ns_cmp_eq_u32 s6, 1\ns_cbranch_scc1 L_b_g1\ns_mov_b64 exec, -1\nv_add_u32 v252, v216, v217\nL_b_g1:")
            A.raw("global_store_dwordx2 v235, v[252:253], s[60:61] sc1")
            A("L_b_ng:")
            A("s_mov_b64 exec, -1\ns_cbranch_vccnz L_b_far\nL_b_fard:")
        def t():
            A("L_b_far:\ns_mov_b32 s45, s44\ns_add_u32 s24, s24, %d" % W_R2)
            s.addbase(52, 38, "s24"); s.addbase(54, 52, "0xffc00")
            s.addbase(58, 58, "%d" % FARC)
            A("s_branch L_b_fard")
        s.side(t)
        s.stamp(5)
        A("s_barrier")
        if late:
            s.jit("D"); A("global_store_dwordx4 v%d, v[212:215], s[28:29] offset:128 sc1" % VS, "vst")
        pl = "global_load_dword v147, v250, s[26:27] offset:2048 sc1"
        steps["L"] = lambda: (s.stamp(11), A(pl))
        A("s_mov_b32 s98, 0")
        gl = "global_load_dwordx2 v[144:145], v%d, s[60:61] sc1" % MP
        steps["g"] = lambda: A(gl)
        if "g" not in seq1: A("v_not_b32 v145, v253")
        for i in range(1, 4): A("v_add_u32 v%d, %d, v43" % (48+i, 16*SLAB*i))
        for ch in (seq1 if "L" in seq1 else seq1 + "L"): steps[ch]()
        if cfg["pw"]:
            assert seq1.endswith("Lg")
            A("s_mov_b32 s3, 0\ns_waitcnt vmcnt(1)\nv_cmp_ne_u32 vcc, s44, v147\ns_cbranch_vccz L_b_fast\nL_b_pv:\ns_waitcnt vmcnt(0)")
        else: A("s_mov_b32 s3, 0\nL_b_pv:\ns_waitcnt vmcnt(0)")
        A("v_cmp_ne_u32 vcc, s44, v147\ns_cbranch_vccz L_b_pv_ok\ns_mov_b64 exec, vcc\ns_sleep %d" % int(cfg["vsleep"]))
        A(pl)
        A("s_add_u32 s3, s3, 1\ns_cmp_lt_u32 s3, %d\ns_cbranch_scc1 L_b_pv\ns_waitcnt vmcnt(0)\nL_b_pv_ok:\ns_mov_b64 exec, -1" % SPIN)
        s.stamp(6)
        if cfg["inb"] is True and "z" not in cfg["seq"]: wiped()
        if cfg.get("x_nov"): A("s_branch L_b_vok")
        A("L_b_vf:\nv_cmp_ne_u32 vcc, s44, v145\ns_cbranch_vccz L_b_gok\ns_mov_b64 exec, vcc")
        A(gl, "g")
        A("s_mov_b64 exec, -1\nL_b_fast:\nL_b_gok:")
        A("s_or_b32 s43, s2, s6\ns_cbranch_scc1 L_b_epd\ns_mov_b64 exec, 1")
        A.raw("global_store_dword v246, v253, s[38:39] sc1")
        A("s_mov_b64 exec, -1\nL_b_epd:")
        vreg = cfg["vreg"]
        if not vreg: A("s_mov_b32 m0, s50")
        for i in range(4):
            a = 48+i if i else 43
            if vreg: A("global_load_dwordx4 %s, v%d, s[30:31] sc1" % (vr(64+4*i, 4), a), ("vd", i))
            else:
                if i: A("s_add_u32 m0, m0, 1024")
                A("global_load_lds_dwordx4 v%d, s[30:31] sc1" % a, ("vd", i))
        if seq2:
            steps["M"] = lambda: s.meet("L_b_mw", M_W, 244, 245, 246, 247)
            A("s_cmp_lg_u32 s98, 0\ns_cbranch_scc1 L_b_s2")
            for ch in seq2: steps[ch]()
            A("L_b_s2d:")
            s.tail.append("L_b_s2:\ns_waitcnt vmcnt(0)\ns_branch L_b_s2d")
        def qunp():
            for i in range(8): A("v_lshlrev_b32 v%d, 16, v%d\nv_and_b32 v%d, %s, v%d" % (QF+2*i, 4+i, QF+2*i+1, MASK, 4+i))
        def gq():
            A("v_lshlrev_b32 v149, 16, v144\nv_and_b32 v148, %s, v144" % MASK)
            if "q" in seq2: A.wait(vm="q"); qunp()
            for i in range(16): A("v_mul_f32_dpp v%d, v148, v%d row_newbcast:%d %s" % (QF+i, QF+i, 8+(i >> 1), DPP))
        def gq2():
            qunp()
            for i in range(16): A("v_mul_f32_dpp v%d, v148, v%d row_newbcast:%d %s" % (QF+i, QF+i, 8+(i >> 1), DPP))
        if "q" not in seq2: qunp()
        A("v_mov_b32 v146, 0")
        A.wait(vm="g")
        if cfg.get("dbg"): s.stamp(2)
        A("v_cmp_ne_u32 s[48:49], s44, v145\ns_mov_b32 exec_lo, 0x00ff00ff\ns_mov_b32 exec_hi, 0x00ff00ff\nv_sub_u32 v146, 0, v144\ns_mov_b64 exec, -1")
        if cfg["gqat"] == "0": gq()
        if cfg["gqat"] == "3": A("v_lshlrev_b32 v149, 16, v144\nv_and_b32 v148, %s, v144" % MASK)
        def dots(i):
            A.wait(lg=("rb", i))
            if cfg.get("nodot"): return
            for p in range(4): A("v_dot2_u32_u16 v146, v%d, v%d, v146" % (64+4*i+p, 64+4*i+p))
        for i in range(4):
            A.wait(vm=("vd", i))
            if i == 3 and cfg.get("dbg"): s.stamp(3)
            if vreg:
                if cfg["white"]:
                    for p in range(4): A("v_xor_b32 v%d, v253, v%d" % (64+4*i+p, 64+4*i+p))
                A("ds_write_b128 v42, %s offset:%d" % (vr(64+4*i, 4), 1024*i)); dots(i)
            else: A("ds_read_b128 %s, v42 offset:%d" % (vr(64+4*i, 4), 1024*i), ("rb", i))
        if not vreg:
            for i in range(4): dots(i)
        for sh in (8, 4, 2, 1): A("v_add_u32_dpp v146, v146, v146 row_ror:%d %s" % (sh, DPP))
        A("v_readlane_b32 s40, v146, 0\nv_readlane_b32 s41, v146, 16\nv_readlane_b32 s43, v146, 32\nv_readlane_b32 s51, v146, 48")
        A("s_add_u32 s40, s40, s41\ns_add_u32 s43, s43, s51\ns_add_u32 s40, s40, s43\n" + ("" if cfg.get("nodot") else "s_or_b32 s48, s48, s40\n") + "s_or_b32 s48, s48, s49\ns_cbranch_scc1 L_b_vr\nL_b_vok:")
        s.tail.append("L_b_vr:\ns_add_u32 s98, s98, 1\ns_cmp_lt_u32 s98, %d\ns_cbranch_scc0 L_b_vok\ns_sleep 2\ns_branch L_b_vf" % (SPIN//16))
        s.stamp(7)
        if cfg.get("dbg"): A("s_waitcnt lgkmcnt(0)\ns_add_u32 s88, s64, s98\ns_mov_b32 s89, s65")
        A("ds_write_b8 v244, v245 offset:%d" % M_V)
        A("s_lshl_b32 s43, s6, 11\ns_add_u32 m0, s43, %d" % YL)
        if int(cfg["prioD"]): A("s_setprio %d" % int(cfg.get("prioE", 0)))
        if cfg["gqat"] == "1": gq()
        A(("L_b_vs:" if cfg.get("nosl") else "s_branch L_b_vw\nL_b_vs:\ns_sleep 1") + "\nL_b_vw:\nds_read2_b32 v[54:55], v246 offset0:%d offset1:%d\ns_waitcnt lgkmcnt(0)\nv_and_b32 v54, v54, v55\nv_cmp_ne_u32 vcc, 0x01010101, v54\ns_cbranch_vccnz L_b_vs" % ((M_V if cfg.get("x_noy") else M_A)//4, M_V//4))
        ydma = ["global_load_lds_dwordx4 v44, s[52:53] sc1", "global_load_lds_dwordx4 v44, s[54:55] offset:1024 sc1"]
        VF = lambda n: 64+4*n
        def trd(n):
            for jj in range(2):
                A("ds_read_b64_tr_b16 %s, v%d offset:%d" % (vr(VF(n)+2*jj, 2), 40+(n >> 3), 2048*(n & 3)+1024*jj+8192*((n >> 2) & 1)), ("t", n))
        def comb(c):
            o = []
            for r in range(4):
                e, d = 128+8*c+r, 132+8*c+r
                o += ["v_add_f32 v%d, v%d, v%d" % (160+2*r+c, e, d), "v_sub_f32 v%d, v%d, v%d" % (168+2*r+c, e, d)]
            for i in range(8): o.append("v_mul_f32_dpp v%d, v149, v%d row_newbcast:%d %s" % (160+2*i+c, 160+2*i+c, 8+i, DPP))
            return o
        ahead = int(cfg["ahead"]); ypre = int(cfg["ypre"])
        d2 = cfg.get("dbg") == "2"
        if d2: s.stamp(1)
        for n in range(ahead): trd(n)
        if cfg["gqat"] == "2": gq()
        c0 = comb(0)
        for n in range(16):
            if n >= 9 or n % 2 == 0: A.wait(lg=("t", n if n >= 8 else n+1))
            acc = vr(128+4*(n >> 2), 4)
            A("v_mfma_f32_16x16x32_bf16 %s, %s, %s, %s" % (acc, vr(CFR((n >> 2) & 1, n & 3, 0, 0), 4), vr(VF(n), 4), acc if n & 3 else "0"))
            if d2 and n in (0, 8, 15): s.stamp({0: 4, 8: 5, 15: 11}[n])
            if n+ahead < 16: trd(n+ahead)
            if n >= 11:
                for _ in range(2): A(c0.pop(0))
            if cfg["inb"] == "N":
                if n == int(cfg['y0']): A("global_load_dword v47, v46, s[58:59] offset:512 sc1")
                if n == ypre:
                    A("s_waitcnt vmcnt(0)\nv_cmp_ne_u32 s[48:49], s45, v47")
                    for l in ydma: A(l)
            elif n == ypre:
                for l in ydma: A(l)
        yrd = lambda pp: A("ds_read_b128 %s, v45 offset:%d" % (vr(56+4*pp, 4), YL+1024*pp), ("y", pp))
        def yflags():
            A("L_b_yf:\ns_mov_b32 s3, 0\nL_b_py:\nglobal_load_dword v47, v46, s[58:59] offset:512 sc1\ns_waitcnt vmcnt(0)\nv_cmp_ne_u32 vcc, s45, v47\ns_cbranch_vccz L_b_py_ok")
            A("s_add_u32 s3, s3, 1\ns_cmp_lt_u32 s3, %d\ns_cbranch_scc1 L_b_py\nL_b_py_ok:\ns_waitcnt lgkmcnt(0)" % SPIN)
            for l in ydma: A(l)
            A("s_waitcnt vmcnt(0)"); yrd(0); yrd(1)
            A("s_waitcnt lgkmcnt(0)\ns_branch L_b_yok")
        s.side(yflags)
        for l in c0: A(l)
        if cfg["gqat"] == "3": gq2()
        A("s_mov_b32 s97, 0\ns_waitcnt vmcnt(0)"); yrd(0); yrd(1)
        if d2: s.stamp(13)
        for l in comb(1): A(l)
        s.stamp(8)
        if cfg["inb"] == "N": A("s_cmp_lg_u64 s[48:49], 0\ns_cbranch_scc1 L_b_yf\ns_waitcnt lgkmcnt(0)\nL_b_yok:")
        else:
            A("s_cmp_eq_u32 s44, s45\ns_cbranch_scc1 L_b_yf\nL_b_yc:\ns_waitcnt lgkmcnt(0)")
            A("v_max3_u32 v47, v56, v57, v58\nv_max3_u32 v48, v59, v60, v61\nv_max3_u32 v47, v47, v62, v63\nv_max_u32 v47, v47, v48\nv_cmp_eq_u32 vcc, -1, v47\n" + ("s_branch L_b_yok" if cfg.get("x_noy") else "s_cbranch_vccz L_b_yok"))
            for l in ydma: A(l)
            A("s_add_u32 s97, s97, 1\ns_cmp_ge_u32 s97, %d\ns_cbranch_scc1 L_b_yf\ns_waitcnt vmcnt(0)" % NEAR_TRIES); yrd(0); yrd(1)
            A("s_branch L_b_yc\nL_b_yok:")
        A.reset_counters()
        if cfg.get("tsleep"): A("s_sleep %d" % int(cfg["tsleep"]))
        if d2: s.stamp(9)
        elif cfg.get("dbg"): A("s_add_u32 s82, s64, s97\ns_mov_b32 s83, s65")
        un = lambda i: A("v_lshlrev_b32 v%d, 16, v%d\nv_and_b32 v%d, %s, v%d" % (72+2*i, 56+i, 73+2*i, MASK, 56+i))
        fm = lambda i: A("v_pk_fma_f32 %s, %s, %s, %s" % (vr(160+2*i, 2), vr(QF+2*i, 2), vr(72+2*i, 2), vr(160+2*i, 2)))
        cv2 = lambda i: A("v_cvt_pk_bf16_f32 v%d, v%d, v%d" % (96+i, 160+2*i, 161+2*i))
        st = lambda i: A("buffer_store_dword v%d, v%d, s[12:15], %s offen %s" % (96+i, 239 if i >> 2 else 234, qso[i & 3], cfg["ont"].replace("_", " ")))
        if cfg["fin"] == "1":
            for i in range(11):
                if 0 <= i-3 < 8: st(i-3)
                if 0 <= i-2 < 8: cv2(i-2)
                if 0 <= i-1 < 8: fm(i-1)
                if i < 8: un(i)
        elif cfg["fin"] == "2":
            for f in (un, fm, cv2, st):
                for i in range(8): f(i)
        else:
            for pp in range(2):
                A.wait(lg=("y", pp))
                if pp: s.stamp(10)
                for r in range(4):
                    o = 8*pp+2*r
                    A("v_lshlrev_b32 v%d, 16, v%d\nv_and_b32 v%d, %s, v%d" % (72+o, 56+4*pp+r, 73+o, MASK, 56+4*pp+r))
                    A("v_pk_fma_f32 %s, %s, %s, %s" % (vr(160+o, 2), vr(QF+o, 2), vr(72+o, 2), vr(160+o, 2)))
                    A("v_cvt_pk_bf16_f32 v%d, v%d, v%d" % (96+4*pp+r, 160+o, 161+o))
                    A("buffer_store_dword v%d, v%d, s[12:15], %s offen %s" % (96+4*pp+r, 239 if pp else 234, qso[r], cfg["ont"].replace("_", " ")))
        if d2: s.stamp(14)
        s.stamps_out(0, 16)
        A("L_end:\ns_endpgm")

    def build(s):
        A = s.A
        A.raw(HEADER.strip("\n"))
        A.raw("; @launch grid=(256,1,1) block=(512,1,1) lds=%d" % LDS)
        A.raw('.amdgcn_target "amdgcn-amd-amdhsa--gfx950"\n.text\n.globl %s\n.p2align 8\n.type %s,@function\n%s:' % (KN, KN, KN))
        s.prologue()
        s.roleB_head(); A("s_branch L_roleB"); s.roleA(); A("L_roleB:"); s.roleB()
        for t in s.tail: A(t)
        A.raw(".p2align 8\n.fill 1536, 4, 0xbf810000")
        A.raw('.section .rodata,"a"\n.p2align 6\n.amdhsa_kernel %s\n.amdhsa_next_free_vgpr 256\n.amdhsa_next_free_sgpr 102\n.amdhsa_accum_offset 256\n.amdhsa_group_segment_fixed_size 0\n.amdhsa_kernarg_size 120\n.amdhsa_user_sgpr_count 2\n.amdhsa_user_sgpr_kernarg_segment_ptr 1\n.amdhsa_system_sgpr_workgroup_id_x 1\n.end_amdhsa_kernel' % KN)
        return A.finish()

if __name__ == "__main__":
    out = sys.argv[1]
    cfg = {}
    for a in sys.argv[2:]:
        k, v = a.split("=")
        cfg[k] = {"True": True, "False": False}.get(v, v)
    g = G(**cfg)
    txt = g.build()
    if int(g.cfg.get("al", 0)):
        from align import align
        txt, nf, npad = align(txt, int(g.cfg["al"])); print("aligned runs", nf, "pads", npad, file=sys.stderr)
    open(out, "w").write(txt)
    print(out, "nops inserted", g.A.nops, file=sys.stderr)
    import subprocess, os
    r = subprocess.run([sys.executable, "cdna_unwritten_srd_check.py", out], capture_output=True, text=True)
    if r.returncode != 0:
        print(r.stdout, r.stderr); os.remove(out); sys.exit(1)
```

```python
import sys
from dsl import Asm
KN = "gated_mix__ssm_conv_h3__spectral_fnet__prompt_kernel"
W_E   = 0
W_C   = 4096
FARC  = 0x10000
W_R   = 0x800000
W_K   = 0x40000
W_G   = 0x20000
W_V   = 0x400000
W_R2  = 0xa00000
STAMP_OFF = 200<<20
LCG_A, LCG_C = 1664525, 1013904223
UL = 0; HL = 9216; RED = HL + 16640; X1 = RED + 4*8704; VL = X1; GL = RED + 24576; KL = GL + 256; YL = HL; CL = RED + 8192; LDS = X1 + 16640
M_W, M_A, M_V, M_C, M_TAG, M_X, M_K = UL, UL+4, UL+8, UL+12, UL+16, UL+24, UL+28
SPIN = 40000
NEAR_TRIES = 64
MASK = "0xffff0000"
DPP = "row_mask:0xf bank_mask:0xf"

HEADER = """
; One launch, 256 workgroups of 8 waves.  Workgroups with equal id & 7 form a group that owns 64 channels.
;   two channels -> handed back to the owners of the output tiles.
; Waves 0-3 ("B"): 8-point row stage on two mirrored row sets + 32 x 16 hidden DFT, folded -> handed to all groups
;   -> 256-point stage for a 128-row x 32-channel output tile, gate, final mix.  DFT factors are computed in the kernel.
; L2 when every member shows the same XCC id and are republished written-through otherwise; between groups they are
"""

def vr(a, n): return "v[%d:%d]" % (a, a+n-1)

class G:
    def __init__(s, **cfg):
        s.cfg = dict(stamps=False, nt=" nt", xnt="nt", qnt="nt", prent="nt", ont="", vsleep=2, lord="hvwipa", hpre=1, nb=14, ypre=3, rot=1,
                     slab=2048, seqE="r", seq="ac.qObePLg.", prioA=1, prioB=0, prioD=3, far=False, ns=8, inb="A", gqat='0', y0=0, ahead=7, vreg=True, white=True, csh=True, fin='0', t_gw=False, t_sk=False, t_h=False, t_c=False, dsh=False, hst='em', early=False, pw=False, wat=0, d0=False, halo=True, ph=False, qe='2', cq=2, cn=10, wn=24, se='v', pfl='', d0nt='', hm=1, al=5)
        s.cfg.update(cfg)
        s.A = Asm(); s.tail = []; s.role = "p"
    def stamp(s, i):
        if s.cfg.get("dly") == "%s%d" % (s.role, i): s.A("s_sleep 4")
        if s.cfg.get("probe") and i not in (0, int(s.cfg["probe"].split(".")[1])): return
        if s.cfg["stamps"]: s.A("%s s[%d:%d]" % ("s_memtime" if s.cfg.get("clk") else "s_memrealtime", 64+2*i, 65+2*i))
    def stamps_out(s, role, n):
        if not s.cfg["stamps"]: return
        A = s.A
        A("s_waitcnt vmcnt(0) lgkmcnt(0)")
        s.stamp(n-1)
        A("s_waitcnt lgkmcnt(0)")
        A("s_cmp_lg_u32 s6, %d\ns_cbranch_scc1 L_end" % int(s.cfg.get("sw", 0)))
        if s.cfg.get("probe"):
            pr, pi = [int(x) for x in s.cfg["probe"].split(".")]
            if pr == role:
                inv = "v_not_b32" if s.cfg.get("ref", "first") == "first" else "v_mov_b32"
                A("s_mov_b64 exec, 1\nv_mov_b32 v1, 0\nv_mov_b32 v2, s%d\n%s v3, s64\nglobal_atomic_umax v1, v2, s[36:37] sc1\nglobal_atomic_umax v1, v3, s[36:37] offset:128 sc1\ns_waitcnt vmcnt(0)" % (64+2*pi, inv))
                A("L_probe0:\ns_memrealtime s[40:41]\ns_waitcnt lgkmcnt(0)\ns_sub_u32 s40, s40, s64\ns_cmp_lt_u32 s40, 3000\ns_cbranch_scc1 L_probe0")
                A("global_load_dword v2, v1, s[36:37] sc1\nglobal_load_dword v3, v1, s[36:37] offset:128 sc1\ns_waitcnt vmcnt(0)\n%s v3, v3\nv_readfirstlane_b32 s42, v2\nv_readfirstlane_b32 s43, v3\ns_nop 3" % inv)
                A("s_sub_u32 s3, s42, s43\ns_min_u32 s3, s3, 1500\ns_mul_i32 s3, s3, %d\ns_add_u32 s3, s3, 5000" % int(s.cfg.get("skew", 5)))
                A("L_probe:\ns_memrealtime s[40:41]\ns_waitcnt lgkmcnt(0)\ns_sub_u32 s40, s40, s64\ns_cmp_lt_u32 s40, s3\ns_cbranch_scc1 L_probe")
            return
        A("s_add_u32 s38, s38, %d\ns_addc_u32 s39, s39, 0" % (STAMP_OFF + role*256*128))
        A("s_lshl_b32 s3, s2, 7\nv_mov_b32 v1, s3\ns_mov_b64 exec, 1")
        for j in range(n):
            A("v_mov_b32 v2, s%d\nv_mov_b32 v3, s%d\nglobal_store_dwordx2 v1, v[2:3], s[38:39] offset:%d\ns_nop 1" % (64+2*j, 65+2*j, 8*j))
    def side(s, fn):
        A = s.A; sv = (list(A.vm), list(A.lg)); keep = A.L; A.L = []
        fn()
        s.tail.append("\n".join(i.text for i in A.L)); A.L = keep; A.vm, A.lg = sv
    def jit(s, ch, n=100, reps=1):
        if ch in s.cfg.get("jit", ""):
            s.A("s_add_u32 s99, s5, s6\ns_and_b32 s99, s99, 7\ns_cmp_lg_u32 s99, 3\ns_cbranch_scc1 L_jit_%s\n" % ch + "s_sleep %d\n" % n * reps + "L_jit_%s:" % ch)
    def addbase(s, d, base, soff):
        s.A("s_add_u32 s%d, s%d, %s\ns_addc_u32 s%d, s%d, 0" % (d, base, soff, d+1, base+1))
    def meet(s, name, off, vw, vone, vzero, vtmp, arrive=True):
        if arrive: s.A("ds_write_b8 v%d, v%d offset:%d" % (vw, vone, off))
        s.A("%s:\nds_read_b32 v%d, v%d offset:%d\ns_waitcnt lgkmcnt(0)\nv_cmp_ne_u32 vcc, 0x01010101, v%d\ns_cbranch_vccnz %s" % (name, vtmp, vzero, off, vtmp, name))

    def prologue(s):
        A = s.A
        s.stamp(0)
        if s.cfg.get("hsleep"): A("s_sleep %d" % int(s.cfg["hsleep"]))
        A("s_load_dwordx16 s[16:31], s[0:1], 0\ns_load_dwordx8 s[32:39], s[0:1], 88")
        A("s_cmp_ge_u32 s2, 256\ns_cbranch_scc1 L_end")
        if s.cfg.get("swap"):
            A("s_or_b32 s3, s2, 1\ns_cmp_eq_u32 s3, %d\ns_cselect_b32 s3, 1, 0\ns_xor_b32 s2, s2, s3" % int(s.cfg["swap"]))
        A("s_getpc_b64 s[40:41]")
        A("s_add_u32 s4, s2, %d\ns_and_b32 s4, s4, 7\ns_lshr_b32 s5, s2, 3" % int(s.cfg["rot"]))
        A("v_lshrrev_b32 v2, 6, v0\ns_lshl_b32 s3, s5, 9\nv_lshl_add_u32 v1, v2, 6, s3\nv_readfirstlane_b32 s7, v2")
        if s.cfg.get("x_nopf"): A("v_mov_b32 v1, 0")
        A("global_load_dword v255, v1, s[40:41]", "pf")
        A("v_and_b32 v1, 63, v0\nv_and_b32 v0, 255, v0\ns_and_b32 s6, s7, 3")
        A("v_lshlrev_b32 v46, 2, v0\nv_mov_b32 v45, 0\nds_write_b32 v46, v45 offset:%d" % UL)
        A("s_mov_b32 s10, 0x200000\ns_mov_b32 s11, 0x20000")
        A("s_cmp_ge_u32 s7, 4\ns_cbranch_scc1 L_roleA")

    def roleA(s):
        A = s.A; cfg = s.cfg; nt = cfg["nt"]
        A.reset_counters(); A.vm = ["pf"]
        KR, VR = 10, 22
        A("L_roleA:"); s.role = "a"
        A("s_lshl_b32 s40, s5, 16\ns_lshl_b32 s3, s4, 7\ns_add_u32 s40, s40, s3")
        dsh = cfg["dsh"]
        if dsh:
            A("s_lshl_b32 s3, s6, 14\ns_add_u32 s40, s40, s3\nv_lshrrev_b32 v5, 1, v1\nv_bfi_b32 v5, 1, v1, v5\nv_and_b32 v3, 2, v0\nv_lshl_add_u32 v3, v3, 12, s40\nv_lshl_add_u32 v2, v5, 2, v3\nv_add_u32 v3, -3072, v2")
            A("s_lshl_b32 s3, s4, 9\nv_lshl_add_u32 v5, v5, 4, s3\nv_and_b32 v4, 31, v0")
        else:
            A("v_lshrrev_b32 v3, 5, v0\nv_and_b32 v4, 31, v0\nv_lshl_add_u32 v3, v3, 13, s40\nv_lshl_add_u32 v2, v4, 2, v3\nv_add_u32 v3, -3072, v2")
            A("s_lshl_b32 s3, s4, 9\nv_lshl_add_u32 v5, v4, 4, s3")
        A("s_lshl_b32 s41, s4, 5\ns_add_u32 s41, s41, s5")
        A("s_lshl_b32 s42, s41, 13\ns_add_u32 s43, s42, 4096\ns_lshl_b32 s41, s41, 2\ns_movk_i32 s7, 4096\nv_mov_b32 v49, s41")
        A("s_mov_b32 s50, 0x200000\ns_mov_b32 s51, 0x20000")
        early = cfg["early"]
        if early:
            assert not cfg.get("g3")
            A("s_and_b32 s56, s5, 15\ns_lshr_b32 s57, s5, 4\ns_lshl_b32 s58, s56, 3\ns_add_u32 s58, s58, s4\ns_lshl_b32 s58, s58, 7\ns_lshl_b32 s3, s57, 20\ns_add_u32 s3, s3, s58")
            A("v_lshlrev_b32 v6, 4, v0\nv_and_b32 v252, 0xfc, v0\nv_lshl_add_u32 v252, v252, 12, s3\nv_and_b32 v254, 3, v0\nv_lshl_add_u32 v252, v254, 5, v252\nv_add_u32 v231, 4096, v2")
            A("s_lshl_b32 s3, s41, 5\ns_add_u32 s3, s3, %d\nv_and_b32 v253, 64, v0\nv_add_u32 v253, s3, v253" % W_C)
        A("s_waitcnt lgkmcnt(0)")
        s.stamp(1)
        A("s_mov_b64 s[8:9], s[18:19]")
        if cfg["se"] == "f": A("s_load_dword s44, s[38:39], 0\ns_load_dword s46, s[26:27], s41")
        for ch in cfg.get("tlb", ""):
            if ch == "V": A("v_mov_b32 v230, %d\nglobal_load_dword v230, v230, s[38:39] nt" % (W_V+0x1fff00+0), "k")
            else: A("global_load_dword v231, v45, s[%d:%d] nt" % (dict(v=(20,21), h=(24,25), o=(34,35), s=(22,23), d=(26,27), w=(38,39))[ch]), "k")
        def haloload():
            if cfg["halo"]: A("s_mov_b32 exec_lo, 0x33333333\ns_mov_b32 exec_hi, 0x33333333" if dsh else "s_mov_b32 exec_hi, 0")
            for i in range(0 if cfg.get("x_nohalo") else 3): A("buffer_load_dword v%d, v3, s[8:11], 0 offen offset:%d%s" % (KR+i, 1024*i, cfg.get("hnt", nt)), "k")
            if cfg["t_sk"]: A("global_load_dwordx4 v[30:33], v5, s[22:23]", "k")
            if cfg["halo"]: A("s_mov_b64 exec, -1")
        if not cfg.get("hlast"): haloload()
        for i in range(8): A("buffer_load_dword v%d, v2, s[8:11], %s offen offset:%d%s" % (KR+3+i, "s7" if i >= 4 else "0", 1024*(i & 3), nt), "k")
        if cfg.get("hlast"): haloload()
        if not cfg["t_sk"]: A("global_load_dwordx4 v[30:33], v5, s[22:23]", "k")
        if cfg["se"] == "v":
            if cfg["t_c"]: A("s_mov_b64 exec, 1")
            A("global_load_dword v9, v45, s[38:39] sc1", "k")
            A("global_load_dword v49, v49, s[26:27]", "k")
            if cfg["t_c"]: A("s_mov_b64 exec, -1")
        elif cfg["se"] == "p":
            A("global_load_dword v9, v45, s[38:39]", "k")
            A("global_load_dword v49, v49, s[26:27]", "k")
        elif cfg["se"] == "s": A("s_load_dword s44, s[38:39], 0\ns_load_dword s46, s[26:27], s41")
        if "B" not in cfg["lord"]: A("s_barrier")
        RB = 34
        if early: A("s_mov_b64 s[48:49], s[24:25]")
        else:
            A("s_mov_b64 s[48:49], s[24:25]"); s.addbase(20, 20, "s7")
            A("s_and_b32 s28, s5, 15\ns_lshr_b32 s29, s5, 4\ns_lshl_b32 s30, s28, 3\ns_add_u32 s30, s30, s4\ns_lshl_b32 s30, s30, 7\ns_lshl_b32 s3, s29, 20\ns_add_u32 s3, s3, s30")
            RB = 34
            if cfg.get("g3"):
                RB = 36
                s.addbase(36, 38, "%d" % (0xc00000 + 128))
                if cfg["g3"] == "1": A("s_cmp_eq_u32 s4, 3\ns_cselect_b64 s[36:37], s[36:37], s[34:35]")
            s.addbase(12, RB, "s3")
            A("s_lshl_b32 s3, s4, 12\ns_add_u32 s3, s3, %d" % W_C); s.addbase(58, 38, "s3")
            A("s_lshl_b32 s3, s5, 7\nv_and_b32 v253, 64, v0\nv_add_u32 v253, s3, v253\nv_lshlrev_b32 v6, 4, v0\nv_and_b32 v252, 0xfc, v0\nv_lshlrev_b32 v252, 12, v252\nv_and_b32 v254, 3, v0\nv_lshl_add_u32 v252, v254, 5, v252")
        def addr():
            if early:
                A("s_mov_b64 s[28:29], s[56:57]\ns_mov_b32 s30, s58\ns_lshl_b32 s3, s4, 12\ns_add_u32 s3, s3, %d" % W_C); s.addbase(58, 38, "s3")
            A("s_mul_i32 s3, s6, 4160\nv_min_u32 v48, 6, v1\nv_lshl_add_u32 v47, v48, 2, s3\nds_write_b32 v47, v45 offset:%d" % HL)
            A("s_lshl_b32 s47, s6, 11\ns_lshl_b32 s60, s5, 2\ns_add_u32 s60, s60, s6\ns_lshl_b32 s31, s60, 7\ns_add_u32 s31, s31, s4\ns_lshl_b32 s31, s31, 7")
            s.addbase(54, RB, "s31")
            A("s_lshl_b32 s3, s29, 6\ns_add_u32 s30, s30, s3")
            s.addbase(52, RB, "s30"); s.addbase(56, 52, "0x3fc00")
            A("s_lshl_b32 s33, s28, 2\ns_add_u32 s33, s33, s6\ns_lshl_b32 s33, s33, 5\ns_add_u32 s33, s33, s4\ns_lshl_b32 s33, s33, 7\ns_add_u32 s33, s33, s3")
            s.addbase(16, RB, "s33")
            A("v_and_b32 v233, 48, v6\nv_and_b32 v5, 60, v1\ns_lshl_b32 s3, s6, 19\nv_lshl_add_u32 v232, v5, 12, s3\nv_add_u32 v232, v232, v233")
            A("v_and_b32 v47, 28, v1\nv_lshl_add_u32 v233, v47, 16, v233\nv_and_b32 v47, 32, v1\nv_lshl_add_u32 v233, v47, 5, v233")
            A("s_lshl_b32 s3, s29, 2\ns_add_u32 s3, s3, s6\ns_lshl_b32 s3, s3, 6\nv_and_b32 v237, 15, v0\nv_lshl_add_u32 v237, v237, 2, s3")
            if dsh:
                A("v_lshlrev_b32 v44, 3, v1\nv_lshlrev_b32 v8, 5, v1\nv_bfi_b32 v8, 32, v8, v44\ns_lshl_b32 s3, s5, 4\nv_xor_b32 v8, s3, v8\nv_and_b32 v8, 48, v8\nv_lshl_add_u32 v8, v47, 1, v8\nv_and_b32 v47, 28, v1\nv_lshl_add_u32 v8, v47, 9, v8")
            else:
                A("v_lshlrev_b32 v44, 3, v1\nv_lshrrev_b32 v47, 1, v1\nv_and_b32 v47, 16, v47\nv_and_b32 v48, 48, v44\nv_xor_b32 v47, v47, v48\nv_lshl_add_u32 v47, v4, 6, v47")
                A("v_add_u32 v47, s47, v47\nv_xor_b32 v48, 32, v47\nv_lshl_add_u32 v21, v1, 4, s47")
                A("v_add_u32 v8, v1, v1\nv_xor_b32 v8, v8, v6\ns_lshl_b32 s3, s5, 4\nv_xor_b32 v8, s3, v8\nv_and_b32 v8, 48, v8\nv_lshl_add_u32 v8, v5, 8, v8")
            A("s_lshl_b32 s60, s60, 2\nv_mov_b32 v7, s60\ns_add_u32 m0, s47, %d" % (UL+1024))
            A("v_and_b32 v238, 15, v0\nv_lshrrev_b32 v235, 4, v1\nv_sub_u32 v238, v238, v235")
            A("s_and_b32 s41, s6, 1\ns_lshl_b32 s41, s41, 3\ns_sub_u32 s41, 16, s41\nv_add_u32 v238, s41, v238\ns_or_b32 s3, s6, 1\ns_lshl_b32 s3, s3, 4")
            for bb in range(2):
                if bb: A("v_add_u32 v238, -4, v238")
                A("v_lshlrev_b32 v239, 2, v238\nv_xor_b32 v239, s3, v239\nv_and_b32 v239, 48, v239\nv_lshl_add_u32 v%d, v238, 6, v239" % (248+2*bb))
                A("v_xor_b32 v%d, 16, v%d" % (249+2*bb, 248+2*bb))
            A("s_mul_i32 s3, s6, 8704\nv_add_u32 v236, v235, v1\nv_lshl_add_u32 v236, v236, 4, s3")
            A("s_lshl_b32 s3, s6, 6\nv_mul_u32_u24 v3, 272, v4\nv_lshrrev_b32 v5, 1, v1\nv_and_b32 v5, 16, v5\nv_add3_u32 v3, v3, v5, s3")
            A("s_lshl_b32 s60, s5, 1\ns_add_u32 s60, s60, s3\ns_lshl_b32 s60, s60, 1")
            A("s_lshr_b32 s61, s6, 1\ns_mul_i32 s61, s61, 7808\ns_lshl_b32 s41, s6, 8\ns_add_u32 s61, s61, s41\ns_add_u32 s61, s61, %d" % HL)
            A("v_and_b32 v234, 1, v0\nv_mul_u32_u24 v234, 4158, v234\nv_lshl_add_u32 v234, v1, 1, v234\nv_add_u32 v234, s61, v234")
        for ch in cfg["lord"]:
            if ch == "a": addr()
            if ch == "B": A("s_barrier")
            if ch in "vw":
                for i in (range(4) if ch == "v" else range(4, 8)): A("global_load_dword v%d, v%d, s[20:21] offset:%d%s" % (VR+i, 231 if early else 2, 1024*i-4096, nt), ("v", i))
            if ch in cfg.get("x_skip", ""): continue
            if ch == "h":
                if cfg["t_h"]:
                    A("buffer_load_dwordx4 v[120:123], v6, s[48:51], s42 offen" + nt, ("h", 0))
                    A("s_mov_b32 exec_lo, 0\ns_brev_b32 exec_hi, 1\nbuffer_load_dword v39, v6, s[48:51], s42 offen offset:16" + nt + "\ns_mov_b64 exec, -1", ("h", 0))
                else:
                    A("buffer_load_dwordx4 v[36:39], v6, s[48:51], s42 offen offset:%d" % int(cfg.get("x_hoff", 4)) + nt, ("h", 0))
                    if cfg["d0"]: A("s_mov_b64 exec, 1")
                    A("buffer_load_dword v34, v6, s[48:51], s42 offen" + " " + cfg["d0nt"], ("h", 0))
                    if cfg["d0"]: A("s_mov_b64 exec, -1")
            if ch == "i":
                if cfg["t_h"]:
                    A("buffer_load_dwordx4 v[124:127], v6, s[48:51], s43 offen" + nt, ("h", 1))
                    A("s_mov_b32 exec_lo, 0\ns_brev_b32 exec_hi, 1\nbuffer_load_dword v43, v6, s[48:51], s43 offen offset:16" + nt + "\ns_mov_b64 exec, -1", ("h", 1))
                else:
                    A("buffer_load_dwordx4 v[40:43], v6, s[48:51], s43 offen offset:%d" % int(cfg.get("x_hoff", 4)) + nt, ("h", 1))
                    if cfg["d0"]: A("s_mov_b64 exec, 1")
                    A("buffer_load_dword v35, v6, s[48:51], s43 offen" + " " + cfg["d0nt"], ("h", 1))
                    if cfg["d0"]: A("s_mov_b64 exec, -1")
            if ch == "p":
                if cfg["t_c"]: A("s_mov_b64 exec, 1")
                A("global_load_dword v253, v253, s[%s] " % ("38:39" if early else "58:59") + cfg.get("cfl", "sc1"), "pre")
                if cfg["t_c"]: A("s_mov_b64 exec, -1")
                if cfg["ph"]: A("s_mov_b32 exec_lo, 0x55555555\ns_mov_b32 exec_hi, 0x55555555")
                A("global_load_dword v254, v252, s[%s] " % ("34:35" if early else "12:13") + cfg.get("pfl", "sc1") + " " + cfg["prent"], "pre")
                if cfg["ph"]: A("s_mov_b64 exec, -1")
        if int(cfg["prioA"]): A("s_setprio %d" % int(cfg["prioA"]))
        s.stamp(11)
        KP, W, S, VP = 50, 72, 80, 96
        A.wait(vm="k")
        if cfg["se"] in "sf": A("s_waitcnt lgkmcnt(0)")
        s.stamp(2)
        if cfg["halo"] and dsh:
            A("s_mov_b32 vcc_lo, 0x33333333\ns_mov_b32 vcc_hi, 0x33333333")
            for i in range(3): A("v_cndmask_b32_dpp v%d, v%d, v%d, vcc quad_perm:[0,1,0,1] %s" % (KR+i, KR+8+i, KR+i, DPP))
        elif cfg["halo"]:
            for i in range(3): A("v_mov_b32 v%d, v%d" % (96+i, KR+8+i))
            for i in range(3): A("v_permlane32_swap_b32 v%d, v%d" % (KR+i, 96+i))
        if cfg["t_sk"]:
            assert cfg["halo"] and not dsh
            A("v_mov_b64 v[100:101], v[30:31]\nv_mov_b64 v[102:103], v[32:33]")
            for i in range(4): A("v_permlane32_swap_b32 v%d, v%d" % (30+i, 100+i))
        for t in range(4):
            for c in range(2):
                src = 30 + 2*c + (t >> 1)
                A(("v_and_b32 v%d, " + MASK + ", v%d" if t & 1 else "v_lshlrev_b32 v%d, 16, v%d") % (W+2*t+c, src))
        for i in range(11):
            A("v_lshlrev_b32 v%d, 16, v%d\nv_and_b32 v%d, %s, v%d" % (KP+2*i, KR+i, KP+2*i+1, MASK, KR+i))
        for t in (3, 2, 1, 0):
            for r in range(8):
                k = vr(KP+2*(r+3-t), 2); w = vr(W+2*t, 2); d = vr(S+2*r, 2)
                A("v_pk_mul_f32 %s, %s, %s" % (d, k, w) if t == 3 else "v_pk_fma_f32 %s, %s, %s, %s" % (d, k, w, d))
        def misc():
            if cfg["se"] in "vp": A("v_readfirstlane_b32 s44, v9\nv_readfirstlane_b32 s46, v49")
            A("s_mov_b32 s96, 0\ns_getreg_b32 s3, hwreg(HW_REG_XCC_ID, 0, 4)")
            A("s_mul_i32 s44, s44, %d\ns_add_u32 s44, s44, %d\ns_add_u32 s45, s44, s3\ns_add_u32 s45, s45, 1" % (LCG_A, LCG_C))
            A("v_mov_b32 v9, s45\nv_mov_b32 v20, v44")
            A("v_mov_b32 v10, v234\nv_mov_b32 v2, v236\nv_mov_b64 v[18:19], v[232:233]\nv_mov_b32 v30, v237\nv_mov_b64 v[14:15], v[248:249]\nv_mov_b64 v[16:17], v[250:251]")
            for i in range(1, 4): A("v_add_u32 v%d, %d, v234" % (10+i, 1024*i))
        def hstage(at):
            for c in range(2):
                if cfg["hst"][c] != at: continue
                A.wait(vm=("h", c))
                d = [34+c] + [36+4*c+k for k in range(4)]
                if cfg["t_h"]:
                    A("v_mov_b32_dpp v%d, v%d wave_shl:1 %s\nv_mov_b32 v%d, v%d" % (39+4*c, 120+4*c, DPP, 34+c, 120+4*c))
                    for k in range(3): A("v_mov_b32 v%d, v%d" % (36+4*c+k, 121+4*c+k))
                if cfg["d0"]: A("v_mov_b32_dpp v%d, v%d wave_shr:1 %s" % (34+c, 39+4*c, DPP))
                A("ds_write_b128 v6, %s offset:%d" % (vr(36+4*c, 4), HL+c*8320+4160+32))
                for k in range(4): A("v_alignbit_b32 v%d, v%d, v%d, 16" % (52+4*c+k, d[k+1], d[k]))
                A("ds_write_b128 v6, %s offset:%d" % (vr(52+4*c, 4), HL+c*8320+32))
                A("s_cmp_lg_u32 s6, 0\ns_cbranch_scc1 L_a_h%d\ns_mov_b64 exec, 1" % c)
                A("s_and_b32 s3, s46, 0xffff0000" if c else "s_lshl_b32 s3, s46, 16")
                A("v_lshlrev_b32 v%d, 16, v%d\nv_add_f32 v%d, s3, v%d\nv_cvt_pk_bf16_f32 v%d, 0, v%d\ns_mov_b32 s3, 0x07060302\nv_perm_b32 v%d, v%d, v%d, s3" % (60+c, 34+c, 60+c, 60+c, 60+c, 60+c, 62+c, 34+c, 60+c))
                A.raw("ds_write_b32 v6, v%d offset:%d\nds_write_b32 v6, v%d offset:%d" % (60+c, HL+c*8320+28, 62+c, HL+c*8320+4160+28))
                A("s_mov_b64 exec, -1\nL_a_h%d:" % c)
        mearly = dsh or "e" in cfg["hst"]
        if mearly: misc()
        hstage("e")
        s.stamp(12)
        for r in range(8):
            if r in (0, 4): A.wait(vm=("v", r+3))
            if r == 4: s.stamp(10)
            A("v_lshlrev_b32 v%d, 16, v%d\nv_and_b32 v%d, %s, v%d" % (VP+2*r, VR+r, VP+2*r+1, MASK, VR+r))
            A("v_pk_mul_f32 %s, %s, %s" % (vr(S+2*r, 2), vr(S+2*r, 2), vr(VP+2*r, 2)))
            if r & 1:
                j = (7-r)//2
                for c in range(2): A("v_cvt_pk_bf16_f32 v%d, v%d, v%d" % (112+4*c+j, S+2*r+c, S+2*(r-1)+c))
        if not dsh:
            for c in range(2): A("ds_write_b128 v%d, %s offset:%d" % (47+c, vr(112+4*c, 4), RED))
            A("ds_read_b128 v[240:243], v21 offset:%d" % RED, "sh0")
            A("ds_read_b128 v[244:247], v21 offset:%d" % (RED+1024), "sh1")
        if not mearly: misc()
        ust = ["global_store_dwordx4 v8, v[240:243], s[54:55]", "global_store_dwordx4 v8, v[244:247], s[54:55] offset:%d" % (1024 if dsh else 64)]
        s.jit("U", 127, 4); s.jit("u")
        if dsh:
            for b in range(2):
                A("s_mov_b32 vcc_lo, 0x%x\ns_mov_b32 vcc_hi, 0x%x" % ((0x55555555 << b,)*2))
                for p in range(4): A("v_cndmask_b32_dpp v%d, v%d, v%d, vcc quad_perm:[1,0,3,2] %s" % (240+4*b+3-p, 116-4*b+3-p, 112+4*b+3-p, DPP))
                A(ust[b], "ust")
        else:
            A.wait(lg="sh0"); A(ust[0], "ust")
            A.wait(lg="sh1"); A(ust[1], "ust")
        s.stamp(3)
        A("v_mov_b32 v26, 0\nv_mov_b32 v27, s44")
        A("ds_write_b32 v26, v27 offset:%d" % M_TAG)
        hstage("m")
        s.stamp(9)
        HB = lambda q: 32+32*(0 if cfg.get('x_noh') else q)
        UB = lambda q: 160+32*(q & 1)
        ACC = 224
        def hread(q, a, half):
            bb, hf = q >> 1, q & 1
            o = 128*(a & 1)+32*bb+4*hf+2*half
            A("ds_read2_b32 %s, v%d offset0:%d offset1:%d" % (vr(HB(q)+4*a+2*half, 2), 10+(a >> 1), o, o+1), ("f", q, a))
        def uread(q, z):
            A("ds_read_b128 %s, v%d offset:%d" % (vr(UB(q)+4*z, 4), 14+q, UL+1024*z), ("f", q, z))
        npre = int(cfg["hpre"])
        hm = int(cfg["hm"])
        A("v_mov_b32 v5, s6\nv_mov_b32 v4, 1")
        hpost = "p" in cfg["hst"]
        if hm and not hpost: A("ds_write_b8 v5, v4 offset:%d" % M_W)
        A("s_mov_b64 exec, 1\ns_waitcnt vmcnt(0)"); s.stamp(4)
        A("global_store_dword v7, v9, s[58:59]\ns_mov_b64 exec, -1")
        if cfg.get("uhack"): A("v_and_b32 v20, 0x78, v20\ns_lshl_b32 s3, s6, 7\nv_add_u32 v20, s3, v20")
        A("s_mov_b32 s3, 0")
        if hm:
            A("global_load_dwordx2 v[22:23], v20, s[58:59] sc1")
            hstage("p"); A("s_mov_b32 s3, 0")
            s.meet("L_a_hw", M_W, 5, 4, 26, 28, arrive=hpost)
            for q in range(hm):
                for a in range(8): hread(q, a, 0); hread(q, a, 1)
            A("s_branch L_a_pu1")
        A("L_a_pu:\nglobal_load_dwordx2 v[22:23], v20, s[58:59] sc1\nL_a_pu1:\ns_waitcnt vmcnt(0)")
        if cfg["far"]: A("s_branch L_a_far")
        A("v_cmp_ne_u32 vcc, s45, v22\nv_cmp_ne_u32 s[40:41], s45, v23\ns_or_b64 vcc, vcc, s[40:41]\ns_cbranch_scc0 L_a_pu_ok")
        if cfg.get("usleep"): A("s_sleep %d" % int(cfg["usleep"]))
        if cfg.get("umask"): A("s_mov_b64 exec, vcc")
        A("s_add_u32 s3, s3, 1\ns_cmp_lt_u32 s3, %d\ns_cbranch_scc1 L_a_pu\ns_branch L_a_far\nL_a_pu_ok:" % NEAR_TRIES)
        def far():
            A("L_a_far:\ns_mov_b64 exec, -1\ns_add_u32 s31, s31, %d" % W_R)
            s.addbase(54, 38, "s31")
            for l in ust: A(l + " sc1")
            A("buffer_wbl2 sc1")
            s.addbase(14, 58, "%d" % FARC)
            A("s_waitcnt vmcnt(0)\ns_mov_b64 exec, 1\nglobal_store_dword v7, v27, s[14:15] sc1\ns_mov_b64 exec, -1")
            A("L_a_pf:\nglobal_load_dwordx2 v[24:25], v20, s[14:15] sc1\ns_waitcnt vmcnt(0)\nglobal_load_dwordx2 v[22:23], v20, s[58:59] sc1\ns_waitcnt vmcnt(0)")
            A("v_cmp_ne_u32 vcc, s45, v22\nv_cmp_ne_u32 s[40:41], s45, v23\ns_or_b64 vcc, vcc, s[40:41]\ns_cbranch_scc0 L_a_pu_ok")
            A("v_cmp_ne_u32 vcc, s44, v24\nv_cmp_ne_u32 s[40:41], s44, v25\ns_or_b64 vcc, vcc, s[40:41]\ns_cbranch_scc0 L_a_isfar")
            A("s_sleep 8\ns_add_u32 s3, s3, 1\ns_cmp_lt_u32 s3, %d\ns_cbranch_scc1 L_a_pf" % SPIN)
            A("L_a_isfar:\ns_mov_b32 s96, 1\nv_mov_b32 v9, s44\nv_mov_b32 v28, 1\nds_write_b32 v26, v28 offset:%d\ns_waitcnt lgkmcnt(0)" % (M_TAG+4))
            A("s_add_u32 s30, s30, %d\ns_add_u32 s33, s33, %d" % (W_R, W_R2))
            s.addbase(52, 38, "s30"); s.addbase(56, 52, "0x3fc00"); s.addbase(16, 38, "s33")
            A("s_branch L_a_pu_ok")
        s.side(far)
        if cfg.get("umask"): A("s_mov_b64 exec, -1")
        s.stamp(5)
        A("global_load_lds_dwordx4 v18, s[52:53] sc1\nglobal_load_lds_dwordx4 v18, s[56:57] offset:1024 sc1")
        A("s_barrier" if hm else "s_waitcnt lgkmcnt(0)\ns_barrier")
        for q in range(hm, npre):
            for a in range(8): hread(q, a, 0); hread(q, a, 1)
        A("v_mov_b32 v29, s60\nv_mov_b32 v5, s6\nv_mov_b32 v4, 1")
        awipe = cfg["inb"] == "A"
        if awipe: A("v_mov_b64 v[22:23], -1\nv_mov_b64 v[24:25], -1")
        A("s_waitcnt vmcnt(0)")
        wipes = ["global_store_dwordx4 v18, v[22:25], s[52:53]", "global_store_dwordx4 v18, v[22:25], s[56:57] offset:1024"]
        wat = int(cfg["wat"])
        if cfg["inb"] == "N": A("s_mov_b64 exec, 1\nglobal_store_dword v7, v9, s[58:59] offset:1024\ns_mov_b64 exec, -1")
        elif not wat:
            for l in wipes: A(l)
        A("s_barrier")
        s.jit("w")
        s.stamp(6)
        todo = [(q, a, k) for q in range(4) for a in range(8) for k in range(3) if k == 0 or (q >= npre and not cfg.get('x_noh'))]
        def feed(n, q):
            for _ in range(n):
                if todo and todo[0][0] <= q+1:
                    qq, a, k = todo.pop(0)
                    if k == 0: uread(qq, a)
                    else: hread(qq, a, k-1)
        feed(8, 0)
        for q in range(4):
            pend = []; n = 0
            for i in range(8):
                while todo and todo[0][:2] <= (q, i): feed(1, q)
                A.wait(lg=[("f", q, i)] if q == 0 else [("f", q, z) for z in range(8)])
                for a in range(i+1):
                    if cfg.get("skipc") and q in (1, 2) and a > 0 and (i+a) % int(cfg["skipc"]) == 0:
                        feed(1, q); continue
                    acc = vr(ACC+4*i, 4)
                    A("v_mfma_f32_16x16x32_bf16 %s, %s, %s, %s" % (acc, vr(UB(q)+4*(i-a), 4), vr(HB(q)+4*a, 4), "0" if (q == 0 and a == 0) else acc))
                    n += 1
                    if n >= (8 if q == 0 else 2): feed(1, q)
                    if wat and q == 0 and n in (wat, wat+2): A(wipes.pop(0))
                    if awipe and q == int(cfg['cq']) and n == int(cfg['cn']): A("s_waitcnt vmcnt(0)\ns_mov_b64 exec, 1\nglobal_store_dword v7, v9, s[58:59] offset:1024\ns_mov_b64 exec, -1")
                    if q == 3 and n == int(cfg['wn']): A("global_load_dword v31, v30, s[58:59] offset:1024 sc1")
                    if pend and n >= pend[0][1]:
                        t = pend.pop(0)[0]
                        A("ds_write_b128 v2, %s offset:%d" % (vr(ACC+4*t, 4), RED+1088*t))
                if q == 3: pend.append((i, n+8))
            for t, _ in pend: A("ds_write_b128 v2, %s offset:%d" % (vr(ACC+4*t, 4), RED+1088*t))
        assert not todo
        s.stamp(13)
        if cfg["inb"] is True:
            A("ds_write_b8 v5, v4 offset:%d" % M_A)
            A("L_a_rw:\nds_read_b64 v[28:29], v26 offset:%d\ns_waitcnt lgkmcnt(0)\nv_and_b32 v28, v28, v29\nv_cmp_ne_u32 vcc, 0x01010101, v28\ns_cbranch_vccnz L_a_rw" % M_W)
        else: s.meet("L_a_rw", M_A, 5, 4, 26, 28)
        for io in range(2):
            for ws in range(4):
                A("ds_read_b128 %s, v3 offset:%d" % (vr(32+16*io+4*ws, 4), RED+ws*8704+io*32), ("r", io))
        s.stamp(7)
        yst = ["global_store_dwordx4 v19, %s, s[16:17] offset:%d" % (vr(64+4*io, 4), 2048*io) for io in range(2)]
        def ysum(io):
            b = 32+16*io
            A.wait(lg=("r", io))
            for c in range(2):
                for p in range(4): A("v_add_f32 v%d, v%d, v%d" % (b+8*c+p, b+8*c+p, b+8*c+4+p))
            for r in range(4): A("v_cvt_pk_bf16_f32 v%d, v%d, v%d" % (64+4*io+r, b+r, b+8+r))
        A("s_cmp_eq_u32 s96, 1\ns_cbranch_scc1 L_a_yfar")
        def yfar():
            A("L_a_yfar:")
            for io in range(2):
                ysum(io); A(yst[io] + " sc1")
            A("s_waitcnt vmcnt(0)\ns_mov_b64 exec, 1\nglobal_store_dword v29, v9, s[14:15] offset:512 sc1\ns_branch L_a_done")
        s.side(yfar)
        ysum(0)
        A("s_waitcnt vmcnt(0)\nv_cmp_ne_u32 vcc, v9, v31\ns_cbranch_vccnz L_a_ww\nL_a_wok:")
        s.tail.append("L_a_ww:\ns_mov_b32 s3, 0\nL_a_wp:\nglobal_load_dword v31, v30, s[58:59] offset:1024 sc1\ns_waitcnt vmcnt(0)\nv_cmp_ne_u32 vcc, v9, v31\ns_cbranch_vccz L_a_wok\ns_add_u32 s3, s3, 1\ns_cmp_lt_u32 s3, %d\ns_cbranch_scc1 L_a_wp\ns_branch L_a_wok" % SPIN)
        s.jit("y"); A(yst[0]); ysum(1); s.jit("Y", 127, 6); A(yst[1])
        A("s_mov_b64 exec, 1\ns_waitcnt vmcnt(0)")
        s.stamp(8)
        A("global_store_dword v29, v9, s[58:59] offset:512")
        A("L_a_done:")
        s.stamps_out(1, 16)
        A("s_endpgm")

    def roleB_head(s):
        A = s.A; cfg = s.cfg
        A("s_lshr_b32 s7, s5, 4\ns_and_b32 s3, s5, 15\ns_lshl_b32 s40, s4, 4\ns_add_u32 s40, s40, s3")
        A("v_and_b32 v2, 3, v0\nv_bfe_u32 v3, v0, 2, 1\nv_lshl_add_u32 v2, v2, 1, v3\nv_and_b32 v3, 8, v0\nv_add_u32 v2, v2, v3")
        A("s_sub_u32 s63, 256, s40\ns_cmp_eq_u32 s40, 0\ns_cselect_b32 s63, 128, s63\ns_sub_u32 s3, s63, s40\nv_lshrrev_b32 v3, 5, v1\nv_mul_u32_u24 v240, s3, v3\nv_add_u32 v240, s40, v240")
        A("v_and_b32 v242, 16, v0\nv_lshl_add_u32 v241, v242, 6, v240\ns_lshl_b32 s41, s6, 8\nv_lshl_add_u32 v3, v2, 4, s41\nv_lshl_add_u32 v2, v241, 10, v3")
        A("s_lshl_b32 s48, s7, 19\ns_xor_b32 s49, s48, 0x40000\ns_xor_b32 s50, s48, 0x80000\ns_xor_b32 s51, s48, 0xc0000")
        A("v_mov_b32 v244, s6\nv_mov_b32 v245, 1\nv_mov_b32 v246, 0")
        A("s_waitcnt lgkmcnt(0)")
        s.stamp(1)
        A("s_mov_b64 s[8:9], s[16:17]")
        for j in range(2 if cfg.get("x_halfx") else 4): A("buffer_load_dwordx4 %s, v2, s[8:11], s%d offen %s" % (vr(s.XR(j), 4), 48+j, cfg["xnt"] if j < 2 else cfg.get("x2nt", cfg["xnt"])), ("x", j))
        if cfg["t_gw"]: A("global_load_dword v219, v46, s[32:33]\nv_and_b32 v218, 0xff, v3", "gw")
        else: A("global_load_dwordx4 v[220:223], v3, s[32:33]", "gw")
        if cfg.get("tw"):
            A("s_lshl_b32 s3, s2, 13\ns_add_u32 s3, s3, %d\nv_mov_b32 v217, s3\ns_cmp_lg_u32 s6, 0\ns_cbranch_scc1 L_b_ntw\ns_mov_b64 exec, 1" % W_V)
            A.raw("global_load_dword v217, v217, s[38:39] nt")
            A("s_mov_b64 exec, -1\nL_b_ntw:")
        A("s_barrier")
        s.vmB = list(A.vm)
    def XR(s, j): return (224+4*j) if j < 2 else (64+4*j)
    def roleB(s):
        A = s.A; cfg = s.cfg; XR = s.XR; SLAB = int(cfg["slab"])
        A.reset_counters(); A.vm = list(s.vmB)
        s.role = "b"
        KQ, NF, QO, MP, L7, VS = 232, 233, 234, 236, 237, 238
        A("v_lshlrev_b32 v243, 4, v1\nv_bfe_u32 v161, v0, 5, 1\nv_cvt_f32_u32 v161, v161\nv_and_b32 v167, 1, v0\ns_mov_b32 s62, 0x80008000")
        def put(f0, n):
            for f in range(f0, f0+n): A("ds_write_b128 v243, %s offset:%d" % (vr(4+4*f, 4), CL+1024*f))
        def trig(c, sn, jump):
            for j in range(8):
                A("v_cos_f32 v%d, v164\nv_sin_f32 v%d, v164" % (c+j, sn+j))
                if jump and j == 3: A("v_fmamk_f32 v164, v163, 0x40a00000, v164")
                elif j < 7: A("v_add_f32 v164, v164, v163")
        def pack(c, sn):
            for j in range(4):
                A("v_cvt_pk_bf16_f32 v%d, v%d, v%d\nv_cvt_pk_bf16_f32 v%d, v%d, v%d" % (c+j, 128+2*j, 129+2*j, sn+j, 136+2*j, 137+2*j))
        A("s_cmp_ge_u32 s6, 2\ns_cbranch_scc1 L_b_c23")
        A("v_and_b32 v160, 24, v0\nv_and_b32 v162, 3, v0\nv_lshl_add_u32 v160, v162, 1, v160\nv_bfe_u32 v162, v0, 2, 1\nv_add_u32 v160, v160, v162\nv_cvt_f32_u32 v160, v160")
        A("s_cmp_eq_u32 s6, 1\ns_cbranch_scc1 L_b_c1")
        A("v_mul_lo_u32 v165, v162, s62\nv_mul_f32 v163, 0x3d000000, v160\nv_mul_f32 v164, 0x41000000, v161\nv_mul_f32 v164, v164, v163")
        trig(128, 136, False); pack(8, 16)
        for j in range(4):
            A("v_xor_b32 v%d, v165, v%d\nv_xor_b32 v%d, v165, v%d\nv_xor_b32 v%d, s62, v%d" % (12+j, 8+j, 20+j, 16+j, 24+j, 16+j))
            A("v_xor_b32 v%d, s62, v%d" % (28+j, 20+j))
        put(1, 6)
        A("s_branch L_b_cd\nL_b_c1:")
        A("v_mul_f32 v163, 0x3b000000, v160\nv_mul_f32 v166, 4.0, v161\nv_mul_f32 v164, v166, v163")
        trig(32, 40, True)
        A("s_nop 0")
        put(7, 4)
        A("s_branch L_b_cd\nL_b_c23:\nv_cvt_f32_u32 v162, v167\nv_mul_f32 v162, 0.25, v162\ns_cmp_eq_u32 s6, 3\ns_cbranch_scc1 L_b_c3")
        A("s_cmp_eq_u32 s40, 0\ns_cselect_b32 s3, 0, 1.0\nv_mul_f32 v162, s3, v162\nv_mul_lo_u32 v165, v167, s62\nv_mul_f32 v166, 4.0, v161")
        A("v_bfe_u32 v160, v0, 1, 4\nv_cvt_f32_u32 v160, v160\nv_mul_f32 v163, 0x3d800000, v160\nv_fma_f32 v164, v166, v163, v162")
        trig(128, 136, True); pack(48, 52)
        A("s_cbranch_scc1 L_b_s0")
        for j in range(8): A("v_xor_b32 v%d, v165, v%d" % (56+j, 48+j))
        A("L_b_s0back:")
        s.tail.append("L_b_s0:\nv_cmp_eq_u32 vcc, 0, v167\ns_nop 1\n" + "\n".join("v_cndmask_b32 v%d, v%d, v167, vcc\nv_cndmask_b32 v%d, 0, v%d, vcc" % (56+j, 48+j, 48+j, 48+j) for j in range(8)) + "\ns_branch L_b_s0back")
        put(11, 4)
        A("s_branch L_b_cd\nL_b_c3:")
        A("v_bfe_u32 v160, v0, 1, 2\ns_lshl_b32 s3, s7, 2\nv_add_u32 v160, s3, v160\nv_cvt_f32_u32 v160, v160\nv_cvt_f32_u32 v161, v241")
        A("v_mul_f32 v163, 0x3a000000, v160\nv_fma_f32 v165, v163, v161, v162\nv_mul_f32 v166, 0x35000000, v160")
        for j in range(4):
            A("v_cvt_f32_u32 v164, s%d\nv_fma_f32 v164, v164, v166, v165\nv_cos_f32 v%d, v164" % (48+j, 168+j))
        for j in range(2): A("v_cvt_pk_bf16_f32 v%d, v%d, v%d" % (4+j, 168+2*j, 169+2*j))
        A("s_mov_b32 exec_lo, 0xff00ff00\ns_mov_b32 exec_hi, 0x00ff00ff\nv_mov_b64 v[4:5], 0\ns_mov_b64 exec, -1")
        put(0, 1)
        A("L_b_cd:")
        A("ds_write_b8 v244, v245 offset:%d" % M_C)
        A("v_lshrrev_b32 v%d, 4, v1\nv_and_b32 v%d, 15, v0\nv_and_b32 v%d, 7, v0" % (KQ, NF, L7))
        A("v_mul_u32_u24 v2, 2064, v%d\nv_and_b32 v3, 8, v0\nv_lshl_add_u32 v2, v3, 7, v2\nv_lshl_add_u32 v2, v242, 3, v2\nv_bfe_u32 v3, v0, 5, 1\nv_lshl_add_u32 v2, v3, 3, v2" % L7)
        A("v_add_u32 v2, s41, v2")
        A("v_lshlrev_b32 v3, 8, v3\nv_lshl_add_u32 v3, v242, 6, v3\nv_lshl_add_u32 v3, v%d, 4, v3\ns_mul_i32 s3, s6, 4128\nv_add_u32 v3, s3, v3" % NF)
        A("s_mov_b32 s46, 0x05040100\ns_mov_b32 s47, 0x07060302")
        qso = ["0", "s56", "s42", "s57"]
        def setup0():
            A("s_and_b32 s41, s5, 15\ns_lshr_b32 s43, s6, 1\ns_lshl_b32 s3, s41, 1\ns_add_u32 s3, s3, s43\ns_lshl_b32 s3, s3, 6\ns_and_b32 s51, s6, 1\ns_add_u32 s3, s3, s51\ns_lshl_b32 s3, s3, 4\ns_add_u32 s3, s3, %d" % W_G)
            A("v_and_b32 v128, 3, v0\nv_lshl_add_u32 v128, v%d, 2, v128\nv_lshl_add_u32 v128, v128, 6, s3\nv_and_b32 v129, 4, v0\nv_lshl_add_u32 v%d, v129, 1, v128" % (KQ, MP))
            A("s_bfe_u32 s50, s5, 0x10002\ns_lshl_b32 s3, s4, 1\ns_add_u32 s3, s3, s50\ns_lshl_b32 s3, s3, 2\ns_add_u32 s3, s3, s6\ns_lshl_b32 s3, s3, 6\ns_add_u32 s3, s3, s7\ns_and_b32 s50, s5, 3\ns_lshl_b32 s3, s3, 2\ns_add_u32 s3, s3, s50\ns_lshl_b32 s3, s3, 3")
            A("v_lshl_add_u32 v129, v%d, 3, v%d\ns_mov_b32 exec_lo, 0x00ff00ff\ns_mov_b32 exec_hi, 0x00ff00ff\nv_lshl_add_u32 v%d, v129, 6, s3\ns_mov_b64 exec, -1" % (KQ, L7, MP))
            s.addbase(60, 38, "%d" % W_K)
            A("s_and_b32 s3, s5, 7\ns_lshl_b32 s3, s3, 1\ns_add_u32 s3, s3, s51\ns_lshl_b32 s3, s3, 6\ns_add_u32 s3, s3, s43\ns_mul_i32 s3, s3, %d\ns_lshl_b32 s43, s4, 1\ns_add_u32 s43, s43, s7\ns_lshl_b32 s50, s43, 7\ns_add_u32 s3, s3, s50\ns_add_u32 s3, s3, %d" % (SLAB, W_V)); s.addbase(30, 38, "s3")
            A("s_lshl_b32 s50, s6, 12\ns_add_u32 s50, s50, %d\nv_lshrrev_b32 v91, 3, v1\nv_mul_u32_u24 v91, %d, v91\nv_lshl_add_u32 v91, v%d, 4, v91\nv_add_u32 v90, s50, v243" % (VL, 2*SLAB, L7))
            A("s_lshl_b32 s3, s4, 12\ns_add_u32 s3, s3, %d" % W_C); s.addbase(58, 38, "s3")
            A("s_mov_b64 s[26:27], s[58:59]\nv_lshlrev_b32 v250, 7, v%d\ns_lshl_b32 s3, s4, 7\ns_add_u32 s3, s3, %d\nv_lshl_add_u32 v248, v%d, 12, s3" % (L7, W_C+2048, L7))
            A("s_lshl_b32 s3, s41, 10\ns_lshl_b32 s41, s6, 18\ns_add_u32 s3, s3, s41\ns_lshl_b32 s43, s43, 6\ns_add_u32 s3, s3, s43")
            A("v_lshl_add_u32 v234, v%d, 16, s3\nv_lshl_add_u32 v234, v%d, 2, v234\nv_add_u32 v239, 0x100000, v234" % (KQ, NF))
            A("s_mov_b32 s56, 0x4000\ns_mov_b32 s57, 0xc000\ns_mov_b32 s42, 0x8000")
        CFR = lambda p, k, jj, b: 176+16*(k >> 1)+8*p+4*(k & 1)+2*jj+b
        def cf(lo, hi):
            for i in range(lo, hi):
                A("v_cos_f32 v134, v132\nv_sin_f32 v135, v132")
                if i < 15: A("v_fmamk_f32 v132, v131, 0x41500000, v132" if i & 3 == 3 else "v_add_f32 v132, v132, v131")
                A("v_cvt_pk_bf16_f32 v%d, v134, v135" % CFR(i & 1, i >> 3, (i >> 2) & 1, (i >> 1) & 1))
        nb = int(cfg["nb"])
        def setup1():
            A("s_lshl_b32 s3, s6, 5\ns_bfe_u32 s41, s5, 0x10003\ns_add_u32 s3, s3, s41\nv_lshl_add_u32 v128, v%d, 1, s3\nv_cvt_f32_u32 v128, v128\nv_mul_f32 v131, 0x3b800000, v128" % NF)
            A("v_cvt_f32_u32 v129, v%d\nv_mul_f32 v129, 4.0, v129\nv_mul_f32 v132, v129, v131" % KQ)
            cf(0, nb)
        def setup1b():
            cf(nb, 16)
            A("s_bfe_u32 s41, s5, 0x10003\ns_lshl_b32 s3, s41, 4\ns_lshl_b32 s43, s41, 15\nv_bfe_i32 v133, v0, 0, 1\nv_and_b32 v133, 0x80008000, v133\nv_xor_b32 v133, s43, v133")
            for i in range(16): A("v_alignbit_b32 v%d, v%d, v%d, s3\nv_xor_b32 v%d, v133, v%d" % (192+i, 176+i, 176+i, 192+i, 192+i))
            A("s_lshl_b32 s41, s41, 31\ns_or_b32 s41, s41, 0x3f803f80\ns_mov_b64 exec, 0xffff\nv_mov_b32 v176, s41\ns_mov_b64 exec, -1")
        def setup2():
            A("s_mov_b64 s[12:13], s[34:35]\ns_mov_b32 s14, 0x200000\ns_mov_b32 s15, 0x20000")
            A("v_and_b32 v92, 58, v0\nv_lshlrev_b32 v88, 4, v92\nv_and_b32 v92, 20, v0\nv_lshl_add_u32 v88, v92, 2, v88\nv_and_b32 v92, 1, v0\nv_lshl_add_u32 v88, v92, 3, v88\nv_add_u32 v88, %d, v88\nv_xor_b32 v89, 64, v88" % VL)
            A("v_and_b32 v92, 0xfc, v0\nv_lshlrev_b32 v92, 12, v92\nv_and_b32 v93, 2, v%d\nv_xor_b32 v93, v93, v0\nv_and_b32 v93, 3, v93\nv_lshl_add_u32 v92, v93, 4, v92" % KQ)
            A("s_and_b32 s24, s5, 15\ns_lshl_b32 s24, s24, 3\ns_add_u32 s24, s24, s4\ns_lshl_b32 s24, s24, 1\ns_add_u32 s24, s24, s7\ns_lshl_b32 s24, s24, 6")
            RB = 34
            if cfg.get("g3"):
                RB = 52
                s.addbase(52, 38, "%d" % (0xc00000 + 128))
                if cfg["g3"] == "1": A("s_cmp_eq_u32 s4, 3\ns_cselect_b64 s[52:53], s[52:53], s[34:35]")
            s.addbase(52, RB, "s24"); s.addbase(54, 52, "0xffc00")
            A("v_bfe_u32 v93, v0, 2, 2\nv_and_b32 v93, 2, v93\nv_xor_b32 v93, v93, v%d\nv_lshlrev_b32 v93, 4, v93\nv_lshl_add_u32 v93, v%d, 6, v93\ns_lshl_b32 s41, s6, 11\nv_add_u32 v93, s41, v93" % (KQ, NF))
            A("s_bfe_u32 s3, s5, 0x20002\ns_lshl_b32 s3, s3, 1\ns_add_u32 s3, s3, s7\ns_lshl_b32 s3, s3, 6\nv_lshl_add_u32 v94, v%d, 2, s3" % NF)
        QF = 16
        def qload():
            for i in range(0 if cfg.get("noq") else 8): A("buffer_load_dword v%d, v%d, s[8:11], %s offen %s" % (4+i, 239 if i >> 2 else 234, qso[i & 3], cfg["qnt"]), "q")
        def post():
            A("s_xor_b32 s3, s6, 2\ns_or_b32 s3, s5, s3\ns_cbranch_scc1 L_b_postd\ns_mov_b64 exec, 0xff")
            A.raw("global_store_dword v248, v253, s[38:39] sc1")
            A("s_mov_b64 exec, -1\nL_b_postd:")
        steps = dict(a=setup0, b=setup1, e=setup1b, c=setup2, q=qload, k=lambda: (A.wait(vm="vst"), s.stamp(14)), W=lambda: A.wait(vm="q"),
                     S=lambda: A("s_sleep %d" % int(cfg["ns"])), p=post, P=lambda: A("s_setprio 3"), O=lambda: A("s_setprio 0"))
        def cread():
            s.meet("L_b_cw", M_C, 244, 245, 246, 247, arrive=False)
            for f in range(15): A("ds_read_b128 %s, v243 offset:%d" % (vr(4+4*f, 4), CL+1024*f), "c")
        steps["r"] = cread
        for ch in cfg["seqE"]: steps[ch]()
        s.stamp(12)
        GW, GX = 144, 128
        A.wait(vm="gw")
        if cfg["t_gw"]:
            for p in range(4): A("ds_bpermute_b32 v%d, v218, v219 offset:%d" % (220+p, 4*p), "gb")
        if cfg.get("x_nog"): A("v_mov_b64 v[144:145], 0")
        else:
            for i in range(8): A("v_lshlrev_b32 v%d, 16, v%d\nv_and_b32 v%d, %s, v%d" % (GX+2*i, 224+i, GX+1+2*i, MASK, 224+i))
            A.wait(lg="gb")
            for p in range(4): A("v_lshlrev_b32 v%d, 16, v%d\nv_and_b32 v%d, %s, v%d" % (GW+2*p, 220+p, GW+1+2*p, MASK, 220+p))
            for i in range(8): A("v_pk_mul_f32 %s, %s, %s" % (vr(GX+2*i, 2), vr(GX+2*i, 2), vr(GW+2*(i & 3), 2)))
            for i in range(16): A("v_cvt_pk_bf16_f32 v%d, 0, v%d" % (GX+i, GX+i))
            for i in range(4): A("v_pk_add_f32 %s, %s, %s" % (vr(GX+4*i, 2), vr(GX+4*i, 2), vr(GX+2+4*i, 2)))
            for i in range(2): A("v_pk_add_f32 %s, %s, %s" % (vr(GX+8*i, 2), vr(GX+8*i, 2), vr(GX+4+8*i, 2)))
            for i in range(2): A("v_add_f32 v%d, v%d, v%d" % (GW+i, GX+8*i, GX+1+8*i))
        perm = lambda jj, c: A("v_perm_b32 v%d, v%d, v%d, s%d" % (96+2*c+jj, XR(2*jj+1)+(c >> 1), XR(2*jj)+(c >> 1), 46+(c & 1)))
        for n, sh in enumerate((8, 4, 2, 1)):
            perm(0, 2*n); perm(0, 2*n+1)
            for r in range(2): A("v_add_f32_dpp v%d, v%d, v%d row_ror:%d %s" % (GW+r, GW+r, GW+r, sh, DPP))
        A("s_lshl_b32 s3, s6, 2\nv_lshl_add_u32 v146, v%d, 5, s3\nv_lshlrev_b32 v255, 4, v%d" % (KQ, L7))
        A("ds_write_b32 v146, v144 offset:%d\nds_write_b32 v146, v145 offset:%d" % (GL, GL+16))
        if int(cfg["prioB"]): A("s_setprio %d" % int(cfg["prioB"]))
        mfA = lambda c: A("v_mfma_f32_16x16x16_bf16 %s, %s, v[4:5], 0" % (vr(128+4*c, 4), vr(96+2*c, 2)))
        def outA(c):
            A("v_cvt_pk_bf16_f32 v%d, v%d, v%d\nv_cvt_pk_bf16_f32 v%d, v%d, v%d" % (160+2*c, 128+4*c, 129+4*c, 161+2*c, 130+4*c, 131+4*c))
            A("ds_write_b64 v2, %s offset:%d" % (vr(160+2*c, 2), X1+16*c))
        A.wait(lg="c"); s.stamp(2)
        for op in "p0 p1 p2 m0 p3 p4 m1 p5 p6 m2 p7 m3 m4 o0 m5 o1 m6 o2 m7 o3 o4 o5 o6 o7".split():
            {"p": lambda c: perm(1, c), "m": mfA, "o": outA}[op[0]](int(op[1]))
        s.meet("L_b_xw", M_X, 244, 245, 246, 247)
        for ri in range(2):
            for ks in range(2):
                A("ds_read_b128 %s, v3 offset:%d" % (vr(64+8*ri+4*ks, 4), X1+ri*2064+ks*512), ("a", ri, ks))
        A("ds_read_b128 v[252:255], v255 offset:%d" % GL, "gp")
        s.stamp(3)
        A("v_and_b32 v160, 28, v0\nv_lshlrev_b32 v238, 6, v160\nv_and_b32 v161, 3, v0\nv_lshl_add_u32 v238, v161, 4, v238")
        A("v_and_b32 v161, 32, v0\nv_lshl_add_u32 v238, v161, 1, v238\ns_and_b32 s3, s40, 4\ns_lshl_b32 s3, s3, 4\nv_xor_b32 v238, s3, v238")
        A("v_add_u32 v219, v160, v161\ns_lshl_b32 s3, s6, 2\ns_add_u32 s3, s3, %d\nv_lshl_add_u32 v219, v219, 3, s3" % KL)
        A("s_lshl_b32 s3, s7, 2\ns_add_u32 s3, s3, s6\ns_lshl_b32 s3, s3, 7\ns_add_u32 s43, s3, s40\ns_mul_i32 s3, s43, %d\ns_add_u32 s3, s3, %d" % (SLAB, W_V))
        s.addbase(28, 38, "s3")
        RE, IM = 96, 112
        M32 = "v_mfma_f32_32x32x16_bf16 %s, %s, %s, %s"
        shadow = []
        if cfg["csh"]:
            keep = A.L; A.L = []; setup2(); A.peep(); body = A.L; A.L = keep
            cut = [len(body)*k//4 for k in range(5)]
            for k in range(1, 4):
                while body[cut[k]].op.startswith(("s_addc", "s_cselect")): cut[k] += 1
            shadow = [body[cut[k]:cut[k+1]] for k in range(4)]
        for n in range(4):
            ri, ks = n >> 1, n & 1
            A.wait(lg=("a", ri, ks))
            A(M32 % (vr(RE, 16), vr(64+8*ri+4*ks, 4), vr((8 if ri == 0 else 16)+4*ks, 4), vr(RE, 16) if n else "0"))
            if shadow: A.L += shadow[n]
        muls = []
        for o in range(16):
            muls.append("v_mul_f32 v%d, v%d, v%d" % (128+o, RE+o, 32+(o & 7)))
            muls.append("v_mul_f32_e64 v%d, -v%d, v%d" % (144+o, RE+o, 40+(o & 7)))
        for n in range(4):
            ri, ks = n >> 1, n & 1
            A(M32 % (vr(IM, 16), vr(64+8*ri+4*ks, 4), vr((24 if ri == 0 else 8)+4*ks, 4), vr(IM, 16) if n else "0"))
            if n == 0:
                A.wait(lg="gp")
                A("v_add_f32 v252, v252, v254\nv_add_f32 v253, v253, v255\nv_add_f32 v252, v252, v253")
                A("v_cvt_pk_bf16_f32 v252, 0, v252\nv_mul_f32 v252, 0xbfb8aa3b, v252\nv_exp_f32 v252, v252\nv_add_f32 v252, 1.0, v252\nv_rcp_f32 v252, v252")
                A("v_cvt_pk_bf16_f32 v252, 0, v252\nv_sub_f32 v254, 1.0, v252\nv_cvt_pk_bf16_f32 v252, v254, v252")
            for _ in range((0, 6, 6, 20)[n]): A(muls.pop(0))
        for o in range(0, 16, 2):
            A("v_pk_fma_f32 %s, %s, %s, %s" % (vr(128+o, 2), vr(IM+o, 2), vr(40+(o & 7), 2), vr(128+o, 2)))
            A("v_pk_fma_f32 %s, %s, %s, %s" % (vr(144+o, 2), vr(IM+o, 2), vr(32+(o & 7), 2), vr(144+o, 2)))
        def cv(n):
            row, ri = n >> 1, n & 1
            for p in range(4):
                o = 128+16*ri+8*row+2*p
                A("v_cvt_pk_bf16_f32 v%d, v%d, v%d" % (160+4*n+p, o, o+1))
        cv(0); cv(1)
        for n in range(4):
            A(M32 % (vr(64, 16), vr(160+4*n, 4), vr(48+4*n, 4), vr(64, 16) if n else "0"))
            if n < 2: cv(n+2)
        A("s_and_b32 s41, s40, 1\ns_lshl_b32 s3, s7, 1\ns_add_u32 s3, s3, s41\ns_lshl_b32 s3, s3, 6\ns_lshr_b32 s41, s40, 1\ns_add_u32 s3, s3, s41\ns_lshl_b32 s3, s3, 6\nv_and_b32 v255, 56, v0\nv_lshl_add_u32 v235, v%d, 3, s3\nv_lshl_add_u32 v235, v255, 11, v235" % L7)
        A("s_nop 1\ns_cmp_lg_u32 s6, 1\ns_cbranch_scc1 L_b_hd")
        A("s_sub_u32 s3, s63, s40\nv_bfe_u32 v235, v0, 2, 1\nv_mul_u32_u24 v235, s3, v235\nv_add_u32 v235, s40, v235\nv_and_b32 v255, 15, v235\nv_and_b32 v235, 0xf0, v235\nv_lshlrev_b32 v235, 2, v235\nv_lshl_add_u32 v235, v255, 11, v235")
        A("v_and_b32 v255, 10, v0\nv_lshl_add_u32 v235, v255, 2, v235\nv_and_b32 v255, 1, v0\nv_lshl_add_u32 v235, v255, 4, v235\ns_lshl_b32 s3, s7, 10\ns_add_u32 s3, s3, %d\nv_add_u32 v235, s3, v235\nL_b_hd:" % W_G)
        for p in range(8): A("v_cvt_pk_bf16_f32 v%d, v%d, v%d" % (80+p, 64+2*p, 65+2*p))
        for b in range(2):
            A("s_mov_b32 vcc_lo, 0x%x\ns_mov_b32 vcc_hi, 0x%x" % ((0x33333333 << 2*b,)*2))
            for p in range(4): A("v_cndmask_b32_dpp v%d, v%d, v%d, vcc quad_perm:[2,3,0,1] %s" % (208+4*b+p, 84-4*b+p, 80+4*b+p, DPP))
        for p in range(8): A("v_dot2_u32_u16 v%d, v%d, v%d, %s" % (216+(p >> 2), 208+p, 208+p, "v%d" % (216+(p >> 2)) if p & 3 else "0"))
        for qp in ("[1,0,3,2]", "[2,3,0,1]"):
            for b in range(2): A("v_add_u32_dpp v%d, v%d, v%d quad_perm:%s %s" % (216+b, 216+b, 216+b, qp, DPP))
        A("ds_write2_b32 v219, v216, v217 offset0:0 offset1:4\nv_lshlrev_b32 v219, 2, v1")
        qe = cfg["qe"]
        if qe: A("ds_write_b8 v244, v245 offset:%d" % M_K)
        if int(cfg["prioB"]): A("s_setprio 0")
        s.stamp(4)
        seq0, seq1, seq2 = cfg["seq"].split(".")
        if cfg["csh"]: steps["c"] = lambda: None
        allseq = cfg["seqE"] + seq0 + seq1 + seq2
        assert all(allseq.count(ch) == 1 for ch in "abecq" + ("xy" if cfg["inb"] is True else "")), allseq
        assert "a" in cfg["seqE"] + seq0 and "c" in cfg["seqE"] + seq0 and not set("xyz") & set(cfg["seqE"]) and "y" not in seq0 and "q" not in cfg["seqE"] + seq0
        assert allseq.index("b") < allseq.index("e") and (("b" in cfg["seqE"]) == ("e" in cfg["seqE"])) and (cfg["inb"] is not True or allseq.index("x") < allseq.index("y"))
        for ch in seq0: steps[ch]()
        for i in range(3): A("v_mov_b64 v[%d:%d], v[%d:%d]" % (40+2*i, 41+2*i, 88+2*i, 89+2*i))
        A("v_mov_b32 v46, v94")
        A("s_getreg_b32 s45, hwreg(HW_REG_XCC_ID, 0, 4)\ns_waitcnt lgkmcnt(0)")
        if cfg["white"]:
            assert cfg["vreg"] and int(cfg["hm"])
            A("s_branch L_b_tw\nL_b_ts:\ns_sleep 1\nL_b_tw:\nds_read_b32 v146, v246 offset:%d\nds_read_b32 v253, v246 offset:%d\ns_waitcnt lgkmcnt(0)\nv_cmp_eq_u32 vcc, 0, v146\ns_cbranch_vccnz L_b_ts" % (M_W, M_TAG))
            for p in range(8): A("v_xor_b32 v%d, v253, v%d" % (208+p, 208+p))
            A("v_readfirstlane_b32 s44, v253\ns_add_u32 s45, s45, 1\ns_add_u32 s45, s45, s44")
        if qe:
            A("s_cmp_eq_u32 s6, 1\ns_cselect_b32 s48, 0xffff, 0\ns_mov_b32 s49, 0\ns_cmp_lg_u32 s6, 0\ns_cbranch_scc1 L_b_kd")
            s.meet("L_b_kw", M_K, 244, 245, 246, 247, arrive=False)
            A("ds_read_b32 v216, v219 offset:%d\nds_read_b32 v217, v219 offset:%d\ns_mov_b64 s[48:49], -1\ns_waitcnt lgkmcnt(0)\nv_add_u32 v252, v216, v217\nL_b_kd:" % (KL, KL+256))
        if int(cfg["prioD"]): A("s_setprio %d" % int(cfg["prioD"]))
        if cfg.get("bsleep"): A("s_sleep %d" % int(cfg["bsleep"]))
        s.stamp(13)
        A("s_barrier")
        s.jit("V")
        late = "D" in cfg.get("jit", "")
        for io in range(0 if cfg.get("x_novst") else (1 if late else 2)): A("global_store_dwordx4 v%d, %s, s[28:29] offset:%d sc1" % (VS, vr(208+4*io, 4), 128*io), "vst")
        s.jit("K")
        assert cfg["white"]
        if qe:
            A("s_cmp_ge_u32 s6, 2\ns_cbranch_scc1 L_b_ng\ns_mov_b64 exec, s[48:49]")
            A.raw("global_store_dwordx2 v235, v[252:253], s[60:61] sc1")
            A("s_mov_b64 exec, -1\nL_b_ng:")
            post()
            A("ds_read_b32 v147, v246 offset:%d\ns_waitcnt lgkmcnt(0)" % (M_TAG+4))
            if qe == "1": qload(); steps["q"] = lambda: None
            A("v_cmp_ne_u32 vcc, 0, v147\ns_cbranch_vccnz L_b_far\nL_b_fard:")
        else:
            A("ds_read_b32 v147, v246 offset:%d\nds_read_b32 v216, v219 offset:%d\nds_read_b32 v217, v219 offset:%d" % (M_TAG+4, KL, KL+256))
            if "p" not in cfg["seq"]: post()
            A("s_cmp_ge_u32 s6, 2\ns_waitcnt lgkmcnt(0)\nv_cmp_ne_u32 vcc, 0, v147\ns_cbranch_scc1 L_b_ng")
            A("s_mov_b64 exec, 0xffff\ns_cmp_eq_u32 s6, 1\ns_cbranch_scc1 L_b_g1\ns_mov_b64 exec, -1\nv_add_u32 v252, v216, v217\nL_b_g1:")
            A.raw("global_store_dwordx2 v235, v[252:253], s[60:61] sc1")
            A("L_b_ng:")
            A("s_mov_b64 exec, -1\ns_cbranch_vccnz L_b_far\nL_b_fard:")
        def t():
            A("L_b_far:\ns_mov_b32 s45, s44\ns_add_u32 s24, s24, %d" % W_R2)
            s.addbase(52, 38, "s24"); s.addbase(54, 52, "0xffc00")
            s.addbase(58, 58, "%d" % FARC)
            A("s_branch L_b_fard")
        s.side(t)
        s.stamp(5)
        A("s_barrier")
        if late:
            s.jit("D"); A("global_store_dwordx4 v%d, v[212:215], s[28:29] offset:128 sc1" % VS, "vst")
        pl = "global_load_dword v147, v250, s[26:27] offset:2048 sc1"
        steps["L"] = lambda: (s.stamp(11), A(pl))
        A("s_mov_b32 s98, 0")
        gl = "global_load_dwordx2 v[144:145], v%d, s[60:61] sc1" % MP
        steps["g"] = lambda: A(gl)
        if "g" not in seq1: A("v_not_b32 v145, v253")
        for i in range(1, 4): A("v_add_u32 v%d, %d, v43" % (48+i, 16*SLAB*i))
        for ch in (seq1 if "L" in seq1 else seq1 + "L"): steps[ch]()
        if cfg["pw"]:
            assert seq1.endswith("Lg")
            A("s_mov_b32 s3, 0\ns_waitcnt vmcnt(1)\nv_cmp_ne_u32 vcc, s44, v147\ns_cbranch_vccz L_b_fast\nL_b_pv:\ns_waitcnt vmcnt(0)")
        else: A("s_mov_b32 s3, 0\nL_b_pv:\ns_waitcnt vmcnt(0)")
        A("v_cmp_ne_u32 vcc, s44, v147\ns_cbranch_vccz L_b_pv_ok\ns_mov_b64 exec, vcc\ns_sleep %d" % int(cfg["vsleep"]))
        A(pl)
        A("s_add_u32 s3, s3, 1\ns_cmp_lt_u32 s3, %d\ns_cbranch_scc1 L_b_pv\ns_waitcnt vmcnt(0)\nL_b_pv_ok:\ns_mov_b64 exec, -1" % SPIN)
        s.stamp(6)
        if cfg["inb"] is True and "z" not in cfg["seq"]: wiped()
        if cfg.get("x_nov"): A("s_branch L_b_vok")
        A("L_b_vf:\nv_cmp_ne_u32 vcc, s44, v145\ns_cbranch_vccz L_b_gok\ns_mov_b64 exec, vcc")
        A(gl, "g")
        A("s_mov_b64 exec, -1\nL_b_fast:\nL_b_gok:")
        A("s_or_b32 s43, s2, s6\ns_cbranch_scc1 L_b_epd\ns_mov_b64 exec, 1")
        A.raw("global_store_dword v246, v253, s[38:39] sc1")
        A("s_mov_b64 exec, -1\nL_b_epd:")
        vreg = cfg["vreg"]
        if not vreg: A("s_mov_b32 m0, s50")
        for i in range(4):
            a = 48+i if i else 43
            if vreg: A("global_load_dwordx4 %s, v%d, s[30:31] sc1" % (vr(64+4*i, 4), a), ("vd", i))
            else:
                if i: A("s_add_u32 m0, m0, 1024")
                A("global_load_lds_dwordx4 v%d, s[30:31] sc1" % a, ("vd", i))
        if seq2:
            steps["M"] = lambda: s.meet("L_b_mw", M_W, 244, 245, 246, 247)
            A("s_cmp_lg_u32 s98, 0\ns_cbranch_scc1 L_b_s2")
            for ch in seq2: steps[ch]()
            A("L_b_s2d:")
            s.tail.append("L_b_s2:\ns_waitcnt vmcnt(0)\ns_branch L_b_s2d")
        def qunp():
            for i in range(8): A("v_lshlrev_b32 v%d, 16, v%d\nv_and_b32 v%d, %s, v%d" % (QF+2*i, 4+i, QF+2*i+1, MASK, 4+i))
        def gq():
            A("v_lshlrev_b32 v149, 16, v144\nv_and_b32 v148, %s, v144" % MASK)
            if "q" in seq2: A.wait(vm="q"); qunp()
            for i in range(16): A("v_mul_f32_dpp v%d, v148, v%d row_newbcast:%d %s" % (QF+i, QF+i, 8+(i >> 1), DPP))
        def gq2():
            qunp()
            for i in range(16): A("v_mul_f32_dpp v%d, v148, v%d row_newbcast:%d %s" % (QF+i, QF+i, 8+(i >> 1), DPP))
        if "q" not in seq2: qunp()
        A("v_mov_b32 v146, 0")
        A.wait(vm="g")
        if cfg.get("dbg"): s.stamp(2)
        A("v_cmp_ne_u32 s[48:49], s44, v145\ns_mov_b32 exec_lo, 0x00ff00ff\ns_mov_b32 exec_hi, 0x00ff00ff\nv_sub_u32 v146, 0, v144\ns_mov_b64 exec, -1")
        if cfg["gqat"] == "0": gq()
        if cfg["gqat"] == "3": A("v_lshlrev_b32 v149, 16, v144\nv_and_b32 v148, %s, v144" % MASK)
        def dots(i):
            A.wait(lg=("rb", i))
            if cfg.get("nodot"): return
            for p in range(4): A("v_dot2_u32_u16 v146, v%d, v%d, v146" % (64+4*i+p, 64+4*i+p))
        for i in range(4):
            A.wait(vm=("vd", i))
            if i == 3 and cfg.get("dbg"): s.stamp(3)
            if vreg:
                if cfg["white"]:
                    for p in range(4): A("v_xor_b32 v%d, v253, v%d" % (64+4*i+p, 64+4*i+p))
                A("ds_write_b128 v42, %s offset:%d" % (vr(64+4*i, 4), 1024*i)); dots(i)
            else: A("ds_read_b128 %s, v42 offset:%d" % (vr(64+4*i, 4), 1024*i), ("rb", i))
        if not vreg:
            for i in range(4): dots(i)
        for sh in (8, 4, 2, 1): A("v_add_u32_dpp v146, v146, v146 row_ror:%d %s" % (sh, DPP))
        A("v_readlane_b32 s40, v146, 0\nv_readlane_b32 s41, v146, 16\nv_readlane_b32 s43, v146, 32\nv_readlane_b32 s51, v146, 48")
        A("s_add_u32 s40, s40, s41\ns_add_u32 s43, s43, s51\ns_add_u32 s40, s40, s43\n" + ("" if cfg.get("nodot") else "s_or_b32 s48, s48, s40\n") + "s_or_b32 s48, s48, s49\ns_cbranch_scc1 L_b_vr\nL_b_vok:")
        s.tail.append("L_b_vr:\ns_add_u32 s98, s98, 1\ns_cmp_lt_u32 s98, %d\ns_cbranch_scc0 L_b_vok\ns_sleep 2\ns_branch L_b_vf" % (SPIN//16))
        s.stamp(7)
        if cfg.get("dbg"): A("s_waitcnt lgkmcnt(0)\ns_add_u32 s88, s64, s98\ns_mov_b32 s89, s65")
        A("ds_write_b8 v244, v245 offset:%d" % M_V)
        A("s_lshl_b32 s43, s6, 11\ns_add_u32 m0, s43, %d" % YL)
        if int(cfg["prioD"]): A("s_setprio %d" % int(cfg.get("prioE", 0)))
        if cfg["gqat"] == "1": gq()
        A(("L_b_vs:" if cfg.get("nosl") else "s_branch L_b_vw\nL_b_vs:\ns_sleep 1") + "\nL_b_vw:\nds_read2_b32 v[54:55], v246 offset0:%d offset1:%d\ns_waitcnt lgkmcnt(0)\nv_and_b32 v54, v54, v55\nv_cmp_ne_u32 vcc, 0x01010101, v54\ns_cbranch_vccnz L_b_vs" % ((M_V if cfg.get("x_noy") else M_A)//4, M_V//4))
        ydma = ["global_load_lds_dwordx4 v44, s[52:53] sc1", "global_load_lds_dwordx4 v44, s[54:55] offset:1024 sc1"]
        VF = lambda n: 64+4*n
        def trd(n):
            for jj in range(2):
                A("ds_read_b64_tr_b16 %s, v%d offset:%d" % (vr(VF(n)+2*jj, 2), 40+(n >> 3), 2048*(n & 3)+1024*jj+8192*((n >> 2) & 1)), ("t", n))
        def comb(c):
            o = []
            for r in range(4):
                e, d = 128+8*c+r, 132+8*c+r
                o += ["v_add_f32 v%d, v%d, v%d" % (160+2*r+c, e, d), "v_sub_f32 v%d, v%d, v%d" % (168+2*r+c, e, d)]
            for i in range(8): o.append("v_mul_f32_dpp v%d, v149, v%d row_newbcast:%d %s" % (160+2*i+c, 160+2*i+c, 8+i, DPP))
            return o
        ahead = int(cfg["ahead"]); ypre = int(cfg["ypre"])
        d2 = cfg.get("dbg") == "2"
        if d2: s.stamp(1)
        for n in range(ahead): trd(n)
        if cfg["gqat"] == "2": gq()
        c0 = comb(0)
        for n in range(16):
            if n >= 9 or n % 2 == 0: A.wait(lg=("t", n if n >= 8 else n+1))
            acc = vr(128+4*(n >> 2), 4)
            A("v_mfma_f32_16x16x32_bf16 %s, %s, %s, %s" % (acc, vr(CFR((n >> 2) & 1, n & 3, 0, 0), 4), vr(VF(n), 4), acc if n & 3 else "0"))
            if d2 and n in (0, 8, 15): s.stamp({0: 4, 8: 5, 15: 11}[n])
            if n+ahead < 16: trd(n+ahead)
            if n >= 11:
                for _ in range(2): A(c0.pop(0))
            if cfg["inb"] == "N":
                if n == int(cfg['y0']): A("global_load_dword v47, v46, s[58:59] offset:512 sc1")
                if n == ypre:
                    A("s_waitcnt vmcnt(0)\nv_cmp_ne_u32 s[48:49], s45, v47")
                    for l in ydma: A(l)
            elif n == ypre:
                for l in ydma: A(l)
        yrd = lambda pp: A("ds_read_b128 %s, v45 offset:%d" % (vr(56+4*pp, 4), YL+1024*pp), ("y", pp))
        def yflags():
            A("L_b_yf:\ns_mov_b32 s3, 0\nL_b_py:\nglobal_load_dword v47, v46, s[58:59] offset:512 sc1\ns_waitcnt vmcnt(0)\nv_cmp_ne_u32 vcc, s45, v47\ns_cbranch_vccz L_b_py_ok")
            A("s_add_u32 s3, s3, 1\ns_cmp_lt_u32 s3, %d\ns_cbranch_scc1 L_b_py\nL_b_py_ok:\ns_waitcnt lgkmcnt(0)" % SPIN)
            for l in ydma: A(l)
            A("s_waitcnt vmcnt(0)"); yrd(0); yrd(1)
            A("s_waitcnt lgkmcnt(0)\ns_branch L_b_yok")
        s.side(yflags)
        for l in c0: A(l)
        if cfg["gqat"] == "3": gq2()
        A("s_mov_b32 s97, 0\ns_waitcnt vmcnt(0)"); yrd(0); yrd(1)
        if d2: s.stamp(13)
        for l in comb(1): A(l)
        s.stamp(8)
        if cfg["inb"] == "N": A("s_cmp_lg_u64 s[48:49], 0\ns_cbranch_scc1 L_b_yf\ns_waitcnt lgkmcnt(0)\nL_b_yok:")
        else:
            A("s_cmp_eq_u32 s44, s45\ns_cbranch_scc1 L_b_yf\nL_b_yc:\ns_waitcnt lgkmcnt(0)")
            A("v_max3_u32 v47, v56, v57, v58\nv_max3_u32 v48, v59, v60, v61\nv_max3_u32 v47, v47, v62, v63\nv_max_u32 v47, v47, v48\nv_cmp_eq_u32 vcc, -1, v47\n" + ("s_branch L_b_yok" if cfg.get("x_noy") else "s_cbranch_vccz L_b_yok"))
            for l in ydma: A(l)
            A("s_add_u32 s97, s97, 1\ns_cmp_ge_u32 s97, %d\ns_cbranch_scc1 L_b_yf\ns_waitcnt vmcnt(0)" % NEAR_TRIES); yrd(0); yrd(1)
            A("s_branch L_b_yc\nL_b_yok:")
        A.reset_counters()
        if cfg.get("tsleep"): A("s_sleep %d" % int(cfg["tsleep"]))
        if d2: s.stamp(9)
        elif cfg.get("dbg"): A("s_add_u32 s82, s64, s97\ns_mov_b32 s83, s65")
        un = lambda i: A("v_lshlrev_b32 v%d, 16, v%d\nv_and_b32 v%d, %s, v%d" % (72+2*i, 56+i, 73+2*i, MASK, 56+i))
        fm = lambda i: A("v_pk_fma_f32 %s, %s, %s, %s" % (vr(160+2*i, 2), vr(QF+2*i, 2), vr(72+2*i, 2), vr(160+2*i, 2)))
        cv2 = lambda i: A("v_cvt_pk_bf16_f32 v%d, v%d, v%d" % (96+i, 160+2*i, 161+2*i))
        st = lambda i: A("buffer_store_dword v%d, v%d, s[12:15], %s offen %s" % (96+i, 239 if i >> 2 else 234, qso[i & 3], cfg["ont"].replace("_", " ")))
        if cfg["fin"] == "1":
            for i in range(11):
                if 0 <= i-3 < 8: st(i-3)
                if 0 <= i-2 < 8: cv2(i-2)
                if 0 <= i-1 < 8: fm(i-1)
                if i < 8: un(i)
        elif cfg["fin"] == "2":
            for f in (un, fm, cv2, st):
                for i in range(8): f(i)
        else:
            for pp in range(2):
                A.wait(lg=("y", pp))
                if pp: s.stamp(10)
                for r in range(4):
                    o = 8*pp+2*r
                    A("v_lshlrev_b32 v%d, 16, v%d\nv_and_b32 v%d, %s, v%d" % (72+o, 56+4*pp+r, 73+o, MASK, 56+4*pp+r))
                    A("v_pk_fma_f32 %s, %s, %s, %s" % (vr(160+o, 2), vr(QF+o, 2), vr(72+o, 2), vr(160+o, 2)))
                    A("v_cvt_pk_bf16_f32 v%d, v%d, v%d" % (96+4*pp+r, 160+o, 161+o))
                    A("buffer_store_dword v%d, v%d, s[12:15], %s offen %s" % (96+4*pp+r, 239 if pp else 234, qso[r], cfg["ont"].replace("_", " ")))
        if d2: s.stamp(14)
        s.stamps_out(0, 16)
        A("L_end:\ns_endpgm")

    def build(s):
        A = s.A
        A.raw(HEADER.strip("\n"))
        A.raw("; @launch grid=(256,1,1) block=(512,1,1) lds=%d" % LDS)
        A.raw('.amdgcn_target "amdgcn-amd-amdhsa--gfx950"\n.text\n.globl %s\n.p2align 8\n.type %s,@function\n%s:' % (KN, KN, KN))
        s.prologue()
        s.roleB_head(); A("s_branch L_roleB"); s.roleA(); A("L_roleB:"); s.roleB()
        for t in s.tail: A(t)
        A.raw(".p2align 8\n.fill 1536, 4, 0xbf810000")
        A.raw('.section .rodata,"a"\n.p2align 6\n.amdhsa_kernel %s\n.amdhsa_next_free_vgpr 256\n.amdhsa_next_free_sgpr 102\n.amdhsa_accum_offset 256\n.amdhsa_group_segment_fixed_size 0\n.amdhsa_kernarg_size 120\n.amdhsa_user_sgpr_count 2\n.amdhsa_user_sgpr_kernarg_segment_ptr 1\n.amdhsa_system_sgpr_workgroup_id_x 1\n.end_amdhsa_kernel' % KN)
        return A.finish()

if __name__ == "__main__":
    out = sys.argv[1]
    cfg = {}
    for a in sys.argv[2:]:
        k, v = a.split("=")
        cfg[k] = {"True": True, "False": False}.get(v, v)
    g = G(**cfg)
    txt = g.build()
    if int(g.cfg.get("al", 0)):
        from align import align
        txt, nf, npad = align(txt, int(g.cfg["al"])); print("aligned runs", nf, "pads", npad, file=sys.stderr)
    open(out, "w").write(txt)
    print(out, "nops inserted", g.A.nops, file=sys.stderr)
    import subprocess, os
    r = subprocess.run([sys.executable, "cdna_unwritten_srd_check.py", out], capture_output=True, text=True)
    if r.returncode != 0:
        print(r.stdout, r.stderr); os.remove(out); sys.exit(1)
```

```python
import sys
from dsl import Asm
KN = "gated_mix__ssm_conv_h3__spectral_fnet__prompt_kernel"
W_E   = 0
W_C   = 4096
FARC  = 0x10000
W_R   = 0x800000
W_K   = 0x40000
W_G   = 0x20000
W_V   = 0x400000
W_R2  = 0xa00000
STAMP_OFF = 200<<20
LCG_A, LCG_C = 1664525, 1013904223
UL = 0; HL = 9216; RED = HL + 16640; X1 = RED + 4*8704; VL = X1; GL = RED + 24576; KL = GL + 256; YL = HL; CL = RED + 8192; LDS = X1 + 16640
M_W, M_A, M_V, M_C, M_TAG, M_X, M_K = UL, UL+4, UL+8, UL+12, UL+16, UL+24, UL+28
SPIN = 40000
NEAR_TRIES = 64
MASK = "0xffff0000"
DPP = "row_mask:0xf bank_mask:0xf"

HEADER = """
; One launch, 256 workgroups of 8 waves.  Workgroups with equal id & 7 form a group that owns 64 channels.
;   two channels -> handed back to the owners of the output tiles.
; Waves 0-3 ("B"): 8-point row stage on two mirrored row sets + 32 x 16 hidden DFT, folded -> handed to all groups
;   -> 256-point stage for a 128-row x 32-channel output tile, gate, final mix.  DFT factors are computed in the kernel.
; L2 when every member shows the same XCC id and are republished written-through otherwise; between groups they are
"""

def vr(a, n): return "v[%d:%d]" % (a, a+n-1)

class G:
    def __init__(s, **cfg):
        s.cfg = dict(stamps=False, nt=" nt", xnt="nt", qnt="nt", prent="", ont="", vsleep=2, lord="hvwipa", hpre=1, nb=14, ypre=3, rot=1,
                     slab=2048, seqE="r", seq="ac.qObePLg.", prioA=1, prioB=0, prioD=3, far=False, ns=8, inb="A", gqat='0', y0=0, ahead=7, vreg=True, white=True, csh=True, fin='0', t_gw=False, t_sk=False, t_h=False, t_c=False, dsh=False, hst='em', early=False, pw=False, wat=0, d0=False, halo=True, ph=False, qe='2', cq=2, cn=10, wn=24, se='v', pfl='', d0nt='', hm=1, al=5)
        s.cfg.update(cfg)
        s.A = Asm(); s.tail = []; s.role = "p"
    def stamp(s, i):
        if s.cfg.get("dly") == "%s%d" % (s.role, i): s.A("s_sleep 4")
        if s.cfg.get("probe") and i not in (0, int(s.cfg["probe"].split(".")[1])): return
        if s.cfg["stamps"]: s.A("%s s[%d:%d]" % ("s_memtime" if s.cfg.get("clk") else "s_memrealtime", 64+2*i, 65+2*i))
    def stamps_out(s, role, n):
        if not s.cfg["stamps"]: return
        A = s.A
        A("s_waitcnt vmcnt(0) lgkmcnt(0)")
        s.stamp(n-1)
        A("s_waitcnt lgkmcnt(0)")
        A("s_cmp_lg_u32 s6, %d\ns_cbranch_scc1 L_end" % int(s.cfg.get("sw", 0)))
        if s.cfg.get("probe"):
            pr, pi = [int(x) for x in s.cfg["probe"].split(".")]
            if pr == role:
                inv = "v_not_b32" if s.cfg.get("ref", "first") == "first" else "v_mov_b32"
                A("s_mov_b64 exec, 1\nv_mov_b32 v1, 0\nv_mov_b32 v2, s%d\n%s v3, s64\nglobal_atomic_umax v1, v2, s[36:37] sc1\nglobal_atomic_umax v1, v3, s[36:37] offset:128 sc1\ns_waitcnt vmcnt(0)" % (64+2*pi, inv))
                A("L_probe0:\ns_memrealtime s[40:41]\ns_waitcnt lgkmcnt(0)\ns_sub_u32 s40, s40, s64\ns_cmp_lt_u32 s40, 3000\ns_cbranch_scc1 L_probe0")
                A("global_load_dword v2, v1, s[36:37] sc1\nglobal_load_dword v3, v1, s[36:37] offset:128 sc1\ns_waitcnt vmcnt(0)\n%s v3, v3\nv_readfirstlane_b32 s42, v2\nv_readfirstlane_b32 s43, v3\ns_nop 3" % inv)
                A("s_sub_u32 s3, s42, s43\ns_min_u32 s3, s3, 1500\ns_mul_i32 s3, s3, %d\ns_add_u32 s3, s3, 5000" % int(s.cfg.get("skew", 5)))
                A("L_probe:\ns_memrealtime s[40:41]\ns_waitcnt lgkmcnt(0)\ns_sub_u32 s40, s40, s64\ns_cmp_lt_u32 s40, s3\ns_cbranch_scc1 L_probe")
            return
        A("s_add_u32 s38, s38, %d\ns_addc_u32 s39, s39, 0" % (STAMP_OFF + role*256*128))
        A("s_lshl_b32 s3, s2, 7\nv_mov_b32 v1, s3\ns_mov_b64 exec, 1")
        for j in range(n):
            A("v_mov_b32 v2, s%d\nv_mov_b32 v3, s%d\nglobal_store_dwordx2 v1, v[2:3], s[38:39] offset:%d\ns_nop 1" % (64+2*j, 65+2*j, 8*j))
    def side(s, fn):
        A = s.A; sv = (list(A.vm), list(A.lg)); keep = A.L; A.L = []
        fn()
        s.tail.append("\n".join(i.text for i in A.L)); A.L = keep; A.vm, A.lg = sv
    def jit(s, ch, n=100, reps=1):
        if ch in s.cfg.get("jit", ""):
            s.A("s_add_u32 s99, s5, s6\ns_and_b32 s99, s99, 7\ns_cmp_lg_u32 s99, 3\ns_cbranch_scc1 L_jit_%s\n" % ch + "s_sleep %d\n" % n * reps + "L_jit_%s:" % ch)
    def addbase(s, d, base, soff):
        s.A("s_add_u32 s%d, s%d, %s\ns_addc_u32 s%d, s%d, 0" % (d, base, soff, d+1, base+1))
    def meet(s, name, off, vw, vone, vzero, vtmp, arrive=True):
        if arrive: s.A("ds_write_b8 v%d, v%d offset:%d" % (vw, vone, off))
        s.A("%s:\nds_read_b32 v%d, v%d offset:%d\ns_waitcnt lgkmcnt(0)\nv_cmp_ne_u32 vcc, 0x01010101, v%d\ns_cbranch_vccnz %s" % (name, vtmp, vzero, off, vtmp, name))

    def prologue(s):
        A = s.A
        s.stamp(0)
        if s.cfg.get("hsleep"): A("s_sleep %d" % int(s.cfg["hsleep"]))
        A("s_load_dwordx16 s[16:31], s[0:1], 0\ns_load_dwordx8 s[32:39], s[0:1], 88")
        A("s_cmp_ge_u32 s2, 256\ns_cbranch_scc1 L_end")
        if s.cfg.get("swap"):
            A("s_or_b32 s3, s2, 1\ns_cmp_eq_u32 s3, %d\ns_cselect_b32 s3, 1, 0\ns_xor_b32 s2, s2, s3" % int(s.cfg["swap"]))
        A("s_getpc_b64 s[40:41]")
        A("s_add_u32 s4, s2, %d\ns_and_b32 s4, s4, 7\ns_lshr_b32 s5, s2, 3" % int(s.cfg["rot"]))
        A("v_lshrrev_b32 v2, 6, v0\ns_lshl_b32 s3, s5, 9\nv_lshl_add_u32 v1, v2, 6, s3\nv_readfirstlane_b32 s7, v2")
        if s.cfg.get("x_nopf"): A("v_mov_b32 v1, 0")
        A("global_load_dword v255, v1, s[40:41]", "pf")
        A("v_and_b32 v1, 63, v0\nv_and_b32 v0, 255, v0\ns_and_b32 s6, s7, 3")
        A("v_lshlrev_b32 v46, 2, v0\nv_mov_b32 v45, 0\nds_write_b32 v46, v45 offset:%d" % UL)
        A("s_mov_b32 s10, 0x200000\ns_mov_b32 s11, 0x20000")
        A("s_cmp_ge_u32 s7, 4\ns_cbranch_scc1 L_roleA")

    def roleA(s):
        A = s.A; cfg = s.cfg; nt = cfg["nt"]
        A.reset_counters(); A.vm = ["pf"]
        KR, VR = 10, 22
        A("L_roleA:"); s.role = "a"
        A("s_lshl_b32 s40, s5, 16\ns_lshl_b32 s3, s4, 7\ns_add_u32 s40, s40, s3")
        dsh = cfg["dsh"]
        if dsh:
            A("s_lshl_b32 s3, s6, 14\ns_add_u32 s40, s40, s3\nv_lshrrev_b32 v5, 1, v1\nv_bfi_b32 v5, 1, v1, v5\nv_and_b32 v3, 2, v0\nv_lshl_add_u32 v3, v3, 12, s40\nv_lshl_add_u32 v2, v5, 2, v3\nv_add_u32 v3, -3072, v2")
            A("s_lshl_b32 s3, s4, 9\nv_lshl_add_u32 v5, v5, 4, s3\nv_and_b32 v4, 31, v0")
        else:
            A("v_lshrrev_b32 v3, 5, v0\nv_and_b32 v4, 31, v0\nv_lshl_add_u32 v3, v3, 13, s40\nv_lshl_add_u32 v2, v4, 2, v3\nv_add_u32 v3, -3072, v2")
            A("s_lshl_b32 s3, s4, 9\nv_lshl_add_u32 v5, v4, 4, s3")
        A("s_lshl_b32 s41, s4, 5\ns_add_u32 s41, s41, s5")
        A("s_lshl_b32 s42, s41, 13\ns_add_u32 s43, s42, 4096\ns_lshl_b32 s41, s41, 2\ns_movk_i32 s7, 4096\nv_mov_b32 v49, s41")
        A("s_mov_b32 s50, 0x200000\ns_mov_b32 s51, 0x20000")
        early = cfg["early"]
        if early:
            assert not cfg.get("g3")
            A("s_and_b32 s56, s5, 15\ns_lshr_b32 s57, s5, 4\ns_lshl_b32 s58, s56, 3\ns_add_u32 s58, s58, s4\ns_lshl_b32 s58, s58, 7\ns_lshl_b32 s3, s57, 20\ns_add_u32 s3, s3, s58")
            A("v_lshlrev_b32 v6, 4, v0\nv_and_b32 v252, 0xfc, v0\nv_lshl_add_u32 v252, v252, 12, s3\nv_and_b32 v254, 3, v0\nv_lshl_add_u32 v252, v254, 5, v252\nv_add_u32 v231, 4096, v2")
            A("s_lshl_b32 s3, s41, 5\ns_add_u32 s3, s3, %d\nv_and_b32 v253, 64, v0\nv_add_u32 v253, s3, v253" % W_C)
        A("s_waitcnt lgkmcnt(0)")
        s.stamp(1)
        A("s_mov_b64 s[8:9], s[18:19]")
        if cfg["se"] == "f": A("s_load_dword s44, s[38:39], 0\ns_load_dword s46, s[26:27], s41")
        for ch in cfg.get("tlb", ""):
            if ch == "V": A("v_mov_b32 v230, %d\nglobal_load_dword v230, v230, s[38:39] nt" % (W_V+0x1fff00+0), "k")
            else: A("global_load_dword v231, v45, s[%d:%d] nt" % (dict(v=(20,21), h=(24,25), o=(34,35), s=(22,23), d=(26,27), w=(38,39))[ch]), "k")
        def haloload():
            if cfg["halo"]: A("s_mov_b32 exec_lo, 0x33333333\ns_mov_b32 exec_hi, 0x33333333" if dsh else "s_mov_b32 exec_hi, 0")
            for i in range(0 if cfg.get("x_nohalo") else 3): A("buffer_load_dword v%d, v3, s[8:11], 0 offen offset:%d%s" % (KR+i, 1024*i, cfg.get("hnt", nt)), "k")
            if cfg["t_sk"]: A("global_load_dwordx4 v[30:33], v5, s[22:23]", "k")
            if cfg["halo"]: A("s_mov_b64 exec, -1")
        if not cfg.get("hlast"): haloload()
        for i in range(8): A("buffer_load_dword v%d, v2, s[8:11], %s offen offset:%d%s" % (KR+3+i, "s7" if i >= 4 else "0", 1024*(i & 3), nt), "k")
        if cfg.get("hlast"): haloload()
        if not cfg["t_sk"]: A("global_load_dwordx4 v[30:33], v5, s[22:23]", "k")
        if cfg["se"] == "v":
            if cfg["t_c"]: A("s_mov_b64 exec, 1")
            A("global_load_dword v9, v45, s[38:39] sc1", "k")
            A("global_load_dword v49, v49, s[26:27]", "k")
            if cfg["t_c"]: A("s_mov_b64 exec, -1")
        elif cfg["se"] == "p":
            A("global_load_dword v9, v45, s[38:39]", "k")
            A("global_load_dword v49, v49, s[26:27]", "k")
        elif cfg["se"] == "s": A("s_load_dword s44, s[38:39], 0\ns_load_dword s46, s[26:27], s41")
        if "B" not in cfg["lord"]: A("s_barrier")
        RB = 34
        if early: A("s_mov_b64 s[48:49], s[24:25]")
        else:
            A("s_mov_b64 s[48:49], s[24:25]"); s.addbase(20, 20, "s7")
            A("s_and_b32 s28, s5, 15\ns_lshr_b32 s29, s5, 4\ns_lshl_b32 s30, s28, 3\ns_add_u32 s30, s30, s4\ns_lshl_b32 s30, s30, 7\ns_lshl_b32 s3, s29, 20\ns_add_u32 s3, s3, s30")
            RB = 34
            if cfg.get("g3"):
                RB = 36
                s.addbase(36, 38, "%d" % (0xc00000 + 128))
                if cfg["g3"] == "1": A("s_cmp_eq_u32 s4, 3\ns_cselect_b64 s[36:37], s[36:37], s[34:35]")
            s.addbase(12, RB, "s3")
            A("s_lshl_b32 s3, s4, 12\ns_add_u32 s3, s3, %d" % W_C); s.addbase(58, 38, "s3")
            A("s_lshl_b32 s3, s5, 7\nv_and_b32 v253, 64, v0\nv_add_u32 v253, s3, v253\nv_lshlrev_b32 v6, 4, v0\nv_and_b32 v252, 0xfc, v0\nv_lshlrev_b32 v252, 12, v252\nv_and_b32 v254, 3, v0\nv_lshl_add_u32 v252, v254, 5, v252")
        def addr():
            if early:
                A("s_mov_b64 s[28:29], s[56:57]\ns_mov_b32 s30, s58\ns_lshl_b32 s3, s4, 12\ns_add_u32 s3, s3, %d" % W_C); s.addbase(58, 38, "s3")
            A("s_mul_i32 s3, s6, 4160\nv_min_u32 v48, 6, v1\nv_lshl_add_u32 v47, v48, 2, s3\nds_write_b32 v47, v45 offset:%d" % HL)
            A("s_lshl_b32 s47, s6, 11\ns_lshl_b32 s60, s5, 2\ns_add_u32 s60, s60, s6\ns_lshl_b32 s31, s60, 7\ns_add_u32 s31, s31, s4\ns_lshl_b32 s31, s31, 7")
            s.addbase(54, RB, "s31")
            A("s_lshl_b32 s3, s29, 6\ns_add_u32 s30, s30, s3")
            s.addbase(52, RB, "s30"); s.addbase(56, 52, "0x3fc00")
            A("s_lshl_b32 s33, s28, 2\ns_add_u32 s33, s33, s6\ns_lshl_b32 s33, s33, 5\ns_add_u32 s33, s33, s4\ns_lshl_b32 s33, s33, 7\ns_add_u32 s33, s33, s3")
            s.addbase(16, RB, "s33")
            A("v_and_b32 v233, 48, v6\nv_and_b32 v5, 60, v1\ns_lshl_b32 s3, s6, 19\nv_lshl_add_u32 v232, v5, 12, s3\nv_add_u32 v232, v232, v233")
            A("v_and_b32 v47, 28, v1\nv_lshl_add_u32 v233, v47, 16, v233\nv_and_b32 v47, 32, v1\nv_lshl_add_u32 v233, v47, 5, v233")
            A("s_lshl_b32 s3, s29, 2\ns_add_u32 s3, s3, s6\ns_lshl_b32 s3, s3, 6\nv_and_b32 v237, 15, v0\nv_lshl_add_u32 v237, v237, 2, s3")
            if dsh:
                A("v_lshlrev_b32 v44, 3, v1\nv_lshlrev_b32 v8, 5, v1\nv_bfi_b32 v8, 32, v8, v44\ns_lshl_b32 s3, s5, 4\nv_xor_b32 v8, s3, v8\nv_and_b32 v8, 48, v8\nv_lshl_add_u32 v8, v47, 1, v8\nv_and_b32 v47, 28, v1\nv_lshl_add_u32 v8, v47, 9, v8")
            else:
                A("v_lshlrev_b32 v44, 3, v1\nv_lshrrev_b32 v47, 1, v1\nv_and_b32 v47, 16, v47\nv_and_b32 v48, 48, v44\nv_xor_b32 v47, v47, v48\nv_lshl_add_u32 v47, v4, 6, v47")
                A("v_add_u32 v47, s47, v47\nv_xor_b32 v48, 32, v47\nv_lshl_add_u32 v21, v1, 4, s47")
                A("v_add_u32 v8, v1, v1\nv_xor_b32 v8, v8, v6\ns_lshl_b32 s3, s5, 4\nv_xor_b32 v8, s3, v8\nv_and_b32 v8, 48, v8\nv_lshl_add_u32 v8, v5, 8, v8")
            A("s_lshl_b32 s60, s60, 2\nv_mov_b32 v7, s60\ns_add_u32 m0, s47, %d" % (UL+1024))
            A("v_and_b32 v238, 15, v0\nv_lshrrev_b32 v235, 4, v1\nv_sub_u32 v238, v238, v235")
            A("s_and_b32 s41, s6, 1\ns_lshl_b32 s41, s41, 3\ns_sub_u32 s41, 16, s41\nv_add_u32 v238, s41, v238\ns_or_b32 s3, s6, 1\ns_lshl_b32 s3, s3, 4")
            for bb in range(2):
                if bb: A("v_add_u32 v238, -4, v238")
                A("v_lshlrev_b32 v239, 2, v238\nv_xor_b32 v239, s3, v239\nv_and_b32 v239, 48, v239\nv_lshl_add_u32 v%d, v238, 6, v239" % (248+2*bb))
                A("v_xor_b32 v%d, 16, v%d" % (249+2*bb, 248+2*bb))
            A("s_mul_i32 s3, s6, 8704\nv_add_u32 v236, v235, v1\nv_lshl_add_u32 v236, v236, 4, s3")
            A("s_lshl_b32 s3, s6, 6\nv_mul_u32_u24 v3, 272, v4\nv_lshrrev_b32 v5, 1, v1\nv_and_b32 v5, 16, v5\nv_add3_u32 v3, v3, v5, s3")
            A("s_lshl_b32 s60, s5, 1\ns_add_u32 s60, s60, s3\ns_lshl_b32 s60, s60, 1")
            A("s_lshr_b32 s61, s6, 1\ns_mul_i32 s61, s61, 7808\ns_lshl_b32 s41, s6, 8\ns_add_u32 s61, s61, s41\ns_add_u32 s61, s61, %d" % HL)
            A("v_and_b32 v234, 1, v0\nv_mul_u32_u24 v234, 4158, v234\nv_lshl_add_u32 v234, v1, 1, v234\nv_add_u32 v234, s61, v234")
        for ch in cfg["lord"]:
            if ch == "a": addr()
            if ch == "B": A("s_barrier")
            if ch in "vw":
                for i in (range(4) if ch == "v" else range(4, 8)): A("global_load_dword v%d, v%d, s[20:21] offset:%d%s" % (VR+i, 231 if early else 2, 1024*i-4096, nt), ("v", i))
            if ch in cfg.get("x_skip", ""): continue
            if ch == "h":
                if cfg["t_h"]:
                    A("buffer_load_dwordx4 v[120:123], v6, s[48:51], s42 offen" + nt, ("h", 0))
                    A("s_mov_b32 exec_lo, 0\ns_brev_b32 exec_hi, 1\nbuffer_load_dword v39, v6, s[48:51], s42 offen offset:16" + nt + "\ns_mov_b64 exec, -1", ("h", 0))
                else:
                    A("buffer_load_dwordx4 v[36:39], v6, s[48:51], s42 offen offset:%d" % int(cfg.get("x_hoff", 4)) + nt, ("h", 0))
                    if cfg["d0"]: A("s_mov_b64 exec, 1")
                    A("buffer_load_dword v34, v6, s[48:51], s42 offen" + " " + cfg["d0nt"], ("h", 0))
                    if cfg["d0"]: A("s_mov_b64 exec, -1")
            if ch == "i":
                if cfg["t_h"]:
                    A("buffer_load_dwordx4 v[124:127], v6, s[48:51], s43 offen" + nt, ("h", 1))
                    A("s_mov_b32 exec_lo, 0\ns_brev_b32 exec_hi, 1\nbuffer_load_dword v43, v6, s[48:51], s43 offen offset:16" + nt + "\ns_mov_b64 exec, -1", ("h", 1))
                else:
                    A("buffer_load_dwordx4 v[40:43], v6, s[48:51], s43 offen offset:%d" % int(cfg.get("x_hoff", 4)) + nt, ("h", 1))
                    if cfg["d0"]: A("s_mov_b64 exec, 1")
                    A("buffer_load_dword v35, v6, s[48:51], s43 offen" + " " + cfg["d0nt"], ("h", 1))
                    if cfg["d0"]: A("s_mov_b64 exec, -1")
            if ch == "p":
                if cfg["t_c"]: A("s_mov_b64 exec, 1")
                A("global_load_dword v253, v253, s[%s] " % ("38:39" if early else "58:59") + cfg.get("cfl", "sc1"), "pre")
                if cfg["t_c"]: A("s_mov_b64 exec, -1")
                if cfg["ph"]: A("s_mov_b32 exec_lo, 0x55555555\ns_mov_b32 exec_hi, 0x55555555")
                A("global_load_dword v254, v252, s[%s] " % ("34:35" if early else "12:13") + cfg.get("pfl", "sc1") + " " + cfg["prent"], "pre")
                if cfg["ph"]: A("s_mov_b64 exec, -1")
        if int(cfg["prioA"]): A("s_setprio %d" % int(cfg["prioA"]))
        s.stamp(11)
        KP, W, S, VP = 50, 72, 80, 96
        A.wait(vm="k")
        if cfg["se"] in "sf": A("s_waitcnt lgkmcnt(0)")
        s.stamp(2)
        if cfg["halo"] and dsh:
            A("s_mov_b32 vcc_lo, 0x33333333\ns_mov_b32 vcc_hi, 0x33333333")
            for i in range(3): A("v_cndmask_b32_dpp v%d, v%d, v%d, vcc quad_perm:[0,1,0,1] %s" % (KR+i, KR+8+i, KR+i, DPP))
        elif cfg["halo"]:
            for i in range(3): A("v_mov_b32 v%d, v%d" % (96+i, KR+8+i))
            for i in range(3): A("v_permlane32_swap_b32 v%d, v%d" % (KR+i, 96+i))
        if cfg["t_sk"]:
            assert cfg["halo"] and not dsh
            A("v_mov_b64 v[100:101], v[30:31]\nv_mov_b64 v[102:103], v[32:33]")
            for i in range(4): A("v_permlane32_swap_b32 v%d, v%d" % (30+i, 100+i))
        for t in range(4):
            for c in range(2):
                src = 30 + 2*c + (t >> 1)
                A(("v_and_b32 v%d, " + MASK + ", v%d" if t & 1 else "v_lshlrev_b32 v%d, 16, v%d") % (W+2*t+c, src))
        for i in range(11):
            A("v_lshlrev_b32 v%d, 16, v%d\nv_and_b32 v%d, %s, v%d" % (KP+2*i, KR+i, KP+2*i+1, MASK, KR+i))
        for t in (3, 2, 1, 0):
            for r in range(8):
                k = vr(KP+2*(r+3-t), 2); w = vr(W+2*t, 2); d = vr(S+2*r, 2)
                A("v_pk_mul_f32 %s, %s, %s" % (d, k, w) if t == 3 else "v_pk_fma_f32 %s, %s, %s, %s" % (d, k, w, d))
        def misc():
            if cfg["se"] in "vp": A("v_readfirstlane_b32 s44, v9\nv_readfirstlane_b32 s46, v49")
            A("s_mov_b32 s96, 0\ns_getreg_b32 s3, hwreg(HW_REG_XCC_ID, 0, 4)")
            A("s_mul_i32 s44, s44, %d\ns_add_u32 s44, s44, %d\ns_add_u32 s45, s44, s3\ns_add_u32 s45, s45, 1" % (LCG_A, LCG_C))
            A("v_mov_b32 v9, s45\nv_mov_b32 v20, v44")
            A("v_mov_b32 v10, v234\nv_mov_b32 v2, v236\nv_mov_b64 v[18:19], v[232:233]\nv_mov_b32 v30, v237\nv_mov_b64 v[14:15], v[248:249]\nv_mov_b64 v[16:17], v[250:251]")
            for i in range(1, 4): A("v_add_u32 v%d, %d, v234" % (10+i, 1024*i))
        def hstage(at):
            for c in range(2):
                if cfg["hst"][c] != at: continue
                A.wait(vm=("h", c))
                d = [34+c] + [36+4*c+k for k in range(4)]
                if cfg["t_h"]:
                    A("v_mov_b32_dpp v%d, v%d wave_shl:1 %s\nv_mov_b32 v%d, v%d" % (39+4*c, 120+4*c, DPP, 34+c, 120+4*c))
                    for k in range(3): A("v_mov_b32 v%d, v%d" % (36+4*c+k, 121+4*c+k))
                if cfg["d0"]: A("v_mov_b32_dpp v%d, v%d wave_shr:1 %s" % (34+c, 39+4*c, DPP))
                A("ds_write_b128 v6, %s offset:%d" % (vr(36+4*c, 4), HL+c*8320+4160+32))
                for k in range(4): A("v_alignbit_b32 v%d, v%d, v%d, 16" % (52+4*c+k, d[k+1], d[k]))
                A("ds_write_b128 v6, %s offset:%d" % (vr(52+4*c, 4), HL+c*8320+32))
                A("s_cmp_lg_u32 s6, 0\ns_cbranch_scc1 L_a_h%d\ns_mov_b64 exec, 1" % c)
                A("s_and_b32 s3, s46, 0xffff0000" if c else "s_lshl_b32 s3, s46, 16")
                A("v_lshlrev_b32 v%d, 16, v%d\nv_add_f32 v%d, s3, v%d\nv_cvt_pk_bf16_f32 v%d, 0, v%d\ns_mov_b32 s3, 0x07060302\nv_perm_b32 v%d, v%d, v%d, s3" % (60+c, 34+c, 60+c, 60+c, 60+c, 60+c, 62+c, 34+c, 60+c))
                A.raw("ds_write_b32 v6, v%d offset:%d\nds_write_b32 v6, v%d offset:%d" % (60+c, HL+c*8320+28, 62+c, HL+c*8320+4160+28))
                A("s_mov_b64 exec, -1\nL_a_h%d:" % c)
        mearly = dsh or "e" in cfg["hst"]
        if mearly: misc()
        hstage("e")
        s.stamp(12)
        for r in range(8):
            if r in (0, 4): A.wait(vm=("v", r+3))
            if r == 4: s.stamp(10)
            A("v_lshlrev_b32 v%d, 16, v%d\nv_and_b32 v%d, %s, v%d" % (VP+2*r, VR+r, VP+2*r+1, MASK, VR+r))
            A("v_pk_mul_f32 %s, %s, %s" % (vr(S+2*r, 2), vr(S+2*r, 2), vr(VP+2*r, 2)))
            if r & 1:
                j = (7-r)//2
                for c in range(2): A("v_cvt_pk_bf16_f32 v%d, v%d, v%d" % (112+4*c+j, S+2*r+c, S+2*(r-1)+c))
        if not dsh:
            for c in range(2): A("ds_write_b128 v%d, %s offset:%d" % (47+c, vr(112+4*c, 4), RED))
            A("ds_read_b128 v[240:243], v21 offset:%d" % RED, "sh0")
            A("ds_read_b128 v[244:247], v21 offset:%d" % (RED+1024), "sh1")
        if not mearly: misc()
        ust = ["global_store_dwordx4 v8, v[240:243], s[54:55]", "global_store_dwordx4 v8, v[244:247], s[54:55] offset:%d" % (1024 if dsh else 64)]
        s.jit("U", 127, 4); s.jit("u")
        if dsh:
            for b in range(2):
                A("s_mov_b32 vcc_lo, 0x%x\ns_mov_b32 vcc_hi, 0x%x" % ((0x55555555 << b,)*2))
                for p in range(4): A("v_cndmask_b32_dpp v%d, v%d, v%d, vcc quad_perm:[1,0,3,2] %s" % (240+4*b+3-p, 116-4*b+3-p, 112+4*b+3-p, DPP))
                A(ust[b], "ust")
        else:
            A.wait(lg="sh0"); A(ust[0], "ust")
            A.wait(lg="sh1"); A(ust[1], "ust")
        s.stamp(3)
        A("v_mov_b32 v26, 0\nv_mov_b32 v27, s44")
        A("ds_write_b32 v26, v27 offset:%d" % M_TAG)
        hstage("m")
        s.stamp(9)
        HB = lambda q: 32+32*(0 if cfg.get('x_noh') else q)
        UB = lambda q: 160+32*(q & 1)
        ACC = 224
        def hread(q, a, half):
            bb, hf = q >> 1, q & 1
            o = 128*(a & 1)+32*bb+4*hf+2*half
            A("ds_read2_b32 %s, v%d offset0:%d offset1:%d" % (vr(HB(q)+4*a+2*half, 2), 10+(a >> 1), o, o+1), ("f", q, a))
        def uread(q, z):
            A("ds_read_b128 %s, v%d offset:%d" % (vr(UB(q)+4*z, 4), 14+q, UL+1024*z), ("f", q, z))
        npre = int(cfg["hpre"])
        hm = int(cfg["hm"])
        A("v_mov_b32 v5, s6\nv_mov_b32 v4, 1")
        hpost = "p" in cfg["hst"]
        if hm and not hpost: A("ds_write_b8 v5, v4 offset:%d" % M_W)
        A("s_mov_b64 exec, 1\ns_waitcnt vmcnt(0)"); s.stamp(4)
        A("global_store_dword v7, v9, s[58:59]\ns_mov_b64 exec, -1")
        if cfg.get("uhack"): A("v_and_b32 v20, 0x78, v20\ns_lshl_b32 s3, s6, 7\nv_add_u32 v20, s3, v20")
        A("s_mov_b32 s3, 0")
        if hm:
            A("global_load_dwordx2 v[22:23], v20, s[58:59] sc1")
            hstage("p"); A("s_mov_b32 s3, 0")
            s.meet("L_a_hw", M_W, 5, 4, 26, 28, arrive=hpost)
            for q in range(hm):
                for a in range(8): hread(q, a, 0); hread(q, a, 1)
            A("s_branch L_a_pu1")
        A("L_a_pu:\nglobal_load_dwordx2 v[22:23], v20, s[58:59] sc1\nL_a_pu1:\ns_waitcnt vmcnt(0)")
        if cfg["far"]: A("s_branch L_a_far")
        A("v_cmp_ne_u32 vcc, s45, v22\nv_cmp_ne_u32 s[40:41], s45, v23\ns_or_b64 vcc, vcc, s[40:41]\ns_cbranch_scc0 L_a_pu_ok")
        if cfg.get("usleep"): A("s_sleep %d" % int(cfg["usleep"]))
        if cfg.get("umask"): A("s_mov_b64 exec, vcc")
        A("s_add_u32 s3, s3, 1\ns_cmp_lt_u32 s3, %d\ns_cbranch_scc1 L_a_pu\ns_branch L_a_far\nL_a_pu_ok:" % NEAR_TRIES)
        def far():
            A("L_a_far:\ns_mov_b64 exec, -1\ns_add_u32 s31, s31, %d" % W_R)
            s.addbase(54, 38, "s31")
            for l in ust: A(l + " sc1")
            A("buffer_wbl2 sc1")
            s.addbase(14, 58, "%d" % FARC)
            A("s_waitcnt vmcnt(0)\ns_mov_b64 exec, 1\nglobal_store_dword v7, v27, s[14:15] sc1\ns_mov_b64 exec, -1")
            A("L_a_pf:\nglobal_load_dwordx2 v[24:25], v20, s[14:15] sc1\ns_waitcnt vmcnt(0)\nglobal_load_dwordx2 v[22:23], v20, s[58:59] sc1\ns_waitcnt vmcnt(0)")
            A("v_cmp_ne_u32 vcc, s45, v22\nv_cmp_ne_u32 s[40:41], s45, v23\ns_or_b64 vcc, vcc, s[40:41]\ns_cbranch_scc0 L_a_pu_ok")
            A("v_cmp_ne_u32 vcc, s44, v24\nv_cmp_ne_u32 s[40:41], s44, v25\ns_or_b64 vcc, vcc, s[40:41]\ns_cbranch_scc0 L_a_isfar")
            A("s_sleep 8\ns_add_u32 s3, s3, 1\ns_cmp_lt_u32 s3, %d\ns_cbranch_scc1 L_a_pf" % SPIN)
            A("L_a_isfar:\ns_mov_b32 s96, 1\nv_mov_b32 v9, s44\nv_mov_b32 v28, 1\nds_write_b32 v26, v28 offset:%d\ns_waitcnt lgkmcnt(0)" % (M_TAG+4))
            A("s_add_u32 s30, s30, %d\ns_add_u32 s33, s33, %d" % (W_R, W_R2))
            s.addbase(52, 38, "s30"); s.addbase(56, 52, "0x3fc00"); s.addbase(16, 38, "s33")
            A("s_branch L_a_pu_ok")
        s.side(far)
        if cfg.get("umask"): A("s_mov_b64 exec, -1")
        s.stamp(5)
        A("global_load_lds_dwordx4 v18, s[52:53] sc1\nglobal_load_lds_dwordx4 v18, s[56:57] offset:1024 sc1")
        A("s_barrier" if hm else "s_waitcnt lgkmcnt(0)\ns_barrier")
        for q in range(hm, npre):
            for a in range(8): hread(q, a, 0); hread(q, a, 1)
        A("v_mov_b32 v29, s60\nv_mov_b32 v5, s6\nv_mov_b32 v4, 1")
        awipe = cfg["inb"] == "A" and "y" not in cfg["seq"]
        if awipe: A("v_mov_b64 v[22:23], -1\nv_mov_b64 v[24:25], -1")
        A("s_waitcnt vmcnt(0)")
        wipes = ["global_store_dwordx4 v18, v[22:25], s[52:53]", "global_store_dwordx4 v18, v[22:25], s[56:57] offset:1024"]
        wat = int(cfg["wat"])
        if cfg["inb"] == "N": A("s_mov_b64 exec, 1\nglobal_store_dword v7, v9, s[58:59] offset:1024\ns_mov_b64 exec, -1")
        elif not wat and awipe:
            for l in wipes: A(l)
        A("s_barrier")
        s.jit("w")
        s.stamp(6)
        todo = [(q, a, k) for q in range(4) for a in range(8) for k in range(3) if k == 0 or (q >= npre and not cfg.get('x_noh'))]
        def feed(n, q):
            for _ in range(n):
                if todo and todo[0][0] <= q+1:
                    qq, a, k = todo.pop(0)
                    if k == 0: uread(qq, a)
                    else: hread(qq, a, k-1)
        feed(8, 0)
        for q in range(4):
            pend = []; n = 0
            for i in range(8):
                while todo and todo[0][:2] <= (q, i): feed(1, q)
                A.wait(lg=[("f", q, i)] if q == 0 else [("f", q, z) for z in range(8)])
                for a in range(i+1):
                    if cfg.get("skipc") and q in (1, 2) and a > 0 and (i+a) % int(cfg["skipc"]) == 0:
                        feed(1, q); continue
                    acc = vr(ACC+4*i, 4)
                    A("v_mfma_f32_16x16x32_bf16 %s, %s, %s, %s" % (acc, vr(UB(q)+4*(i-a), 4), vr(HB(q)+4*a, 4), "0" if (q == 0 and a == 0) else acc))
                    n += 1
                    if n >= (8 if q == 0 else 2): feed(1, q)
                    if wat and q == 0 and n in (wat, wat+2): A(wipes.pop(0))
                    if awipe and q == int(cfg['cq']) and n == int(cfg['cn']): A("s_waitcnt vmcnt(0)\ns_mov_b64 exec, 1\nglobal_store_dword v7, v9, s[58:59] offset:1024\ns_mov_b64 exec, -1")
                    if q == 3 and n == int(cfg['wn']): A("global_load_dword v31, v30, s[58:59] offset:1024 sc1")
                    if pend and n >= pend[0][1]:
                        t = pend.pop(0)[0]
                        A("ds_write_b128 v2, %s offset:%d" % (vr(ACC+4*t, 4), RED+1088*t))
                if q == 3: pend.append((i, n+8))
            for t, _ in pend: A("ds_write_b128 v2, %s offset:%d" % (vr(ACC+4*t, 4), RED+1088*t))
        assert not todo
        s.stamp(13)
        if cfg["inb"] is True:
            A("ds_write_b8 v5, v4 offset:%d" % M_A)
            A("L_a_rw:\nds_read_b64 v[28:29], v26 offset:%d\ns_waitcnt lgkmcnt(0)\nv_and_b32 v28, v28, v29\nv_cmp_ne_u32 vcc, 0x01010101, v28\ns_cbranch_vccnz L_a_rw" % M_W)
        else: s.meet("L_a_rw", M_A, 5, 4, 26, 28)
        for io in range(2):
            for ws in range(4):
                A("ds_read_b128 %s, v3 offset:%d" % (vr(32+16*io+4*ws, 4), RED+ws*8704+io*32), ("r", io))
        s.stamp(7)
        yst = ["global_store_dwordx4 v19, %s, s[16:17] offset:%d" % (vr(64+4*io, 4), 2048*io) for io in range(2)]
        def ysum(io):
            b = 32+16*io
            A.wait(lg=("r", io))
            for c in range(2):
                for p in range(4): A("v_add_f32 v%d, v%d, v%d" % (b+8*c+p, b+8*c+p, b+8*c+4+p))
            for r in range(4): A("v_cvt_pk_bf16_f32 v%d, v%d, v%d" % (64+4*io+r, b+r, b+8+r))
        A("s_cmp_eq_u32 s96, 1\ns_cbranch_scc1 L_a_yfar")
        def yfar():
            A("L_a_yfar:")
            for io in range(2):
                ysum(io); A(yst[io] + " sc1")
            A("s_waitcnt vmcnt(0)\ns_mov_b64 exec, 1\nglobal_store_dword v29, v9, s[14:15] offset:512 sc1\ns_branch L_a_done")
        s.side(yfar)
        ysum(0)
        A("s_waitcnt vmcnt(0)\nv_cmp_ne_u32 vcc, v9, v31\ns_cbranch_vccnz L_a_ww\nL_a_wok:")
        s.tail.append("L_a_ww:\ns_mov_b32 s3, 0\nL_a_wp:\nglobal_load_dword v31, v30, s[58:59] offset:1024 sc1\ns_waitcnt vmcnt(0)\nv_cmp_ne_u32 vcc, v9, v31\ns_cbranch_vccz L_a_wok\ns_add_u32 s3, s3, 1\ns_cmp_lt_u32 s3, %d\ns_cbranch_scc1 L_a_wp\ns_branch L_a_wok" % SPIN)
        s.jit("y"); A(yst[0]); ysum(1); s.jit("Y", 127, 6); A(yst[1])
        A("s_mov_b64 exec, 1\ns_waitcnt vmcnt(0)")
        s.stamp(8)
        A("global_store_dword v29, v9, s[58:59] offset:512")
        A("L_a_done:")
        s.stamps_out(1, 16)
        A("s_endpgm")

    def roleB_head(s):
        A = s.A; cfg = s.cfg
        A("s_lshr_b32 s7, s5, 4\ns_and_b32 s3, s5, 15\ns_lshl_b32 s40, s4, 4\ns_add_u32 s40, s40, s3")
        A("v_and_b32 v2, 3, v0\nv_bfe_u32 v3, v0, 2, 1\nv_lshl_add_u32 v2, v2, 1, v3\nv_and_b32 v3, 8, v0\nv_add_u32 v2, v2, v3")
        A("s_sub_u32 s63, 256, s40\ns_cmp_eq_u32 s40, 0\ns_cselect_b32 s63, 128, s63\ns_sub_u32 s3, s63, s40\nv_lshrrev_b32 v3, 5, v1\nv_mul_u32_u24 v240, s3, v3\nv_add_u32 v240, s40, v240")
        A("v_and_b32 v242, 16, v0\nv_lshl_add_u32 v241, v242, 6, v240\ns_lshl_b32 s41, s6, 8\nv_lshl_add_u32 v3, v2, 4, s41\nv_lshl_add_u32 v2, v241, 10, v3")
        A("s_lshl_b32 s48, s7, 19\ns_xor_b32 s49, s48, 0x40000\ns_xor_b32 s50, s48, 0x80000\ns_xor_b32 s51, s48, 0xc0000")
        A("v_mov_b32 v244, s6\nv_mov_b32 v245, 1\nv_mov_b32 v246, 0")
        A("s_waitcnt lgkmcnt(0)")
        s.stamp(1)
        A("s_mov_b64 s[8:9], s[16:17]")
        for j in range(2 if cfg.get("x_halfx") else 4): A("buffer_load_dwordx4 %s, v2, s[8:11], s%d offen %s" % (vr(s.XR(j), 4), 48+j, cfg["xnt"] if j < 2 else cfg.get("x2nt", cfg["xnt"])), ("x", j))
        if cfg["t_gw"]: A("global_load_dword v219, v46, s[32:33]\nv_and_b32 v218, 0xff, v3", "gw")
        else: A("global_load_dwordx4 v[220:223], v3, s[32:33]", "gw")
        if cfg.get("tw"):
            A("s_lshl_b32 s3, s2, 13\ns_add_u32 s3, s3, %d\nv_mov_b32 v217, s3\ns_cmp_lg_u32 s6, 0\ns_cbranch_scc1 L_b_ntw\ns_mov_b64 exec, 1" % W_V)
            A.raw("global_load_dword v217, v217, s[38:39] nt")
            A("s_mov_b64 exec, -1\nL_b_ntw:")
        A("s_barrier")
        s.vmB = list(A.vm)
    def XR(s, j): return (224+4*j) if j < 2 else (64+4*j)
    def roleB(s):
        A = s.A; cfg = s.cfg; XR = s.XR; SLAB = int(cfg["slab"])
        A.reset_counters(); A.vm = list(s.vmB)
        s.role = "b"
        KQ, NF, QO, MP, L7, VS = 232, 233, 234, 236, 237, 238
        A("v_lshlrev_b32 v243, 4, v1\nv_bfe_u32 v161, v0, 5, 1\nv_cvt_f32_u32 v161, v161\nv_and_b32 v167, 1, v0\ns_mov_b32 s62, 0x80008000")
        def put(f0, n):
            for f in range(f0, f0+n): A("ds_write_b128 v243, %s offset:%d" % (vr(4+4*f, 4), CL+1024*f))
        def trig(c, sn, jump):
            for j in range(8):
                A("v_cos_f32 v%d, v164\nv_sin_f32 v%d, v164" % (c+j, sn+j))
                if jump and j == 3: A("v_fmamk_f32 v164, v163, 0x40a00000, v164")
                elif j < 7: A("v_add_f32 v164, v164, v163")
        def pack(c, sn):
            for j in range(4):
                A("v_cvt_pk_bf16_f32 v%d, v%d, v%d\nv_cvt_pk_bf16_f32 v%d, v%d, v%d" % (c+j, 128+2*j, 129+2*j, sn+j, 136+2*j, 137+2*j))
        A("s_cmp_ge_u32 s6, 2\ns_cbranch_scc1 L_b_c23")
        A("v_and_b32 v160, 24, v0\nv_and_b32 v162, 3, v0\nv_lshl_add_u32 v160, v162, 1, v160\nv_bfe_u32 v162, v0, 2, 1\nv_add_u32 v160, v160, v162\nv_cvt_f32_u32 v160, v160")
        A("s_cmp_eq_u32 s6, 1\ns_cbranch_scc1 L_b_c1")
        A("v_mul_lo_u32 v165, v162, s62\nv_mul_f32 v163, 0x3d000000, v160\nv_mul_f32 v164, 0x41000000, v161\nv_mul_f32 v164, v164, v163")
        trig(128, 136, False); pack(8, 16)
        for j in range(4):
            A("v_xor_b32 v%d, v165, v%d\nv_xor_b32 v%d, v165, v%d\nv_xor_b32 v%d, s62, v%d" % (12+j, 8+j, 20+j, 16+j, 24+j, 16+j))
            A("v_xor_b32 v%d, s62, v%d" % (28+j, 20+j))
        put(1, 6)
        A("s_branch L_b_cd\nL_b_c1:")
        A("v_mul_f32 v163, 0x3b000000, v160\nv_mul_f32 v166, 4.0, v161\nv_mul_f32 v164, v166, v163")
        trig(32, 40, True)
        A("s_nop 0")
        put(7, 4)
        A("s_branch L_b_cd\nL_b_c23:\nv_cvt_f32_u32 v162, v167\nv_mul_f32 v162, 0.25, v162\ns_cmp_eq_u32 s6, 3\ns_cbranch_scc1 L_b_c3")
        A("s_cmp_eq_u32 s40, 0\ns_cselect_b32 s3, 0, 1.0\nv_mul_f32 v162, s3, v162\nv_mul_lo_u32 v165, v167, s62\nv_mul_f32 v166, 4.0, v161")
        A("v_bfe_u32 v160, v0, 1, 4\nv_cvt_f32_u32 v160, v160\nv_mul_f32 v163, 0x3d800000, v160\nv_fma_f32 v164, v166, v163, v162")
        trig(128, 136, True); pack(48, 52)
        A("s_cbranch_scc1 L_b_s0")
        for j in range(8): A("v_xor_b32 v%d, v165, v%d" % (56+j, 48+j))
        A("L_b_s0back:")
        s.tail.append("L_b_s0:\nv_cmp_eq_u32 vcc, 0, v167\ns_nop 1\n" + "\n".join("v_cndmask_b32 v%d, v%d, v167, vcc\nv_cndmask_b32 v%d, 0, v%d, vcc" % (56+j, 48+j, 48+j, 48+j) for j in range(8)) + "\ns_branch L_b_s0back")
        put(11, 4)
        A("s_branch L_b_cd\nL_b_c3:")
        A("v_bfe_u32 v160, v0, 1, 2\ns_lshl_b32 s3, s7, 2\nv_add_u32 v160, s3, v160\nv_cvt_f32_u32 v160, v160\nv_cvt_f32_u32 v161, v241")
        A("v_mul_f32 v163, 0x3a000000, v160\nv_fma_f32 v165, v163, v161, v162\nv_mul_f32 v166, 0x35000000, v160")
        for j in range(4):
            A("v_cvt_f32_u32 v164, s%d\nv_fma_f32 v164, v164, v166, v165\nv_cos_f32 v%d, v164" % (48+j, 168+j))
        for j in range(2): A("v_cvt_pk_bf16_f32 v%d, v%d, v%d" % (4+j, 168+2*j, 169+2*j))
        A("s_mov_b32 exec_lo, 0xff00ff00\ns_mov_b32 exec_hi, 0x00ff00ff\nv_mov_b64 v[4:5], 0\ns_mov_b64 exec, -1")
        put(0, 1)
        A("L_b_cd:")
        A("ds_write_b8 v244, v245 offset:%d" % M_C)
        A("v_lshrrev_b32 v%d, 4, v1\nv_and_b32 v%d, 15, v0\nv_and_b32 v%d, 7, v0" % (KQ, NF, L7))
        A("v_mul_u32_u24 v2, 2064, v%d\nv_and_b32 v3, 8, v0\nv_lshl_add_u32 v2, v3, 7, v2\nv_lshl_add_u32 v2, v242, 3, v2\nv_bfe_u32 v3, v0, 5, 1\nv_lshl_add_u32 v2, v3, 3, v2" % L7)
        A("v_add_u32 v2, s41, v2")
        A("v_lshlrev_b32 v3, 8, v3\nv_lshl_add_u32 v3, v242, 6, v3\nv_lshl_add_u32 v3, v%d, 4, v3\ns_mul_i32 s3, s6, 4128\nv_add_u32 v3, s3, v3" % NF)
        A("s_mov_b32 s46, 0x05040100\ns_mov_b32 s47, 0x07060302")
        qso = ["0", "s56", "s42", "s57"]
        def setup0():
            A("s_and_b32 s41, s5, 15\ns_lshr_b32 s43, s6, 1\ns_lshl_b32 s3, s41, 1\ns_add_u32 s3, s3, s43\ns_lshl_b32 s3, s3, 6\ns_and_b32 s51, s6, 1\ns_add_u32 s3, s3, s51\ns_lshl_b32 s3, s3, 4\ns_add_u32 s3, s3, %d" % W_G)
            A("v_and_b32 v128, 3, v0\nv_lshl_add_u32 v128, v%d, 2, v128\nv_lshl_add_u32 v128, v128, 6, s3\nv_and_b32 v129, 4, v0\nv_lshl_add_u32 v%d, v129, 1, v128" % (KQ, MP))
            A("s_bfe_u32 s50, s5, 0x10002\ns_lshl_b32 s3, s4, 1\ns_add_u32 s3, s3, s50\ns_lshl_b32 s3, s3, 2\ns_add_u32 s3, s3, s6\ns_lshl_b32 s3, s3, 6\ns_add_u32 s3, s3, s7\ns_and_b32 s50, s5, 3\ns_lshl_b32 s3, s3, 2\ns_add_u32 s3, s3, s50\ns_lshl_b32 s3, s3, 3")
            A("v_lshl_add_u32 v129, v%d, 3, v%d\ns_mov_b32 exec_lo, 0x00ff00ff\ns_mov_b32 exec_hi, 0x00ff00ff\nv_lshl_add_u32 v%d, v129, 6, s3\ns_mov_b64 exec, -1" % (KQ, L7, MP))
            s.addbase(60, 38, "%d" % W_K)
            A("s_and_b32 s3, s5, 7\ns_lshl_b32 s3, s3, 1\ns_add_u32 s3, s3, s51\ns_lshl_b32 s3, s3, 6\ns_add_u32 s3, s3, s43\ns_mul_i32 s3, s3, %d\ns_lshl_b32 s43, s4, 1\ns_add_u32 s43, s43, s7\ns_lshl_b32 s50, s43, 7\ns_add_u32 s3, s3, s50\ns_add_u32 s3, s3, %d" % (SLAB, W_V)); s.addbase(30, 38, "s3")
            A("s_lshl_b32 s50, s6, 12\ns_add_u32 s50, s50, %d\nv_lshrrev_b32 v91, 3, v1\nv_mul_u32_u24 v91, %d, v91\nv_lshl_add_u32 v91, v%d, 4, v91\nv_add_u32 v90, s50, v243" % (VL, 2*SLAB, L7))
            A("s_lshl_b32 s3, s4, 12\ns_add_u32 s3, s3, %d" % W_C); s.addbase(58, 38, "s3")
            A("s_mov_b64 s[26:27], s[58:59]\nv_lshlrev_b32 v250, 7, v%d\ns_lshl_b32 s3, s4, 7\ns_add_u32 s3, s3, %d\nv_lshl_add_u32 v248, v%d, 12, s3" % (L7, W_C+2048, L7))
            A("s_lshl_b32 s3, s41, 10\ns_lshl_b32 s41, s6, 18\ns_add_u32 s3, s3, s41\ns_lshl_b32 s43, s43, 6\ns_add_u32 s3, s3, s43")
            A("v_lshl_add_u32 v234, v%d, 16, s3\nv_lshl_add_u32 v234, v%d, 2, v234\nv_add_u32 v239, 0x100000, v234" % (KQ, NF))
            A("s_mov_b32 s56, 0x4000\ns_mov_b32 s57, 0xc000\ns_mov_b32 s42, 0x8000")
        CFR = lambda p, k, jj, b: 176+16*(k >> 1)+8*p+4*(k & 1)+2*jj+b
        def cf(lo, hi):
            for i in range(lo, hi):
                A("v_cos_f32 v134, v132\nv_sin_f32 v135, v132")
                if i < 15: A("v_fmamk_f32 v132, v131, 0x41500000, v132" if i & 3 == 3 else "v_add_f32 v132, v132, v131")
                A("v_cvt_pk_bf16_f32 v%d, v134, v135" % CFR(i & 1, i >> 3, (i >> 2) & 1, (i >> 1) & 1))
        nb = int(cfg["nb"])
        def setup1():
            A("s_lshl_b32 s3, s6, 5\ns_bfe_u32 s41, s5, 0x10003\ns_add_u32 s3, s3, s41\nv_lshl_add_u32 v128, v%d, 1, s3\nv_cvt_f32_u32 v128, v128\nv_mul_f32 v131, 0x3b800000, v128" % NF)
            A("v_cvt_f32_u32 v129, v%d\nv_mul_f32 v129, 4.0, v129\nv_mul_f32 v132, v129, v131" % KQ)
            cf(0, nb)
        def setup1b():
            cf(nb, 16)
            A("s_bfe_u32 s41, s5, 0x10003\ns_lshl_b32 s3, s41, 4\ns_lshl_b32 s43, s41, 15\nv_bfe_i32 v133, v0, 0, 1\nv_and_b32 v133, 0x80008000, v133\nv_xor_b32 v133, s43, v133")
            for i in range(16): A("v_alignbit_b32 v%d, v%d, v%d, s3\nv_xor_b32 v%d, v133, v%d" % (192+i, 176+i, 176+i, 192+i, 192+i))
            A("s_lshl_b32 s41, s41, 31\ns_or_b32 s41, s41, 0x3f803f80\ns_mov_b64 exec, 0xffff\nv_mov_b32 v176, s41\ns_mov_b64 exec, -1")
        def setup2():
            A("s_mov_b64 s[12:13], s[34:35]\ns_mov_b32 s14, 0x200000\ns_mov_b32 s15, 0x20000")
            A("v_and_b32 v92, 58, v0\nv_lshlrev_b32 v88, 4, v92\nv_and_b32 v92, 20, v0\nv_lshl_add_u32 v88, v92, 2, v88\nv_and_b32 v92, 1, v0\nv_lshl_add_u32 v88, v92, 3, v88\nv_add_u32 v88, %d, v88\nv_xor_b32 v89, 64, v88" % VL)
            A("v_and_b32 v92, 0xfc, v0\nv_lshlrev_b32 v92, 12, v92\nv_and_b32 v93, 2, v%d\nv_xor_b32 v93, v93, v0\nv_and_b32 v93, 3, v93\nv_lshl_add_u32 v92, v93, 4, v92" % KQ)
            A("s_and_b32 s24, s5, 15\ns_lshl_b32 s24, s24, 3\ns_add_u32 s24, s24, s4\ns_lshl_b32 s24, s24, 1\ns_add_u32 s24, s24, s7\ns_lshl_b32 s24, s24, 6")
            RB = 34
            if cfg.get("g3"):
                RB = 52
                s.addbase(52, 38, "%d" % (0xc00000 + 128))
                if cfg["g3"] == "1": A("s_cmp_eq_u32 s4, 3\ns_cselect_b64 s[52:53], s[52:53], s[34:35]")
            s.addbase(52, RB, "s24"); s.addbase(54, 52, "0xffc00")
            A("v_bfe_u32 v93, v0, 2, 2\nv_and_b32 v93, 2, v93\nv_xor_b32 v93, v93, v%d\nv_lshlrev_b32 v93, 4, v93\nv_lshl_add_u32 v93, v%d, 6, v93\ns_lshl_b32 s41, s6, 11\nv_add_u32 v93, s41, v93" % (KQ, NF))
            A("s_bfe_u32 s3, s5, 0x20002\ns_lshl_b32 s3, s3, 1\ns_add_u32 s3, s3, s7\ns_lshl_b32 s3, s3, 6\nv_lshl_add_u32 v94, v%d, 2, s3" % NF)
        QF = 16
        def qload():
            for i in range(0 if cfg.get("noq") else 8): A("buffer_load_dword v%d, v%d, s[8:11], %s offen %s" % (4+i, 239 if i >> 2 else 234, qso[i & 3], cfg["qnt"]), "q")
        def wipe():
            A("global_store_dwordx4 v44, v[52:55], s[22:23]\nglobal_store_dwordx4 v44, v[52:55], s[20:21] offset:1024", "wp")
        def wiped():
            A.wait(vm="wp")
            A("s_mov_b64 exec, 1\nglobal_store_dword v56, v57, s[26:27] offset:1024\ns_mov_b64 exec, -1")
        def post():
            A("s_xor_b32 s3, s6, 2\ns_or_b32 s3, s5, s3\ns_cbranch_scc1 L_b_postd\ns_mov_b64 exec, 0xff")
            A.raw("global_store_dword v248, v253, s[38:39] sc1")
            A("s_mov_b64 exec, -1\nL_b_postd:")
        steps = dict(a=setup0, b=setup1, e=setup1b, c=setup2, q=qload, k=lambda: (A.wait(vm="vst"), s.stamp(14)), W=lambda: A.wait(vm="q"),
                     S=lambda: A("s_sleep %d" % int(cfg["ns"])), p=post, y=wipe, z=wiped, P=lambda: A("s_setprio 3"), O=lambda: A("s_setprio 0"))
        def cread():
            s.meet("L_b_cw", M_C, 244, 245, 246, 247, arrive=False)
            for f in range(15): A("ds_read_b128 %s, v243 offset:%d" % (vr(4+4*f, 4), CL+1024*f), "c")
        steps["r"] = cread
        for ch in cfg["seqE"]: steps[ch]()
        s.stamp(12)
        GW, GX = 144, 128
        A.wait(vm="gw")
        if cfg["t_gw"]:
            for p in range(4): A("ds_bpermute_b32 v%d, v218, v219 offset:%d" % (220+p, 4*p), "gb")
        if cfg.get("x_nog"): A("v_mov_b64 v[144:145], 0")
        else:
            for i in range(8): A("v_lshlrev_b32 v%d, 16, v%d\nv_and_b32 v%d, %s, v%d" % (GX+2*i, 224+i, GX+1+2*i, MASK, 224+i))
            A.wait(lg="gb")
            for p in range(4): A("v_lshlrev_b32 v%d, 16, v%d\nv_and_b32 v%d, %s, v%d" % (GW+2*p, 220+p, GW+1+2*p, MASK, 220+p))
            for i in range(8): A("v_pk_mul_f32 %s, %s, %s" % (vr(GX+2*i, 2), vr(GX+2*i, 2), vr(GW+2*(i & 3), 2)))
            for i in range(16): A("v_cvt_pk_bf16_f32 v%d, 0, v%d" % (GX+i, GX+i))
            for i in range(4): A("v_pk_add_f32 %s, %s, %s" % (vr(GX+4*i, 2), vr(GX+4*i, 2), vr(GX+2+4*i, 2)))
            for i in range(2): A("v_pk_add_f32 %s, %s, %s" % (vr(GX+8*i, 2), vr(GX+8*i, 2), vr(GX+4+8*i, 2)))
            for i in range(2): A("v_add_f32 v%d, v%d, v%d" % (GW+i, GX+8*i, GX+1+8*i))
        perm = lambda jj, c: A("v_perm_b32 v%d, v%d, v%d, s%d" % (96+2*c+jj, XR(2*jj+1)+(c >> 1), XR(2*jj)+(c >> 1), 46+(c & 1)))
        for n, sh in enumerate((8, 4, 2, 1)):
            perm(0, 2*n); perm(0, 2*n+1)
            for r in range(2): A("v_add_f32_dpp v%d, v%d, v%d row_ror:%d %s" % (GW+r, GW+r, GW+r, sh, DPP))
        A("s_lshl_b32 s3, s6, 2\nv_lshl_add_u32 v146, v%d, 5, s3\nv_lshlrev_b32 v255, 4, v%d" % (KQ, L7))
        A("ds_write_b32 v146, v144 offset:%d\nds_write_b32 v146, v145 offset:%d" % (GL, GL+16))
        if int(cfg["prioB"]): A("s_setprio %d" % int(cfg["prioB"]))
        mfA = lambda c: A("v_mfma_f32_16x16x16_bf16 %s, %s, v[4:5], 0" % (vr(128+4*c, 4), vr(96+2*c, 2)))
        def outA(c):
            A("v_cvt_pk_bf16_f32 v%d, v%d, v%d\nv_cvt_pk_bf16_f32 v%d, v%d, v%d" % (160+2*c, 128+4*c, 129+4*c, 161+2*c, 130+4*c, 131+4*c))
            A("ds_write_b64 v2, %s offset:%d" % (vr(160+2*c, 2), X1+16*c))
        A.wait(lg="c"); s.stamp(2)
        for op in "p0 p1 p2 m0 p3 p4 m1 p5 p6 m2 p7 m3 m4 o0 m5 o1 m6 o2 m7 o3 o4 o5 o6 o7".split():
            {"p": lambda c: perm(1, c), "m": mfA, "o": outA}[op[0]](int(op[1]))
        s.meet("L_b_xw", M_X, 244, 245, 246, 247)
        for ri in range(2):
            for ks in range(2):
                A("ds_read_b128 %s, v3 offset:%d" % (vr(64+8*ri+4*ks, 4), X1+ri*2064+ks*512), ("a", ri, ks))
        A("ds_read_b128 v[252:255], v255 offset:%d" % GL, "gp")
        s.stamp(3)
        A("v_and_b32 v160, 28, v0\nv_lshlrev_b32 v238, 6, v160\nv_and_b32 v161, 3, v0\nv_lshl_add_u32 v238, v161, 4, v238")
        A("v_and_b32 v161, 32, v0\nv_lshl_add_u32 v238, v161, 1, v238\ns_and_b32 s3, s40, 4\ns_lshl_b32 s3, s3, 4\nv_xor_b32 v238, s3, v238")
        A("v_add_u32 v219, v160, v161\ns_lshl_b32 s3, s6, 2\ns_add_u32 s3, s3, %d\nv_lshl_add_u32 v219, v219, 3, s3" % KL)
        A("s_lshl_b32 s3, s7, 2\ns_add_u32 s3, s3, s6\ns_lshl_b32 s3, s3, 7\ns_add_u32 s43, s3, s40\ns_mul_i32 s3, s43, %d\ns_add_u32 s3, s3, %d" % (SLAB, W_V))
        s.addbase(28, 38, "s3")
        RE, IM = 96, 112
        M32 = "v_mfma_f32_32x32x16_bf16 %s, %s, %s, %s"
        shadow = []
        if cfg["csh"]:
            keep = A.L; A.L = []; setup2(); A.peep(); body = A.L; A.L = keep
            cut = [len(body)*k//4 for k in range(5)]
            for k in range(1, 4):
                while body[cut[k]].op.startswith(("s_addc", "s_cselect")): cut[k] += 1
            shadow = [body[cut[k]:cut[k+1]] for k in range(4)]
        for n in range(4):
            ri, ks = n >> 1, n & 1
            A.wait(lg=("a", ri, ks))
            A(M32 % (vr(RE, 16), vr(64+8*ri+4*ks, 4), vr((8 if ri == 0 else 16)+4*ks, 4), vr(RE, 16) if n else "0"))
            if shadow: A.L += shadow[n]
        muls = []
        for o in range(16):
            muls.append("v_mul_f32 v%d, v%d, v%d" % (128+o, RE+o, 32+(o & 7)))
            muls.append("v_mul_f32_e64 v%d, -v%d, v%d" % (144+o, RE+o, 40+(o & 7)))
        for n in range(4):
            ri, ks = n >> 1, n & 1
            A(M32 % (vr(IM, 16), vr(64+8*ri+4*ks, 4), vr((24 if ri == 0 else 8)+4*ks, 4), vr(IM, 16) if n else "0"))
            if n == 0:
                A.wait(lg="gp")
                A("v_add_f32 v252, v252, v254\nv_add_f32 v253, v253, v255\nv_add_f32 v252, v252, v253")
                A("v_cvt_pk_bf16_f32 v252, 0, v252\nv_mul_f32 v252, 0xbfb8aa3b, v252\nv_exp_f32 v252, v252\nv_add_f32 v252, 1.0, v252\nv_rcp_f32 v252, v252")
                A("v_cvt_pk_bf16_f32 v252, 0, v252\nv_sub_f32 v254, 1.0, v252\nv_cvt_pk_bf16_f32 v252, v254, v252")
            for _ in range((0, 6, 6, 20)[n]): A(muls.pop(0))
        for o in range(0, 16, 2):
            A("v_pk_fma_f32 %s, %s, %s, %s" % (vr(128+o, 2), vr(IM+o, 2), vr(40+(o & 7), 2), vr(128+o, 2)))
            A("v_pk_fma_f32 %s, %s, %s, %s" % (vr(144+o, 2), vr(IM+o, 2), vr(32+(o & 7), 2), vr(144+o, 2)))
        def cv(n):
            row, ri = n >> 1, n & 1
            for p in range(4):
                o = 128+16*ri+8*row+2*p
                A("v_cvt_pk_bf16_f32 v%d, v%d, v%d" % (160+4*n+p, o, o+1))
        cv(0); cv(1)
        for n in range(4):
            A(M32 % (vr(64, 16), vr(160+4*n, 4), vr(48+4*n, 4), vr(64, 16) if n else "0"))
            if n < 2: cv(n+2)
        A("s_and_b32 s41, s40, 1\ns_lshl_b32 s3, s7, 1\ns_add_u32 s3, s3, s41\ns_lshl_b32 s3, s3, 6\ns_lshr_b32 s41, s40, 1\ns_add_u32 s3, s3, s41\ns_lshl_b32 s3, s3, 6\nv_and_b32 v255, 56, v0\nv_lshl_add_u32 v235, v%d, 3, s3\nv_lshl_add_u32 v235, v255, 11, v235" % L7)
        A("s_nop 1\ns_cmp_lg_u32 s6, 1\ns_cbranch_scc1 L_b_hd")
        A("s_sub_u32 s3, s63, s40\nv_bfe_u32 v235, v0, 2, 1\nv_mul_u32_u24 v235, s3, v235\nv_add_u32 v235, s40, v235\nv_and_b32 v255, 15, v235\nv_and_b32 v235, 0xf0, v235\nv_lshlrev_b32 v235, 2, v235\nv_lshl_add_u32 v235, v255, 11, v235")
        A("v_and_b32 v255, 10, v0\nv_lshl_add_u32 v235, v255, 2, v235\nv_and_b32 v255, 1, v0\nv_lshl_add_u32 v235, v255, 4, v235\ns_lshl_b32 s3, s7, 10\ns_add_u32 s3, s3, %d\nv_add_u32 v235, s3, v235\nL_b_hd:" % W_G)
        for p in range(8): A("v_cvt_pk_bf16_f32 v%d, v%d, v%d" % (80+p, 64+2*p, 65+2*p))
        for b in range(2):
            A("s_mov_b32 vcc_lo, 0x%x\ns_mov_b32 vcc_hi, 0x%x" % ((0x33333333 << 2*b,)*2))
            for p in range(4): A("v_cndmask_b32_dpp v%d, v%d, v%d, vcc quad_perm:[2,3,0,1] %s" % (208+4*b+p, 84-4*b+p, 80+4*b+p, DPP))
        for p in range(8): A("v_dot2_u32_u16 v%d, v%d, v%d, %s" % (216+(p >> 2), 208+p, 208+p, "v%d" % (216+(p >> 2)) if p & 3 else "0"))
        for qp in ("[1,0,3,2]", "[2,3,0,1]"):
            for b in range(2): A("v_add_u32_dpp v%d, v%d, v%d quad_perm:%s %s" % (216+b, 216+b, 216+b, qp, DPP))
        A("ds_write2_b32 v219, v216, v217 offset0:0 offset1:4\nv_lshlrev_b32 v219, 2, v1")
        qe = cfg["qe"]
        if qe: A("ds_write_b8 v244, v245 offset:%d" % M_K)
        if int(cfg["prioB"]): A("s_setprio 0")
        s.stamp(4)
        seq0, seq1, seq2 = cfg["seq"].split(".")
        if cfg["csh"]: steps["c"] = lambda: None
        allseq = cfg["seqE"] + seq0 + seq1 + seq2
        assert all(allseq.count(ch) == 1 for ch in "abecq" + ("xy" if cfg["inb"] is True else "")), allseq
        assert "a" in cfg["seqE"] + seq0 and "c" in cfg["seqE"] + seq0 and not set("xyz") & set(cfg["seqE"]) and "y" not in seq0 and "q" not in cfg["seqE"] + seq0
        assert allseq.index("b") < allseq.index("e") and (("b" in cfg["seqE"]) == ("e" in cfg["seqE"])) and (cfg["inb"] is not True or allseq.index("x") < allseq.index("y"))
        for ch in seq0: steps[ch]()
        for i in range(3): A("v_mov_b64 v[%d:%d], v[%d:%d]" % (40+2*i, 41+2*i, 88+2*i, 89+2*i))
        A("v_mov_b32 v46, v94")
        A("s_getreg_b32 s45, hwreg(HW_REG_XCC_ID, 0, 4)\ns_waitcnt lgkmcnt(0)")
        if cfg["white"]:
            assert cfg["vreg"] and int(cfg["hm"])
            A("s_branch L_b_tw\nL_b_ts:\ns_sleep 1\nL_b_tw:\nds_read_b32 v146, v246 offset:%d\nds_read_b32 v253, v246 offset:%d\ns_waitcnt lgkmcnt(0)\nv_cmp_eq_u32 vcc, 0, v146\ns_cbranch_vccnz L_b_ts" % (M_W, M_TAG))
            for p in range(8): A("v_xor_b32 v%d, v253, v%d" % (208+p, 208+p))
            A("v_readfirstlane_b32 s44, v253\ns_add_u32 s45, s45, 1\ns_add_u32 s45, s45, s44")
        if "y" in cfg["seq"]:
            A("v_mov_b64 v[52:53], -1\nv_mov_b64 v[54:55], -1\ns_lshl_b32 s3, s5, 2\ns_add_u32 s3, s3, s6\ns_lshl_b32 s3, s3, 2\nv_mov_b32 v56, s3\nv_mov_b32 v57, s45\ns_mov_b64 s[22:23], s[52:53]\ns_mov_b64 s[20:21], s[54:55]")
        if qe:
            A("s_cmp_eq_u32 s6, 1\ns_cselect_b32 s48, 0xffff, 0\ns_mov_b32 s49, 0\ns_cmp_lg_u32 s6, 0\ns_cbranch_scc1 L_b_kd")
            s.meet("L_b_kw", M_K, 244, 245, 246, 247, arrive=False)
            A("ds_read_b32 v216, v219 offset:%d\nds_read_b32 v217, v219 offset:%d\ns_mov_b64 s[48:49], -1\ns_waitcnt lgkmcnt(0)\nv_add_u32 v252, v216, v217\nL_b_kd:" % (KL, KL+256))
        if int(cfg["prioD"]): A("s_setprio %d" % int(cfg["prioD"]))
        if cfg.get("bsleep"): A("s_sleep %d" % int(cfg["bsleep"]))
        s.stamp(13)
        A("s_barrier")
        if cfg.get("vlate"): A("s_barrier")
        s.jit("V")
        late = "D" in cfg.get("jit", "")
        for io in range(0 if cfg.get("x_novst") else (1 if late else 2)): A("global_store_dwordx4 v%d, %s, s[28:29] offset:%d sc1" % (VS, vr(208+4*io, 4), 128*io), "vst")
        s.jit("K")
        assert cfg["white"]
        if qe:
            A("s_cmp_ge_u32 s6, 2\ns_cbranch_scc1 L_b_ng\ns_mov_b64 exec, s[48:49]")
            A.raw("global_store_dwordx2 v235, v[252:253], s[60:61] sc1")
            A("s_mov_b64 exec, -1\nL_b_ng:")
            post()
            A("ds_read_b32 v147, v246 offset:%d\ns_waitcnt lgkmcnt(0)" % (M_TAG+4))
            if qe == "1": qload(); steps["q"] = lambda: None
            A("v_cmp_ne_u32 vcc, 0, v147\ns_cbranch_vccnz L_b_far\nL_b_fard:")
        else:
            A("ds_read_b32 v147, v246 offset:%d\nds_read_b32 v216, v219 offset:%d\nds_read_b32 v217, v219 offset:%d" % (M_TAG+4, KL, KL+256))
            if "p" not in cfg["seq"]: post()
            A("s_cmp_ge_u32 s6, 2\ns_waitcnt lgkmcnt(0)\nv_cmp_ne_u32 vcc, 0, v147\ns_cbranch_scc1 L_b_ng")
            A("s_mov_b64 exec, 0xffff\ns_cmp_eq_u32 s6, 1\ns_cbranch_scc1 L_b_g1\ns_mov_b64 exec, -1\nv_add_u32 v252, v216, v217\nL_b_g1:")
            A.raw("global_store_dwordx2 v235, v[252:253], s[60:61] sc1")
            A("L_b_ng:")
            A("s_mov_b64 exec, -1\ns_cbranch_vccnz L_b_far\nL_b_fard:")
        def t():
            A("L_b_far:\ns_mov_b32 s45, s44\ns_add_u32 s24, s24, %d" % W_R2)
            s.addbase(52, 38, "s24"); s.addbase(54, 52, "0xffc00")
            s.addbase(58, 58, "%d" % FARC)
            A("s_branch L_b_fard")
        s.side(t)
        s.stamp(5)
        if not cfg.get("vlate"): A("s_barrier")
        if late:
            s.jit("D"); A("global_store_dwordx4 v%d, v[212:215], s[28:29] offset:128 sc1" % VS, "vst")
        pl = "global_load_dword v147, v250, s[26:27] offset:2048 sc1"
        steps["L"] = lambda: (s.stamp(11), A(pl))
        A("s_mov_b32 s98, 0")
        gl = "global_load_dwordx2 v[144:145], v%d, s[60:61] sc1" % MP
        steps["g"] = lambda: A(gl)
        if "g" not in seq1: A("v_not_b32 v145, v253")
        for i in range(1, 4): A("v_add_u32 v%d, %d, v43" % (48+i, 16*SLAB*i))
        for ch in (seq1 if "L" in seq1 else seq1 + "L"): steps[ch]()
        if cfg["pw"]:
            assert seq1.endswith("Lg")
            A("s_mov_b32 s3, 0\ns_waitcnt vmcnt(1)\nv_cmp_ne_u32 vcc, s44, v147\ns_cbranch_vccz L_b_fast\nL_b_pv:\ns_waitcnt vmcnt(0)")
        else: A("s_mov_b32 s3, 0\nL_b_pv:\ns_waitcnt vmcnt(0)")
        A("v_cmp_ne_u32 vcc, s44, v147\ns_cbranch_vccz L_b_pv_ok\ns_mov_b64 exec, vcc\ns_sleep %d" % int(cfg["vsleep"]))
        A(pl)
        A("s_add_u32 s3, s3, 1\ns_cmp_lt_u32 s3, %d\ns_cbranch_scc1 L_b_pv\ns_waitcnt vmcnt(0)\nL_b_pv_ok:\ns_mov_b64 exec, -1" % SPIN)
        s.stamp(6)
        if cfg["inb"] is True and "z" not in cfg["seq"]: wiped()
        if cfg.get("x_nov"): A("s_branch L_b_vok")
        A("L_b_vf:\nv_cmp_ne_u32 vcc, s44, v145\ns_cbranch_vccz L_b_gok\ns_mov_b64 exec, vcc")
        A(gl, "g")
        A("s_mov_b64 exec, -1\nL_b_fast:\nL_b_gok:")
        A("s_or_b32 s43, s2, s6\ns_cbranch_scc1 L_b_epd\ns_mov_b64 exec, 1")
        A.raw("global_store_dword v246, v253, s[38:39] sc1")
        A("s_mov_b64 exec, -1\nL_b_epd:")
        vreg = cfg["vreg"]
        if not vreg: A("s_mov_b32 m0, s50")
        for i in range(4):
            a = 48+i if i else 43
            if vreg: A("global_load_dwordx4 %s, v%d, s[30:31] sc1" % (vr(64+4*i, 4), a), ("vd", i))
            else:
                if i: A("s_add_u32 m0, m0, 1024")
                A("global_load_lds_dwordx4 v%d, s[30:31] sc1" % a, ("vd", i))
        if seq2:
            steps["M"] = lambda: s.meet("L_b_mw", M_W, 244, 245, 246, 247)
            A("s_cmp_lg_u32 s98, 0\ns_cbranch_scc1 L_b_s2")
            for ch in seq2: steps[ch]()
            A("L_b_s2d:")
            s.tail.append("L_b_s2:\ns_waitcnt vmcnt(0)\ns_branch L_b_s2d")
        def qunp():
            for i in range(8): A("v_lshlrev_b32 v%d, 16, v%d\nv_and_b32 v%d, %s, v%d" % (QF+2*i, 4+i, QF+2*i+1, MASK, 4+i))
        def gq():
            A("v_lshlrev_b32 v149, 16, v144\nv_and_b32 v148, %s, v144" % MASK)
            if "q" in seq2: A.wait(vm="q"); qunp()
            for i in range(16): A("v_mul_f32_dpp v%d, v148, v%d row_newbcast:%d %s" % (QF+i, QF+i, 8+(i >> 1), DPP))
        def gq2():
            qunp()
            for i in range(16): A("v_mul_f32_dpp v%d, v148, v%d row_newbcast:%d %s" % (QF+i, QF+i, 8+(i >> 1), DPP))
        if "q" not in seq2: qunp()
        A("v_mov_b32 v146, 0")
        A.wait(vm="g")
        if cfg.get("dbg"): s.stamp(2)
        A("v_cmp_ne_u32 s[48:49], s44, v145\ns_mov_b32 exec_lo, 0x00ff00ff\ns_mov_b32 exec_hi, 0x00ff00ff\nv_sub_u32 v146, 0, v144\ns_mov_b64 exec, -1")
        if cfg["gqat"] == "0": gq()
        if cfg["gqat"] == "3": A("v_lshlrev_b32 v149, 16, v144\nv_and_b32 v148, %s, v144" % MASK)
        def dots(i):
            A.wait(lg=("rb", i))
            if cfg.get("nodot"): return
            for p in range(4): A("v_dot2_u32_u16 v146, v%d, v%d, v146" % (64+4*i+p, 64+4*i+p))
        for i in range(4):
            A.wait(vm=("vd", i))
            if i == 3 and cfg.get("dbg"): s.stamp(3)
            if vreg:
                if cfg["white"]:
                    for p in range(4): A("v_xor_b32 v%d, v253, v%d" % (64+4*i+p, 64+4*i+p))
                A("ds_write_b128 v42, %s offset:%d" % (vr(64+4*i, 4), 1024*i)); dots(i)
            else: A("ds_read_b128 %s, v42 offset:%d" % (vr(64+4*i, 4), 1024*i), ("rb", i))
        if not vreg:
            for i in range(4): dots(i)
        for sh in (8, 4, 2, 1): A("v_add_u32_dpp v146, v146, v146 row_ror:%d %s" % (sh, DPP))
        A("v_readlane_b32 s40, v146, 0\nv_readlane_b32 s41, v146, 16\nv_readlane_b32 s43, v146, 32\nv_readlane_b32 s51, v146, 48")
        A("s_add_u32 s40, s40, s41\ns_add_u32 s43, s43, s51\ns_add_u32 s40, s40, s43\n" + ("" if cfg.get("nodot") else "s_or_b32 s48, s48, s40\n") + "s_or_b32 s48, s48, s49\ns_cbranch_scc1 L_b_vr\nL_b_vok:")
        s.tail.append("L_b_vr:\ns_add_u32 s98, s98, 1\ns_cmp_lt_u32 s98, %d\ns_cbranch_scc0 L_b_vok\ns_sleep 2\ns_branch L_b_vf" % (SPIN//16))
        s.stamp(7)
        if cfg.get("dbg"): A("s_waitcnt lgkmcnt(0)\ns_add_u32 s88, s64, s98\ns_mov_b32 s89, s65")
        A("ds_write_b8 v244, v245 offset:%d" % M_V)
        A("s_lshl_b32 s43, s6, 11\ns_add_u32 m0, s43, %d" % YL)
        if int(cfg["prioD"]): A("s_setprio %d" % int(cfg.get("prioE", 0)))
        if cfg["gqat"] == "1": gq()
        A(("L_b_vs:" if cfg.get("nosl") else "s_branch L_b_vw\nL_b_vs:\ns_sleep 1") + "\nL_b_vw:\nds_read2_b32 v[54:55], v246 offset0:%d offset1:%d\ns_waitcnt lgkmcnt(0)\nv_and_b32 v54, v54, v55\nv_cmp_ne_u32 vcc, 0x01010101, v54\ns_cbranch_vccnz L_b_vs" % ((M_V if cfg.get("x_noy") else M_A)//4, M_V//4))
        ydma = ["global_load_lds_dwordx4 v44, s[52:53] sc1", "global_load_lds_dwordx4 v44, s[54:55] offset:1024 sc1"]
        VF = lambda n: 64+4*n
        def trd(n):
            for jj in range(2):
                A("ds_read_b64_tr_b16 %s, v%d offset:%d" % (vr(VF(n)+2*jj, 2), 40+(n >> 3), 2048*(n & 3)+1024*jj+8192*((n >> 2) & 1)), ("t", n))
        def comb(c):
            o = []
            for r in range(4):
                e, d = 128+8*c+r, 132+8*c+r
                o += ["v_add_f32 v%d, v%d, v%d" % (160+2*r+c, e, d), "v_sub_f32 v%d, v%d, v%d" % (168+2*r+c, e, d)]
            for i in range(8): o.append("v_mul_f32_dpp v%d, v149, v%d row_newbcast:%d %s" % (160+2*i+c, 160+2*i+c, 8+i, DPP))
            return o
        ahead = int(cfg["ahead"]); ypre = int(cfg["ypre"])
        d2 = cfg.get("dbg") == "2"
        if d2: s.stamp(1)
        for n in range(ahead): trd(n)
        if cfg["gqat"] == "2": gq()
        c0 = comb(0)
        for n in range(16):
            if n >= 9 or n % 2 == 0: A.wait(lg=("t", n if n >= 8 else n+1))
            acc = vr(128+4*(n >> 2), 4)
            A("v_mfma_f32_16x16x32_bf16 %s, %s, %s, %s" % (acc, vr(CFR((n >> 2) & 1, n & 3, 0, 0), 4), vr(VF(n), 4), acc if n & 3 else "0"))
            if d2 and n in (0, 8, 15): s.stamp({0: 4, 8: 5, 15: 11}[n])
            if n+ahead < 16: trd(n+ahead)
            if n >= 11:
                for _ in range(2): A(c0.pop(0))
            if cfg["inb"] == "N":
                if n == int(cfg['y0']): A("global_load_dword v47, v46, s[58:59] offset:512 sc1")
                if n == ypre:
                    A("s_waitcnt vmcnt(0)\nv_cmp_ne_u32 s[48:49], s45, v47")
                    for l in ydma: A(l)
            elif n == ypre:
                for l in ydma: A(l)
        yrd = lambda pp: A("ds_read_b128 %s, v45 offset:%d" % (vr(56+4*pp, 4), YL+1024*pp), ("y", pp))
        def yflags():
            A("L_b_yf:\ns_mov_b32 s3, 0\nL_b_py:\nglobal_load_dword v47, v46, s[58:59] offset:512 sc1\ns_waitcnt vmcnt(0)\nv_cmp_ne_u32 vcc, s45, v47\ns_cbranch_vccz L_b_py_ok")
            A("s_add_u32 s3, s3, 1\ns_cmp_lt_u32 s3, %d\ns_cbranch_scc1 L_b_py\nL_b_py_ok:\ns_waitcnt lgkmcnt(0)" % SPIN)
            for l in ydma: A(l)
            A("s_waitcnt vmcnt(0)"); yrd(0); yrd(1)
            A("s_waitcnt lgkmcnt(0)\ns_branch L_b_yok")
        s.side(yflags)
        for l in c0: A(l)
        if cfg["gqat"] == "3": gq2()
        A("s_mov_b32 s97, 0\ns_waitcnt vmcnt(0)"); yrd(0); yrd(1)
        if d2: s.stamp(13)
        for l in comb(1): A(l)
        s.stamp(8)
        if cfg["inb"] == "N": A("s_cmp_lg_u64 s[48:49], 0\ns_cbranch_scc1 L_b_yf\ns_waitcnt lgkmcnt(0)\nL_b_yok:")
        else:
            A("s_cmp_eq_u32 s44, s45\ns_cbranch_scc1 L_b_yf\nL_b_yc:\ns_waitcnt lgkmcnt(0)")
            A("v_max3_u32 v47, v56, v57, v58\nv_max3_u32 v48, v59, v60, v61\nv_max3_u32 v47, v47, v62, v63\nv_max_u32 v47, v47, v48\nv_cmp_eq_u32 vcc, -1, v47\n" + ("s_branch L_b_yok" if cfg.get("x_noy") else "s_cbranch_vccz L_b_yok"))
            for l in ydma: A(l)
            A("s_add_u32 s97, s97, 1\ns_cmp_ge_u32 s97, %d\ns_cbranch_scc1 L_b_yf\ns_waitcnt vmcnt(0)" % NEAR_TRIES); yrd(0); yrd(1)
            A("s_branch L_b_yc\nL_b_yok:")
        A.reset_counters()
        if cfg.get("tsleep"): A("s_sleep %d" % int(cfg["tsleep"]))
        if d2: s.stamp(9)
        elif cfg.get("dbg"): A("s_add_u32 s82, s64, s97\ns_mov_b32 s83, s65")
        un = lambda i: A("v_lshlrev_b32 v%d, 16, v%d\nv_and_b32 v%d, %s, v%d" % (72+2*i, 56+i, 73+2*i, MASK, 56+i))
        fm = lambda i: A("v_pk_fma_f32 %s, %s, %s, %s" % (vr(160+2*i, 2), vr(QF+2*i, 2), vr(72+2*i, 2), vr(160+2*i, 2)))
        cv2 = lambda i: A("v_cvt_pk_bf16_f32 v%d, v%d, v%d" % (96+i, 160+2*i, 161+2*i))
        st = lambda i: A("buffer_store_dword v%d, v%d, s[12:15], %s offen %s" % (96+i, 239 if i >> 2 else 234, qso[i & 3], cfg["ont"].replace("_", " ")))
        if cfg["fin"] == "1":
            for i in range(11):
                if 0 <= i-3 < 8: st(i-3)
                if 0 <= i-2 < 8: cv2(i-2)
                if 0 <= i-1 < 8: fm(i-1)
                if i < 8: un(i)
        elif cfg["fin"] == "2":
            for f in (un, fm, cv2, st):
                for i in range(8): f(i)
        else:
            for pp in range(2):
                A.wait(lg=("y", pp))
                if pp: s.stamp(10)
                for r in range(4):
                    o = 8*pp+2*r
                    A("v_lshlrev_b32 v%d, 16, v%d\nv_and_b32 v%d, %s, v%d" % (72+o, 56+4*pp+r, 73+o, MASK, 56+4*pp+r))
                    A("v_pk_fma_f32 %s, %s, %s, %s" % (vr(160+o, 2), vr(QF+o, 2), vr(72+o, 2), vr(160+o, 2)))
                    A("v_cvt_pk_bf16_f32 v%d, v%d, v%d" % (96+4*pp+r, 160+o, 161+o))
                    A("buffer_store_dword v%d, v%d, s[12:15], %s offen %s" % (96+4*pp+r, 239 if pp else 234, qso[r], cfg["ont"].replace("_", " ")))
        if d2: s.stamp(14)
        s.stamps_out(0, 16)
        A("L_end:\ns_endpgm")

    def build(s):
        A = s.A
        A.raw(HEADER.strip("\n"))
        A.raw("; @launch grid=(256,1,1) block=(512,1,1) lds=%d" % LDS)
        A.raw('.amdgcn_target "amdgcn-amd-amdhsa--gfx950"\n.text\n.globl %s\n.p2align 8\n.type %s,@function\n%s:' % (KN, KN, KN))
        s.prologue()
        s.roleB_head(); A("s_branch L_roleB"); s.roleA(); A("L_roleB:"); s.roleB()
        for t in s.tail: A(t)
        A.raw(".p2align 8\n.fill 1536, 4, 0xbf810000")
        A.raw('.section .rodata,"a"\n.p2align 6\n.amdhsa_kernel %s\n.amdhsa_next_free_vgpr 256\n.amdhsa_next_free_sgpr 102\n.amdhsa_accum_offset 256\n.amdhsa_group_segment_fixed_size 0\n.amdhsa_kernarg_size 120\n.amdhsa_user_sgpr_count 2\n.amdhsa_user_sgpr_kernarg_segment_ptr 1\n.amdhsa_system_sgpr_workgroup_id_x 1\n.end_amdhsa_kernel' % KN)
        return A.finish()

if __name__ == "__main__":
    out = sys.argv[1]
    cfg = {}
    for a in sys.argv[2:]:
        k, v = a.split("=")
        cfg[k] = {"True": True, "False": False}.get(v, v)
    g = G(**cfg)
    txt = g.build()
    if int(g.cfg.get("al", 0)):
        from align import align
        txt, nf, npad = align(txt, int(g.cfg["al"])); print("aligned runs", nf, "pads", npad, file=sys.stderr)
    open(out, "w").write(txt)
    print(out, "nops inserted", g.A.nops, file=sys.stderr)
    import subprocess, os
    r = subprocess.run([sys.executable, "cdna_unwritten_srd_check.py", out], capture_output=True, text=True)
    if r.returncode != 0:
        print(r.stdout, r.stderr); os.remove(out); sys.exit(1)
```

```python
import sys
from dsl import Asm
KN = "gated_mix__ssm_conv_h3__spectral_fnet__prompt_kernel"
W_E   = 0
W_C   = 4096
FARC  = 0x10000
W_R   = 0x800000
W_K   = 0x40000
W_G   = 0x20000
W_V   = 0x400000
W_R2  = 0xa00000
STAMP_OFF = 200<<20
LCG_A, LCG_C = 1664525, 1013904223
UL = 0; HL = 9216; RED = HL + 16640; X1 = RED + 4*8704; VL = X1; GL = RED + 24576; KL = GL + 256; YL = HL; CL = RED + 8192; LDS = X1 + 16640
M_W, M_A, M_V, M_C, M_TAG, M_X, M_K = UL, UL+4, UL+8, UL+12, UL+16, UL+24, UL+28
SPIN = 40000
NEAR_TRIES = 64
MASK = "0xffff0000"
DPP = "row_mask:0xf bank_mask:0xf"

HEADER = """
; One launch, 256 workgroups of 8 waves.  Workgroups with equal id & 7 form a group that owns 64 channels.
;   two channels -> handed back to the owners of the output tiles.
; Waves 0-3 ("B"): 8-point row stage on two mirrored row sets + 32 x 16 hidden DFT, folded -> handed to all groups
;   -> 256-point stage for a 128-row x 32-channel output tile, gate, final mix.  DFT factors are computed in the kernel.
; L2 when every member shows the same XCC id and are republished written-through otherwise; between groups they are
"""

def vr(a, n): return "v[%d:%d]" % (a, a+n-1)

class G:
    def __init__(s, **cfg):
        s.cfg = dict(stamps=False, nt=" nt", xnt="nt", qnt="nt", prent="", ont="", vsleep=2, lord="hvwipa", hpre=1, nb=14, ypre=3, rot=1,
                     slab=2048, seqE="r", seq="ac.qObePLg.", prioA=1, prioB=0, prioD=3, far=False, ns=8, inb="A", gqat='0', y0=0, ahead=7, vreg=True, white=True, csh=True, nd=16, fin='0', t_gw=False, t_sk=False, t_h=False, t_c=False, dsh=False, hst='em', early=False, pw=False, wat=0, d0=False, halo=True, ph=False, qe='2', cq=2, cn=10, wn=24, se='v', pfl='', d0nt='', hm=1, al=5)
        s.cfg.update(cfg)
        s.A = Asm(); s.tail = []; s.role = "p"
    def stamp(s, i):
        if s.cfg.get("dly") == "%s%d" % (s.role, i): s.A("s_sleep 4")
        if s.cfg.get("probe") and i not in (0, int(s.cfg["probe"].split(".")[1])): return
        if s.cfg["stamps"]: s.A("%s s[%d:%d]" % ("s_memtime" if s.cfg.get("clk") else "s_memrealtime", 64+2*i, 65+2*i))
    def stamps_out(s, role, n):
        if not s.cfg["stamps"]: return
        A = s.A
        A("s_waitcnt vmcnt(0) lgkmcnt(0)")
        s.stamp(n-1)
        A("s_waitcnt lgkmcnt(0)")
        A("s_cmp_lg_u32 s6, %d\ns_cbranch_scc1 L_end" % int(s.cfg.get("sw", 0)))
        if s.cfg.get("probe"):
            pr, pi = [int(x) for x in s.cfg["probe"].split(".")]
            if pr == role:
                inv = "v_not_b32" if s.cfg.get("ref", "first") == "first" else "v_mov_b32"
                A("s_mov_b64 exec, 1\nv_mov_b32 v1, 0\nv_mov_b32 v2, s%d\n%s v3, s64\nglobal_atomic_umax v1, v2, s[36:37] sc1\nglobal_atomic_umax v1, v3, s[36:37] offset:128 sc1\ns_waitcnt vmcnt(0)" % (64+2*pi, inv))
                A("L_probe0:\ns_memrealtime s[40:41]\ns_waitcnt lgkmcnt(0)\ns_sub_u32 s40, s40, s64\ns_cmp_lt_u32 s40, 3000\ns_cbranch_scc1 L_probe0")
                A("global_load_dword v2, v1, s[36:37] sc1\nglobal_load_dword v3, v1, s[36:37] offset:128 sc1\ns_waitcnt vmcnt(0)\n%s v3, v3\nv_readfirstlane_b32 s42, v2\nv_readfirstlane_b32 s43, v3\ns_nop 3" % inv)
                A("s_sub_u32 s3, s42, s43\ns_min_u32 s3, s3, 1500\ns_mul_i32 s3, s3, %d\ns_add_u32 s3, s3, 5000" % int(s.cfg.get("skew", 5)))
                A("L_probe:\ns_memrealtime s[40:41]\ns_waitcnt lgkmcnt(0)\ns_sub_u32 s40, s40, s64\ns_cmp_lt_u32 s40, s3\ns_cbranch_scc1 L_probe")
            return
        A("s_add_u32 s38, s38, %d\ns_addc_u32 s39, s39, 0" % (STAMP_OFF + role*256*128))
        A("s_lshl_b32 s3, s2, 7\nv_mov_b32 v1, s3\ns_mov_b64 exec, 1")
        for j in range(n):
            A("v_mov_b32 v2, s%d\nv_mov_b32 v3, s%d\nglobal_store_dwordx2 v1, v[2:3], s[38:39] offset:%d\ns_nop 1" % (64+2*j, 65+2*j, 8*j))
    def side(s, fn):
        A = s.A; sv = (list(A.vm), list(A.lg)); keep = A.L; A.L = []
        fn()
        s.tail.append("\n".join(i.text for i in A.L)); A.L = keep; A.vm, A.lg = sv
    def jit(s, ch, n=100, reps=1):
        if ch in s.cfg.get("jit", ""):
            s.A("s_add_u32 s99, s5, s6\ns_and_b32 s99, s99, 7\ns_cmp_lg_u32 s99, 3\ns_cbranch_scc1 L_jit_%s\n" % ch + "s_sleep %d\n" % n * reps + "L_jit_%s:" % ch)
    def addbase(s, d, base, soff):
        s.A("s_add_u32 s%d, s%d, %s\ns_addc_u32 s%d, s%d, 0" % (d, base, soff, d+1, base+1))
    def meet(s, name, off, vw, vone, vzero, vtmp, arrive=True):
        if arrive: s.A("ds_write_b8 v%d, v%d offset:%d" % (vw, vone, off))
        s.A("%s:\nds_read_b32 v%d, v%d offset:%d\ns_waitcnt lgkmcnt(0)\nv_cmp_ne_u32 vcc, 0x01010101, v%d\ns_cbranch_vccnz %s" % (name, vtmp, vzero, off, vtmp, name))

    def prologue(s):
        A = s.A
        s.stamp(0)
        if s.cfg.get("hsleep"): A("s_sleep %d" % int(s.cfg["hsleep"]))
        A("s_load_dwordx16 s[16:31], s[0:1], 0\ns_load_dwordx8 s[32:39], s[0:1], 88")
        A("s_cmp_ge_u32 s2, 256\ns_cbranch_scc1 L_end")
        if s.cfg.get("swap"):
            A("s_or_b32 s3, s2, 1\ns_cmp_eq_u32 s3, %d\ns_cselect_b32 s3, 1, 0\ns_xor_b32 s2, s2, s3" % int(s.cfg["swap"]))
        A("s_getpc_b64 s[40:41]")
        A("s_add_u32 s4, s2, %d\ns_and_b32 s4, s4, 7\ns_lshr_b32 s5, s2, 3" % int(s.cfg["rot"]))
        A("v_lshrrev_b32 v2, 6, v0\ns_lshl_b32 s3, s5, 9\nv_lshl_add_u32 v1, v2, 6, s3\nv_readfirstlane_b32 s7, v2")
        if s.cfg.get("x_nopf"): A("v_mov_b32 v1, 0")
        A("global_load_dword v255, v1, s[40:41]", "pf")
        A("v_and_b32 v1, 63, v0\nv_and_b32 v0, 255, v0\ns_and_b32 s6, s7, 3")
        A("v_lshlrev_b32 v46, 2, v0\nv_mov_b32 v45, 0\nds_write_b32 v46, v45 offset:%d" % UL)
        A("s_mov_b32 s10, 0x200000\ns_mov_b32 s11, 0x20000")
        A("s_cmp_ge_u32 s7, 4\ns_cbranch_scc1 L_roleA")

    def roleA(s):
        A = s.A; cfg = s.cfg; nt = cfg["nt"]
        A.reset_counters(); A.vm = ["pf"]
        KR, VR = 10, 22
        A("L_roleA:"); s.role = "a"
        A("s_lshl_b32 s40, s5, 16\ns_lshl_b32 s3, s4, 7\ns_add_u32 s40, s40, s3")
        dsh = cfg["dsh"]
        if dsh:
            A("s_lshl_b32 s3, s6, 14\ns_add_u32 s40, s40, s3\nv_lshrrev_b32 v5, 1, v1\nv_bfi_b32 v5, 1, v1, v5\nv_and_b32 v3, 2, v0\nv_lshl_add_u32 v3, v3, 12, s40\nv_lshl_add_u32 v2, v5, 2, v3\nv_add_u32 v3, -3072, v2")
            A("s_lshl_b32 s3, s4, 9\nv_lshl_add_u32 v5, v5, 4, s3\nv_and_b32 v4, 31, v0")
        else:
            A("v_lshrrev_b32 v3, 5, v0\nv_and_b32 v4, 31, v0\nv_lshl_add_u32 v3, v3, 13, s40\nv_lshl_add_u32 v2, v4, 2, v3\nv_add_u32 v3, -3072, v2")
            A("s_lshl_b32 s3, s4, 9\nv_lshl_add_u32 v5, v4, 4, s3")
        A("s_lshl_b32 s41, s4, 5\ns_add_u32 s41, s41, s5")
        A("s_lshl_b32 s42, s41, 13\ns_add_u32 s43, s42, 4096\ns_lshl_b32 s41, s41, 2\ns_movk_i32 s7, 4096\nv_mov_b32 v49, s41")
        A("s_mov_b32 s50, 0x200000\ns_mov_b32 s51, 0x20000")
        early = cfg["early"]
        if early:
            assert not cfg.get("g3")
            A("s_and_b32 s56, s5, 15\ns_lshr_b32 s57, s5, 4\ns_lshl_b32 s58, s56, 3\ns_add_u32 s58, s58, s4\ns_lshl_b32 s58, s58, 7\ns_lshl_b32 s3, s57, 20\ns_add_u32 s3, s3, s58")
            A("v_lshlrev_b32 v6, 4, v0\nv_and_b32 v252, 0xfc, v0\nv_lshl_add_u32 v252, v252, 12, s3\nv_and_b32 v254, 3, v0\nv_lshl_add_u32 v252, v254, 5, v252\nv_add_u32 v231, 4096, v2")
            A("s_lshl_b32 s3, s41, 5\ns_add_u32 s3, s3, %d\nv_and_b32 v253, 64, v0\nv_add_u32 v253, s3, v253" % W_C)
        A("s_waitcnt lgkmcnt(0)")
        s.stamp(1)
        A("s_mov_b64 s[8:9], s[18:19]")
        if cfg["se"] == "f": A("s_load_dword s44, s[38:39], 0\ns_load_dword s46, s[26:27], s41")
        for ch in cfg.get("tlb", ""):
            if ch == "V": A("v_mov_b32 v230, %d\nglobal_load_dword v230, v230, s[38:39] nt" % (W_V+0x1fff00+0), "k")
            else: A("global_load_dword v231, v45, s[%d:%d] nt" % (dict(v=(20,21), h=(24,25), o=(34,35), s=(22,23), d=(26,27), w=(38,39))[ch]), "k")
        def haloload():
            if cfg["halo"]: A("s_mov_b32 exec_lo, 0x33333333\ns_mov_b32 exec_hi, 0x33333333" if dsh else "s_mov_b32 exec_hi, 0")
            for i in range(0 if cfg.get("x_nohalo") else 3): A("buffer_load_dword v%d, v3, s[8:11], 0 offen offset:%d%s" % (KR+i, 1024*i, cfg.get("hnt", nt)), "k")
            if cfg["t_sk"]: A("global_load_dwordx4 v[30:33], v5, s[22:23]", "k")
            if cfg["halo"]: A("s_mov_b64 exec, -1")
        if not cfg.get("hlast"): haloload()
        for i in range(8): A("buffer_load_dword v%d, v2, s[8:11], %s offen offset:%d%s" % (KR+3+i, "s7" if i >= 4 else "0", 1024*(i & 3), nt), "k")
        if cfg.get("hlast"): haloload()
        if not cfg["t_sk"]: A("global_load_dwordx4 v[30:33], v5, s[22:23]", "k")
        if cfg["se"] == "v":
            if cfg["t_c"]: A("s_mov_b64 exec, 1")
            A("global_load_dword v9, v45, s[38:39] sc1", "k")
            A("global_load_dword v49, v49, s[26:27]", "k")
            if cfg["t_c"]: A("s_mov_b64 exec, -1")
        elif cfg["se"] == "p":
            A("global_load_dword v9, v45, s[38:39]", "k")
            A("global_load_dword v49, v49, s[26:27]", "k")
        elif cfg["se"] == "s": A("s_load_dword s44, s[38:39], 0\ns_load_dword s46, s[26:27], s41")
        if "B" not in cfg["lord"]: A("s_barrier")
        RB = 34
        if early: A("s_mov_b64 s[48:49], s[24:25]")
        else:
            A("s_mov_b64 s[48:49], s[24:25]"); s.addbase(20, 20, "s7")
            A("s_and_b32 s28, s5, 15\ns_lshr_b32 s29, s5, 4\ns_lshl_b32 s30, s28, 3\ns_add_u32 s30, s30, s4\ns_lshl_b32 s30, s30, 7\ns_lshl_b32 s3, s29, 20\ns_add_u32 s3, s3, s30")
            RB = 34
            if cfg.get("g3"):
                RB = 36
                s.addbase(36, 38, "%d" % (0xc00000 + 128))
                if cfg["g3"] == "1": A("s_cmp_eq_u32 s4, 3\ns_cselect_b64 s[36:37], s[36:37], s[34:35]")
            s.addbase(12, RB, "s3")
            A("s_lshl_b32 s3, s4, 12\ns_add_u32 s3, s3, %d" % W_C); s.addbase(58, 38, "s3")
            A("s_lshl_b32 s3, s5, 7\nv_and_b32 v253, 64, v0\nv_add_u32 v253, s3, v253\nv_lshlrev_b32 v6, 4, v0\nv_and_b32 v252, 0xfc, v0\nv_lshlrev_b32 v252, 12, v252\nv_and_b32 v254, 3, v0\nv_lshl_add_u32 v252, v254, 5, v252")
        def addr():
            if early:
                A("s_mov_b64 s[28:29], s[56:57]\ns_mov_b32 s30, s58\ns_lshl_b32 s3, s4, 12\ns_add_u32 s3, s3, %d" % W_C); s.addbase(58, 38, "s3")
            A("s_mul_i32 s3, s6, 4160\nv_min_u32 v48, 6, v1\nv_lshl_add_u32 v47, v48, 2, s3\nds_write_b32 v47, v45 offset:%d" % HL)
            A("s_lshl_b32 s47, s6, 11\ns_lshl_b32 s60, s5, 2\ns_add_u32 s60, s60, s6\ns_lshl_b32 s31, s60, 7\ns_add_u32 s31, s31, s4\ns_lshl_b32 s31, s31, 7")
            s.addbase(54, RB, "s31")
            A("s_lshl_b32 s3, s29, 6\ns_add_u32 s30, s30, s3")
            s.addbase(52, RB, "s30"); s.addbase(56, 52, "0x3fc00")
            A("s_lshl_b32 s33, s28, 2\ns_add_u32 s33, s33, s6\ns_lshl_b32 s33, s33, 5\ns_add_u32 s33, s33, s4\ns_lshl_b32 s33, s33, 7\ns_add_u32 s33, s33, s3")
            s.addbase(16, RB, "s33")
            A("v_and_b32 v233, 48, v6\nv_and_b32 v5, 60, v1\ns_lshl_b32 s3, s6, 19\nv_lshl_add_u32 v232, v5, 12, s3\nv_add_u32 v232, v232, v233")
            A("v_and_b32 v47, 28, v1\nv_lshl_add_u32 v233, v47, 16, v233\nv_and_b32 v47, 32, v1\nv_lshl_add_u32 v233, v47, 5, v233")
            A("s_lshl_b32 s3, s29, 2\ns_add_u32 s3, s3, s6\ns_lshl_b32 s3, s3, 6\nv_and_b32 v237, 15, v0\nv_lshl_add_u32 v237, v237, 2, s3")
            if dsh:
                A("v_lshlrev_b32 v44, 3, v1\nv_lshlrev_b32 v8, 5, v1\nv_bfi_b32 v8, 32, v8, v44\ns_lshl_b32 s3, s5, 4\nv_xor_b32 v8, s3, v8\nv_and_b32 v8, 48, v8\nv_lshl_add_u32 v8, v47, 1, v8\nv_and_b32 v47, 28, v1\nv_lshl_add_u32 v8, v47, 9, v8")
            else:
                A("v_lshlrev_b32 v44, 3, v1\nv_lshrrev_b32 v47, 1, v1\nv_and_b32 v47, 16, v47\nv_and_b32 v48, 48, v44\nv_xor_b32 v47, v47, v48\nv_lshl_add_u32 v47, v4, 6, v47")
                A("v_add_u32 v47, s47, v47\nv_xor_b32 v48, 32, v47\nv_lshl_add_u32 v21, v1, 4, s47")
                A("v_add_u32 v8, v1, v1\nv_xor_b32 v8, v8, v6\ns_lshl_b32 s3, s5, 4\nv_xor_b32 v8, s3, v8\nv_and_b32 v8, 48, v8\nv_lshl_add_u32 v8, v5, 8, v8")
            A("s_lshl_b32 s60, s60, 2\nv_mov_b32 v7, s60\ns_add_u32 m0, s47, %d" % (UL+1024))
            A("v_and_b32 v238, 15, v0\nv_lshrrev_b32 v235, 4, v1\nv_sub_u32 v238, v238, v235")
            A("s_and_b32 s41, s6, 1\ns_lshl_b32 s41, s41, 3\ns_sub_u32 s41, 16, s41\nv_add_u32 v238, s41, v238\ns_or_b32 s3, s6, 1\ns_lshl_b32 s3, s3, 4")
            for bb in range(2):
                if bb: A("v_add_u32 v238, -4, v238")
                A("v_lshlrev_b32 v239, 2, v238\nv_xor_b32 v239, s3, v239\nv_and_b32 v239, 48, v239\nv_lshl_add_u32 v%d, v238, 6, v239" % (248+2*bb))
                A("v_xor_b32 v%d, 16, v%d" % (249+2*bb, 248+2*bb))
            A("s_mul_i32 s3, s6, 8704\nv_add_u32 v236, v235, v1\nv_lshl_add_u32 v236, v236, 4, s3")
            A("s_lshl_b32 s3, s6, 6\nv_mul_u32_u24 v3, 272, v4\nv_lshrrev_b32 v5, 1, v1\nv_and_b32 v5, 16, v5\nv_add3_u32 v3, v3, v5, s3")
            A("s_lshl_b32 s60, s5, 1\ns_add_u32 s60, s60, s3\ns_lshl_b32 s60, s60, 1")
            A("s_lshr_b32 s61, s6, 1\ns_mul_i32 s61, s61, 7808\ns_lshl_b32 s41, s6, 8\ns_add_u32 s61, s61, s41\ns_add_u32 s61, s61, %d" % HL)
            A("v_and_b32 v234, 1, v0\nv_mul_u32_u24 v234, 4158, v234\nv_lshl_add_u32 v234, v1, 1, v234\nv_add_u32 v234, s61, v234")
        for ch in cfg["lord"]:
            if ch == "a": addr()
            if ch == "B": A("s_barrier")
            if ch in "vw":
                for i in (range(4) if ch == "v" else range(4, 8)): A("global_load_dword v%d, v%d, s[20:21] offset:%d%s" % (VR+i, 231 if early else 2, 1024*i-4096, nt), ("v", i))
            if ch in cfg.get("x_skip", ""): continue
            if ch == "h":
                if cfg["t_h"]:
                    A("buffer_load_dwordx4 v[120:123], v6, s[48:51], s42 offen" + nt, ("h", 0))
                    A("s_mov_b32 exec_lo, 0\ns_brev_b32 exec_hi, 1\nbuffer_load_dword v39, v6, s[48:51], s42 offen offset:16" + nt + "\ns_mov_b64 exec, -1", ("h", 0))
                else:
                    A("buffer_load_dwordx4 v[36:39], v6, s[48:51], s42 offen offset:%d" % int(cfg.get("x_hoff", 4)) + nt, ("h", 0))
                    if cfg["d0"]: A("s_mov_b64 exec, 1")
                    A("buffer_load_dword v34, v6, s[48:51], s42 offen" + " " + cfg["d0nt"], ("h", 0))
                    if cfg["d0"]: A("s_mov_b64 exec, -1")
            if ch == "i":
                if cfg["t_h"]:
                    A("buffer_load_dwordx4 v[124:127], v6, s[48:51], s43 offen" + nt, ("h", 1))
                    A("s_mov_b32 exec_lo, 0\ns_brev_b32 exec_hi, 1\nbuffer_load_dword v43, v6, s[48:51], s43 offen offset:16" + nt + "\ns_mov_b64 exec, -1", ("h", 1))
                else:
                    A("buffer_load_dwordx4 v[40:43], v6, s[48:51], s43 offen offset:%d" % int(cfg.get("x_hoff", 4)) + nt, ("h", 1))
                    if cfg["d0"]: A("s_mov_b64 exec, 1")
                    A("buffer_load_dword v35, v6, s[48:51], s43 offen" + " " + cfg["d0nt"], ("h", 1))
                    if cfg["d0"]: A("s_mov_b64 exec, -1")
            if ch == "p":
                if cfg["t_c"]: A("s_mov_b64 exec, 1")
                A("global_load_dword v253, v253, s[%s] " % ("38:39" if early else "58:59") + cfg.get("cfl", "sc1"), "pre")
                if cfg["t_c"]: A("s_mov_b64 exec, -1")
                if cfg["ph"]: A("s_mov_b32 exec_lo, 0x55555555\ns_mov_b32 exec_hi, 0x55555555")
                A("global_load_dword v254, v252, s[%s] " % ("34:35" if early else "12:13") + cfg.get("pfl", "sc1") + " " + cfg["prent"], "pre")
                if cfg["ph"]: A("s_mov_b64 exec, -1")
        if int(cfg["prioA"]): A("s_setprio %d" % int(cfg["prioA"]))
        s.stamp(11)
        KP, W, S, VP = 50, 72, 80, 96
        A.wait(vm="k")
        if cfg["se"] in "sf": A("s_waitcnt lgkmcnt(0)")
        s.stamp(2)
        if cfg["halo"] and dsh:
            A("s_mov_b32 vcc_lo, 0x33333333\ns_mov_b32 vcc_hi, 0x33333333")
            for i in range(3): A("v_cndmask_b32_dpp v%d, v%d, v%d, vcc quad_perm:[0,1,0,1] %s" % (KR+i, KR+8+i, KR+i, DPP))
        elif cfg["halo"]:
            for i in range(3): A("v_mov_b32 v%d, v%d" % (96+i, KR+8+i))
            for i in range(3): A("v_permlane32_swap_b32 v%d, v%d" % (KR+i, 96+i))
        if cfg["t_sk"]:
            assert cfg["halo"] and not dsh
            A("v_mov_b64 v[100:101], v[30:31]\nv_mov_b64 v[102:103], v[32:33]")
            for i in range(4): A("v_permlane32_swap_b32 v%d, v%d" % (30+i, 100+i))
        for t in range(4):
            for c in range(2):
                src = 30 + 2*c + (t >> 1)
                A(("v_and_b32 v%d, " + MASK + ", v%d" if t & 1 else "v_lshlrev_b32 v%d, 16, v%d") % (W+2*t+c, src))
        for i in range(11):
            A("v_lshlrev_b32 v%d, 16, v%d\nv_and_b32 v%d, %s, v%d" % (KP+2*i, KR+i, KP+2*i+1, MASK, KR+i))
        for t in (3, 2, 1, 0):
            for r in range(8):
                k = vr(KP+2*(r+3-t), 2); w = vr(W+2*t, 2); d = vr(S+2*r, 2)
                A("v_pk_mul_f32 %s, %s, %s" % (d, k, w) if t == 3 else "v_pk_fma_f32 %s, %s, %s, %s" % (d, k, w, d))
        def misc():
            if cfg["se"] in "vp": A("v_readfirstlane_b32 s44, v9\nv_readfirstlane_b32 s46, v49")
            A("s_mov_b32 s96, 0\ns_getreg_b32 s3, hwreg(HW_REG_XCC_ID, 0, 4)")
            A("s_mul_i32 s44, s44, %d\ns_add_u32 s44, s44, %d\ns_add_u32 s45, s44, s3\ns_add_u32 s45, s45, 1" % (LCG_A, LCG_C))
            A("v_mov_b32 v9, s45\nv_mov_b32 v20, v44")
            A("v_mov_b32 v10, v234\nv_mov_b32 v2, v236\nv_mov_b64 v[18:19], v[232:233]\nv_mov_b32 v30, v237\nv_mov_b64 v[14:15], v[248:249]\nv_mov_b64 v[16:17], v[250:251]")
            for i in range(1, 4): A("v_add_u32 v%d, %d, v234" % (10+i, 1024*i))
        def hstage(at):
            for c in range(2):
                if cfg["hst"][c] != at: continue
                A.wait(vm=("h", c))
                d = [34+c] + [36+4*c+k for k in range(4)]
                if cfg["t_h"]:
                    A("v_mov_b32_dpp v%d, v%d wave_shl:1 %s\nv_mov_b32 v%d, v%d" % (39+4*c, 120+4*c, DPP, 34+c, 120+4*c))
                    for k in range(3): A("v_mov_b32 v%d, v%d" % (36+4*c+k, 121+4*c+k))
                if cfg["d0"]: A("v_mov_b32_dpp v%d, v%d wave_shr:1 %s" % (34+c, 39+4*c, DPP))
                A("ds_write_b128 v6, %s offset:%d" % (vr(36+4*c, 4), HL+c*8320+4160+32))
                for k in range(4): A("v_alignbit_b32 v%d, v%d, v%d, 16" % (52+4*c+k, d[k+1], d[k]))
                A("ds_write_b128 v6, %s offset:%d" % (vr(52+4*c, 4), HL+c*8320+32))
                A("s_cmp_lg_u32 s6, 0\ns_cbranch_scc1 L_a_h%d\ns_mov_b64 exec, 1" % c)
                A("s_and_b32 s3, s46, 0xffff0000" if c else "s_lshl_b32 s3, s46, 16")
                A("v_lshlrev_b32 v%d, 16, v%d\nv_add_f32 v%d, s3, v%d\nv_cvt_pk_bf16_f32 v%d, 0, v%d\ns_mov_b32 s3, 0x07060302\nv_perm_b32 v%d, v%d, v%d, s3" % (60+c, 34+c, 60+c, 60+c, 60+c, 60+c, 62+c, 34+c, 60+c))
                A.raw("ds_write_b32 v6, v%d offset:%d\nds_write_b32 v6, v%d offset:%d" % (60+c, HL+c*8320+28, 62+c, HL+c*8320+4160+28))
                A("s_mov_b64 exec, -1\nL_a_h%d:" % c)
        mearly = dsh or "e" in cfg["hst"]
        if mearly: misc()
        hstage("e")
        s.stamp(12)
        for r in range(8):
            if r in (0, 4): A.wait(vm=("v", r+3))
            if r == 4: s.stamp(10)
            A("v_lshlrev_b32 v%d, 16, v%d\nv_and_b32 v%d, %s, v%d" % (VP+2*r, VR+r, VP+2*r+1, MASK, VR+r))
            A("v_pk_mul_f32 %s, %s, %s" % (vr(S+2*r, 2), vr(S+2*r, 2), vr(VP+2*r, 2)))
            if r & 1:
                j = (7-r)//2
                for c in range(2): A("v_cvt_pk_bf16_f32 v%d, v%d, v%d" % (112+4*c+j, S+2*r+c, S+2*(r-1)+c))
        if not dsh:
            for c in range(2): A("ds_write_b128 v%d, %s offset:%d" % (47+c, vr(112+4*c, 4), RED))
            A("ds_read_b128 v[240:243], v21 offset:%d" % RED, "sh0")
            A("ds_read_b128 v[244:247], v21 offset:%d" % (RED+1024), "sh1")
        if not mearly: misc()
        ust = ["global_store_dwordx4 v8, v[240:243], s[54:55]", "global_store_dwordx4 v8, v[244:247], s[54:55] offset:%d" % (1024 if dsh else 64)]
        s.jit("U", 127, 4); s.jit("u")
        if dsh:
            for b in range(2):
                A("s_mov_b32 vcc_lo, 0x%x\ns_mov_b32 vcc_hi, 0x%x" % ((0x55555555 << b,)*2))
                for p in range(4): A("v_cndmask_b32_dpp v%d, v%d, v%d, vcc quad_perm:[1,0,3,2] %s" % (240+4*b+3-p, 116-4*b+3-p, 112+4*b+3-p, DPP))
                A(ust[b], "ust")
        else:
            A.wait(lg="sh0"); A(ust[0], "ust")
            A.wait(lg="sh1"); A(ust[1], "ust")
        s.stamp(3)
        A("v_mov_b32 v26, 0\nv_mov_b32 v27, s44")
        A("ds_write_b32 v26, v27 offset:%d" % M_TAG)
        hstage("m")
        s.stamp(9)
        HB = lambda q: 32+32*(0 if cfg.get('x_noh') else q)
        UB = lambda q: 160+32*(q & 1)
        ACC = 224
        def hread(q, a, half):
            bb, hf = q >> 1, q & 1
            o = 128*(a & 1)+32*bb+4*hf+2*half
            A("ds_read2_b32 %s, v%d offset0:%d offset1:%d" % (vr(HB(q)+4*a+2*half, 2), 10+(a >> 1), o, o+1), ("f", q, a))
        def uread(q, z):
            A("ds_read_b128 %s, v%d offset:%d" % (vr(UB(q)+4*z, 4), 14+q, UL+1024*z), ("f", q, z))
        npre = int(cfg["hpre"])
        hm = int(cfg["hm"])
        A("v_mov_b32 v5, s6\nv_mov_b32 v4, 1")
        hpost = "p" in cfg["hst"]
        if hm and not hpost: A("ds_write_b8 v5, v4 offset:%d" % M_W)
        A("s_mov_b64 exec, 1\ns_waitcnt vmcnt(0)"); s.stamp(4)
        A("global_store_dword v7, v9, s[58:59]\ns_mov_b64 exec, -1")
        if cfg.get("uhack"): A("v_and_b32 v20, 0x78, v20\ns_lshl_b32 s3, s6, 7\nv_add_u32 v20, s3, v20")
        A("s_mov_b32 s3, 0")
        if hm:
            A("global_load_dwordx2 v[22:23], v20, s[58:59] sc1")
            hstage("p"); A("s_mov_b32 s3, 0")
            s.meet("L_a_hw", M_W, 5, 4, 26, 28, arrive=hpost)
            for q in range(hm):
                for a in range(8): hread(q, a, 0); hread(q, a, 1)
            A("s_branch L_a_pu1")
        A("L_a_pu:\nglobal_load_dwordx2 v[22:23], v20, s[58:59] sc1\nL_a_pu1:\ns_waitcnt vmcnt(0)")
        if cfg["far"]: A("s_branch L_a_far")
        A("v_cmp_ne_u32 vcc, s45, v22\nv_cmp_ne_u32 s[40:41], s45, v23\ns_or_b64 vcc, vcc, s[40:41]\ns_cbranch_scc0 L_a_pu_ok")
        if cfg.get("usleep"): A("s_sleep %d" % int(cfg["usleep"]))
        if cfg.get("umask"): A("s_mov_b64 exec, vcc")
        A("s_add_u32 s3, s3, 1\ns_cmp_lt_u32 s3, %d\ns_cbranch_scc1 L_a_pu\ns_branch L_a_far\nL_a_pu_ok:" % NEAR_TRIES)
        def far():
            A("L_a_far:\ns_mov_b64 exec, -1\ns_add_u32 s31, s31, %d" % W_R)
            s.addbase(54, 38, "s31")
            for l in ust: A(l + " sc1")
            A("buffer_wbl2 sc1")
            s.addbase(14, 58, "%d" % FARC)
            A("s_waitcnt vmcnt(0)\ns_mov_b64 exec, 1\nglobal_store_dword v7, v27, s[14:15] sc1\ns_mov_b64 exec, -1")
            A("L_a_pf:\nglobal_load_dwordx2 v[24:25], v20, s[14:15] sc1\ns_waitcnt vmcnt(0)\nglobal_load_dwordx2 v[22:23], v20, s[58:59] sc1\ns_waitcnt vmcnt(0)")
            A("v_cmp_ne_u32 vcc, s45, v22\nv_cmp_ne_u32 s[40:41], s45, v23\ns_or_b64 vcc, vcc, s[40:41]\ns_cbranch_scc0 L_a_pu_ok")
            A("v_cmp_ne_u32 vcc, s44, v24\nv_cmp_ne_u32 s[40:41], s44, v25\ns_or_b64 vcc, vcc, s[40:41]\ns_cbranch_scc0 L_a_isfar")
            A("s_sleep 8\ns_add_u32 s3, s3, 1\ns_cmp_lt_u32 s3, %d\ns_cbranch_scc1 L_a_pf" % SPIN)
            A("L_a_isfar:\ns_mov_b32 s96, 1\nv_mov_b32 v9, s44\nv_mov_b32 v28, 1\nds_write_b32 v26, v28 offset:%d\ns_waitcnt lgkmcnt(0)" % (M_TAG+4))
            A("s_add_u32 s30, s30, %d\ns_add_u32 s33, s33, %d" % (W_R, W_R2))
            s.addbase(52, 38, "s30"); s.addbase(56, 52, "0x3fc00"); s.addbase(16, 38, "s33")
            A("s_branch L_a_pu_ok")
        s.side(far)
        if cfg.get("umask"): A("s_mov_b64 exec, -1")
        s.stamp(5)
        A("global_load_lds_dwordx4 v18, s[52:53] sc1\nglobal_load_lds_dwordx4 v18, s[56:57] offset:1024 sc1")
        if cfg.get("vlate") != "2": A("s_barrier" if hm else "s_waitcnt lgkmcnt(0)\ns_barrier")
        for q in range(hm, npre):
            for a in range(8): hread(q, a, 0); hread(q, a, 1)
        A("v_mov_b32 v29, s60\nv_mov_b32 v5, s6\nv_mov_b32 v4, 1")
        awipe = cfg["inb"] == "A" and "y" not in cfg["seq"]
        if awipe: A("v_mov_b64 v[22:23], -1\nv_mov_b64 v[24:25], -1")
        A("s_waitcnt vmcnt(0)")
        wipes = ["global_store_dwordx4 v18, v[22:25], s[52:53]", "global_store_dwordx4 v18, v[22:25], s[56:57] offset:1024"]
        wat = int(cfg["wat"])
        if cfg["inb"] == "N": A("s_mov_b64 exec, 1\nglobal_store_dword v7, v9, s[58:59] offset:1024\ns_mov_b64 exec, -1")
        elif not wat and awipe:
            for l in wipes: A(l)
        A("s_barrier")
        s.jit("w")
        s.stamp(6)
        todo = [(q, a, k) for q in range(4) for a in range(8) for k in range(3) if k == 0 or (q >= npre and not cfg.get('x_noh'))]
        def feed(n, q):
            for _ in range(n):
                if todo and todo[0][0] <= q+1:
                    qq, a, k = todo.pop(0)
                    if k == 0: uread(qq, a)
                    else: hread(qq, a, k-1)
        feed(8, 0)
        for q in range(4):
            pend = []; n = 0
            for i in range(8):
                while todo and todo[0][:2] <= (q, i): feed(1, q)
                A.wait(lg=[("f", q, i)] if q == 0 else [("f", q, z) for z in range(8)])
                for a in range(i+1):
                    if cfg.get("skipc") and q in (1, 2) and a > 0 and (i+a) % int(cfg["skipc"]) == 0:
                        feed(1, q); continue
                    acc = vr(ACC+4*i, 4)
                    A("v_mfma_f32_16x16x32_bf16 %s, %s, %s, %s" % (acc, vr(UB(q)+4*(i-a), 4), vr(HB(q)+4*a, 4), "0" if (q == 0 and a == 0) else acc))
                    n += 1
                    if n >= (8 if q == 0 else 2): feed(1, q)
                    if wat and q == 0 and n in (wat, wat+2): A(wipes.pop(0))
                    if awipe and q == int(cfg['cq']) and n == int(cfg['cn']): A("s_waitcnt vmcnt(0)\ns_mov_b64 exec, 1\nglobal_store_dword v7, v9, s[58:59] offset:1024\ns_mov_b64 exec, -1")
                    if q == 3 and n == int(cfg['wn']): A("global_load_dword v31, v30, s[58:59] offset:1024 sc1")
                    if pend and n >= pend[0][1]:
                        t = pend.pop(0)[0]
                        A("ds_write_b128 v2, %s offset:%d" % (vr(ACC+4*t, 4), RED+1088*t))
                if q == 3: pend.append((i, n+8))
            for t, _ in pend: A("ds_write_b128 v2, %s offset:%d" % (vr(ACC+4*t, 4), RED+1088*t))
        assert not todo
        s.stamp(13)
        if cfg["inb"] is True:
            A("ds_write_b8 v5, v4 offset:%d" % M_A)
            A("L_a_rw:\nds_read_b64 v[28:29], v26 offset:%d\ns_waitcnt lgkmcnt(0)\nv_and_b32 v28, v28, v29\nv_cmp_ne_u32 vcc, 0x01010101, v28\ns_cbranch_vccnz L_a_rw" % M_W)
        else: s.meet("L_a_rw", M_A, 5, 4, 26, 28)
        for io in range(2):
            for ws in range(4):
                A("ds_read_b128 %s, v3 offset:%d" % (vr(32+16*io+4*ws, 4), RED+ws*8704+io*32), ("r", io))
        s.stamp(7)
        yst = ["global_store_dwordx4 v19, %s, s[16:17] offset:%d" % (vr(64+4*io, 4), 2048*io) for io in range(2)]
        def ysum(io):
            b = 32+16*io
            A.wait(lg=("r", io))
            for c in range(2):
                for p in range(4): A("v_add_f32 v%d, v%d, v%d" % (b+8*c+p, b+8*c+p, b+8*c+4+p))
            for r in range(4): A("v_cvt_pk_bf16_f32 v%d, v%d, v%d" % (64+4*io+r, b+r, b+8+r))
        A("s_cmp_eq_u32 s96, 1\ns_cbranch_scc1 L_a_yfar")
        def yfar():
            A("L_a_yfar:")
            for io in range(2):
                ysum(io); A(yst[io] + " sc1")
            A("s_waitcnt vmcnt(0)\ns_mov_b64 exec, 1\nglobal_store_dword v29, v9, s[14:15] offset:512 sc1\ns_branch L_a_done")
        s.side(yfar)
        ysum(0)
        A("s_waitcnt vmcnt(0)\nv_cmp_ne_u32 vcc, v9, v31\ns_cbranch_vccnz L_a_ww\nL_a_wok:")
        s.tail.append("L_a_ww:\ns_mov_b32 s3, 0\nL_a_wp:\nglobal_load_dword v31, v30, s[58:59] offset:1024 sc1\ns_waitcnt vmcnt(0)\nv_cmp_ne_u32 vcc, v9, v31\ns_cbranch_vccz L_a_wok\ns_add_u32 s3, s3, 1\ns_cmp_lt_u32 s3, %d\ns_cbranch_scc1 L_a_wp\ns_branch L_a_wok" % SPIN)
        s.jit("y"); A(yst[0]); ysum(1); s.jit("Y", 127, 6); A(yst[1])
        A("s_mov_b64 exec, 1\ns_waitcnt vmcnt(0)")
        s.stamp(8)
        A("global_store_dword v29, v9, s[58:59] offset:512")
        A("L_a_done:")
        s.stamps_out(1, 16)
        A("s_endpgm")

    def roleB_head(s):
        A = s.A; cfg = s.cfg
        A("s_lshr_b32 s7, s5, 4\ns_and_b32 s3, s5, 15\ns_lshl_b32 s40, s4, 4\ns_add_u32 s40, s40, s3")
        A("v_and_b32 v2, 3, v0\nv_bfe_u32 v3, v0, 2, 1\nv_lshl_add_u32 v2, v2, 1, v3\nv_and_b32 v3, 8, v0\nv_add_u32 v2, v2, v3")
        A("s_sub_u32 s63, 256, s40\ns_cmp_eq_u32 s40, 0\ns_cselect_b32 s63, 128, s63\ns_sub_u32 s3, s63, s40\nv_lshrrev_b32 v3, 5, v1\nv_mul_u32_u24 v240, s3, v3\nv_add_u32 v240, s40, v240")
        A("v_and_b32 v242, 16, v0\nv_lshl_add_u32 v241, v242, 6, v240\ns_lshl_b32 s41, s6, 8\nv_lshl_add_u32 v3, v2, 4, s41\nv_lshl_add_u32 v2, v241, 10, v3")
        A("s_lshl_b32 s48, s7, 19\ns_xor_b32 s49, s48, 0x40000\ns_xor_b32 s50, s48, 0x80000\ns_xor_b32 s51, s48, 0xc0000")
        A("v_mov_b32 v244, s6\nv_mov_b32 v245, 1\nv_mov_b32 v246, 0")
        A("s_waitcnt lgkmcnt(0)")
        s.stamp(1)
        A("s_mov_b64 s[8:9], s[16:17]")
        for j in range(2 if cfg.get("x_halfx") else 4): A("buffer_load_dwordx4 %s, v2, s[8:11], s%d offen %s" % (vr(s.XR(j), 4), 48+j, cfg["xnt"] if j < 2 else cfg.get("x2nt", cfg["xnt"])), ("x", j))
        if cfg["t_gw"]: A("global_load_dword v219, v46, s[32:33]\nv_and_b32 v218, 0xff, v3", "gw")
        else: A("global_load_dwordx4 v[220:223], v3, s[32:33]", "gw")
        if cfg.get("tw"):
            A("s_lshl_b32 s3, s2, 13\ns_add_u32 s3, s3, %d\nv_mov_b32 v217, s3\ns_cmp_lg_u32 s6, 0\ns_cbranch_scc1 L_b_ntw\ns_mov_b64 exec, 1" % W_V)
            A.raw("global_load_dword v217, v217, s[38:39] nt")
            A("s_mov_b64 exec, -1\nL_b_ntw:")
        A("s_barrier")
        s.vmB = list(A.vm)
    def XR(s, j): return (224+4*j) if j < 2 else (64+4*j)
    def roleB(s):
        A = s.A; cfg = s.cfg; XR = s.XR; SLAB = int(cfg["slab"])
        A.reset_counters(); A.vm = list(s.vmB)
        s.role = "b"
        KQ, NF, QO, MP, L7, VS = 232, 233, 234, 236, 237, 238
        A("v_lshlrev_b32 v243, 4, v1\nv_bfe_u32 v161, v0, 5, 1\nv_cvt_f32_u32 v161, v161\nv_and_b32 v167, 1, v0\ns_mov_b32 s62, 0x80008000")
        def put(f0, n):
            for f in range(f0, f0+n): A("ds_write_b128 v243, %s offset:%d" % (vr(4+4*f, 4), CL+1024*f))
        def trig(c, sn, jump):
            for j in range(8):
                A("v_cos_f32 v%d, v164\nv_sin_f32 v%d, v164" % (c+j, sn+j))
                if jump and j == 3: A("v_fmamk_f32 v164, v163, 0x40a00000, v164")
                elif j < 7: A("v_add_f32 v164, v164, v163")
        def pack(c, sn):
            for j in range(4):
                A("v_cvt_pk_bf16_f32 v%d, v%d, v%d\nv_cvt_pk_bf16_f32 v%d, v%d, v%d" % (c+j, 128+2*j, 129+2*j, sn+j, 136+2*j, 137+2*j))
        A("s_cmp_ge_u32 s6, 2\ns_cbranch_scc1 L_b_c23")
        A("v_and_b32 v160, 24, v0\nv_and_b32 v162, 3, v0\nv_lshl_add_u32 v160, v162, 1, v160\nv_bfe_u32 v162, v0, 2, 1\nv_add_u32 v160, v160, v162\nv_cvt_f32_u32 v160, v160")
        A("s_cmp_eq_u32 s6, 1\ns_cbranch_scc1 L_b_c1")
        A("v_mul_lo_u32 v165, v162, s62\nv_mul_f32 v163, 0x3d000000, v160\nv_mul_f32 v164, 0x41000000, v161\nv_mul_f32 v164, v164, v163")
        trig(128, 136, False); pack(8, 16)
        for j in range(4):
            A("v_xor_b32 v%d, v165, v%d\nv_xor_b32 v%d, v165, v%d\nv_xor_b32 v%d, s62, v%d" % (12+j, 8+j, 20+j, 16+j, 24+j, 16+j))
            A("v_xor_b32 v%d, s62, v%d" % (28+j, 20+j))
        put(1, 6)
        A("s_branch L_b_cd\nL_b_c1:")
        A("v_mul_f32 v163, 0x3b000000, v160\nv_mul_f32 v166, 4.0, v161\nv_mul_f32 v164, v166, v163")
        trig(32, 40, True)
        A("s_nop 0")
        put(7, 4)
        A("s_branch L_b_cd\nL_b_c23:\nv_cvt_f32_u32 v162, v167\nv_mul_f32 v162, 0.25, v162\ns_cmp_eq_u32 s6, 3\ns_cbranch_scc1 L_b_c3")
        A("s_cmp_eq_u32 s40, 0\ns_cselect_b32 s3, 0, 1.0\nv_mul_f32 v162, s3, v162\nv_mul_lo_u32 v165, v167, s62\nv_mul_f32 v166, 4.0, v161")
        A("v_bfe_u32 v160, v0, 1, 4\nv_cvt_f32_u32 v160, v160\nv_mul_f32 v163, 0x3d800000, v160\nv_fma_f32 v164, v166, v163, v162")
        trig(128, 136, True); pack(48, 52)
        A("s_cbranch_scc1 L_b_s0")
        for j in range(8): A("v_xor_b32 v%d, v165, v%d" % (56+j, 48+j))
        A("L_b_s0back:")
        s.tail.append("L_b_s0:\nv_cmp_eq_u32 vcc, 0, v167\ns_nop 1\n" + "\n".join("v_cndmask_b32 v%d, v%d, v167, vcc\nv_cndmask_b32 v%d, 0, v%d, vcc" % (56+j, 48+j, 48+j, 48+j) for j in range(8)) + "\ns_branch L_b_s0back")
        put(11, 4)
        A("s_branch L_b_cd\nL_b_c3:")
        A("v_bfe_u32 v160, v0, 1, 2\ns_lshl_b32 s3, s7, 2\nv_add_u32 v160, s3, v160\nv_cvt_f32_u32 v160, v160\nv_cvt_f32_u32 v161, v241")
        A("v_mul_f32 v163, 0x3a000000, v160\nv_fma_f32 v165, v163, v161, v162\nv_mul_f32 v166, 0x35000000, v160")
        for j in range(4):
            A("v_cvt_f32_u32 v164, s%d\nv_fma_f32 v164, v164, v166, v165\nv_cos_f32 v%d, v164" % (48+j, 168+j))
        for j in range(2): A("v_cvt_pk_bf16_f32 v%d, v%d, v%d" % (4+j, 168+2*j, 169+2*j))
        A("s_mov_b32 exec_lo, 0xff00ff00\ns_mov_b32 exec_hi, 0x00ff00ff\nv_mov_b64 v[4:5], 0\ns_mov_b64 exec, -1")
        put(0, 1)
        A("L_b_cd:")
        A("ds_write_b8 v244, v245 offset:%d" % M_C)
        A("v_lshrrev_b32 v%d, 4, v1\nv_and_b32 v%d, 15, v0\nv_and_b32 v%d, 7, v0" % (KQ, NF, L7))
        A("v_mul_u32_u24 v2, 2064, v%d\nv_and_b32 v3, 8, v0\nv_lshl_add_u32 v2, v3, 7, v2\nv_lshl_add_u32 v2, v242, 3, v2\nv_bfe_u32 v3, v0, 5, 1\nv_lshl_add_u32 v2, v3, 3, v2" % L7)
        A("v_add_u32 v2, s41, v2")
        A("v_lshlrev_b32 v3, 8, v3\nv_lshl_add_u32 v3, v242, 6, v3\nv_lshl_add_u32 v3, v%d, 4, v3\ns_mul_i32 s3, s6, 4128\nv_add_u32 v3, s3, v3" % NF)
        A("s_mov_b32 s46, 0x05040100\ns_mov_b32 s47, 0x07060302")
        qso = ["0", "s56", "s42", "s57"]
        def setup0():
            A("s_and_b32 s41, s5, 15\ns_lshr_b32 s43, s6, 1\ns_lshl_b32 s3, s41, 1\ns_add_u32 s3, s3, s43\ns_lshl_b32 s3, s3, 6\ns_and_b32 s51, s6, 1\ns_add_u32 s3, s3, s51\ns_lshl_b32 s3, s3, 4\ns_add_u32 s3, s3, %d" % W_G)
            A("v_and_b32 v128, 3, v0\nv_lshl_add_u32 v128, v%d, 2, v128\nv_lshl_add_u32 v128, v128, 6, s3\nv_and_b32 v129, 4, v0\nv_lshl_add_u32 v%d, v129, 1, v128" % (KQ, MP))
            A("s_bfe_u32 s50, s5, 0x10002\ns_lshl_b32 s3, s4, 1\ns_add_u32 s3, s3, s50\ns_lshl_b32 s3, s3, 2\ns_add_u32 s3, s3, s6\ns_lshl_b32 s3, s3, 6\ns_add_u32 s3, s3, s7\ns_and_b32 s50, s5, 3\ns_lshl_b32 s3, s3, 2\ns_add_u32 s3, s3, s50\ns_lshl_b32 s3, s3, 3")
            A("v_lshl_add_u32 v129, v%d, 3, v%d\ns_mov_b32 exec_lo, 0x00ff00ff\ns_mov_b32 exec_hi, 0x00ff00ff\nv_lshl_add_u32 v%d, v129, 6, s3\ns_mov_b64 exec, -1" % (KQ, L7, MP))
            s.addbase(60, 38, "%d" % W_K)
            A("s_and_b32 s3, s5, 7\ns_lshl_b32 s3, s3, 1\ns_add_u32 s3, s3, s51\ns_lshl_b32 s3, s3, 6\ns_add_u32 s3, s3, s43\ns_mul_i32 s3, s3, %d\ns_lshl_b32 s43, s4, 1\ns_add_u32 s43, s43, s7\ns_lshl_b32 s50, s43, 7\ns_add_u32 s3, s3, s50\ns_add_u32 s3, s3, %d" % (SLAB, W_V)); s.addbase(30, 38, "s3")
            A("s_lshl_b32 s50, s6, 12\ns_add_u32 s50, s50, %d\nv_lshrrev_b32 v91, 3, v1\nv_mul_u32_u24 v91, %d, v91\nv_lshl_add_u32 v91, v%d, 4, v91\nv_add_u32 v90, s50, v243" % (VL, 2*SLAB, L7))
            A("s_lshl_b32 s3, s4, 12\ns_add_u32 s3, s3, %d" % W_C); s.addbase(58, 38, "s3")
            A("s_mov_b64 s[26:27], s[58:59]\nv_lshlrev_b32 v250, 7, v%d\ns_lshl_b32 s3, s4, 7\ns_add_u32 s3, s3, %d\nv_lshl_add_u32 v248, v%d, 12, s3" % (L7, W_C+2048, L7))
            A("s_lshl_b32 s3, s41, 10\ns_lshl_b32 s41, s6, 18\ns_add_u32 s3, s3, s41\ns_lshl_b32 s43, s43, 6\ns_add_u32 s3, s3, s43")
            A("v_lshl_add_u32 v234, v%d, 16, s3\nv_lshl_add_u32 v234, v%d, 2, v234\nv_add_u32 v239, 0x100000, v234" % (KQ, NF))
            A("s_mov_b32 s56, 0x4000\ns_mov_b32 s57, 0xc000\ns_mov_b32 s42, 0x8000")
        CFR = lambda p, k, jj, b: 176+16*(k >> 1)+8*p+4*(k & 1)+2*jj+b
        def cf(lo, hi):
            for i in range(lo, hi):
                A("v_cos_f32 v134, v132\nv_sin_f32 v135, v132")
                if i < 15: A("v_fmamk_f32 v132, v131, 0x41500000, v132" if i & 3 == 3 else "v_add_f32 v132, v132, v131")
                A("v_cvt_pk_bf16_f32 v%d, v134, v135" % CFR(i & 1, i >> 3, (i >> 2) & 1, (i >> 1) & 1))
        nb = int(cfg["nb"])
        def setup1():
            A("s_lshl_b32 s3, s6, 5\ns_bfe_u32 s41, s5, 0x10003\ns_add_u32 s3, s3, s41\nv_lshl_add_u32 v128, v%d, 1, s3\nv_cvt_f32_u32 v128, v128\nv_mul_f32 v131, 0x3b800000, v128" % NF)
            A("v_cvt_f32_u32 v129, v%d\nv_mul_f32 v129, 4.0, v129\nv_mul_f32 v132, v129, v131" % KQ)
            cf(0, nb)
        nd = int(cfg["nd"]) if "d" in cfg["seq"] else nb
        def setup1b():
            cf(nd, 16)
            A("s_bfe_u32 s41, s5, 0x10003\ns_lshl_b32 s3, s41, 4\ns_lshl_b32 s43, s41, 15\nv_bfe_i32 v133, v0, 0, 1\nv_and_b32 v133, 0x80008000, v133\nv_xor_b32 v133, s43, v133")
            for i in range(16): A("v_alignbit_b32 v%d, v%d, v%d, s3\nv_xor_b32 v%d, v133, v%d" % (192+i, 176+i, 176+i, 192+i, 192+i))
            A("s_lshl_b32 s41, s41, 31\ns_or_b32 s41, s41, 0x3f803f80\ns_mov_b64 exec, 0xffff\nv_mov_b32 v176, s41\ns_mov_b64 exec, -1")
        def setup2():
            A("s_mov_b64 s[12:13], s[34:35]\ns_mov_b32 s14, 0x200000\ns_mov_b32 s15, 0x20000")
            A("v_and_b32 v92, 58, v0\nv_lshlrev_b32 v88, 4, v92\nv_and_b32 v92, 20, v0\nv_lshl_add_u32 v88, v92, 2, v88\nv_and_b32 v92, 1, v0\nv_lshl_add_u32 v88, v92, 3, v88\nv_add_u32 v88, %d, v88\nv_xor_b32 v89, 64, v88" % VL)
            A("v_and_b32 v92, 0xfc, v0\nv_lshlrev_b32 v92, 12, v92\nv_and_b32 v93, 2, v%d\nv_xor_b32 v93, v93, v0\nv_and_b32 v93, 3, v93\nv_lshl_add_u32 v92, v93, 4, v92" % KQ)
            A("s_and_b32 s24, s5, 15\ns_lshl_b32 s24, s24, 3\ns_add_u32 s24, s24, s4\ns_lshl_b32 s24, s24, 1\ns_add_u32 s24, s24, s7\ns_lshl_b32 s24, s24, 6")
            RB = 34
            if cfg.get("g3"):
                RB = 52
                s.addbase(52, 38, "%d" % (0xc00000 + 128))
                if cfg["g3"] == "1": A("s_cmp_eq_u32 s4, 3\ns_cselect_b64 s[52:53], s[52:53], s[34:35]")
            s.addbase(52, RB, "s24"); s.addbase(54, 52, "0xffc00")
            A("v_bfe_u32 v93, v0, 2, 2\nv_and_b32 v93, 2, v93\nv_xor_b32 v93, v93, v%d\nv_lshlrev_b32 v93, 4, v93\nv_lshl_add_u32 v93, v%d, 6, v93\ns_lshl_b32 s41, s6, 11\nv_add_u32 v93, s41, v93" % (KQ, NF))
            A("s_bfe_u32 s3, s5, 0x20002\ns_lshl_b32 s3, s3, 1\ns_add_u32 s3, s3, s7\ns_lshl_b32 s3, s3, 6\nv_lshl_add_u32 v94, v%d, 2, s3" % NF)
        QF = 16
        def qload():
            for i in range(0 if cfg.get("noq") else 8): A("buffer_load_dword v%d, v%d, s[8:11], %s offen %s" % (4+i, 239 if i >> 2 else 234, qso[i & 3], cfg["qnt"]), "q")
        def wipe():
            A("global_store_dwordx4 v44, v[52:55], s[22:23]\nglobal_store_dwordx4 v44, v[52:55], s[20:21] offset:1024", "wp")
        def wiped():
            A.wait(vm="wp")
            A("s_mov_b64 exec, 1\nglobal_store_dword v56, v57, s[26:27] offset:1024\ns_mov_b64 exec, -1")
        def post():
            A("s_xor_b32 s3, s6, 2\ns_or_b32 s3, s5, s3\ns_cbranch_scc1 L_b_postd\ns_mov_b64 exec, 0xff")
            A.raw("global_store_dword v248, v253, s[38:39] sc1")
            A("s_mov_b64 exec, -1\nL_b_postd:")
        steps = dict(a=setup0, b=setup1, e=setup1b, d=lambda: cf(nb, nd), c=setup2, q=qload, k=lambda: (A.wait(vm="vst"), s.stamp(14)), W=lambda: A.wait(vm="q"),
                     S=lambda: A("s_sleep %d" % int(cfg["ns"])), p=post, y=wipe, z=wiped, P=lambda: A("s_setprio 3"), O=lambda: A("s_setprio 0"))
        def cread():
            s.meet("L_b_cw", M_C, 244, 245, 246, 247, arrive=False)
            for f in range(15): A("ds_read_b128 %s, v243 offset:%d" % (vr(4+4*f, 4), CL+1024*f), "c")
        steps["r"] = cread
        for ch in cfg["seqE"]: steps[ch]()
        s.stamp(12)
        GW, GX = 144, 128
        A.wait(vm="gw")
        if cfg["t_gw"]:
            for p in range(4): A("ds_bpermute_b32 v%d, v218, v219 offset:%d" % (220+p, 4*p), "gb")
        if cfg.get("x_nog"): A("v_mov_b64 v[144:145], 0")
        else:
            for i in range(8): A("v_lshlrev_b32 v%d, 16, v%d\nv_and_b32 v%d, %s, v%d" % (GX+2*i, 224+i, GX+1+2*i, MASK, 224+i))
            A.wait(lg="gb")
            for p in range(4): A("v_lshlrev_b32 v%d, 16, v%d\nv_and_b32 v%d, %s, v%d" % (GW+2*p, 220+p, GW+1+2*p, MASK, 220+p))
            for i in range(8): A("v_pk_mul_f32 %s, %s, %s" % (vr(GX+2*i, 2), vr(GX+2*i, 2), vr(GW+2*(i & 3), 2)))
            for i in range(16): A("v_cvt_pk_bf16_f32 v%d, 0, v%d" % (GX+i, GX+i))
            for i in range(4): A("v_pk_add_f32 %s, %s, %s" % (vr(GX+4*i, 2), vr(GX+4*i, 2), vr(GX+2+4*i, 2)))
            for i in range(2): A("v_pk_add_f32 %s, %s, %s" % (vr(GX+8*i, 2), vr(GX+8*i, 2), vr(GX+4+8*i, 2)))
            for i in range(2): A("v_add_f32 v%d, v%d, v%d" % (GW+i, GX+8*i, GX+1+8*i))
        perm = lambda jj, c: A("v_perm_b32 v%d, v%d, v%d, s%d" % (96+2*c+jj, XR(2*jj+1)+(c >> 1), XR(2*jj)+(c >> 1), 46+(c & 1)))
        for n, sh in enumerate((8, 4, 2, 1)):
            perm(0, 2*n); perm(0, 2*n+1)
            for r in range(2): A("v_add_f32_dpp v%d, v%d, v%d row_ror:%d %s" % (GW+r, GW+r, GW+r, sh, DPP))
        A("s_lshl_b32 s3, s6, 2\nv_lshl_add_u32 v146, v%d, 5, s3\nv_lshlrev_b32 v255, 4, v%d" % (KQ, L7))
        A("ds_write_b32 v146, v144 offset:%d\nds_write_b32 v146, v145 offset:%d" % (GL, GL+16))
        if int(cfg["prioB"]): A("s_setprio %d" % int(cfg["prioB"]))
        mfA = lambda c: A("v_mfma_f32_16x16x16_bf16 %s, %s, v[4:5], 0" % (vr(128+4*c, 4), vr(96+2*c, 2)))
        def outA(c):
            A("v_cvt_pk_bf16_f32 v%d, v%d, v%d\nv_cvt_pk_bf16_f32 v%d, v%d, v%d" % (160+2*c, 128+4*c, 129+4*c, 161+2*c, 130+4*c, 131+4*c))
            A("ds_write_b64 v2, %s offset:%d" % (vr(160+2*c, 2), X1+16*c))
        A.wait(lg="c"); s.stamp(2)
        for op in "p0 p1 p2 m0 p3 p4 m1 p5 p6 m2 p7 m3 m4 o0 m5 o1 m6 o2 m7 o3 o4 o5 o6 o7".split():
            {"p": lambda c: perm(1, c), "m": mfA, "o": outA}[op[0]](int(op[1]))
        s.meet("L_b_xw", M_X, 244, 245, 246, 247)
        for ri in range(2):
            for ks in range(2):
                A("ds_read_b128 %s, v3 offset:%d" % (vr(64+8*ri+4*ks, 4), X1+ri*2064+ks*512), ("a", ri, ks))
        A("ds_read_b128 v[252:255], v255 offset:%d" % GL, "gp")
        s.stamp(3)
        A("v_and_b32 v160, 28, v0\nv_lshlrev_b32 v238, 6, v160\nv_and_b32 v161, 3, v0\nv_lshl_add_u32 v238, v161, 4, v238")
        A("v_and_b32 v161, 32, v0\nv_lshl_add_u32 v238, v161, 1, v238\ns_and_b32 s3, s40, 4\ns_lshl_b32 s3, s3, 4\nv_xor_b32 v238, s3, v238")
        A("v_add_u32 v219, v160, v161\ns_lshl_b32 s3, s6, 2\ns_add_u32 s3, s3, %d\nv_lshl_add_u32 v219, v219, 3, s3" % KL)
        A("s_lshl_b32 s3, s7, 2\ns_add_u32 s3, s3, s6\ns_lshl_b32 s3, s3, 7\ns_add_u32 s43, s3, s40\ns_mul_i32 s3, s43, %d\ns_add_u32 s3, s3, %d" % (SLAB, W_V))
        s.addbase(28, 38, "s3")
        RE, IM = 96, 112
        M32 = "v_mfma_f32_32x32x16_bf16 %s, %s, %s, %s"
        shadow = []
        if cfg["csh"]:
            keep = A.L; A.L = []; setup2(); A.peep(); body = A.L; A.L = keep
            cut = [len(body)*k//4 for k in range(5)]
            for k in range(1, 4):
                while body[cut[k]].op.startswith(("s_addc", "s_cselect")): cut[k] += 1
            shadow = [body[cut[k]:cut[k+1]] for k in range(4)]
        for n in range(4):
            ri, ks = n >> 1, n & 1
            A.wait(lg=("a", ri, ks))
            A(M32 % (vr(RE, 16), vr(64+8*ri+4*ks, 4), vr((8 if ri == 0 else 16)+4*ks, 4), vr(RE, 16) if n else "0"))
            if shadow: A.L += shadow[n]
        muls = []
        for o in range(16):
            muls.append("v_mul_f32 v%d, v%d, v%d" % (128+o, RE+o, 32+(o & 7)))
            muls.append("v_mul_f32_e64 v%d, -v%d, v%d" % (144+o, RE+o, 40+(o & 7)))
        for n in range(4):
            ri, ks = n >> 1, n & 1
            A(M32 % (vr(IM, 16), vr(64+8*ri+4*ks, 4), vr((24 if ri == 0 else 8)+4*ks, 4), vr(IM, 16) if n else "0"))
            if n == 0:
                A.wait(lg="gp")
                A("v_add_f32 v252, v252, v254\nv_add_f32 v253, v253, v255\nv_add_f32 v252, v252, v253")
                A("v_cvt_pk_bf16_f32 v252, 0, v252\nv_mul_f32 v252, 0xbfb8aa3b, v252\nv_exp_f32 v252, v252\nv_add_f32 v252, 1.0, v252\nv_rcp_f32 v252, v252")
                A("v_cvt_pk_bf16_f32 v252, 0, v252\nv_sub_f32 v254, 1.0, v252\nv_cvt_pk_bf16_f32 v252, v254, v252")
            for _ in range((0, 6, 6, 20)[n]): A(muls.pop(0))
        for o in range(0, 16, 2):
            A("v_pk_fma_f32 %s, %s, %s, %s" % (vr(128+o, 2), vr(IM+o, 2), vr(40+(o & 7), 2), vr(128+o, 2)))
            A("v_pk_fma_f32 %s, %s, %s, %s" % (vr(144+o, 2), vr(IM+o, 2), vr(32+(o & 7), 2), vr(144+o, 2)))
        def cv(n):
            row, ri = n >> 1, n & 1
            for p in range(4):
                o = 128+16*ri+8*row+2*p
                A("v_cvt_pk_bf16_f32 v%d, v%d, v%d" % (160+4*n+p, o, o+1))
        cv(0); cv(1)
        for n in range(4):
            A(M32 % (vr(64, 16), vr(160+4*n, 4), vr(48+4*n, 4), vr(64, 16) if n else "0"))
            if n < 2: cv(n+2)
        A("s_and_b32 s41, s40, 1\ns_lshl_b32 s3, s7, 1\ns_add_u32 s3, s3, s41\ns_lshl_b32 s3, s3, 6\ns_lshr_b32 s41, s40, 1\ns_add_u32 s3, s3, s41\ns_lshl_b32 s3, s3, 6\nv_and_b32 v255, 56, v0\nv_lshl_add_u32 v235, v%d, 3, s3\nv_lshl_add_u32 v235, v255, 11, v235" % L7)
        A("s_nop 1\ns_cmp_lg_u32 s6, 1\ns_cbranch_scc1 L_b_hd")
        A("s_sub_u32 s3, s63, s40\nv_bfe_u32 v235, v0, 2, 1\nv_mul_u32_u24 v235, s3, v235\nv_add_u32 v235, s40, v235\nv_and_b32 v255, 15, v235\nv_and_b32 v235, 0xf0, v235\nv_lshlrev_b32 v235, 2, v235\nv_lshl_add_u32 v235, v255, 11, v235")
        A("v_and_b32 v255, 10, v0\nv_lshl_add_u32 v235, v255, 2, v235\nv_and_b32 v255, 1, v0\nv_lshl_add_u32 v235, v255, 4, v235\ns_lshl_b32 s3, s7, 10\ns_add_u32 s3, s3, %d\nv_add_u32 v235, s3, v235\nL_b_hd:" % W_G)
        for p in range(8): A("v_cvt_pk_bf16_f32 v%d, v%d, v%d" % (80+p, 64+2*p, 65+2*p))
        for b in range(2):
            A("s_mov_b32 vcc_lo, 0x%x\ns_mov_b32 vcc_hi, 0x%x" % ((0x33333333 << 2*b,)*2))
            for p in range(4): A("v_cndmask_b32_dpp v%d, v%d, v%d, vcc quad_perm:[2,3,0,1] %s" % (208+4*b+p, 84-4*b+p, 80+4*b+p, DPP))
        for p in range(8): A("v_dot2_u32_u16 v%d, v%d, v%d, %s" % (216+(p >> 2), 208+p, 208+p, "v%d" % (216+(p >> 2)) if p & 3 else "0"))
        for qp in ("[1,0,3,2]", "[2,3,0,1]"):
            for b in range(2): A("v_add_u32_dpp v%d, v%d, v%d quad_perm:%s %s" % (216+b, 216+b, 216+b, qp, DPP))
        A("ds_write2_b32 v219, v216, v217 offset0:0 offset1:4\nv_lshlrev_b32 v219, 2, v1")
        qe = cfg["qe"]
        if qe: A("ds_write_b8 v244, v245 offset:%d" % M_K)
        if int(cfg["prioB"]): A("s_setprio 0")
        s.stamp(4)
        seq0, seq1, seq2 = cfg["seq"].split(".")
        if cfg["csh"]: steps["c"] = lambda: None
        allseq = cfg["seqE"] + seq0 + seq1 + seq2
        assert all(allseq.count(ch) == 1 for ch in "abecq" + ("xy" if cfg["inb"] is True else "")), allseq
        assert "a" in cfg["seqE"] + seq0 and "c" in cfg["seqE"] + seq0 and not set("xyz") & set(cfg["seqE"]) and "y" not in seq0 and "q" not in cfg["seqE"] + seq0
        assert allseq.index("b") < allseq.index("e") and (("b" in cfg["seqE"]) == ("e" in cfg["seqE"])) and (cfg["inb"] is not True or allseq.index("x") < allseq.index("y"))
        for ch in seq0: steps[ch]()
        for i in range(3): A("v_mov_b64 v[%d:%d], v[%d:%d]" % (40+2*i, 41+2*i, 88+2*i, 89+2*i))
        A("v_mov_b32 v46, v94")
        A("s_getreg_b32 s45, hwreg(HW_REG_XCC_ID, 0, 4)\ns_waitcnt lgkmcnt(0)")
        if cfg["white"]:
            assert cfg["vreg"] and int(cfg["hm"])
            A("s_branch L_b_tw\nL_b_ts:\ns_sleep 1\nL_b_tw:\nds_read_b32 v146, v246 offset:%d\nds_read_b32 v253, v246 offset:%d\ns_waitcnt lgkmcnt(0)\nv_cmp_eq_u32 vcc, 0, v146\ns_cbranch_vccnz L_b_ts" % (M_W, M_TAG))
            for p in range(8): A("v_xor_b32 v%d, v253, v%d" % (208+p, 208+p))
            A("v_readfirstlane_b32 s44, v253\ns_add_u32 s45, s45, 1\ns_add_u32 s45, s45, s44")
        if "y" in cfg["seq"]:
            A("v_mov_b64 v[52:53], -1\nv_mov_b64 v[54:55], -1\ns_lshl_b32 s3, s5, 2\ns_add_u32 s3, s3, s6\ns_lshl_b32 s3, s3, 2\nv_mov_b32 v56, s3\nv_mov_b32 v57, s45\ns_mov_b64 s[22:23], s[52:53]\ns_mov_b64 s[20:21], s[54:55]")
        if qe:
            A("s_cmp_eq_u32 s6, 1\ns_cselect_b32 s48, 0xffff, 0\ns_mov_b32 s49, 0\ns_cmp_lg_u32 s6, 0\ns_cbranch_scc1 L_b_kd")
            s.meet("L_b_kw", M_K, 244, 245, 246, 247, arrive=False)
            A("ds_read_b32 v216, v219 offset:%d\nds_read_b32 v217, v219 offset:%d\ns_mov_b64 s[48:49], -1\ns_waitcnt lgkmcnt(0)\nv_add_u32 v252, v216, v217\nL_b_kd:" % (KL, KL+256))
        if int(cfg["prioD"]): A("s_setprio %d" % int(cfg["prioD"]))
        if cfg.get("bsleep"): A("s_sleep %d" % int(cfg["bsleep"]))
        s.stamp(13)
        A("s_barrier")
        if cfg.get("vlate") == "1": A("s_barrier")
        s.jit("V")
        late = "D" in cfg.get("jit", "")
        for io in range(0 if cfg.get("x_novst") else (1 if late else 2)): A("global_store_dwordx4 v%d, %s, s[28:29] offset:%d sc1" % (VS, vr(208+4*io, 4), 128*io), "vst")
        s.jit("K")
        assert cfg["white"]
        if qe:
            A("s_cmp_ge_u32 s6, 2\ns_cbranch_scc1 L_b_ng\ns_mov_b64 exec, s[48:49]")
            A.raw("global_store_dwordx2 v235, v[252:253], s[60:61] sc1")
            A("s_mov_b64 exec, -1\nL_b_ng:")
            post()
            A("ds_read_b32 v147, v246 offset:%d\ns_waitcnt lgkmcnt(0)" % (M_TAG+4))
            if qe == "1": qload(); steps["q"] = lambda: None
            A("v_cmp_ne_u32 vcc, 0, v147\ns_cbranch_vccnz L_b_far\nL_b_fard:")
        else:
            A("ds_read_b32 v147, v246 offset:%d\nds_read_b32 v216, v219 offset:%d\nds_read_b32 v217, v219 offset:%d" % (M_TAG+4, KL, KL+256))
            if "p" not in cfg["seq"]: post()
            A("s_cmp_ge_u32 s6, 2\ns_waitcnt lgkmcnt(0)\nv_cmp_ne_u32 vcc, 0, v147\ns_cbranch_scc1 L_b_ng")
            A("s_mov_b64 exec, 0xffff\ns_cmp_eq_u32 s6, 1\ns_cbranch_scc1 L_b_g1\ns_mov_b64 exec, -1\nv_add_u32 v252, v216, v217\nL_b_g1:")
            A.raw("global_store_dwordx2 v235, v[252:253], s[60:61] sc1")
            A("L_b_ng:")
            A("s_mov_b64 exec, -1\ns_cbranch_vccnz L_b_far\nL_b_fard:")
        def t():
            A("L_b_far:\ns_mov_b32 s45, s44\ns_add_u32 s24, s24, %d" % W_R2)
            s.addbase(52, 38, "s24"); s.addbase(54, 52, "0xffc00")
            s.addbase(58, 58, "%d" % FARC)
            A("s_branch L_b_fard")
        s.side(t)
        s.stamp(5)
        if not cfg.get("vlate"): A("s_barrier")
        if late:
            s.jit("D"); A("global_store_dwordx4 v%d, v[212:215], s[28:29] offset:128 sc1" % VS, "vst")
        pl = "global_load_dword v147, v250, s[26:27] offset:2048 sc1"
        steps["L"] = lambda: (s.stamp(11), A(pl))
        A("s_mov_b32 s98, 0")
        gl = "global_load_dwordx2 v[144:145], v%d, s[60:61] sc1" % MP
        steps["g"] = lambda: A(gl)
        if "g" not in seq1: A("v_not_b32 v145, v253")
        for i in range(1, 4): A("v_add_u32 v%d, %d, v43" % (48+i, 16*SLAB*i))
        for ch in (seq1 if "L" in seq1 else seq1 + "L"): steps[ch]()
        if cfg["pw"]:
            assert "Lg" in seq1 and "q" not in seq1.split("Lg")[1]
            A("s_mov_b32 s3, 0\ns_waitcnt vmcnt(1)\nv_cmp_ne_u32 vcc, s44, v147\ns_cbranch_vccz L_b_fast\nL_b_pv:\ns_waitcnt vmcnt(0)")
        else: A("s_mov_b32 s3, 0\nL_b_pv:\ns_waitcnt vmcnt(0)")
        A("v_cmp_ne_u32 vcc, s44, v147\ns_cbranch_vccz L_b_pv_ok\ns_mov_b64 exec, vcc\ns_sleep %d" % int(cfg["vsleep"]))
        A(pl)
        A("s_add_u32 s3, s3, 1\ns_cmp_lt_u32 s3, %d\ns_cbranch_scc1 L_b_pv\ns_waitcnt vmcnt(0)\nL_b_pv_ok:\ns_mov_b64 exec, -1" % SPIN)
        s.stamp(6)
        if cfg["inb"] is True and "z" not in cfg["seq"]: wiped()
        if cfg.get("x_nov"): A("s_branch L_b_vok")
        A("L_b_vf:\nv_cmp_ne_u32 vcc, s44, v145\ns_cbranch_vccz L_b_gok\ns_mov_b64 exec, vcc")
        A(gl, "g")
        A("s_mov_b64 exec, -1\nL_b_fast:\nL_b_gok:")
        A("s_or_b32 s43, s2, s6\ns_cbranch_scc1 L_b_epd\ns_mov_b64 exec, 1")
        A.raw("global_store_dword v246, v253, s[38:39] sc1")
        A("s_mov_b64 exec, -1\nL_b_epd:")
        vreg = cfg["vreg"]
        if not vreg: A("s_mov_b32 m0, s50")
        for i in range(4):
            a = 48+i if i else 43
            if vreg: A("global_load_dwordx4 %s, v%d, s[30:31] sc1" % (vr(64+4*i, 4), a), ("vd", i))
            else:
                if i: A("s_add_u32 m0, m0, 1024")
                A("global_load_lds_dwordx4 v%d, s[30:31] sc1" % a, ("vd", i))
        if seq2:
            steps["M"] = lambda: s.meet("L_b_mw", M_W, 244, 245, 246, 247)
            A("s_cmp_lg_u32 s98, 0\ns_cbranch_scc1 L_b_s2")
            for ch in seq2: steps[ch]()
            A("L_b_s2d:")
            s.tail.append("L_b_s2:\ns_waitcnt vmcnt(0)\ns_branch L_b_s2d")
        def qunp():
            for i in range(8): A("v_lshlrev_b32 v%d, 16, v%d\nv_and_b32 v%d, %s, v%d" % (QF+2*i, 4+i, QF+2*i+1, MASK, 4+i))
        def gq():
            A("v_lshlrev_b32 v149, 16, v144\nv_and_b32 v148, %s, v144" % MASK)
            if "q" in seq2: A.wait(vm="q"); qunp()
            for i in range(16): A("v_mul_f32_dpp v%d, v148, v%d row_newbcast:%d %s" % (QF+i, QF+i, 8+(i >> 1), DPP))
        def gq2():
            qunp()
            for i in range(16): A("v_mul_f32_dpp v%d, v148, v%d row_newbcast:%d %s" % (QF+i, QF+i, 8+(i >> 1), DPP))
        if "q" not in seq2: qunp()
        A("v_mov_b32 v146, 0")
        A.wait(vm="g")
        if cfg.get("dbg"): s.stamp(2)
        A("v_cmp_ne_u32 s[48:49], s44, v145\ns_mov_b32 exec_lo, 0x00ff00ff\ns_mov_b32 exec_hi, 0x00ff00ff\nv_sub_u32 v146, 0, v144\ns_mov_b64 exec, -1")
        if cfg["gqat"] == "0": gq()
        if cfg["gqat"] == "3": A("v_lshlrev_b32 v149, 16, v144\nv_and_b32 v148, %s, v144" % MASK)
        def dots(i):
            A.wait(lg=("rb", i))
            if cfg.get("nodot"): return
            for p in range(4): A("v_dot2_u32_u16 v146, v%d, v%d, v146" % (64+4*i+p, 64+4*i+p))
        for i in range(4):
            A.wait(vm=("vd", i))
            if i == 3 and cfg.get("dbg"): s.stamp(3)
            if vreg:
                if cfg["white"]:
                    for p in range(4): A("v_xor_b32 v%d, v253, v%d" % (64+4*i+p, 64+4*i+p))
                A("ds_write_b128 v42, %s offset:%d" % (vr(64+4*i, 4), 1024*i)); dots(i)
            else: A("ds_read_b128 %s, v42 offset:%d" % (vr(64+4*i, 4), 1024*i), ("rb", i))
        if not vreg:
            for i in range(4): dots(i)
        for sh in (8, 4, 2, 1): A("v_add_u32_dpp v146, v146, v146 row_ror:%d %s" % (sh, DPP))
        A("v_readlane_b32 s40, v146, 0\nv_readlane_b32 s41, v146, 16\nv_readlane_b32 s43, v146, 32\nv_readlane_b32 s51, v146, 48")
        A("s_add_u32 s40, s40, s41\ns_add_u32 s43, s43, s51\ns_add_u32 s40, s40, s43\n" + ("" if cfg.get("nodot") else "s_or_b32 s48, s48, s40\n") + "s_or_b32 s48, s48, s49\ns_cbranch_scc1 L_b_vr\nL_b_vok:")
        s.tail.append("L_b_vr:\ns_add_u32 s98, s98, 1\ns_cmp_lt_u32 s98, %d\ns_cbranch_scc0 L_b_vok\ns_sleep 2\ns_branch L_b_vf" % (SPIN//16))
        s.stamp(7)
        if cfg.get("dbg"): A("s_waitcnt lgkmcnt(0)\ns_add_u32 s88, s64, s98\ns_mov_b32 s89, s65")
        A("ds_write_b8 v244, v245 offset:%d" % M_V)
        A("s_lshl_b32 s43, s6, 11\ns_add_u32 m0, s43, %d" % YL)
        if int(cfg["prioD"]): A("s_setprio %d" % int(cfg.get("prioE", 0)))
        if cfg["gqat"] == "1": gq()
        A(("L_b_vs:" if cfg.get("nosl") else "s_branch L_b_vw\nL_b_vs:\ns_sleep 1") + "\nL_b_vw:\nds_read2_b32 v[54:55], v246 offset0:%d offset1:%d\ns_waitcnt lgkmcnt(0)\nv_and_b32 v54, v54, v55\nv_cmp_ne_u32 vcc, 0x01010101, v54\ns_cbranch_vccnz L_b_vs" % ((M_V if cfg.get("x_noy") else M_A)//4, M_V//4))
        ydma = ["global_load_lds_dwordx4 v44, s[52:53] sc1", "global_load_lds_dwordx4 v44, s[54:55] offset:1024 sc1"]
        VF = lambda n: 64+4*n
        def trd(n):
            for jj in range(2):
                A("ds_read_b64_tr_b16 %s, v%d offset:%d" % (vr(VF(n)+2*jj, 2), 40+(n >> 3), 2048*(n & 3)+1024*jj+8192*((n >> 2) & 1)), ("t", n))
        def comb(c):
            o = []
            for r in range(4):
                e, d = 128+8*c+r, 132+8*c+r
                o += ["v_add_f32 v%d, v%d, v%d" % (160+2*r+c, e, d), "v_sub_f32 v%d, v%d, v%d" % (168+2*r+c, e, d)]
            for i in range(8): o.append("v_mul_f32_dpp v%d, v149, v%d row_newbcast:%d %s" % (160+2*i+c, 160+2*i+c, 8+i, DPP))
            return o
        ahead = int(cfg["ahead"]); ypre = int(cfg["ypre"])
        d2 = cfg.get("dbg") == "2"
        if d2: s.stamp(1)
        for n in range(ahead): trd(n)
        if cfg["gqat"] == "2": gq()
        c0 = comb(0)
        for n in range(16):
            if n >= 9 or n % 2 == 0: A.wait(lg=("t", n if n >= 8 else n+1))
            acc = vr(128+4*(n >> 2), 4)
            A("v_mfma_f32_16x16x32_bf16 %s, %s, %s, %s" % (acc, vr(CFR((n >> 2) & 1, n & 3, 0, 0), 4), vr(VF(n), 4), acc if n & 3 else "0"))
            if d2 and n in (0, 8, 15): s.stamp({0: 4, 8: 5, 15: 11}[n])
            if n+ahead < 16: trd(n+ahead)
            if n >= 11:
                for _ in range(2): A(c0.pop(0))
            if cfg["inb"] == "N":
                if n == int(cfg['y0']): A("global_load_dword v47, v46, s[58:59] offset:512 sc1")
                if n == ypre:
                    A("s_waitcnt vmcnt(0)\nv_cmp_ne_u32 s[48:49], s45, v47")
                    for l in ydma: A(l)
            elif n == ypre:
                for l in ydma: A(l)
        yrd = lambda pp: A("ds_read_b128 %s, v45 offset:%d" % (vr(56+4*pp, 4), YL+1024*pp), ("y", pp))
        def yflags():
            A("L_b_yf:\ns_mov_b32 s3, 0\nL_b_py:\nglobal_load_dword v47, v46, s[58:59] offset:512 sc1\ns_waitcnt vmcnt(0)\nv_cmp_ne_u32 vcc, s45, v47\ns_cbranch_vccz L_b_py_ok")
            A("s_add_u32 s3, s3, 1\ns_cmp_lt_u32 s3, %d\ns_cbranch_scc1 L_b_py\nL_b_py_ok:\ns_waitcnt lgkmcnt(0)" % SPIN)
            for l in ydma: A(l)
            A("s_waitcnt vmcnt(0)"); yrd(0); yrd(1)
            A("s_waitcnt lgkmcnt(0)\ns_branch L_b_yok")
        s.side(yflags)
        for l in c0: A(l)
        if cfg["gqat"] == "3": gq2()
        A("s_mov_b32 s97, 0\ns_waitcnt vmcnt(0)"); yrd(0); yrd(1)
        if d2: s.stamp(13)
        for l in comb(1): A(l)
        s.stamp(8)
        if cfg["inb"] == "N": A("s_cmp_lg_u64 s[48:49], 0\ns_cbranch_scc1 L_b_yf\ns_waitcnt lgkmcnt(0)\nL_b_yok:")
        else:
            A("s_cmp_eq_u32 s44, s45\ns_cbranch_scc1 L_b_yf\nL_b_yc:\ns_waitcnt lgkmcnt(0)")
            A("v_max3_u32 v47, v56, v57, v58\nv_max3_u32 v48, v59, v60, v61\nv_max3_u32 v47, v47, v62, v63\nv_max_u32 v47, v47, v48\nv_cmp_eq_u32 vcc, -1, v47\n" + ("s_branch L_b_yok" if cfg.get("x_noy") else "s_cbranch_vccz L_b_yok"))
            for l in ydma: A(l)
            A("s_add_u32 s97, s97, 1\ns_cmp_ge_u32 s97, %d\ns_cbranch_scc1 L_b_yf\ns_waitcnt vmcnt(0)" % NEAR_TRIES); yrd(0); yrd(1)
            A("s_branch L_b_yc\nL_b_yok:")
        A.reset_counters()
        if cfg.get("tsleep"): A("s_sleep %d" % int(cfg["tsleep"]))
        if d2: s.stamp(9)
        elif cfg.get("dbg"): A("s_add_u32 s82, s64, s97\ns_mov_b32 s83, s65")
        un = lambda i: A("v_lshlrev_b32 v%d, 16, v%d\nv_and_b32 v%d, %s, v%d" % (72+2*i, 56+i, 73+2*i, MASK, 56+i))
        fm = lambda i: A("v_pk_fma_f32 %s, %s, %s, %s" % (vr(160+2*i, 2), vr(QF+2*i, 2), vr(72+2*i, 2), vr(160+2*i, 2)))
        cv2 = lambda i: A("v_cvt_pk_bf16_f32 v%d, v%d, v%d" % (96+i, 160+2*i, 161+2*i))
        st = lambda i: A("buffer_store_dword v%d, v%d, s[12:15], %s offen %s" % (96+i, 239 if i >> 2 else 234, qso[i & 3], cfg["ont"].replace("_", " ")))
        if cfg["fin"] == "1":
            for i in range(11):
                if 0 <= i-3 < 8: st(i-3)
                if 0 <= i-2 < 8: cv2(i-2)
                if 0 <= i-1 < 8: fm(i-1)
                if i < 8: un(i)
        elif cfg["fin"] == "2":
            for f in (un, fm, cv2, st):
                for i in range(8): f(i)
        else:
            for pp in range(2):
                A.wait(lg=("y", pp))
                if pp: s.stamp(10)
                for r in range(4):
                    o = 8*pp+2*r
                    A("v_lshlrev_b32 v%d, 16, v%d\nv_and_b32 v%d, %s, v%d" % (72+o, 56+4*pp+r, 73+o, MASK, 56+4*pp+r))
                    A("v_pk_fma_f32 %s, %s, %s, %s" % (vr(160+o, 2), vr(QF+o, 2), vr(72+o, 2), vr(160+o, 2)))
                    A("v_cvt_pk_bf16_f32 v%d, v%d, v%d" % (96+4*pp+r, 160+o, 161+o))
                    A("buffer_store_dword v%d, v%d, s[12:15], %s offen %s" % (96+4*pp+r, 239 if pp else 234, qso[r], cfg["ont"].replace("_", " ")))
        if d2: s.stamp(14)
        s.stamps_out(0, 16)
        A("L_end:\ns_endpgm")

    def build(s):
        A = s.A
        A.raw(HEADER.strip("\n"))
        A.raw("; @launch grid=(256,1,1) block=(512,1,1) lds=%d" % LDS)
        A.raw('.amdgcn_target "amdgcn-amd-amdhsa--gfx950"\n.text\n.globl %s\n.p2align 8\n.type %s,@function\n%s:' % (KN, KN, KN))
        s.prologue()
        s.roleB_head(); A("s_branch L_roleB"); s.roleA(); A("L_roleB:"); s.roleB()
        for t in s.tail: A(t)
        A.raw(".p2align 8\n.fill 1536, 4, 0xbf810000")
        A.raw('.section .rodata,"a"\n.p2align 6\n.amdhsa_kernel %s\n.amdhsa_next_free_vgpr 256\n.amdhsa_next_free_sgpr 102\n.amdhsa_accum_offset 256\n.amdhsa_group_segment_fixed_size 0\n.amdhsa_kernarg_size 120\n.amdhsa_user_sgpr_count 2\n.amdhsa_user_sgpr_kernarg_segment_ptr 1\n.amdhsa_system_sgpr_workgroup_id_x 1\n.end_amdhsa_kernel' % KN)
        return A.finish()

if __name__ == "__main__":
    out = sys.argv[1]
    cfg = {}
    for a in sys.argv[2:]:
        k, v = a.split("=")
        cfg[k] = {"True": True, "False": False}.get(v, v)
    g = G(**cfg)
    txt = g.build()
    if int(g.cfg.get("al", 0)):
        from align import align
        txt, nf, npad = align(txt, int(g.cfg["al"])); print("aligned runs", nf, "pads", npad, file=sys.stderr)
    open(out, "w").write(txt)
    print(out, "nops inserted", g.A.nops, file=sys.stderr)
    import subprocess, os
    r = subprocess.run([sys.executable, "cdna_unwritten_srd_check.py", out], capture_output=True, text=True)
    if r.returncode != 0:
        print(r.stdout, r.stderr); os.remove(out); sys.exit(1)
```

```python
import sys
from dsl import Asm
KN = "gated_mix__ssm_conv_h3__spectral_fnet__prompt_kernel"
W_E   = 0
W_C   = 4096
FARC  = 0x10000
W_R   = 0x800000
W_K   = 0x40000
W_G   = 0x20000
W_V   = 0x400000
W_R2  = 0xa00000
STAMP_OFF = 200<<20
LCG_A, LCG_C = 1664525, 1013904223
UL = 0; HL = 9216; RED = HL + 16640; X1 = RED + 4*8704; VL = X1; GL = RED + 24576; KL = GL + 256; YL = HL; CL = RED + 8192; LDS = X1 + 16640
M_W, M_A, M_V, M_C, M_TAG, M_X, M_K = UL, UL+4, UL+8, UL+12, UL+16, UL+24, UL+28
SPIN = 40000
NEAR_TRIES = 64
MASK = "0xffff0000"
DPP = "row_mask:0xf bank_mask:0xf"

HEADER = """
; One launch, 256 workgroups of 8 waves.  Workgroups with equal id & 7 form a group that owns 64 channels.
;   two channels -> handed back to the owners of the output tiles.
; Waves 0-3 ("B"): 8-point row stage on two mirrored row sets + 32 x 16 hidden DFT, folded -> handed to all groups
;   -> 256-point stage for a 128-row x 32-channel output tile, gate, final mix.  DFT factors are computed in the kernel.
; L2 when every member shows the same XCC id and are republished written-through otherwise; between groups they are
"""

def vr(a, n): return "v[%d:%d]" % (a, a+n-1)

class G:
    def __init__(s, **cfg):
        s.cfg = dict(stamps=False, nt=" nt", xnt="", qnt="", vlate="2", prent="", ont="", vsleep=2, lord="hvwipa", hpre=1, nb=4, ypre=1, rot=1,
                     slab=2048, seqE="r", seq="ac.yObPqOePzLg.", prioA=1, prioB=0, prioD=3, far=False, ns=8, inb="A", gqat='0', y0=0, ahead=7, vreg=True, white=True, csh=True, nd=16, fin='0', t_gw=False, t_sk=False, t_h=False, t_c=False, dsh=False, hst='em', early=False, pw=False, wat=0, d0=False, halo=True, ph=False, qe='2', cq=2, cn=10, wn=28, se='v', pfl='', d0nt='', hm=1, al=5)
        s.cfg.update(cfg)
        s.A = Asm(); s.tail = []; s.role = "p"
    def stamp(s, i):
        if s.cfg.get("dly") == "%s%d" % (s.role, i): s.A("s_sleep 4")
        if s.cfg.get("probe") and i not in (0, int(s.cfg["probe"].split(".")[1])): return
        if s.cfg["stamps"]: s.A("%s s[%d:%d]" % ("s_memtime" if s.cfg.get("clk") else "s_memrealtime", 64+2*i, 65+2*i))
    def stamps_out(s, role, n):
        if not s.cfg["stamps"]: return
        A = s.A
        A("s_waitcnt vmcnt(0) lgkmcnt(0)")
        s.stamp(n-1)
        A("s_waitcnt lgkmcnt(0)")
        A("s_cmp_lg_u32 s6, %d\ns_cbranch_scc1 L_end" % int(s.cfg.get("sw", 0)))
        if s.cfg.get("probe"):
            pr, pi = [int(x) for x in s.cfg["probe"].split(".")]
            if pr == role:
                inv = "v_not_b32" if s.cfg.get("ref", "first") == "first" else "v_mov_b32"
                A("s_mov_b64 exec, 1\nv_mov_b32 v1, 0\nv_mov_b32 v2, s%d\n%s v3, s64\nglobal_atomic_umax v1, v2, s[36:37] sc1\nglobal_atomic_umax v1, v3, s[36:37] offset:128 sc1\ns_waitcnt vmcnt(0)" % (64+2*pi, inv))
                A("L_probe0:\ns_memrealtime s[40:41]\ns_waitcnt lgkmcnt(0)\ns_sub_u32 s40, s40, s64\ns_cmp_lt_u32 s40, 3000\ns_cbranch_scc1 L_probe0")
                A("global_load_dword v2, v1, s[36:37] sc1\nglobal_load_dword v3, v1, s[36:37] offset:128 sc1\ns_waitcnt vmcnt(0)\n%s v3, v3\nv_readfirstlane_b32 s42, v2\nv_readfirstlane_b32 s43, v3\ns_nop 3" % inv)
                A("s_sub_u32 s3, s42, s43\ns_min_u32 s3, s3, 1500\ns_mul_i32 s3, s3, %d\ns_add_u32 s3, s3, 5000" % int(s.cfg.get("skew", 5)))
                A("L_probe:\ns_memrealtime s[40:41]\ns_waitcnt lgkmcnt(0)\ns_sub_u32 s40, s40, s64\ns_cmp_lt_u32 s40, s3\ns_cbranch_scc1 L_probe")
            return
        A("s_add_u32 s38, s38, %d\ns_addc_u32 s39, s39, 0" % (STAMP_OFF + role*256*128))
        A("s_lshl_b32 s3, s2, 7\nv_mov_b32 v1, s3\ns_mov_b64 exec, 1")
        for j in range(n):
            A("v_mov_b32 v2, s%d\nv_mov_b32 v3, s%d\nglobal_store_dwordx2 v1, v[2:3], s[38:39] offset:%d\ns_nop 1" % (64+2*j, 65+2*j, 8*j))
    def side(s, fn):
        A = s.A; sv = (list(A.vm), list(A.lg)); keep = A.L; A.L = []
        fn()
        s.tail.append("\n".join(i.text for i in A.L)); A.L = keep; A.vm, A.lg = sv
    def jit(s, ch, n=100, reps=1):
        if ch in s.cfg.get("jit", ""):
            s.A("s_add_u32 s99, s5, s6\ns_and_b32 s99, s99, 7\ns_cmp_lg_u32 s99, 3\ns_cbranch_scc1 L_jit_%s\n" % ch + "s_sleep %d\n" % n * reps + "L_jit_%s:" % ch)
    def addbase(s, d, base, soff):
        s.A("s_add_u32 s%d, s%d, %s\ns_addc_u32 s%d, s%d, 0" % (d, base, soff, d+1, base+1))
    def meet(s, name, off, vw, vone, vzero, vtmp, arrive=True):
        if arrive: s.A("ds_write_b8 v%d, v%d offset:%d" % (vw, vone, off))
        s.A("%s:\nds_read_b32 v%d, v%d offset:%d\ns_waitcnt lgkmcnt(0)\nv_cmp_ne_u32 vcc, 0x01010101, v%d\ns_cbranch_vccnz %s" % (name, vtmp, vzero, off, vtmp, name))

    def prologue(s):
        A = s.A
        s.stamp(0)
        if s.cfg.get("hsleep"): A("s_sleep %d" % int(s.cfg["hsleep"]))
        A("s_load_dwordx16 s[16:31], s[0:1], 0\ns_load_dwordx8 s[32:39], s[0:1], 88")
        A("s_cmp_ge_u32 s2, 256\ns_cbranch_scc1 L_end")
        if s.cfg.get("swap"):
            A("s_or_b32 s3, s2, 1\ns_cmp_eq_u32 s3, %d\ns_cselect_b32 s3, 1, 0\ns_xor_b32 s2, s2, s3" % int(s.cfg["swap"]))
        A("s_getpc_b64 s[40:41]")
        A("s_add_u32 s4, s2, %d\ns_and_b32 s4, s4, 7\ns_lshr_b32 s5, s2, 3" % int(s.cfg["rot"]))
        A("v_lshrrev_b32 v2, 6, v0\ns_lshl_b32 s3, s5, 9\nv_lshl_add_u32 v1, v2, 6, s3\nv_readfirstlane_b32 s7, v2")
        if s.cfg.get("x_nopf"): A("v_mov_b32 v1, 0")
        A("global_load_dword v255, v1, s[40:41]", "pf")
        A("v_and_b32 v1, 63, v0\nv_and_b32 v0, 255, v0\ns_and_b32 s6, s7, 3")
        A("v_lshlrev_b32 v46, 2, v0\nv_mov_b32 v45, 0\nds_write_b32 v46, v45 offset:%d" % UL)
        A("s_mov_b32 s10, 0x200000\ns_mov_b32 s11, 0x20000")
        A("s_cmp_ge_u32 s7, 4\ns_cbranch_scc1 L_roleA")

    def roleA(s):
        A = s.A; cfg = s.cfg; nt = cfg["nt"]
        A.reset_counters(); A.vm = ["pf"]
        KR, VR = 10, 22
        A("L_roleA:"); s.role = "a"
        A("s_lshl_b32 s40, s5, 16\ns_lshl_b32 s3, s4, 7\ns_add_u32 s40, s40, s3")
        dsh = cfg["dsh"]
        if dsh:
            A("s_lshl_b32 s3, s6, 14\ns_add_u32 s40, s40, s3\nv_lshrrev_b32 v5, 1, v1\nv_bfi_b32 v5, 1, v1, v5\nv_and_b32 v3, 2, v0\nv_lshl_add_u32 v3, v3, 12, s40\nv_lshl_add_u32 v2, v5, 2, v3\nv_add_u32 v3, -3072, v2")
            A("s_lshl_b32 s3, s4, 9\nv_lshl_add_u32 v5, v5, 4, s3\nv_and_b32 v4, 31, v0")
        else:
            A("v_lshrrev_b32 v3, 5, v0\nv_and_b32 v4, 31, v0\nv_lshl_add_u32 v3, v3, 13, s40\nv_lshl_add_u32 v2, v4, 2, v3\nv_add_u32 v3, -3072, v2")
            A("s_lshl_b32 s3, s4, 9\nv_lshl_add_u32 v5, v4, 4, s3")
        A("s_lshl_b32 s41, s4, 5\ns_add_u32 s41, s41, s5")
        A("s_lshl_b32 s42, s41, 13\ns_add_u32 s43, s42, 4096\ns_lshl_b32 s41, s41, 2\ns_movk_i32 s7, 4096\nv_mov_b32 v49, s41")
        A("s_mov_b32 s50, 0x200000\ns_mov_b32 s51, 0x20000")
        early = cfg["early"]
        if early:
            assert not cfg.get("g3")
            A("s_and_b32 s56, s5, 15\ns_lshr_b32 s57, s5, 4\ns_lshl_b32 s58, s56, 3\ns_add_u32 s58, s58, s4\ns_lshl_b32 s58, s58, 7\ns_lshl_b32 s3, s57, 20\ns_add_u32 s3, s3, s58")
            A("v_lshlrev_b32 v6, 4, v0\nv_and_b32 v252, 0xfc, v0\nv_lshl_add_u32 v252, v252, 12, s3\nv_and_b32 v254, 3, v0\nv_lshl_add_u32 v252, v254, 5, v252\nv_add_u32 v231, 4096, v2")
            A("s_lshl_b32 s3, s41, 5\ns_add_u32 s3, s3, %d\nv_and_b32 v253, 64, v0\nv_add_u32 v253, s3, v253" % W_C)
        A("s_waitcnt lgkmcnt(0)")
        s.stamp(1)
        A("s_mov_b64 s[8:9], s[18:19]")
        if cfg["se"] == "f": A("s_load_dword s44, s[38:39], 0\ns_load_dword s46, s[26:27], s41")
        for ch in cfg.get("tlb", ""):
            if ch == "V": A("v_mov_b32 v230, %d\nglobal_load_dword v230, v230, s[38:39] nt" % (W_V+0x1fff00+0), "k")
            else: A("global_load_dword v231, v45, s[%d:%d] nt" % (dict(v=(20,21), h=(24,25), o=(34,35), s=(22,23), d=(26,27), w=(38,39))[ch]), "k")
        def haloload():
            if cfg["halo"]: A("s_mov_b32 exec_lo, 0x33333333\ns_mov_b32 exec_hi, 0x33333333" if dsh else "s_mov_b32 exec_hi, 0")
            for i in range(0 if cfg.get("x_nohalo") else 3): A("buffer_load_dword v%d, v3, s[8:11], 0 offen offset:%d%s" % (KR+i, 1024*i, cfg.get("hnt", nt)), "k")
            if cfg["t_sk"]: A("global_load_dwordx4 v[30:33], v5, s[22:23]", "k")
            if cfg["halo"]: A("s_mov_b64 exec, -1")
        if not cfg.get("hlast"): haloload()
        for i in range(8): A("buffer_load_dword v%d, v2, s[8:11], %s offen offset:%d%s" % (KR+3+i, "s7" if i >= 4 else "0", 1024*(i & 3), nt), "k")
        if cfg.get("hlast"): haloload()
        if not cfg["t_sk"]: A("global_load_dwordx4 v[30:33], v5, s[22:23]", "k")
        if cfg["se"] == "v":
            if cfg["t_c"]: A("s_mov_b64 exec, 1")
            A("global_load_dword v9, v45, s[38:39] sc1", "k")
            A("global_load_dword v49, v49, s[26:27]", "k")
            if cfg["t_c"]: A("s_mov_b64 exec, -1")
        elif cfg["se"] == "p":
            A("global_load_dword v9, v45, s[38:39]", "k")
            A("global_load_dword v49, v49, s[26:27]", "k")
        elif cfg["se"] == "s": A("s_load_dword s44, s[38:39], 0\ns_load_dword s46, s[26:27], s41")
        if "B" not in cfg["lord"]: A("s_barrier")
        RB = 34
        if early: A("s_mov_b64 s[48:49], s[24:25]")
        else:
            A("s_mov_b64 s[48:49], s[24:25]"); s.addbase(20, 20, "s7")
            A("s_and_b32 s28, s5, 15\ns_lshr_b32 s29, s5, 4\ns_lshl_b32 s30, s28, 3\ns_add_u32 s30, s30, s4\ns_lshl_b32 s30, s30, 7\ns_lshl_b32 s3, s29, 20\ns_add_u32 s3, s3, s30")
            RB = 34
            if cfg.get("g3"):
                RB = 36
                s.addbase(36, 38, "%d" % (0xc00000 + 128))
                if cfg["g3"] == "1": A("s_cmp_eq_u32 s4, 3\ns_cselect_b64 s[36:37], s[36:37], s[34:35]")
            s.addbase(12, RB, "s3")
            A("s_lshl_b32 s3, s4, 12\ns_add_u32 s3, s3, %d" % W_C); s.addbase(58, 38, "s3")
            A(("s_and_b32 s3, s5, 15\ns_lshl_b32 s3, s3, 7" if cfg.get("nopp") else "s_lshl_b32 s3, s5, 7") + "\nv_and_b32 v253, 64, v0\nv_add_u32 v253, s3, v253\nv_lshlrev_b32 v6, 4, v0\nv_and_b32 v252, 0xfc, v0\nv_lshlrev_b32 v252, 12, v252\nv_and_b32 v254, 3, v0\nv_lshl_add_u32 v252, v254, 5, v252")
        def addr():
            if early:
                A("s_mov_b64 s[28:29], s[56:57]\ns_mov_b32 s30, s58\ns_lshl_b32 s3, s4, 12\ns_add_u32 s3, s3, %d" % W_C); s.addbase(58, 38, "s3")
            A("s_mul_i32 s3, s6, 4160\nv_min_u32 v48, 6, v1\nv_lshl_add_u32 v47, v48, 2, s3\nds_write_b32 v47, v45 offset:%d" % HL)
            A("s_lshl_b32 s47, s6, 11\ns_lshl_b32 s60, s5, 2\ns_add_u32 s60, s60, s6\ns_lshl_b32 s31, s60, 7\ns_add_u32 s31, s31, s4\ns_lshl_b32 s31, s31, 7")
            s.addbase(54, RB, "s31")
            A("s_lshl_b32 s3, s29, 6\ns_add_u32 s30, s30, s3")
            s.addbase(52, RB, "s30"); s.addbase(56, 52, "0x3fc00")
            A("s_lshl_b32 s33, s28, 2\ns_add_u32 s33, s33, s6\ns_lshl_b32 s33, s33, 5\ns_add_u32 s33, s33, s4\ns_lshl_b32 s33, s33, 7\ns_add_u32 s33, s33, s3")
            s.addbase(16, RB, "s33")
            A("v_and_b32 v233, 48, v6\nv_and_b32 v5, 60, v1\ns_lshl_b32 s3, s6, 19\nv_lshl_add_u32 v232, v5, 12, s3\nv_add_u32 v232, v232, v233")
            A("v_and_b32 v47, 28, v1\nv_lshl_add_u32 v233, v47, 16, v233\nv_and_b32 v47, 32, v1\nv_lshl_add_u32 v233, v47, 5, v233")
            A("s_lshl_b32 s3, s29, 2\ns_add_u32 s3, s3, s6\ns_lshl_b32 s3, s3, 6\nv_and_b32 v237, 15, v0\nv_lshl_add_u32 v237, v237, 2, s3")
            if dsh:
                A("v_lshlrev_b32 v44, 3, v1\nv_lshlrev_b32 v8, 5, v1\nv_bfi_b32 v8, 32, v8, v44\ns_lshl_b32 s3, s5, 4\nv_xor_b32 v8, s3, v8\nv_and_b32 v8, 48, v8\nv_lshl_add_u32 v8, v47, 1, v8\nv_and_b32 v47, 28, v1\nv_lshl_add_u32 v8, v47, 9, v8")
            else:
                A("v_lshlrev_b32 v44, 3, v1\nv_lshrrev_b32 v47, 1, v1\nv_and_b32 v47, 16, v47\nv_and_b32 v48, 48, v44\nv_xor_b32 v47, v47, v48\nv_lshl_add_u32 v47, v4, 6, v47")
                A("v_add_u32 v47, s47, v47\nv_xor_b32 v48, 32, v47\nv_lshl_add_u32 v21, v1, 4, s47")
                A("v_add_u32 v8, v1, v1\nv_xor_b32 v8, v8, v6\ns_lshl_b32 s3, s5, 4\nv_xor_b32 v8, s3, v8\nv_and_b32 v8, 48, v8\nv_lshl_add_u32 v8, v5, 8, v8")
            A("s_lshl_b32 s60, s60, 2\nv_mov_b32 v7, s60\ns_add_u32 m0, s47, %d" % (UL+1024))
            A("v_and_b32 v238, 15, v0\nv_lshrrev_b32 v235, 4, v1\nv_sub_u32 v238, v238, v235")
            A("s_and_b32 s41, s6, 1\ns_lshl_b32 s41, s41, 3\ns_sub_u32 s41, 16, s41\nv_add_u32 v238, s41, v238\ns_or_b32 s3, s6, 1\ns_lshl_b32 s3, s3, 4")
            for bb in range(2):
                if bb: A("v_add_u32 v238, -4, v238")
                A("v_lshlrev_b32 v239, 2, v238\nv_xor_b32 v239, s3, v239\nv_and_b32 v239, 48, v239\nv_lshl_add_u32 v%d, v238, 6, v239" % (248+2*bb))
                A("v_xor_b32 v%d, 16, v%d" % (249+2*bb, 248+2*bb))
            A("s_mul_i32 s3, s6, 8704\nv_add_u32 v236, v235, v1\nv_lshl_add_u32 v236, v236, 4, s3")
            A("s_lshl_b32 s3, s6, 6\nv_mul_u32_u24 v3, 272, v4\nv_lshrrev_b32 v5, 1, v1\nv_and_b32 v5, 16, v5\nv_add3_u32 v3, v3, v5, s3")
            A("s_lshl_b32 s60, s5, 1\ns_add_u32 s60, s60, s3\ns_lshl_b32 s60, s60, 1")
            A("s_lshr_b32 s61, s6, 1\ns_mul_i32 s61, s61, 7808\ns_lshl_b32 s41, s6, 8\ns_add_u32 s61, s61, s41\ns_add_u32 s61, s61, %d" % HL)
            A("v_and_b32 v234, 1, v0\nv_mul_u32_u24 v234, 4158, v234\nv_lshl_add_u32 v234, v1, 1, v234\nv_add_u32 v234, s61, v234")
        for ch in cfg["lord"]:
            if ch == "a": addr()
            if ch == "B": A("s_barrier")
            if ch in "vw":
                for i in (range(4) if ch == "v" else range(4, 8)): A("global_load_dword v%d, v%d, s[20:21] offset:%d%s" % (VR+i, 231 if early else 2, 1024*i-4096, nt), ("v", i))
            if ch in cfg.get("x_skip", ""): continue
            if ch == "h":
                if cfg["t_h"]:
                    A("buffer_load_dwordx4 v[120:123], v6, s[48:51], s42 offen" + nt, ("h", 0))
                    A("s_mov_b32 exec_lo, 0\ns_brev_b32 exec_hi, 1\nbuffer_load_dword v39, v6, s[48:51], s42 offen offset:16" + nt + "\ns_mov_b64 exec, -1", ("h", 0))
                else:
                    A("buffer_load_dwordx4 v[36:39], v6, s[48:51], s42 offen offset:%d" % int(cfg.get("x_hoff", 4)) + nt, ("h", 0))
                    if cfg["d0"]: A("s_mov_b64 exec, 1")
                    A("buffer_load_dword v34, v6, s[48:51], s42 offen" + " " + cfg["d0nt"], ("h", 0))
                    if cfg["d0"]: A("s_mov_b64 exec, -1")
            if ch == "i":
                if cfg["t_h"]:
                    A("buffer_load_dwordx4 v[124:127], v6, s[48:51], s43 offen" + nt, ("h", 1))
                    A("s_mov_b32 exec_lo, 0\ns_brev_b32 exec_hi, 1\nbuffer_load_dword v43, v6, s[48:51], s43 offen offset:16" + nt + "\ns_mov_b64 exec, -1", ("h", 1))
                else:
                    A("buffer_load_dwordx4 v[40:43], v6, s[48:51], s43 offen offset:%d" % int(cfg.get("x_hoff", 4)) + nt, ("h", 1))
                    if cfg["d0"]: A("s_mov_b64 exec, 1")
                    A("buffer_load_dword v35, v6, s[48:51], s43 offen" + " " + cfg["d0nt"], ("h", 1))
                    if cfg["d0"]: A("s_mov_b64 exec, -1")
            if ch == "p":
                if cfg["t_c"]: A("s_mov_b64 exec, 1")
                A("global_load_dword v253, v253, s[%s] " % ("38:39" if early else "58:59") + cfg.get("cfl", "sc1"), "pre")
                if cfg["t_c"]: A("s_mov_b64 exec, -1")
                if cfg["ph"]: A("s_mov_b32 exec_lo, 0x55555555\ns_mov_b32 exec_hi, 0x55555555")
                A("global_load_dword v254, v252, s[%s] " % ("34:35" if early else "12:13") + cfg.get("pfl", "sc1") + " " + cfg["prent"], "pre")
                if cfg["ph"]: A("s_mov_b64 exec, -1")
        if int(cfg["prioA"]): A("s_setprio %d" % int(cfg["prioA"]))
        s.stamp(11)
        KP, W, S, VP = 50, 72, 80, 96
        A.wait(vm="k")
        if cfg["se"] in "sf": A("s_waitcnt lgkmcnt(0)")
        s.stamp(2)
        if cfg["halo"] and dsh:
            A("s_mov_b32 vcc_lo, 0x33333333\ns_mov_b32 vcc_hi, 0x33333333")
            for i in range(3): A("v_cndmask_b32_dpp v%d, v%d, v%d, vcc quad_perm:[0,1,0,1] %s" % (KR+i, KR+8+i, KR+i, DPP))
        elif cfg["halo"]:
            for i in range(3): A("v_mov_b32 v%d, v%d" % (96+i, KR+8+i))
            for i in range(3): A("v_permlane32_swap_b32 v%d, v%d" % (KR+i, 96+i))
        if cfg["t_sk"]:
            assert cfg["halo"] and not dsh
            A("v_mov_b64 v[100:101], v[30:31]\nv_mov_b64 v[102:103], v[32:33]")
            for i in range(4): A("v_permlane32_swap_b32 v%d, v%d" % (30+i, 100+i))
        for t in range(4):
            for c in range(2):
                src = 30 + 2*c + (t >> 1)
                A(("v_and_b32 v%d, " + MASK + ", v%d" if t & 1 else "v_lshlrev_b32 v%d, 16, v%d") % (W+2*t+c, src))
        for i in range(11):
            A("v_lshlrev_b32 v%d, 16, v%d\nv_and_b32 v%d, %s, v%d" % (KP+2*i, KR+i, KP+2*i+1, MASK, KR+i))
        for t in (3, 2, 1, 0):
            for r in range(8):
                k = vr(KP+2*(r+3-t), 2); w = vr(W+2*t, 2); d = vr(S+2*r, 2)
                A("v_pk_mul_f32 %s, %s, %s" % (d, k, w) if t == 3 else "v_pk_fma_f32 %s, %s, %s, %s" % (d, k, w, d))
        def misc():
            if cfg["se"] in "vp": A("v_readfirstlane_b32 s44, v9\nv_readfirstlane_b32 s46, v49")
            A("s_mov_b32 s96, 0\ns_getreg_b32 s3, hwreg(HW_REG_XCC_ID, 0, 4)")
            A("s_mul_i32 s44, s44, %d\ns_add_u32 s44, s44, %d\ns_add_u32 s45, s44, s3\ns_add_u32 s45, s45, 1" % (LCG_A, LCG_C))
            A("v_mov_b32 v9, s45\nv_mov_b32 v20, v44")
            A("v_mov_b32 v10, v234\nv_mov_b32 v2, v236\nv_mov_b64 v[18:19], v[232:233]\nv_mov_b32 v30, v237\nv_mov_b64 v[14:15], v[248:249]\nv_mov_b64 v[16:17], v[250:251]")
            for i in range(1, 4): A("v_add_u32 v%d, %d, v234" % (10+i, 1024*i))
        def hstage(at):
            for c in range(2):
                if cfg["hst"][c] != at: continue
                A.wait(vm=("h", c))
                d = [34+c] + [36+4*c+k for k in range(4)]
                if cfg["t_h"]:
                    A("v_mov_b32_dpp v%d, v%d wave_shl:1 %s\nv_mov_b32 v%d, v%d" % (39+4*c, 120+4*c, DPP, 34+c, 120+4*c))
                    for k in range(3): A("v_mov_b32 v%d, v%d" % (36+4*c+k, 121+4*c+k))
                if cfg["d0"]: A("v_mov_b32_dpp v%d, v%d wave_shr:1 %s" % (34+c, 39+4*c, DPP))
                A("ds_write_b128 v6, %s offset:%d" % (vr(36+4*c, 4), HL+c*8320+4160+32))
                for k in range(4): A("v_alignbit_b32 v%d, v%d, v%d, 16" % (52+4*c+k, d[k+1], d[k]))
                A("ds_write_b128 v6, %s offset:%d" % (vr(52+4*c, 4), HL+c*8320+32))
                A("s_cmp_lg_u32 s6, 0\ns_cbranch_scc1 L_a_h%d\ns_mov_b64 exec, 1" % c)
                A("s_and_b32 s3, s46, 0xffff0000" if c else "s_lshl_b32 s3, s46, 16")
                A("v_lshlrev_b32 v%d, 16, v%d\nv_add_f32 v%d, s3, v%d\nv_cvt_pk_bf16_f32 v%d, 0, v%d\ns_mov_b32 s3, 0x07060302\nv_perm_b32 v%d, v%d, v%d, s3" % (60+c, 34+c, 60+c, 60+c, 60+c, 60+c, 62+c, 34+c, 60+c))
                A.raw("ds_write_b32 v6, v%d offset:%d\nds_write_b32 v6, v%d offset:%d" % (60+c, HL+c*8320+28, 62+c, HL+c*8320+4160+28))
                A("s_mov_b64 exec, -1\nL_a_h%d:" % c)
        mearly = dsh or "e" in cfg["hst"]
        if mearly: misc()
        hstage("e")
        s.stamp(12)
        for r in range(8):
            if r in (0, 4): A.wait(vm=("v", r+3))
            if r == 4: s.stamp(10)
            A("v_lshlrev_b32 v%d, 16, v%d\nv_and_b32 v%d, %s, v%d" % (VP+2*r, VR+r, VP+2*r+1, MASK, VR+r))
            A("v_pk_mul_f32 %s, %s, %s" % (vr(S+2*r, 2), vr(S+2*r, 2), vr(VP+2*r, 2)))
            if r & 1:
                j = (7-r)//2
                for c in range(2): A("v_cvt_pk_bf16_f32 v%d, v%d, v%d" % (112+4*c+j, S+2*r+c, S+2*(r-1)+c))
        if not dsh:
            for c in range(2): A("ds_write_b128 v%d, %s offset:%d" % (47+c, vr(112+4*c, 4), RED))
            A("ds_read_b128 v[240:243], v21 offset:%d" % RED, "sh0")
            A("ds_read_b128 v[244:247], v21 offset:%d" % (RED+1024), "sh1")
        if not mearly: misc()
        ust = ["global_store_dwordx4 v8, v[240:243], s[54:55]", "global_store_dwordx4 v8, v[244:247], s[54:55] offset:%d" % (1024 if dsh else 64)]
        s.jit("U", 127, 4); s.jit("u")
        if dsh:
            for b in range(2):
                A("s_mov_b32 vcc_lo, 0x%x\ns_mov_b32 vcc_hi, 0x%x" % ((0x55555555 << b,)*2))
                for p in range(4): A("v_cndmask_b32_dpp v%d, v%d, v%d, vcc quad_perm:[1,0,3,2] %s" % (240+4*b+3-p, 116-4*b+3-p, 112+4*b+3-p, DPP))
                A(ust[b], "ust")
        else:
            A.wait(lg="sh0"); A(ust[0], "ust")
            A.wait(lg="sh1"); A(ust[1], "ust")
        s.stamp(3)
        A("v_mov_b32 v26, 0\nv_mov_b32 v27, s44")
        A("ds_write_b32 v26, v27 offset:%d" % M_TAG)
        hstage("m")
        s.stamp(9)
        HB = lambda q: 32+32*(0 if cfg.get('x_noh') else q)
        UB = lambda q: 160+32*(q & 1)
        ACC = 224
        def hread(q, a, half):
            bb, hf = q >> 1, q & 1
            o = 128*(a & 1)+32*bb+4*hf+2*half
            A("ds_read2_b32 %s, v%d offset0:%d offset1:%d" % (vr(HB(q)+4*a+2*half, 2), 10+(a >> 1), o, o+1), ("f", q, a))
        def uread(q, z):
            A("ds_read_b128 %s, v%d offset:%d" % (vr(UB(q)+4*z, 4), 14+q, UL+1024*z), ("f", q, z))
        npre = int(cfg["hpre"])
        hm = int(cfg["hm"])
        A("v_mov_b32 v5, s6\nv_mov_b32 v4, 1")
        hpost = "p" in cfg["hst"]
        if hm and not hpost: A("ds_write_b8 v5, v4 offset:%d" % M_W)
        A("s_mov_b64 exec, 1\ns_waitcnt vmcnt(0)"); s.stamp(4)
        A("global_store_dword v7, v9, s[58:59]\ns_mov_b64 exec, -1")
        if cfg.get("uhack"): A("v_and_b32 v20, 0x78, v20\ns_lshl_b32 s3, s6, 7\nv_add_u32 v20, s3, v20")
        A("s_mov_b32 s3, 0")
        if hm:
            A("global_load_dwordx2 v[22:23], v20, s[58:59] sc1")
            hstage("p"); A("s_mov_b32 s3, 0")
            s.meet("L_a_hw", M_W, 5, 4, 26, 28, arrive=hpost)
            for q in range(hm):
                for a in range(8): hread(q, a, 0); hread(q, a, 1)
            A("s_branch L_a_pu1")
        A("L_a_pu:\nglobal_load_dwordx2 v[22:23], v20, s[58:59] sc1\nL_a_pu1:\ns_waitcnt vmcnt(0)")
        if cfg["far"]: A("s_branch L_a_far")
        A("v_cmp_ne_u32 vcc, s45, v22\nv_cmp_ne_u32 s[40:41], s45, v23\ns_or_b64 vcc, vcc, s[40:41]\ns_cbranch_scc0 L_a_pu_ok")
        if cfg.get("usleep"): A("s_sleep %d" % int(cfg["usleep"]))
        if cfg.get("umask"): A("s_mov_b64 exec, vcc")
        A("s_add_u32 s3, s3, 1\ns_cmp_lt_u32 s3, %d\ns_cbranch_scc1 L_a_pu\ns_branch L_a_far\nL_a_pu_ok:" % NEAR_TRIES)
        def far():
            A("L_a_far:\ns_mov_b64 exec, -1\ns_add_u32 s31, s31, %d" % W_R)
            s.addbase(54, 38, "s31")
            for l in ust: A(l + " sc1")
            A("buffer_wbl2 sc1")
            s.addbase(14, 58, "%d" % FARC)
            A("s_waitcnt vmcnt(0)\ns_mov_b64 exec, 1\nglobal_store_dword v7, v27, s[14:15] sc1\ns_mov_b64 exec, -1")
            A("L_a_pf:\nglobal_load_dwordx2 v[24:25], v20, s[14:15] sc1\ns_waitcnt vmcnt(0)\nglobal_load_dwordx2 v[22:23], v20, s[58:59] sc1\ns_waitcnt vmcnt(0)")
            A("v_cmp_ne_u32 vcc, s45, v22\nv_cmp_ne_u32 s[40:41], s45, v23\ns_or_b64 vcc, vcc, s[40:41]\ns_cbranch_scc0 L_a_pu_ok")
            A("v_cmp_ne_u32 vcc, s44, v24\nv_cmp_ne_u32 s[40:41], s44, v25\ns_or_b64 vcc, vcc, s[40:41]\ns_cbranch_scc0 L_a_isfar")
            A("s_sleep 8\ns_add_u32 s3, s3, 1\ns_cmp_lt_u32 s3, %d\ns_cbranch_scc1 L_a_pf" % SPIN)
            A("L_a_isfar:\ns_mov_b32 s96, 1\nv_mov_b32 v9, s44\nv_mov_b32 v28, 1\nds_write_b32 v26, v28 offset:%d\ns_waitcnt lgkmcnt(0)" % (M_TAG+4))
            A("s_add_u32 s30, s30, %d\ns_add_u32 s33, s33, %d" % (W_R, W_R2))
            s.addbase(52, 38, "s30"); s.addbase(56, 52, "0x3fc00"); s.addbase(16, 38, "s33")
            A("s_branch L_a_pu_ok")
        s.side(far)
        if cfg.get("umask"): A("s_mov_b64 exec, -1")
        s.stamp(5)
        A("global_load_lds_dwordx4 v18, s[52:53] sc1\nglobal_load_lds_dwordx4 v18, s[56:57] offset:1024 sc1")
        if cfg.get("vlate") != "2": A("s_barrier" if hm else "s_waitcnt lgkmcnt(0)\ns_barrier")
        for q in range(hm, npre):
            for a in range(8): hread(q, a, 0); hread(q, a, 1)
        A("v_mov_b32 v29, s60\nv_mov_b32 v5, s6\nv_mov_b32 v4, 1")
        awipe = cfg["inb"] == "A" and "y" not in cfg["seq"]
        if awipe: A("v_mov_b64 v[22:23], -1\nv_mov_b64 v[24:25], -1")
        A("s_waitcnt vmcnt(0)")
        wipes = ["global_store_dwordx4 v18, v[22:25], s[52:53]", "global_store_dwordx4 v18, v[22:25], s[56:57] offset:1024"]
        wat = int(cfg["wat"])
        if cfg["inb"] == "N": A("s_mov_b64 exec, 1\nglobal_store_dword v7, v9, s[58:59] offset:1024\ns_mov_b64 exec, -1")
        elif not wat and awipe:
            for l in wipes: A(l)
        A("s_barrier")
        s.jit("w")
        s.stamp(6)
        todo = [(q, a, k) for q in range(4) for a in range(8) for k in range(3) if k == 0 or (q >= npre and not cfg.get('x_noh'))]
        def feed(n, q):
            for _ in range(n):
                if todo and todo[0][0] <= q+1:
                    qq, a, k = todo.pop(0)
                    if k == 0: uread(qq, a)
                    else: hread(qq, a, k-1)
        feed(8, 0)
        for q in range(4):
            pend = []; n = 0
            for i in range(8):
                while todo and todo[0][:2] <= (q, i): feed(1, q)
                A.wait(lg=[("f", q, i)] if q == 0 else [("f", q, z) for z in range(8)])
                for a in range(i+1):
                    if cfg.get("skipc") and q in (1, 2) and a > 0 and (i+a) % int(cfg["skipc"]) == 0:
                        feed(1, q); continue
                    acc = vr(ACC+4*i, 4)
                    A("v_mfma_f32_16x16x32_bf16 %s, %s, %s, %s" % (acc, vr(UB(q)+4*(i-a), 4), vr(HB(q)+4*a, 4), "0" if (q == 0 and a == 0) else acc))
                    n += 1
                    if n >= (8 if q == 0 else 2): feed(1, q)
                    if wat and q == 0 and n in (wat, wat+2): A(wipes.pop(0))
                    if awipe and q == int(cfg['cq']) and n == int(cfg['cn']): A("s_waitcnt vmcnt(0)\ns_mov_b64 exec, 1\nglobal_store_dword v7, v9, s[58:59] offset:1024\ns_mov_b64 exec, -1")
                    if q == 3 and n == int(cfg['wn']): A("global_load_dword v31, v30, s[58:59] offset:1024 sc1")
                    if pend and n >= pend[0][1]:
                        t = pend.pop(0)[0]
                        A("ds_write_b128 v2, %s offset:%d" % (vr(ACC+4*t, 4), RED+1088*t))
                if q == 3: pend.append((i, n+8))
            for t, _ in pend: A("ds_write_b128 v2, %s offset:%d" % (vr(ACC+4*t, 4), RED+1088*t))
        assert not todo
        s.stamp(13)
        if cfg["inb"] is True:
            A("ds_write_b8 v5, v4 offset:%d" % M_A)
            A("L_a_rw:\nds_read_b64 v[28:29], v26 offset:%d\ns_waitcnt lgkmcnt(0)\nv_and_b32 v28, v28, v29\nv_cmp_ne_u32 vcc, 0x01010101, v28\ns_cbranch_vccnz L_a_rw" % M_W)
        else: s.meet("L_a_rw", M_A, 5, 4, 26, 28)
        for io in range(2):
            for ws in range(4):
                A("ds_read_b128 %s, v3 offset:%d" % (vr(32+16*io+4*ws, 4), RED+ws*8704+io*32), ("r", io))
        s.stamp(7)
        yst = ["global_store_dwordx4 v19, %s, s[16:17] offset:%d" % (vr(64+4*io, 4), 2048*io) for io in range(2)]
        def ysum(io):
            b = 32+16*io
            A.wait(lg=("r", io))
            for c in range(2):
                for p in range(4): A("v_add_f32 v%d, v%d, v%d" % (b+8*c+p, b+8*c+p, b+8*c+4+p))
            for r in range(4): A("v_cvt_pk_bf16_f32 v%d, v%d, v%d" % (64+4*io+r, b+r, b+8+r))
        A("s_cmp_eq_u32 s96, 1\ns_cbranch_scc1 L_a_yfar")
        def yfar():
            A("L_a_yfar:")
            for io in range(2):
                ysum(io); A(yst[io] + " sc1")
            A("s_waitcnt vmcnt(0)\ns_mov_b64 exec, 1\nglobal_store_dword v29, v9, s[14:15] offset:512 sc1\ns_branch L_a_done")
        s.side(yfar)
        ysum(0)
        A("s_waitcnt vmcnt(0)\nv_cmp_ne_u32 vcc, v9, v31\ns_cbranch_vccnz L_a_ww\nL_a_wok:")
        s.tail.append("L_a_ww:\ns_mov_b32 s3, 0\nL_a_wp:\nglobal_load_dword v31, v30, s[58:59] offset:1024 sc1\ns_waitcnt vmcnt(0)\nv_cmp_ne_u32 vcc, v9, v31\ns_cbranch_vccz L_a_wok\ns_add_u32 s3, s3, 1\ns_cmp_lt_u32 s3, %d\ns_cbranch_scc1 L_a_wp\ns_branch L_a_wok" % SPIN)
        s.jit("y"); A(yst[0]); ysum(1); s.jit("Y", 127, 6); A(yst[1])
        A("s_mov_b64 exec, 1\ns_waitcnt vmcnt(0)")
        s.stamp(8)
        A("global_store_dword v29, v9, s[58:59] offset:512")
        A("L_a_done:")
        s.stamps_out(1, 16)
        A("s_endpgm")

    def roleB_head(s):
        A = s.A; cfg = s.cfg
        A("s_lshr_b32 s7, s5, 4\ns_and_b32 s3, s5, 15\ns_lshl_b32 s40, s4, 4\ns_add_u32 s40, s40, s3")
        A("v_and_b32 v2, 3, v0\nv_bfe_u32 v3, v0, 2, 1\nv_lshl_add_u32 v2, v2, 1, v3\nv_and_b32 v3, 8, v0\nv_add_u32 v2, v2, v3")
        A("s_sub_u32 s63, 256, s40\ns_cmp_eq_u32 s40, 0\ns_cselect_b32 s63, 128, s63\ns_sub_u32 s3, s63, s40\nv_lshrrev_b32 v3, 5, v1\nv_mul_u32_u24 v240, s3, v3\nv_add_u32 v240, s40, v240")
        A("v_and_b32 v242, 16, v0\nv_lshl_add_u32 v241, v242, 6, v240\ns_lshl_b32 s41, s6, 8\nv_lshl_add_u32 v3, v2, 4, s41\nv_lshl_add_u32 v2, v241, 10, v3")
        A("s_lshl_b32 s48, s7, 19\ns_xor_b32 s49, s48, 0x40000\ns_xor_b32 s50, s48, 0x80000\ns_xor_b32 s51, s48, 0xc0000")
        A("v_mov_b32 v244, s6\nv_mov_b32 v245, 1\nv_mov_b32 v246, 0")
        A("s_waitcnt lgkmcnt(0)")
        s.stamp(1)
        A("s_mov_b64 s[8:9], s[16:17]")
        for j in range(2 if cfg.get("x_halfx") else 4): A("buffer_load_dwordx4 %s, v2, s[8:11], s%d offen %s" % (vr(s.XR(j), 4), 48+j, cfg["xnt"] if j < 2 else cfg.get("x2nt", cfg["xnt"])), ("x", j))
        if cfg["t_gw"]: A("global_load_dword v219, v46, s[32:33]\nv_and_b32 v218, 0xff, v3", "gw")
        else: A("global_load_dwordx4 v[220:223], v3, s[32:33]", "gw")
        if cfg.get("tw"):
            A("s_lshl_b32 s3, s2, 13\ns_add_u32 s3, s3, %d\nv_mov_b32 v217, s3\ns_cmp_lg_u32 s6, 0\ns_cbranch_scc1 L_b_ntw\ns_mov_b64 exec, 1" % W_V)
            A.raw("global_load_dword v217, v217, s[38:39] nt")
            A("s_mov_b64 exec, -1\nL_b_ntw:")
        A("s_barrier")
        s.vmB = list(A.vm)
    def XR(s, j): return (224+4*j) if j < 2 else (64+4*j)
    def roleB(s):
        A = s.A; cfg = s.cfg; XR = s.XR; SLAB = int(cfg["slab"])
        A.reset_counters(); A.vm = list(s.vmB)
        s.role = "b"
        KQ, NF, QO, MP, L7, VS = 232, 233, 234, 236, 237, 238
        A("v_lshlrev_b32 v243, 4, v1\nv_bfe_u32 v161, v0, 5, 1\nv_cvt_f32_u32 v161, v161\nv_and_b32 v167, 1, v0\ns_mov_b32 s62, 0x80008000")
        def put(f0, n):
            for f in range(f0, f0+n): A("ds_write_b128 v243, %s offset:%d" % (vr(4+4*f, 4), CL+1024*f))
        def trig(c, sn, jump):
            for j in range(8):
                A("v_cos_f32 v%d, v164\nv_sin_f32 v%d, v164" % (c+j, sn+j))
                if jump and j == 3: A("v_fmamk_f32 v164, v163, 0x40a00000, v164")
                elif j < 7: A("v_add_f32 v164, v164, v163")
        def pack(c, sn):
            for j in range(4):
                A("v_cvt_pk_bf16_f32 v%d, v%d, v%d\nv_cvt_pk_bf16_f32 v%d, v%d, v%d" % (c+j, 128+2*j, 129+2*j, sn+j, 136+2*j, 137+2*j))
        A("s_cmp_ge_u32 s6, 2\ns_cbranch_scc1 L_b_c23")
        A("v_and_b32 v160, 24, v0\nv_and_b32 v162, 3, v0\nv_lshl_add_u32 v160, v162, 1, v160\nv_bfe_u32 v162, v0, 2, 1\nv_add_u32 v160, v160, v162\nv_cvt_f32_u32 v160, v160")
        A("s_cmp_eq_u32 s6, 1\ns_cbranch_scc1 L_b_c1")
        A("v_mul_lo_u32 v165, v162, s62\nv_mul_f32 v163, 0x3d000000, v160\nv_mul_f32 v164, 0x41000000, v161\nv_mul_f32 v164, v164, v163")
        trig(128, 136, False); pack(8, 16)
        for j in range(4):
            A("v_xor_b32 v%d, v165, v%d\nv_xor_b32 v%d, v165, v%d\nv_xor_b32 v%d, s62, v%d" % (12+j, 8+j, 20+j, 16+j, 24+j, 16+j))
            A("v_xor_b32 v%d, s62, v%d" % (28+j, 20+j))
        put(1, 6)
        A("s_branch L_b_cd\nL_b_c1:")
        A("v_mul_f32 v163, 0x3b000000, v160\nv_mul_f32 v166, 4.0, v161\nv_mul_f32 v164, v166, v163")
        trig(32, 40, True)
        A("s_nop 0")
        put(7, 4)
        A("s_branch L_b_cd\nL_b_c23:\nv_cvt_f32_u32 v162, v167\nv_mul_f32 v162, 0.25, v162\ns_cmp_eq_u32 s6, 3\ns_cbranch_scc1 L_b_c3")
        A("s_cmp_eq_u32 s40, 0\ns_cselect_b32 s3, 0, 1.0\nv_mul_f32 v162, s3, v162\nv_mul_lo_u32 v165, v167, s62\nv_mul_f32 v166, 4.0, v161")
        A("v_bfe_u32 v160, v0, 1, 4\nv_cvt_f32_u32 v160, v160\nv_mul_f32 v163, 0x3d800000, v160\nv_fma_f32 v164, v166, v163, v162")
        trig(128, 136, True); pack(48, 52)
        A("s_cbranch_scc1 L_b_s0")
        for j in range(8): A("v_xor_b32 v%d, v165, v%d" % (56+j, 48+j))
        A("L_b_s0back:")
        s.tail.append("L_b_s0:\nv_cmp_eq_u32 vcc, 0, v167\ns_nop 1\n" + "\n".join("v_cndmask_b32 v%d, v%d, v167, vcc\nv_cndmask_b32 v%d, 0, v%d, vcc" % (56+j, 48+j, 48+j, 48+j) for j in range(8)) + "\ns_branch L_b_s0back")
        put(11, 4)
        A("s_branch L_b_cd\nL_b_c3:")
        A("v_bfe_u32 v160, v0, 1, 2\ns_lshl_b32 s3, s7, 2\nv_add_u32 v160, s3, v160\nv_cvt_f32_u32 v160, v160\nv_cvt_f32_u32 v161, v241")
        A("v_mul_f32 v163, 0x3a000000, v160\nv_fma_f32 v165, v163, v161, v162\nv_mul_f32 v166, 0x35000000, v160")
        for j in range(4):
            A("v_cvt_f32_u32 v164, s%d\nv_fma_f32 v164, v164, v166, v165\nv_cos_f32 v%d, v164" % (48+j, 168+j))
        for j in range(2): A("v_cvt_pk_bf16_f32 v%d, v%d, v%d" % (4+j, 168+2*j, 169+2*j))
        A("s_mov_b32 exec_lo, 0xff00ff00\ns_mov_b32 exec_hi, 0x00ff00ff\nv_mov_b64 v[4:5], 0\ns_mov_b64 exec, -1")
        put(0, 1)
        A("L_b_cd:")
        A("ds_write_b8 v244, v245 offset:%d" % M_C)
        A("v_lshrrev_b32 v%d, 4, v1\nv_and_b32 v%d, 15, v0\nv_and_b32 v%d, 7, v0" % (KQ, NF, L7))
        A("v_mul_u32_u24 v2, 2064, v%d\nv_and_b32 v3, 8, v0\nv_lshl_add_u32 v2, v3, 7, v2\nv_lshl_add_u32 v2, v242, 3, v2\nv_bfe_u32 v3, v0, 5, 1\nv_lshl_add_u32 v2, v3, 3, v2" % L7)
        A("v_add_u32 v2, s41, v2")
        A("v_lshlrev_b32 v3, 8, v3\nv_lshl_add_u32 v3, v242, 6, v3\nv_lshl_add_u32 v3, v%d, 4, v3\ns_mul_i32 s3, s6, 4128\nv_add_u32 v3, s3, v3" % NF)
        A("s_mov_b32 s46, 0x05040100\ns_mov_b32 s47, 0x07060302")
        qso = ["0", "s56", "s42", "s57"]
        def setup0():
            A("s_and_b32 s41, s5, 15\ns_lshr_b32 s43, s6, 1\ns_lshl_b32 s3, s41, 1\ns_add_u32 s3, s3, s43\ns_lshl_b32 s3, s3, 6\ns_and_b32 s51, s6, 1\ns_add_u32 s3, s3, s51\ns_lshl_b32 s3, s3, 4\ns_add_u32 s3, s3, %d" % W_G)
            A("v_and_b32 v128, 3, v0\nv_lshl_add_u32 v128, v%d, 2, v128\nv_lshl_add_u32 v128, v128, 6, s3\nv_and_b32 v129, 4, v0\nv_lshl_add_u32 v%d, v129, 1, v128" % (KQ, MP))
            A("s_bfe_u32 s50, s5, 0x10002\ns_lshl_b32 s3, s4, 1\ns_add_u32 s3, s3, s50\ns_lshl_b32 s3, s3, 2\ns_add_u32 s3, s3, s6\ns_lshl_b32 s3, s3, 6\ns_add_u32 s3, s3, s7\ns_and_b32 s50, s5, 3\ns_lshl_b32 s3, s3, 2\ns_add_u32 s3, s3, s50\ns_lshl_b32 s3, s3, 3")
            A("v_lshl_add_u32 v129, v%d, 3, v%d\ns_mov_b32 exec_lo, 0x00ff00ff\ns_mov_b32 exec_hi, 0x00ff00ff\nv_lshl_add_u32 v%d, v129, 6, s3\ns_mov_b64 exec, -1" % (KQ, L7, MP))
            s.addbase(60, 38, "%d" % W_K)
            A("s_and_b32 s3, s5, 7\ns_lshl_b32 s3, s3, 1\ns_add_u32 s3, s3, s51\ns_lshl_b32 s3, s3, 6\ns_add_u32 s3, s3, s43\ns_mul_i32 s3, s3, %d\ns_lshl_b32 s43, s4, 1\ns_add_u32 s43, s43, s7\ns_lshl_b32 s50, s43, 7\ns_add_u32 s3, s3, s50\ns_add_u32 s3, s3, %d" % (SLAB, W_V)); s.addbase(30, 38, "s3")
            A("s_lshl_b32 s50, s6, 12\ns_add_u32 s50, s50, %d\nv_lshrrev_b32 v91, 3, v1\nv_mul_u32_u24 v91, %d, v91\nv_lshl_add_u32 v91, v%d, 4, v91\nv_add_u32 v90, s50, v243" % (VL, 2*SLAB, L7))
            A("s_lshl_b32 s3, s4, 12\ns_add_u32 s3, s3, %d" % W_C); s.addbase(58, 38, "s3")
            A("s_mov_b64 s[26:27], s[58:59]\nv_lshlrev_b32 v250, 7, v%d\ns_lshl_b32 s3, s4, 7\ns_add_u32 s3, s3, %d\nv_lshl_add_u32 v248, v%d, 12, s3" % (L7, W_C+2048, L7))
            A("s_lshl_b32 s3, s41, 10\ns_lshl_b32 s41, s6, 18\ns_add_u32 s3, s3, s41\ns_lshl_b32 s43, s43, 6\ns_add_u32 s3, s3, s43")
            A("v_lshl_add_u32 v234, v%d, 16, s3\nv_lshl_add_u32 v234, v%d, 2, v234\nv_add_u32 v239, 0x100000, v234" % (KQ, NF))
            A("s_mov_b32 s56, 0x4000\ns_mov_b32 s57, 0xc000\ns_mov_b32 s42, 0x8000")
        CFR = lambda p, k, jj, b: 176+16*(k >> 1)+8*p+4*(k & 1)+2*jj+b
        def cf(lo, hi):
            for i in range(lo, hi):
                A("v_cos_f32 v134, v132\nv_sin_f32 v135, v132")
                if i < 15: A("v_fmamk_f32 v132, v131, 0x41500000, v132" if i & 3 == 3 else "v_add_f32 v132, v132, v131")
                A("v_cvt_pk_bf16_f32 v%d, v134, v135" % CFR(i & 1, i >> 3, (i >> 2) & 1, (i >> 1) & 1))
        nb = int(cfg["nb"])
        def setup1():
            A("s_lshl_b32 s3, s6, 5\ns_bfe_u32 s41, s5, 0x10003\ns_add_u32 s3, s3, s41\nv_lshl_add_u32 v128, v%d, 1, s3\nv_cvt_f32_u32 v128, v128\nv_mul_f32 v131, 0x3b800000, v128" % NF)
            A("v_cvt_f32_u32 v129, v%d\nv_mul_f32 v129, 4.0, v129\nv_mul_f32 v132, v129, v131" % KQ)
            cf(0, nb)
        nd = int(cfg["nd"]) if "d" in cfg["seq"] else nb
        def setup1b():
            cf(nd, 16)
            A("s_bfe_u32 s41, s5, 0x10003\ns_lshl_b32 s3, s41, 4\ns_lshl_b32 s43, s41, 15\nv_bfe_i32 v133, v0, 0, 1\nv_and_b32 v133, 0x80008000, v133\nv_xor_b32 v133, s43, v133")
            for i in range(16): A("v_alignbit_b32 v%d, v%d, v%d, s3\nv_xor_b32 v%d, v133, v%d" % (192+i, 176+i, 176+i, 192+i, 192+i))
            A("s_lshl_b32 s41, s41, 31\ns_or_b32 s41, s41, 0x3f803f80\ns_mov_b64 exec, 0xffff\nv_mov_b32 v176, s41\ns_mov_b64 exec, -1")
        def setup2():
            A("s_mov_b64 s[12:13], s[34:35]\ns_mov_b32 s14, 0x200000\ns_mov_b32 s15, 0x20000")
            A("v_and_b32 v92, 58, v0\nv_lshlrev_b32 v88, 4, v92\nv_and_b32 v92, 20, v0\nv_lshl_add_u32 v88, v92, 2, v88\nv_and_b32 v92, 1, v0\nv_lshl_add_u32 v88, v92, 3, v88\nv_add_u32 v88, %d, v88\nv_xor_b32 v89, 64, v88" % VL)
            A("v_and_b32 v92, 0xfc, v0\nv_lshlrev_b32 v92, 12, v92\nv_and_b32 v93, 2, v%d\nv_xor_b32 v93, v93, v0\nv_and_b32 v93, 3, v93\nv_lshl_add_u32 v92, v93, 4, v92" % KQ)
            A("s_and_b32 s24, s5, 15\ns_lshl_b32 s24, s24, 3\ns_add_u32 s24, s24, s4\ns_lshl_b32 s24, s24, 1\ns_add_u32 s24, s24, s7\ns_lshl_b32 s24, s24, 6")
            RB = 34
            if cfg.get("g3"):
                RB = 52
                s.addbase(52, 38, "%d" % (0xc00000 + 128))
                if cfg["g3"] == "1": A("s_cmp_eq_u32 s4, 3\ns_cselect_b64 s[52:53], s[52:53], s[34:35]")
            s.addbase(52, RB, "s24"); s.addbase(54, 52, "0xffc00")
            A("v_bfe_u32 v93, v0, 2, 2\nv_and_b32 v93, 2, v93\nv_xor_b32 v93, v93, v%d\nv_lshlrev_b32 v93, 4, v93\nv_lshl_add_u32 v93, v%d, 6, v93\ns_lshl_b32 s41, s6, 11\nv_add_u32 v93, s41, v93" % (KQ, NF))
            A("s_bfe_u32 s3, s5, 0x20002\ns_lshl_b32 s3, s3, 1\ns_add_u32 s3, s3, s7\ns_lshl_b32 s3, s3, 6\nv_lshl_add_u32 v94, v%d, 2, s3" % NF)
        QF = 16
        def qload():
            for i in range(0 if cfg.get("noq") else 8): A("buffer_load_dword v%d, v%d, s[8:11], %s offen %s" % (4+i, 239 if i >> 2 else 234, qso[i & 3], cfg["qnt"]), "q")
        def wipe():
            s.jit("W")
            A("global_store_dwordx4 v44, v[52:55], s[22:23]\nglobal_store_dwordx4 v44, v[52:55], s[20:21] offset:1024", "wp")
        def wiped():
            A.wait(vm="wp")
            A("s_mov_b64 exec, 1\nglobal_store_dword v56, v57, s[26:27] offset:1024\ns_mov_b64 exec, -1")
        def post():
            A("s_xor_b32 s3, s6, 2\ns_or_b32 s3, s5, s3\ns_cbranch_scc1 L_b_postd\ns_mov_b64 exec, 0xff")
            A.raw("global_store_dword v248, v253, s[38:39] sc1")
            A("s_mov_b64 exec, -1\nL_b_postd:")
        steps = dict(a=setup0, b=setup1, e=setup1b, d=lambda: cf(nb, nd), c=setup2, q=qload, k=lambda: (A.wait(vm="vst"), s.stamp(14)), W=lambda: A.wait(vm="q"),
                     S=lambda: A("s_sleep %d" % int(cfg["ns"])), p=post, y=wipe, z=wiped, P=lambda: A("s_setprio 3"), O=lambda: A("s_setprio 0"))
        def cread():
            s.meet("L_b_cw", M_C, 244, 245, 246, 247, arrive=False)
            for f in range(15): A("ds_read_b128 %s, v243 offset:%d" % (vr(4+4*f, 4), CL+1024*f), "c")
        steps["r"] = cread
        for ch in cfg["seqE"]: steps[ch]()
        s.stamp(12)
        GW, GX = 144, 128
        A.wait(vm="gw")
        if cfg["t_gw"]:
            for p in range(4): A("ds_bpermute_b32 v%d, v218, v219 offset:%d" % (220+p, 4*p), "gb")
        if cfg.get("x_nog"): A("v_mov_b64 v[144:145], 0")
        else:
            for i in range(8): A("v_lshlrev_b32 v%d, 16, v%d\nv_and_b32 v%d, %s, v%d" % (GX+2*i, 224+i, GX+1+2*i, MASK, 224+i))
            A.wait(lg="gb")
            for p in range(4): A("v_lshlrev_b32 v%d, 16, v%d\nv_and_b32 v%d, %s, v%d" % (GW+2*p, 220+p, GW+1+2*p, MASK, 220+p))
            for i in range(8): A("v_pk_mul_f32 %s, %s, %s" % (vr(GX+2*i, 2), vr(GX+2*i, 2), vr(GW+2*(i & 3), 2)))
            for i in range(16): A("v_cvt_pk_bf16_f32 v%d, 0, v%d" % (GX+i, GX+i))
            for i in range(4): A("v_pk_add_f32 %s, %s, %s" % (vr(GX+4*i, 2), vr(GX+4*i, 2), vr(GX+2+4*i, 2)))
            for i in range(2): A("v_pk_add_f32 %s, %s, %s" % (vr(GX+8*i, 2), vr(GX+8*i, 2), vr(GX+4+8*i, 2)))
            for i in range(2): A("v_add_f32 v%d, v%d, v%d" % (GW+i, GX+8*i, GX+1+8*i))
        perm = lambda jj, c: A("v_perm_b32 v%d, v%d, v%d, s%d" % (96+2*c+jj, XR(2*jj+1)+(c >> 1), XR(2*jj)+(c >> 1), 46+(c & 1)))
        for n, sh in enumerate((8, 4, 2, 1)):
            perm(0, 2*n); perm(0, 2*n+1)
            for r in range(2): A("v_add_f32_dpp v%d, v%d, v%d row_ror:%d %s" % (GW+r, GW+r, GW+r, sh, DPP))
        A("s_lshl_b32 s3, s6, 2\nv_lshl_add_u32 v146, v%d, 5, s3\nv_lshlrev_b32 v255, 4, v%d" % (KQ, L7))
        A("ds_write_b32 v146, v144 offset:%d\nds_write_b32 v146, v145 offset:%d" % (GL, GL+16))
        if int(cfg["prioB"]): A("s_setprio %d" % int(cfg["prioB"]))
        mfA = lambda c: A("v_mfma_f32_16x16x16_bf16 %s, %s, v[4:5], 0" % (vr(128+4*c, 4), vr(96+2*c, 2)))
        def outA(c):
            A("v_cvt_pk_bf16_f32 v%d, v%d, v%d\nv_cvt_pk_bf16_f32 v%d, v%d, v%d" % (160+2*c, 128+4*c, 129+4*c, 161+2*c, 130+4*c, 131+4*c))
            A("ds_write_b64 v2, %s offset:%d" % (vr(160+2*c, 2), X1+16*c))
        A.wait(lg="c"); s.stamp(2)
        for op in "p0 p1 p2 m0 p3 p4 m1 p5 p6 m2 p7 m3 m4 o0 m5 o1 m6 o2 m7 o3 o4 o5 o6 o7".split():
            {"p": lambda c: perm(1, c), "m": mfA, "o": outA}[op[0]](int(op[1]))
        s.meet("L_b_xw", M_X, 244, 245, 246, 247)
        for ri in range(2):
            for ks in range(2):
                A("ds_read_b128 %s, v3 offset:%d" % (vr(64+8*ri+4*ks, 4), X1+ri*2064+ks*512), ("a", ri, ks))
        A("ds_read_b128 v[252:255], v255 offset:%d" % GL, "gp")
        s.stamp(3)
        A("v_and_b32 v160, 28, v0\nv_lshlrev_b32 v238, 6, v160\nv_and_b32 v161, 3, v0\nv_lshl_add_u32 v238, v161, 4, v238")
        A("v_and_b32 v161, 32, v0\nv_lshl_add_u32 v238, v161, 1, v238\ns_and_b32 s3, s40, 4\ns_lshl_b32 s3, s3, 4\nv_xor_b32 v238, s3, v238")
        A("v_add_u32 v219, v160, v161\ns_lshl_b32 s3, s6, 2\ns_add_u32 s3, s3, %d\nv_lshl_add_u32 v219, v219, 3, s3" % KL)
        A("s_lshl_b32 s3, s7, 2\ns_add_u32 s3, s3, s6\ns_lshl_b32 s3, s3, 7\ns_add_u32 s43, s3, s40\ns_mul_i32 s3, s43, %d\ns_add_u32 s3, s3, %d" % (SLAB, W_V))
        s.addbase(28, 38, "s3")
        RE, IM = 96, 112
        M32 = "v_mfma_f32_32x32x16_bf16 %s, %s, %s, %s"
        shadow = []
        if cfg["csh"]:
            keep = A.L; A.L = []; setup2(); A.peep(); body = A.L; A.L = keep
            cut = [len(body)*k//4 for k in range(5)]
            for k in range(1, 4):
                while body[cut[k]].op.startswith(("s_addc", "s_cselect")): cut[k] += 1
            shadow = [body[cut[k]:cut[k+1]] for k in range(4)]
        for n in range(4):
            ri, ks = n >> 1, n & 1
            A.wait(lg=("a", ri, ks))
            A(M32 % (vr(RE, 16), vr(64+8*ri+4*ks, 4), vr((8 if ri == 0 else 16)+4*ks, 4), vr(RE, 16) if n else "0"))
            if shadow: A.L += shadow[n]
        muls = []
        for o in range(16):
            muls.append("v_mul_f32 v%d, v%d, v%d" % (128+o, RE+o, 32+(o & 7)))
            muls.append("v_mul_f32_e64 v%d, -v%d, v%d" % (144+o, RE+o, 40+(o & 7)))
        for n in range(4):
            ri, ks = n >> 1, n & 1
            A(M32 % (vr(IM, 16), vr(64+8*ri+4*ks, 4), vr((24 if ri == 0 else 8)+4*ks, 4), vr(IM, 16) if n else "0"))
            if n == 0:
                A.wait(lg="gp")
                A("v_add_f32 v252, v252, v254\nv_add_f32 v253, v253, v255\nv_add_f32 v252, v252, v253")
                A("v_cvt_pk_bf16_f32 v252, 0, v252\nv_mul_f32 v252, 0xbfb8aa3b, v252\nv_exp_f32 v252, v252\nv_add_f32 v252, 1.0, v252\nv_rcp_f32 v252, v252")
                A("v_cvt_pk_bf16_f32 v252, 0, v252\nv_sub_f32 v254, 1.0, v252\nv_cvt_pk_bf16_f32 v252, v254, v252")
            for _ in range((0, 6, 6, 20)[n]): A(muls.pop(0))
        for o in range(0, 16, 2):
            A("v_pk_fma_f32 %s, %s, %s, %s" % (vr(128+o, 2), vr(IM+o, 2), vr(40+(o & 7), 2), vr(128+o, 2)))
            A("v_pk_fma_f32 %s, %s, %s, %s" % (vr(144+o, 2), vr(IM+o, 2), vr(32+(o & 7), 2), vr(144+o, 2)))
        def cv(n):
            row, ri = n >> 1, n & 1
            for p in range(4):
                o = 128+16*ri+8*row+2*p
                A("v_cvt_pk_bf16_f32 v%d, v%d, v%d" % (160+4*n+p, o, o+1))
        cv(0); cv(1)
        for n in range(4):
            A(M32 % (vr(64, 16), vr(160+4*n, 4), vr(48+4*n, 4), vr(64, 16) if n else "0"))
            if n < 2: cv(n+2)
        A("s_and_b32 s41, s40, 1\ns_lshl_b32 s3, s7, 1\ns_add_u32 s3, s3, s41\ns_lshl_b32 s3, s3, 6\ns_lshr_b32 s41, s40, 1\ns_add_u32 s3, s3, s41\ns_lshl_b32 s3, s3, 6\nv_and_b32 v255, 56, v0\nv_lshl_add_u32 v235, v%d, 3, s3\nv_lshl_add_u32 v235, v255, 11, v235" % L7)
        A("s_nop 1\ns_cmp_lg_u32 s6, 1\ns_cbranch_scc1 L_b_hd")
        A("s_sub_u32 s3, s63, s40\nv_bfe_u32 v235, v0, 2, 1\nv_mul_u32_u24 v235, s3, v235\nv_add_u32 v235, s40, v235\nv_and_b32 v255, 15, v235\nv_and_b32 v235, 0xf0, v235\nv_lshlrev_b32 v235, 2, v235\nv_lshl_add_u32 v235, v255, 11, v235")
        A("v_and_b32 v255, 10, v0\nv_lshl_add_u32 v235, v255, 2, v235\nv_and_b32 v255, 1, v0\nv_lshl_add_u32 v235, v255, 4, v235\ns_lshl_b32 s3, s7, 10\ns_add_u32 s3, s3, %d\nv_add_u32 v235, s3, v235\nL_b_hd:" % W_G)
        for p in range(8): A("v_cvt_pk_bf16_f32 v%d, v%d, v%d" % (80+p, 64+2*p, 65+2*p))
        for b in range(2):
            A("s_mov_b32 vcc_lo, 0x%x\ns_mov_b32 vcc_hi, 0x%x" % ((0x33333333 << 2*b,)*2))
            for p in range(4): A("v_cndmask_b32_dpp v%d, v%d, v%d, vcc quad_perm:[2,3,0,1] %s" % (208+4*b+p, 84-4*b+p, 80+4*b+p, DPP))
        for p in range(8): A("v_dot2_u32_u16 v%d, v%d, v%d, %s" % (216+(p >> 2), 208+p, 208+p, "v%d" % (216+(p >> 2)) if p & 3 else "0"))
        for qp in ("[1,0,3,2]", "[2,3,0,1]"):
            for b in range(2): A("v_add_u32_dpp v%d, v%d, v%d quad_perm:%s %s" % (216+b, 216+b, 216+b, qp, DPP))
        A("ds_write2_b32 v219, v216, v217 offset0:0 offset1:4\nv_lshlrev_b32 v219, 2, v1")
        qe = cfg["qe"]
        if qe: A("ds_write_b8 v244, v245 offset:%d" % M_K)
        if int(cfg["prioB"]): A("s_setprio 0")
        s.stamp(4)
        seq0, seq1, seq2 = cfg["seq"].split(".")
        if cfg["csh"]: steps["c"] = lambda: None
        allseq = cfg["seqE"] + seq0 + seq1 + seq2
        assert all(allseq.count(ch) == 1 for ch in "abecq" + ("xy" if cfg["inb"] is True else "")), allseq
        assert "a" in cfg["seqE"] + seq0 and "c" in cfg["seqE"] + seq0 and not set("xyz") & set(cfg["seqE"]) and "y" not in seq0 and "q" not in cfg["seqE"] + seq0
        assert allseq.index("b") < allseq.index("e") and (("b" in cfg["seqE"]) == ("e" in cfg["seqE"])) and (cfg["inb"] is not True or allseq.index("x") < allseq.index("y"))
        for ch in seq0: steps[ch]()
        for i in range(3): A("v_mov_b64 v[%d:%d], v[%d:%d]" % (40+2*i, 41+2*i, 88+2*i, 89+2*i))
        A("v_mov_b32 v46, v94")
        A("s_getreg_b32 s45, hwreg(HW_REG_XCC_ID, 0, 4)\ns_waitcnt lgkmcnt(0)")
        if cfg["white"]:
            assert cfg["vreg"] and int(cfg["hm"])
            A("s_branch L_b_tw\nL_b_ts:\ns_sleep 1\nL_b_tw:\nds_read_b32 v146, v246 offset:%d\nds_read_b32 v253, v246 offset:%d\ns_waitcnt lgkmcnt(0)\nv_cmp_eq_u32 vcc, 0, v146\ns_cbranch_vccnz L_b_ts" % (M_W, M_TAG))
            for p in range(8): A("v_xor_b32 v%d, v253, v%d" % (208+p, 208+p))
            A("v_readfirstlane_b32 s44, v253\ns_add_u32 s45, s45, 1\ns_add_u32 s45, s45, s44")
        if "y" in cfg["seq"]:
            A("v_mov_b64 v[52:53], -1\nv_mov_b64 v[54:55], -1\ns_lshl_b32 s3, s5, 2\ns_add_u32 s3, s3, s6\ns_lshl_b32 s3, s3, 2\nv_mov_b32 v56, s3\nv_mov_b32 v57, s45\ns_mov_b64 s[22:23], s[52:53]\ns_mov_b64 s[20:21], s[54:55]")
        if qe:
            A("s_cmp_eq_u32 s6, 1\ns_cselect_b32 s48, 0xffff, 0\ns_mov_b32 s49, 0\ns_cmp_lg_u32 s6, 0\ns_cbranch_scc1 L_b_kd")
            s.meet("L_b_kw", M_K, 244, 245, 246, 247, arrive=False)
            A("ds_read_b32 v216, v219 offset:%d\nds_read_b32 v217, v219 offset:%d\ns_mov_b64 s[48:49], -1\ns_waitcnt lgkmcnt(0)\nv_add_u32 v252, v216, v217\nL_b_kd:" % (KL, KL+256))
        if int(cfg["prioD"]): A("s_setprio %d" % int(cfg["prioD"]))
        if cfg.get("bsleep"): A("s_sleep %d" % int(cfg["bsleep"]))
        s.stamp(13)
        A("s_barrier")
        if cfg.get("vlate") == "1": A("s_barrier")
        s.jit("V")
        late = "D" in cfg.get("jit", "")
        for io in range(0 if cfg.get("x_novst") else (1 if late else 2)): A("global_store_dwordx4 v%d, %s, s[28:29] offset:%d sc1" % (VS, vr(208+4*io, 4), 128*io), "vst")
        s.jit("K")
        assert cfg["white"]
        if qe:
            A("s_cmp_ge_u32 s6, 2\ns_cbranch_scc1 L_b_ng\ns_mov_b64 exec, s[48:49]")
            A.raw("global_store_dwordx2 v235, v[252:253], s[60:61] sc1")
            A("s_mov_b64 exec, -1\nL_b_ng:")
            post()
            A("ds_read_b32 v147, v246 offset:%d\ns_waitcnt lgkmcnt(0)" % (M_TAG+4))
            if qe == "1": qload(); steps["q"] = lambda: None
            A("v_cmp_ne_u32 vcc, 0, v147\ns_cbranch_vccnz L_b_far\nL_b_fard:")
        else:
            A("ds_read_b32 v147, v246 offset:%d\nds_read_b32 v216, v219 offset:%d\nds_read_b32 v217, v219 offset:%d" % (M_TAG+4, KL, KL+256))
            if "p" not in cfg["seq"]: post()
            A("s_cmp_ge_u32 s6, 2\ns_waitcnt lgkmcnt(0)\nv_cmp_ne_u32 vcc, 0, v147\ns_cbranch_scc1 L_b_ng")
            A("s_mov_b64 exec, 0xffff\ns_cmp_eq_u32 s6, 1\ns_cbranch_scc1 L_b_g1\ns_mov_b64 exec, -1\nv_add_u32 v252, v216, v217\nL_b_g1:")
            A.raw("global_store_dwordx2 v235, v[252:253], s[60:61] sc1")
            A("L_b_ng:")
            A("s_mov_b64 exec, -1\ns_cbranch_vccnz L_b_far\nL_b_fard:")
        def t():
            A("L_b_far:\ns_mov_b32 s45, s44\ns_add_u32 s24, s24, %d" % W_R2)
            s.addbase(52, 38, "s24"); s.addbase(54, 52, "0xffc00")
            s.addbase(58, 58, "%d" % FARC)
            A("s_branch L_b_fard")
        s.side(t)
        s.stamp(5)
        if not cfg.get("vlate"): A("s_barrier")
        if late:
            s.jit("D"); A("global_store_dwordx4 v%d, v[212:215], s[28:29] offset:128 sc1" % VS, "vst")
        pl = "global_load_dword v147, v250, s[26:27] offset:2048 sc1"
        steps["L"] = lambda: (s.stamp(11), A(pl))
        if cfg.get("one"): steps["L"] = lambda: (s.stamp(11), A("s_cmp_lg_u32 s6, 3\ns_cbranch_scc1 L_b_nl"), A.raw(pl), A("L_b_nl:"))
        A("s_mov_b32 s98, 0")
        gl = "global_load_dwordx2 v[144:145], v%d, s[60:61] sc1" % MP
        steps["g"] = lambda: A(gl)
        if "g" not in seq1: A("v_not_b32 v145, v253")
        for i in range(1, 4): A("v_add_u32 v%d, %d, v43" % (48+i, 16*SLAB*i))
        for ch in (seq1 if "L" in seq1 else seq1 + "L"): steps[ch]()
        if cfg.get("one"):
            A("s_cmp_lg_u32 s6, 3\ns_cbranch_scc1 L_b_ow")
        if cfg["pw"]:
            assert "Lg" in seq1 and "q" not in seq1.split("Lg")[1]
            A("s_mov_b32 s3, 0\ns_waitcnt vmcnt(1)\nv_cmp_ne_u32 vcc, s44, v147\ns_cbranch_vccz L_b_fast\nL_b_pv:\ns_waitcnt vmcnt(0)")
        else: A("s_mov_b32 s3, 0\nL_b_pv:\ns_waitcnt vmcnt(0)")
        A("v_cmp_ne_u32 vcc, s44, v147\ns_cbranch_vccz L_b_pv_ok\ns_mov_b64 exec, vcc\ns_sleep %d" % int(cfg["vsleep"]))
        A(pl)
        A("s_add_u32 s3, s3, 1\ns_cmp_lt_u32 s3, %d\ns_cbranch_scc1 L_b_pv\ns_waitcnt vmcnt(0)\nL_b_pv_ok:\ns_mov_b64 exec, -1" % SPIN)
        if cfg.get("one"):
            A("ds_write_b32 v246, v245 offset:%d\ns_branch L_b_od\nL_b_os:\ns_sleep 1\nL_b_ow:\nds_read_b32 v247, v246 offset:%d\ns_waitcnt lgkmcnt(0)\nv_cmp_eq_u32 vcc, 0, v247\ns_cbranch_vccnz L_b_os\ns_waitcnt vmcnt(0)\nL_b_od:" % (UL+32, UL+32))
        s.stamp(6)
        if cfg["inb"] is True and "z" not in cfg["seq"]: wiped()
        if cfg.get("x_nov"): A("s_branch L_b_vok")
        A("L_b_vf:\nv_cmp_ne_u32 vcc, s44, v145\ns_cbranch_vccz L_b_gok\ns_mov_b64 exec, vcc")
        A(gl, "g")
        A("s_mov_b64 exec, -1\nL_b_fast:\nL_b_gok:")
        A("s_or_b32 s43, s2, s6\ns_cbranch_scc1 L_b_epd\ns_mov_b64 exec, 1")
        A.raw("global_store_dword v246, v253, s[38:39] sc1")
        A("s_mov_b64 exec, -1\nL_b_epd:")
        vreg = cfg["vreg"]
        if not vreg: A("s_mov_b32 m0, s50")
        for i in range(4):
            a = 48+i if i else 43
            if vreg: A("global_load_dwordx4 %s, v%d, s[30:31] sc1" % (vr(64+4*i, 4), a), ("vd", i))
            else:
                if i: A("s_add_u32 m0, m0, 1024")
                A("global_load_lds_dwordx4 v%d, s[30:31] sc1" % a, ("vd", i))
        if seq2:
            steps["M"] = lambda: s.meet("L_b_mw", M_W, 244, 245, 246, 247)
            A("s_cmp_lg_u32 s98, 0\ns_cbranch_scc1 L_b_s2")
            for ch in seq2: steps[ch]()
            A("L_b_s2d:")
            s.tail.append("L_b_s2:\ns_waitcnt vmcnt(0)\ns_branch L_b_s2d")
        def qunp():
            for i in range(8): A("v_lshlrev_b32 v%d, 16, v%d\nv_and_b32 v%d, %s, v%d" % (QF+2*i, 4+i, QF+2*i+1, MASK, 4+i))
        def gq():
            A("v_lshlrev_b32 v149, 16, v144\nv_and_b32 v148, %s, v144" % MASK)
            if "q" in seq2: A.wait(vm="q"); qunp()
            for i in range(16): A("v_mul_f32_dpp v%d, v148, v%d row_newbcast:%d %s" % (QF+i, QF+i, 8+(i >> 1), DPP))
        def gq2():
            qunp()
            for i in range(16): A("v_mul_f32_dpp v%d, v148, v%d row_newbcast:%d %s" % (QF+i, QF+i, 8+(i >> 1), DPP))
        if "q" not in seq2: qunp()
        A("v_mov_b32 v146, 0")
        A.wait(vm="g")
        if cfg.get("dbg"): s.stamp(2)
        A("v_cmp_ne_u32 s[48:49], s44, v145\ns_mov_b32 exec_lo, 0x00ff00ff\ns_mov_b32 exec_hi, 0x00ff00ff\nv_sub_u32 v146, 0, v144\ns_mov_b64 exec, -1")
        if cfg["gqat"] == "0": gq()
        if cfg["gqat"] == "3": A("v_lshlrev_b32 v149, 16, v144\nv_and_b32 v148, %s, v144" % MASK)
        def dots(i):
            A.wait(lg=("rb", i))
            if cfg.get("nodot"): return
            for p in range(4): A("v_dot2_u32_u16 v146, v%d, v%d, v146" % (64+4*i+p, 64+4*i+p))
        for i in range(4):
            A.wait(vm=("vd", i))
            if i == 3 and cfg.get("dbg"): s.stamp(3)
            if vreg:
                if cfg["white"]:
                    for p in range(4): A("v_xor_b32 v%d, v253, v%d" % (64+4*i+p, 64+4*i+p))
                A("ds_write_b128 v42, %s offset:%d" % (vr(64+4*i, 4), 1024*i)); dots(i)
            else: A("ds_read_b128 %s, v42 offset:%d" % (vr(64+4*i, 4), 1024*i), ("rb", i))
        if not vreg:
            for i in range(4): dots(i)
        for sh in (8, 4, 2, 1): A("v_add_u32_dpp v146, v146, v146 row_ror:%d %s" % (sh, DPP))
        A("v_readlane_b32 s40, v146, 0\nv_readlane_b32 s41, v146, 16\nv_readlane_b32 s43, v146, 32\nv_readlane_b32 s51, v146, 48")
        A("s_add_u32 s40, s40, s41\ns_add_u32 s43, s43, s51\ns_add_u32 s40, s40, s43\n" + ("" if cfg.get("nodot") else "s_or_b32 s48, s48, s40\n") + "s_or_b32 s48, s48, s49\ns_cbranch_scc1 L_b_vr\nL_b_vok:")
        s.tail.append("L_b_vr:\ns_add_u32 s98, s98, 1\ns_cmp_lt_u32 s98, %d\ns_cbranch_scc0 L_b_vok\ns_sleep 2\ns_branch L_b_vf" % (SPIN//16))
        s.stamp(7)
        if cfg.get("dbg"): A("s_waitcnt lgkmcnt(0)\ns_add_u32 s88, s64, s98\ns_mov_b32 s89, s65")
        A("ds_write_b8 v244, v245 offset:%d" % M_V)
        A("s_lshl_b32 s43, s6, 11\ns_add_u32 m0, s43, %d" % YL)
        if int(cfg["prioD"]): A("s_setprio %d" % int(cfg.get("prioE", 0)))
        if cfg["gqat"] == "1": gq()
        A(("L_b_vs:" if cfg.get("nosl") else "s_branch L_b_vw\nL_b_vs:\ns_sleep 1") + "\nL_b_vw:\nds_read2_b32 v[54:55], v246 offset0:%d offset1:%d\ns_waitcnt lgkmcnt(0)\nv_and_b32 v54, v54, v55\nv_cmp_ne_u32 vcc, 0x01010101, v54\ns_cbranch_vccnz L_b_vs" % ((M_V if cfg.get("x_noy") else M_A)//4, M_V//4))
        ydma = ["global_load_lds_dwordx4 v44, s[52:53] sc1", "global_load_lds_dwordx4 v44, s[54:55] offset:1024 sc1"]
        VF = lambda n: 64+4*n
        def trd(n):
            for jj in range(2):
                A("ds_read_b64_tr_b16 %s, v%d offset:%d" % (vr(VF(n)+2*jj, 2), 40+(n >> 3), 2048*(n & 3)+1024*jj+8192*((n >> 2) & 1)), ("t", n))
        def comb(c):
            o = []
            for r in range(4):
                e, d = 128+8*c+r, 132+8*c+r
                o += ["v_add_f32 v%d, v%d, v%d" % (160+2*r+c, e, d), "v_sub_f32 v%d, v%d, v%d" % (168+2*r+c, e, d)]
            for i in range(8): o.append("v_mul_f32_dpp v%d, v149, v%d row_newbcast:%d %s" % (160+2*i+c, 160+2*i+c, 8+i, DPP))
            return o
        ahead = int(cfg["ahead"]); ypre = int(cfg["ypre"])
        d2 = cfg.get("dbg") == "2"
        if d2: s.stamp(1)
        for n in range(ahead): trd(n)
        if cfg["gqat"] == "2": gq()
        c0 = comb(0)
        for n in range(16):
            if n >= 9 or n % 2 == 0: A.wait(lg=("t", n if n >= 8 else n+1))
            acc = vr(128+4*(n >> 2), 4)
            A("v_mfma_f32_16x16x32_bf16 %s, %s, %s, %s" % (acc, vr(CFR((n >> 2) & 1, n & 3, 0, 0), 4), vr(VF(n), 4), acc if n & 3 else "0"))
            if d2 and n in (0, 8, 15): s.stamp({0: 4, 8: 5, 15: 11}[n])
            if n+ahead < 16: trd(n+ahead)
            if n >= 11:
                for _ in range(2): A(c0.pop(0))
            if cfg["inb"] == "N":
                if n == int(cfg['y0']): A("global_load_dword v47, v46, s[58:59] offset:512 sc1")
                if n == ypre:
                    A("s_waitcnt vmcnt(0)\nv_cmp_ne_u32 s[48:49], s45, v47")
                    for l in ydma: A(l)
            elif n == ypre:
                for l in ydma: A(l)
        yrd = lambda pp: A("ds_read_b128 %s, v45 offset:%d" % (vr(56+4*pp, 4), YL+1024*pp), ("y", pp))
        def yflags():
            A("L_b_yf:\ns_mov_b32 s3, 0\nL_b_py:\nglobal_load_dword v47, v46, s[58:59] offset:512 sc1\ns_waitcnt vmcnt(0)\nv_cmp_ne_u32 vcc, s45, v47\ns_cbranch_vccz L_b_py_ok")
            A("s_add_u32 s3, s3, 1\ns_cmp_lt_u32 s3, %d\ns_cbranch_scc1 L_b_py\nL_b_py_ok:\ns_waitcnt lgkmcnt(0)" % SPIN)
            for l in ydma: A(l)
            A("s_waitcnt vmcnt(0)"); yrd(0); yrd(1)
            A("s_waitcnt lgkmcnt(0)\ns_branch L_b_yok")
        s.side(yflags)
        for l in c0: A(l)
        if cfg["gqat"] == "3": gq2()
        A("s_mov_b32 s97, 0\ns_waitcnt vmcnt(0)"); yrd(0); yrd(1)
        if d2: s.stamp(13)
        for l in comb(1): A(l)
        s.stamp(8)
        if cfg["inb"] == "N": A("s_cmp_lg_u64 s[48:49], 0\ns_cbranch_scc1 L_b_yf\ns_waitcnt lgkmcnt(0)\nL_b_yok:")
        else:
            A("s_cmp_eq_u32 s44, s45\ns_cbranch_scc1 L_b_yf\nL_b_yc:\ns_waitcnt lgkmcnt(0)")
            A("v_max3_u32 v47, v56, v57, v58\nv_max3_u32 v48, v59, v60, v61\nv_max3_u32 v47, v47, v62, v63\nv_max_u32 v47, v47, v48\nv_cmp_eq_u32 vcc, -1, v47\n" + ("s_branch L_b_yok" if cfg.get("x_noy") else "s_cbranch_vccz L_b_yok"))
            for l in ydma: A(l)
            A("s_add_u32 s97, s97, 1\ns_cmp_ge_u32 s97, %d\ns_cbranch_scc1 L_b_yf\ns_waitcnt vmcnt(0)" % NEAR_TRIES); yrd(0); yrd(1)
            A("s_branch L_b_yc\nL_b_yok:")
        A.reset_counters()
        if cfg.get("tsleep"): A("s_sleep %d" % int(cfg["tsleep"]))
        if d2: s.stamp(9)
        elif cfg.get("dbg"): A("s_add_u32 s82, s64, s97\ns_mov_b32 s83, s65")
        un = lambda i: A("v_lshlrev_b32 v%d, 16, v%d\nv_and_b32 v%d, %s, v%d" % (72+2*i, 56+i, 73+2*i, MASK, 56+i))
        fm = lambda i: A("v_pk_fma_f32 %s, %s, %s, %s" % (vr(160+2*i, 2), vr(QF+2*i, 2), vr(72+2*i, 2), vr(160+2*i, 2)))
        cv2 = lambda i: A("v_cvt_pk_bf16_f32 v%d, v%d, v%d" % (96+i, 160+2*i, 161+2*i))
        st = lambda i: A("buffer_store_dword v%d, v%d, s[12:15], %s offen %s" % (96+i, 239 if i >> 2 else 234, qso[i & 3], cfg["ont"].replace("_", " ")))
        if cfg["fin"] == "1":
            for i in range(11):
                if 0 <= i-3 < 8: st(i-3)
                if 0 <= i-2 < 8: cv2(i-2)
                if 0 <= i-1 < 8: fm(i-1)
                if i < 8: un(i)
        elif cfg["fin"] == "2":
            for f in (un, fm, cv2, st):
                for i in range(8): f(i)
        else:
            for pp in range(2):
                A.wait(lg=("y", pp))
                if pp: s.stamp(10)
                for r in range(4):
                    o = 8*pp+2*r
                    A("v_lshlrev_b32 v%d, 16, v%d\nv_and_b32 v%d, %s, v%d" % (72+o, 56+4*pp+r, 73+o, MASK, 56+4*pp+r))
                    A("v_pk_fma_f32 %s, %s, %s, %s" % (vr(160+o, 2), vr(QF+o, 2), vr(72+o, 2), vr(160+o, 2)))
                    A("v_cvt_pk_bf16_f32 v%d, v%d, v%d" % (96+4*pp+r, 160+o, 161+o))
                    A("buffer_store_dword v%d, v%d, s[12:15], %s offen %s" % (96+4*pp+r, 239 if pp else 234, qso[r], cfg["ont"].replace("_", " ")))
        if d2: s.stamp(14)
        s.stamps_out(0, 16)
        A("L_end:\ns_endpgm")

    def build(s):
        A = s.A
        A.raw(HEADER.strip("\n"))
        A.raw("; @launch grid=(256,1,1) block=(512,1,1) lds=%d" % LDS)
        A.raw('.amdgcn_target "amdgcn-amd-amdhsa--gfx950"\n.text\n.globl %s\n.p2align 8\n.type %s,@function\n%s:' % (KN, KN, KN))
        s.prologue()
        s.roleB_head(); A("s_branch L_roleB"); s.roleA(); A("L_roleB:"); s.roleB()
        for t in s.tail: A(t)
        A.raw(".p2align 8\n.fill 1536, 4, 0xbf810000")
        A.raw('.section .rodata,"a"\n.p2align 6\n.amdhsa_kernel %s\n.amdhsa_next_free_vgpr 256\n.amdhsa_next_free_sgpr 102\n.amdhsa_accum_offset 256\n.amdhsa_group_segment_fixed_size 0\n.amdhsa_kernarg_size 120\n.amdhsa_user_sgpr_count 2\n.amdhsa_user_sgpr_kernarg_segment_ptr 1\n.amdhsa_system_sgpr_workgroup_id_x 1\n.end_amdhsa_kernel' % KN)
        return A.finish()

if __name__ == "__main__":
    out = sys.argv[1]
    cfg = {}
    for a in sys.argv[2:]:
        k, v = a.split("=")
        cfg[k] = {"True": True, "False": False}.get(v, v)
    g = G(**cfg)
    txt = g.build()
    if int(g.cfg.get("al", 0)):
        from align import align
        txt, nf, npad = align(txt, int(g.cfg["al"])); print("aligned runs", nf, "pads", npad, file=sys.stderr)
    open(out, "w").write(txt)
    print(out, "nops inserted", g.A.nops, file=sys.stderr)
    import subprocess, os
    r = subprocess.run([sys.executable, "cdna_unwritten_srd_check.py", out], capture_output=True, text=True)
    if r.returncode != 0:
        print(r.stdout, r.stderr); os.remove(out); sys.exit(1)
```
